```python
import torch

def _softmax(x, axis=-1):
    return torch.softmax(x, dim=axis)
def _gelu(x):
    return torch.nn.functional.gelu(x, approximate="tanh")
def _silu(x):
    return torch.nn.functional.silu(x)
def _sigmoid(x):
    return torch.sigmoid(x)
def _layernorm(x, axis=-1, eps=1e-5):
    m = x.mean(dim=axis, keepdim=True)
    v = x.var(dim=axis, keepdim=True, unbiased=False)
    return (x - m) / torch.sqrt(v + eps)
def _scatter_add(tgt, idx, src, axis=0):
    return tgt.clone().index_add_(axis, idx, src)
def _segment_sum(src, seg, n):
    out = torch.zeros((n,) + src.shape[1:], dtype=src.dtype)
    return out.index_add_(0, seg, src)
def _pad(x, pw):
    flat = tuple(v for pair in reversed(pw) for v in pair)
    return torch.nn.functional.pad(x, flat)

kernel_name = 'recurrent_scan__sliding_local_dilated__glu_gated_geglu__prompt'

def setup_inputs():

    _w = (lambda a: (lambda t: t.to(torch.bfloat16) if t.is_floating_point() else t)(torch.as_tensor(a)))
    def _A_setup():
        B, S, D = 1, 2048, 512
        return {
            "x": _w((lambda *s: torch.randn(*s, dtype=torch.bfloat16) * 0.05)(B, S, D)),
            "wqkv": _w((lambda *s: torch.randn(*s, dtype=torch.bfloat16) * 0.2)(D, 3 * D)),
            "wo": _w((lambda *s: torch.randn(*s, dtype=torch.bfloat16) * 0.2)(D, D)),
        }
    _A_in = _A_setup()

    def _B_setup():
        B, S, Dm, Df = 1, 2048, 512, 1792
        return {
            "x": _w((lambda *s: torch.randn(*s, dtype=torch.bfloat16) * 0.05)(B, S, Dm)),
            "w_gate": _w((lambda *s: torch.randn(*s, dtype=torch.bfloat16) * 0.1)(Dm, Df) * (Dm ** -0.5)),
            "w_up": _w((lambda *s: torch.randn(*s, dtype=torch.bfloat16) * 0.1)(Dm, Df) * (Dm ** -0.5)),
            "w_down": _w((lambda *s: torch.randn(*s, dtype=torch.bfloat16) * 0.1)(Df, Dm) * (Df ** -0.5)),
        }
    _B_in = _B_setup()

    return {
        "A_x": _A_in["x"],
        "A_wqkv": _A_in["wqkv"],
        "A_wo": _A_in["wo"],
        "B_x": _B_in["x"],
        "B_w_gate": _B_in["w_gate"],
        "B_w_up": _B_in["w_up"],
        "B_w_down": _B_in["w_down"],
    }

def reference(A_x, A_wqkv, A_wo, B_x, B_w_gate, B_w_up, B_w_down):
    def _A_ref(x, wqkv, wo):
        B, S, D = x.shape
        H = 32; Dh = D // H
        W, dil = 8, 2
        qkv = (lambda x, *d: x.permute(*d))((x @ wqkv).reshape(B, S, 3, H, Dh), 2, 0, 3, 1, 4)
        q, k, v = qkv[0], qkv[1], qkv[2]
        scale = Dh ** -0.5
        pos = torch.arange(S)
        off = torch.arange(W) * dil
        idx = pos[:, None] - off[None, :]
        mask = idx >= 0
        idx_c = torch.where(mask, idx, 0).reshape(-1)
        kg = k[:, :, idx_c, :].reshape(B, H, S, W, Dh)
        vg = v[:, :, idx_c, :].reshape(B, H, S, W, Dh)
        logits = torch.einsum("bhsd,bhswd->bhsw", q, kg) * scale
        logits = torch.where(mask[None, None, :, :], logits, -1e9)
        attn = _softmax(logits, axis=-1)
        o = torch.einsum("bhsw,bhswd->bhsd", attn, vg)
        return (lambda x, *d: x.permute(*d))(o, 0, 2, 1, 3).reshape(B, S, D) @ wo

    def _B_ref(x, w_gate, w_up, w_down):
        g = torch.einsum("bsd,df->bsf", x, w_gate)
        u = torch.einsum("bsd,df->bsf", x, w_up)
        h = _gelu(g) * u
        return torch.einsum("bsf,fd->bsd", h, w_down)

    x = A_x
    xn = _layernorm(x, axis=-1)
    s = _A_ref(xn, A_wqkv, A_wo)
    g = _silu(_B_ref(xn, B_w_gate, B_w_up, B_w_down))
    return x + s * g
```

```python
import struct


def f2u(x):
    return struct.unpack("<I", struct.pack("<f", x))[0]


def hexf(x):
    return "0x%08x" % f2u(x)


def v(i, n=1):
    return "v%d" % i if n == 1 else "v[%d:%d]" % (i, i + n - 1)


def s(i, n=1):
    return "s%d" % i if n == 1 else "s[%d:%d]" % (i, i + n - 1)


class Asm:
    def __init__(self):
        self.lines = []
        self.uid = 0

    def __call__(self, text):
        for ln in text.split("\n"):
            self.lines.append("  " + ln.strip() if ln.strip() else "")

    def raw(self, text):
        self.lines.append(text)

    def label(self, name):
        self.lines.append(name + ":")

    def newlabel(self, base):
        self.uid += 1
        return "L_%s_%d" % (base, self.uid)

    def comment(self, text):
        self.lines.append("  ; " + text)

    def text(self):
        return "\n".join(self.lines) + "\n"


def interleave(main, fillers):
    out = []
    by = {}
    for pos, t in fillers:
        by.setdefault(pos, []).append(t)
    for t in by.get(-1, []):
        out.append(t)
    for i, m in enumerate(main):
        out.append(m)
        for t in by.get(i, []):
            out.append(t)
    for pos in sorted(by):
        if pos >= len(main):
            out.extend(by[pos])
    return out
```

```python
from asmlib import *
from layout import *

S_X, S_Q, S_G, S_U, S_WS = 4, 6, 8, 10, 12
SRD_X, SRD_Q, SRD_G, SRD_U, SRD_WS, SRD_MIX = 16, 20, 24, 28, 32, 36
S_RB, S_CGI, S_UU, S_W, S_J, S_R0B = 40, 41, 42, 43, 44, 46
S_KT, S_KOFF = 47, 48
S_COL0, S_COL1, S_COL2 = 49, 50, 51
S_WSLOT, S_WNEXT = 52, 53
S_XK, S_XSLOTW, S_XSLOTR, S_HK = 54, 55, 56, 57
S_IT = 58
S_T0, S_T1, S_T2, S_T3 = 60, 61, 62, 63
S_EX = 64
S_M0W = 66
S_M0X = 67
S_CSSTEP = 68
S_C1 = 69

V_LANE = 0
V_WVO = 1
V_WVO2 = 2
V_XVO = 3
V_XL0, V_XL1 = 4, 5
V_HL0, V_HL1 = 6, 7
V_WL = 8
V_WM = 9
V_XA, V_HA, V_WA, V_WMA = 10, 11, 12, 13
V_CSST = 14
V_ONES = 16
V_T = 20
WF = lambda st, t: 48 + st * 20 + t * 4
XF = lambda st, t: 88 + st * 20 + t * 4
ACC = lambda tau, t: 128 + (tau * 4 + t) * 4
V_AH = 208
V_CSP = 212
V_STAT = 224
V_CSTMP = 226

OOB = 0x7FFFFF00


def allreduce16(a, regs, op="v_add_f32"):
    for ror in (8, 4, 2, 1):
        for r in regs:
            a("%s_dpp %s, %s, %s row_ror:%d row_mask:0xf bank_mask:0xf" % (op, v(r), v(r), v(r), ror))
        pad = 2 - (len(regs) - 1)
        if pad > 0:
            a("s_nop %d" % (pad - 1))


def allreduce_rows(a, r, tmp, op="v_add_f32"):
    a("v_mov_b32 %s, %s" % (v(tmp), v(r)))
    a("s_nop 1")
    a("v_permlane16_swap_b32 %s, %s" % (v(r), v(tmp)))
    a("s_nop 1")
    a("%s %s, %s, %s" % (op, v(r), v(r), v(tmp)))
    a("s_nop 0")
    a("v_mov_b32 %s, %s" % (v(tmp), v(r)))
    a("s_nop 1")
    a("v_permlane32_swap_b32 %s, %s" % (v(r), v(tmp)))
    a("s_nop 1")
    a("%s %s, %s, %s" % (op, v(r), v(r), v(tmp)))


def srd(a, base, ptr, nbytes):
    a("s_mov_b32 %s, %s" % (s(base), s(ptr)))
    a("s_and_b32 %s, %s, 0xffff" % (s(base + 1), s(ptr + 1)))
    a("s_mov_b32 %s, 0x%x" % (s(base + 2), nbytes))
    a("s_mov_b32 %s, 0x20000" % s(base + 3))


class Variant:
    def __init__(self, typ, m):
        self.typ = typ
        self.m = m
        if typ == 'X' and m == 0:
            self.loads = [(SRD_Q, S_COL0, V_WVO, 0), (SRD_Q, S_COL1, V_WVO, 1), (SRD_Q, S_COL2, V_WVO, 2)]
            self.pitch = 3072
        elif typ == 'X':
            self.loads = [(SRD_G, S_COL0, V_WVO, 3), (SRD_U, S_COL0, V_WVO, 4)]
            self.pitch = 3584
        elif m == 0:
            self.loads = [(SRD_G, S_COL0, V_WVO, 0), (SRD_U, S_COL0, V_WVO, 1), (SRD_G, S_COL1, V_WVO, 2)]
            self.pitch = 3584
        else:
            self.loads = [(SRD_U, S_COL1, V_WVO, 3), (SRD_MIX, S_COL2, V_WVO2, 4)]
            self.pitch = 3584
        self.L = len(self.loads) + 1
        self.name = "%s%d" % (typ, m)


def w_issue(var):
    groups = []
    first = True
    for (srdr, col, vo, q) in var.loads:
        g = []
        if first:
            g.append("s_mul_i32 %s, %s, %d" % (s(S_KOFF), s(S_KT), 32 * var.pitch))
            first = False
        g.append("s_add_u32 %s, %s, %s" % (s(S_T0), s(S_WSLOT), s(S_M0W)))
        g.append("s_add_u32 m0, %s, %d" % (s(S_T0), q * 4096))
        g.append("s_add_u32 %s, %s, %s" % (s(S_T1), s(S_KOFF), s(col)))
        g.append("buffer_load_dwordx4 %s, %s, %s offen lds" % (v(vo), s(srdr, 4), s(S_T1)))
        groups.append(g)
    groups[-1].append("s_add_u32 %s, %s, 1" % (s(S_KT), s(S_KT)))
    groups[-1].append("s_and_b32 %s, %s, 15" % (s(S_KT), s(S_KT)))
    return groups


def x_issue(h):
    g = []
    g.append("s_lshl_b32 %s, %s, 7" % (s(S_T2), s(S_XK)))
    g.append("s_add_u32 %s, %s, %s" % (s(S_T3), s(S_XSLOTW), s(S_M0X)))
    g.append("s_add_u32 m0, %s, %d" % (s(S_T3), h * 8192))
    g.append("s_add_u32 %s, %s, %s" % (s(S_T2), s(S_T2), s(S_R0B)))
    if h:
        g.append("s_add_u32 %s, %s, 0x10000" % (s(S_T2), s(S_T2)))
    g.append("buffer_load_dwordx4 %s, %s, %s offen lds" % (v(V_XVO), s(SRD_X, 4), s(S_T2)))
    if h:
        g.append("s_add_u32 %s, %s, 1" % (s(S_XK), s(S_XK)))
        g.append("s_and_b32 %s, %s, 7" % (s(S_XK), s(S_XK)))
        g.append("s_add_u32 %s, %s, 0x4000" % (s(S_XSLOTW), s(S_XSLOTW)))
        g.append("s_cmp_eq_u32 %s, 0xc000" % s(S_XSLOTW))
        g.append("s_cselect_b32 %s, 0, %s" % (s(S_XSLOTW), s(S_XSLOTW)))
    return g


def wslot_next():
    return ["s_add_u32 %s, %s, %d" % (s(S_WNEXT), s(S_WSLOT), WSLOT),
            "s_cmp_eq_u32 %s, %d" % (s(S_WNEXT), 4 * WSLOT),
            "s_cselect_b32 %s, 0, %s" % (s(S_WNEXT), s(S_WNEXT))]


def frag_addr(var, kk, advance_x, wslot_reg):
    g = []
    if advance_x:
        g.append("s_add_u32 %s, %s, 0x4000" % (s(S_XSLOTR), s(S_XSLOTR)))
        g.append("s_cmp_eq_u32 %s, 0xc000" % s(S_XSLOTR))
        g.append("s_cselect_b32 %s, 0, %s" % (s(S_XSLOTR), s(S_XSLOTR)))
        if var.typ == 'X':
            g.append("s_add_u32 %s, %s, 0x800" % (s(S_HK), s(S_HK)))
            g.append("s_and_b32 %s, %s, 0x3fff" % (s(S_HK), s(S_HK)))
    g.append("v_add_u32 %s, %s, %s" % (v(V_WA), s(wslot_reg), v(V_WL)))
    g.append("v_add_u32 %s, %s, %s" % (v(V_XA), s(S_XSLOTR), v(V_XL1 if kk else V_XL0)))
    if var.typ == 'X':
        g.append("v_add_u32 %s, %s, %s" % (v(V_HA), s(S_HK), v(V_HL1 if kk else V_HL0)))
    else:
        g.append("v_add_u32 %s, %s, %s" % (v(V_WMA), s(wslot_reg), v(V_WM)))
    return g


def frag_reads(var, st):
    r = []

    def wt(tau):
        if var.typ == 'Y' and tau == 4:
            r.append("ds_read_b64_tr_b16 %s, %s" % (v(WF(st, tau), 2), v(V_WMA)))
            r.append("ds_read_b64_tr_b16 %s, %s offset:256" % (v(WF(st, tau) + 2, 2), v(V_WMA)))
        else:
            r.append("ds_read_b64_tr_b16 %s, %s offset:%d" % (v(WF(st, tau), 2), v(V_WA), tau * 4096))
            r.append("ds_read_b64_tr_b16 %s, %s offset:%d" % (v(WF(st, tau) + 2, 2), v(V_WA), tau * 4096 + 512))

    def xt(t):
        r.append("ds_read_b128 %s, %s offset:%d" % (v(XF(st, t), 4), v(V_XA), t * 2048))
    xt(0)
    wt(0)
    wt(1)
    xt(1)
    wt(2)
    xt(2)
    wt(3)
    xt(3)
    wt(4)
    if var.typ == 'X':
        r.append("ds_read_b128 %s, %s" % (v(XF(st, 4), 4), v(V_HA)))
    return r


def mfmas(var, st):
    out = []
    for t in range(4):
        for tau in range(5):
            d = v(ACC(tau, t), 4)
            if var.typ == 'X' and tau == 2:
                out.append("v_mfma_f32_16x16x32_bf16 %s, %s, %s, %s" % (d, v(XF(st, t), 4), v(WF(st, tau), 4), d))
            else:
                out.append("v_mfma_f32_16x16x32_bf16 %s, %s, %s, %s" % (d, v(WF(st, tau), 4), v(XF(st, t), 4), d))
    if var.typ == 'X':
        d = v(V_AH, 4)
        if var.m == 0:
            out.append("v_mfma_f32_16x16x32_bf16 %s, %s, %s, %s" % (d, v(WF(st, 1), 4), v(XF(st, 4), 4), d))
        else:
            out.append("v_mfma_f32_16x16x32_bf16 %s, %s, %s, %s" % (d, v(XF(st, 4), 4), v(WF(st, 2), 4), d))
    return out


def emit_step(a, var, par, vm, dma=True, prefetch=True, extra=None, cs_hook=None):
    if vm is not None:
        a("s_waitcnt vmcnt(%d) lgkmcnt(0)" % vm)
    else:
        a("s_waitcnt lgkmcnt(0)")
    a("s_barrier")
    M = mfmas(var, par)
    F = []
    pos = 0
    head = list(wslot_next()) if (dma or prefetch) else []
    if prefetch:
        head += frag_addr(var, kk=1 - par, advance_x=(par == 1), wslot_reg=S_WNEXT)
    for t in head:
        F.append((0, t))
    pos = 1
    if dma:
        for g in w_issue(var):
            for t in g:
                F.append((pos, t))
            pos += 1
        for t in x_issue(h=1 - par):
            F.append((pos, t))
        pos += 1
    if prefetch:
        rd = frag_reads(var, 1 - par)
        p0 = 1
        n = len(rd)
        last = len(M) - 5
        for i, t in enumerate(rd):
            F.append((p0 + (i * (last - p0)) // n, t))
    if dma or prefetch:
        F.append((len(M) - 2, "s_mov_b32 %s, %s" % (s(S_WSLOT), s(S_WNEXT))))
    if extra:
        F += extra
    for t in interleave(M, F):
        a(t)
    if cs_hook:
        cs_hook(a)


def colsum_block(a, var, par):
    if var.m != 0:
        return
    skip = a.newlabel("cs_skip")
    a("s_cmp_eq_u32 %s, 6" % s(S_IT))
    a("s_cbranch_scc0 %s" % skip)
    a("s_cmp_eq_u32 %s, %d" % (s(S_CSSTEP), par))
    a("s_cbranch_scc0 %s" % skip)
    for tau in range(5):
        a("v_mfma_f32_16x16x32_bf16 %s, %s, %s, 0" % (v(V_CSTMP + 4 * tau, 4), v(WF(par, tau), 4), v(V_ONES, 4)))
    a("s_nop 7")
    a("s_nop 1")
    for tau in range(5):
        a("buffer_store_dwordx4 %s, %s, %s, 0 offen offset:%d sc1" % (v(V_CSTMP + 4 * tau, 4), v(V_CSST), s(SRD_WS, 4), tau * 256))
    a.label(skip)


def prologue_common(a):
    a.comment("---- K1 prologue ----")
    a("s_load_dwordx4 %s, s[0:1], 0" % s(S_X, 4))
    a("s_load_dwordx4 %s, s[0:1], 32" % s(S_G, 4))
    a("s_load_dwordx2 %s, s[0:1], 72" % s(S_WS, 2))
    a("v_lshrrev_b32 v1, 6, v0")
    a("v_and_b32 v0, 63, v0")
    a("v_readfirstlane_b32 %s, v1" % s(S_W))
    a("s_and_b32 %s, s2, 7" % s(S_T0))
    a("s_lshr_b32 %s, s2, 3" % s(S_T1))
    a("s_lshr_b32 %s, %s, 2" % (s(S_T2), s(S_T0)))
    a("s_lshl_b32 %s, %s, 3" % (s(S_T2), s(S_T2)))
    a("s_and_b32 %s, %s, 7" % (s(S_T3), s(S_T1)))
    a("s_or_b32 %s, %s, %s" % (s(S_RB), s(S_T2), s(S_T3)))
    a("s_and_b32 %s, %s, 3" % (s(S_T2), s(S_T0)))
    a("s_lshl_b32 %s, %s, 2" % (s(S_T2), s(S_T2)))
    a("s_lshr_b32 %s, %s, 3" % (s(S_T3), s(S_T1)))
    a("s_or_b32 %s, %s, %s" % (s(S_CGI), s(S_T2), s(S_T3)))
    a("s_lshr_b32 %s, %s, 1" % (s(S_UU), s(S_CGI)))
    a("s_lshl_b32 %s, %s, 17" % (s(S_R0B), s(S_RB)))
    a("s_and_b32 %s, %s, 3" % (s(S_J), s(S_W)))
    a("s_lshl_b32 %s, %s, 10" % (s(S_M0W), s(S_J)))
    a("s_lshl_b32 %s, %s, 10" % (s(S_M0X), s(S_W)))
    a("s_add_u32 %s, %s, %d" % (s(S_M0X), s(S_M0X), XRING))
    a("s_and_b32 %s, %s, 7" % (s(S_XK), s(S_RB)))
    a("s_lshl_b32 %s, %s, 1" % (s(S_KT), s(S_XK)))
    a("s_lshl_b32 %s, %s, 11" % (s(S_HK), s(S_XK)))
    a("s_mov_b32 %s, 0" % s(S_WSLOT))
    a("s_mov_b32 %s, 0" % s(S_XSLOTW))
    a("s_mov_b32 %s, 0" % s(S_XSLOTR))
    a("s_lshr_b32 %s, %s, 3" % (s(S_CSSTEP), s(S_RB)))
    a("s_mov_b32 %s, 6" % s(S_IT))
    T = V_T
    a("v_lshrrev_b32 %s, 3, v0" % v(T))
    a("v_lshrrev_b32 %s, 4, v0" % v(T + 1))
    a("s_lshl_b32 %s, %s, 3" % (s(S_T0), s(S_W)))
    a("v_add_u32 %s, %s, %s" % (v(T + 2), s(S_T0), v(T)))
    a("v_lshrrev_b32 %s, 1, %s" % (v(T + 3), v(T + 2)))
    a("v_and_b32 %s, 7, %s" % (v(T + 3), v(T + 3)))
    a("v_and_b32 %s, 7, v0" % v(T + 4))
    a("v_xor_b32 %s, %s, %s" % (v(T + 4), v(T + 4), v(T + 3)))
    a("v_lshlrev_b32 %s, 4, %s" % (v(T + 4), v(T + 4)))
    a("v_lshl_add_u32 %s, %s, 10, %s" % (v(V_XVO), v(T + 2), v(T + 4)))
    a("v_and_b32 %s, 15, v0" % v(T + 5))
    a("v_lshrrev_b32 %s, 1, %s" % (v(T + 6), v(T + 5)))
    a("v_xor_b32 %s, %s, %s" % (v(T + 6), v(T + 6), v(T + 1)))
    a("v_lshlrev_b32 %s, 4, %s" % (v(T + 6), v(T + 6)))
    a("v_lshl_add_u32 %s, %s, 7, %s" % (v(T + 6), v(T + 5), v(T + 6)))
    a("v_add_u32 %s, %d, %s" % (v(V_HL0), HALO, v(T + 6)))
    a("v_xor_b32 %s, 64, %s" % (v(V_HL1), v(V_HL0)))
    a("s_lshr_b32 %s, %s, 2" % (s(S_T0), s(S_W)))
    a("s_lshl_b32 %s, %s, 13" % (s(S_T0), s(S_T0)))
    a("s_add_u32 %s, %s, %d" % (s(S_T0), s(S_T0), XRING))
    a("v_add_u32 %s, %s, %s" % (v(V_XL0), s(S_T0), v(T + 6)))
    a("v_xor_b32 %s, 64, %s" % (v(V_XL1), v(V_XL0)))
    a("v_lshrrev_b32 %s, 2, v0" % v(T + 7))
    a("v_and_b32 %s, 3, %s" % (v(T + 7), v(T + 7)))
    a("v_lshl_add_u32 %s, %s, 3, %s" % (v(T + 7), v(T + 1), v(T + 7)))
    a("v_and_b32 %s, 3, %s" % (v(T + 8), v(T)))
    a("v_xor_b32 %s, %s, %s" % (v(T + 8), s(S_J), v(T + 8)))
    a("v_lshlrev_b32 %s, 5, %s" % (v(T + 8), v(T + 8)))
    a("v_lshl_add_u32 %s, %s, 7, %s" % (v(T + 8), v(T + 7), v(T + 8)))
    a("v_and_b32 %s, 3, v0" % v(T + 9))
    a("v_lshl_add_u32 %s, %s, 3, %s" % (v(V_WL), v(T + 9), v(T + 8)))
    a("v_and_b32 %s, 1, %s" % (v(T + 10), v(T + 1)))
    a("v_and_b32 %s, 2, %s" % (v(T + 11), v(T + 9)))
    a("v_or_b32 %s, %s, %s" % (v(T + 10), v(T + 10), v(T + 11)))
    a("v_xor_b32 %s, %s, %s" % (v(T + 10), s(S_J), v(T + 10)))
    a("v_lshlrev_b32 %s, 4, %s" % (v(T + 10), v(T + 10)))
    a("v_lshl_add_u32 %s, %s, 6, %s" % (v(T + 10), v(T + 7), v(T + 10)))
    a("v_lshl_add_u32 %s, %s, 10, %s" % (v(T + 10), v(T + 11), v(T + 10)))
    a("v_and_b32 %s, 1, %s" % (v(T + 11), v(T + 9)))
    a("v_lshl_add_u32 %s, %s, 3, %s" % (v(T + 10), v(T + 11), v(T + 10)))
    a("v_add_u32 %s, 16384, %s" % (v(V_WM), v(T + 10)))
    for i in range(4):
        a("v_mov_b32 %s, 0x3f803f80" % v(V_ONES + i))
    a("s_mul_i32 %s, %s, 20480" % (s(S_T0), s(S_CGI)))
    a("s_mul_i32 %s, %s, 1280" % (s(S_T1), s(S_RB)))
    a("s_add_u32 %s, %s, %s" % (s(S_T0), s(S_T0), s(S_T1)))
    a("s_lshl_b32 %s, %s, 6" % (s(S_T1), s(S_J)))
    a("s_add_u32 %s, %s, %s" % (s(S_T0), s(S_T0), s(S_T1)))
    a("s_add_u32 %s, %s, %d" % (s(S_T0), s(S_T0), WS_CSP))
    a("v_lshlrev_b32 %s, 4, %s" % (v(V_CSST), v(T + 1)))
    a("v_add_u32 %s, %s, %s" % (v(V_CSST), s(S_T0), v(V_CSST)))
    a("v_cmp_eq_u32 vcc, 0, %s" % v(T + 5))
    a("v_mov_b32 %s, 0x%x" % (v(T + 11), OOB))
    a("s_nop 1")
    a("v_cndmask_b32 %s, %s, %s, vcc" % (v(V_CSST), v(T + 11), v(V_CSST)))
    a("s_waitcnt lgkmcnt(0)")
    srd(a, SRD_X, S_X, 2048 * 1024)
    srd(a, SRD_Q, S_Q, 512 * 3072)
    srd(a, SRD_G, S_G, 512 * 3584)
    srd(a, SRD_U, S_U, 512 * 3584)
    srd(a, SRD_WS, S_WS, WS_USED)
    a("s_lshl_b32 %s, %s, 3" % (s(S_T0), s(S_CGI)))
    a("s_add_u32 %s, %s, %s" % (s(S_T0), s(S_T0), s(S_W)))
    a("s_lshl_b32 %s, %s, 10" % (s(S_T0), s(S_T0)))
    a("s_add_u32 %s, %s, %s" % (s(S_T0), s(S_T0), s(S_R0B)))
    a("v_lshlrev_b32 %s, 4, v0" % v(T + 12))
    a("buffer_load_dwordx4 %s, %s, %s, %s offen" % (v(V_CSP, 4), v(T + 12), s(SRD_X, 4), s(S_T0)))


def w_voffset_full(a, pitch):
    T = V_T
    a("v_lshrrev_b32 %s, 3, v0" % v(T))
    a("s_lshl_b32 %s, %s, 3" % (s(S_T0), s(S_J)))
    a("v_add_u32 %s, %s, %s" % (v(T), s(S_T0), v(T)))
    a("s_mov_b32 %s, %d" % (s(S_T1), pitch))
    a("v_mul_lo_u32 %s, %s, %s" % (v(T), v(T), s(S_T1)))
    a("v_bfe_u32 %s, v0, 4, 1" % v(T + 1))
    a("s_and_b32 %s, %s, 1" % (s(S_T0), s(S_J)))
    a("s_lshl_b32 %s, %s, 1" % (s(S_T0), s(S_T0)))
    a("v_or_b32 %s, %s, %s" % (v(T + 1), s(S_T0), v(T + 1)))
    a("v_bfe_u32 %s, v0, 1, 2" % v(T + 2))
    a("v_xor_b32 %s, %s, %s" % (v(T + 1), v(T + 1), v(T + 2)))
    a("v_lshl_add_u32 %s, %s, 5, %s" % (v(T), v(T + 1), v(T)))
    a("v_and_b32 %s, 1, v0" % v(T + 2))
    a("v_lshl_add_u32 %s, %s, 4, %s" % (v(V_WVO), v(T + 2), v(T)))


def w_voffset_g4(a):
    T = V_T
    a("v_lshrrev_b32 %s, 2, v0" % v(T))
    a("s_and_b32 %s, %s, 1" % (s(S_T0), s(S_J)))
    a("s_lshl_b32 %s, %s, 4" % (s(S_T0), s(S_T0)))
    a("v_add_u32 %s, %s, %s" % (v(T), s(S_T0), v(T)))
    a("s_mov_b32 %s, 3584" % s(S_T1))
    a("v_mul_lo_u32 %s, %s, %s" % (v(T), v(T), s(S_T1)))
    a("v_lshrrev_b32 %s, 5, v0" % v(T + 1))
    a("s_and_b32 %s, %s, 2" % (s(S_T0), s(S_J)))
    a("v_or_b32 %s, %s, %s" % (v(T + 1), s(S_T0), v(T + 1)))
    a("v_and_b32 %s, 3, v0" % v(T + 2))
    a("v_xor_b32 %s, %s, %s" % (v(T + 1), v(T + 1), v(T + 2)))
    a("v_lshl_add_u32 %s, %s, 4, %s" % (v(V_WVO2), v(T + 1), v(T)))


def y_cols(a):
    a("s_mul_i32 %s, %s, 320" % (s(S_T0), s(S_UU)))
    a("s_add_u32 %s, %s, 1024" % (s(S_T0), s(S_T0)))
    a("s_and_b32 %s, %s, 1" % (s(S_T1), s(S_UU)))
    a("s_lshl_b32 %s, %s, 6" % (s(S_T1), s(S_T1)))
    a("s_add_u32 %s, %s, %s" % (s(S_COL0), s(S_T0), s(S_T1)))
    a("s_add_u32 %s, %s, 128" % (s(S_COL1), s(S_COL0)))
    a("s_cmp_eq_u32 %s, 0" % s(S_T1))
    a("s_cselect_b32 %s, 256, 0" % s(S_T1))
    a("s_add_u32 %s, %s, %s" % (s(S_COL2), s(S_T0), s(S_T1)))


def stats_compute(a):
    T = V_T
    A = T
    for i in range(4):
        a("v_lshlrev_b32 %s, 16, %s" % (v(A + 2 * i), v(V_CSP + i)))
        a("v_and_b32 %s, 0xffff0000, %s" % (v(A + 2 * i + 1), v(V_CSP + i)))
    R = T + 8
    a("v_add_f32 %s, %s, %s" % (v(R), v(A), v(A + 1)))
    for i in range(2, 8):
        a("v_add_f32 %s, %s, %s" % (v(R), v(R), v(A + i)))
    a("s_nop 1")
    allreduce16(a, [R])
    allreduce_rows(a, R, R + 1)
    a("v_mul_f32 %s, %s, %s" % (v(R), hexf(1.0 / 512), v(R)))
    for i in range(8):
        a("v_sub_f32 %s, %s, %s" % (v(A + i), v(A + i), v(R)))
    a("v_mul_f32 %s, %s, %s" % (v(R + 1), v(A), v(A)))
    for i in range(1, 8):
        a("v_fmac_f32 %s, %s, %s" % (v(R + 1), v(A + i), v(A + i)))
    a("s_nop 1")
    allreduce16(a, [R + 1])
    allreduce_rows(a, R + 1, R + 2)
    a("v_mov_b32 %s, %s" % (v(R + 2), hexf(1e-5)))
    a("v_fmac_f32 %s, %s, %s" % (v(R + 2), hexf(1.0 / 512), v(R + 1)))
    a("v_rsq_f32 %s, %s" % (v(R + 1), v(R + 2)))
    a("s_lshl_b32 %s, %s, 3" % (s(S_T0), s(S_CGI)))
    a("s_add_u32 %s, %s, %s" % (s(S_T0), s(S_T0), s(S_W)))
    a("s_lshl_b32 %s, %s, 7" % (s(S_T1), s(S_RB)))
    a("s_add_u32 %s, %s, %s" % (s(S_T0), s(S_T0), s(S_T1)))
    a("s_lshl_b32 %s, %s, 3" % (s(S_T0), s(S_T0)))
    a("s_add_u32 %s, %s, %d" % (s(S_T0), s(S_T0), WS_STATS))
    a("v_mov_b32 %s, %s" % (v(R + 2), s(S_T0)))
    a("v_mov_b32 %s, 0x%x" % (v(R + 3), OOB))
    a("v_cmp_eq_u32 vcc, 0, v0")
    a("s_nop 1")
    a("v_cndmask_b32 %s, %s, %s, vcc" % (v(R + 2), v(R + 3), v(R + 2)))
    a("buffer_store_dwordx2 %s, %s, %s, 0 offen sc1" % (v(R, 2), v(R + 2), s(SRD_WS, 4)))


def halo_issue(a):
    T = V_T
    for hh in range(2):
        a("v_lshrrev_b32 %s, 3, v0" % v(T))
        if hh:
            a("v_add_u32 %s, 8, %s" % (v(T), v(T)))
        a("v_lshrrev_b32 %s, 1, %s" % (v(T + 1), v(T)))
        a("v_and_b32 %s, 7, v0" % v(T + 2))
        a("v_xor_b32 %s, %s, %s" % (v(T + 1), v(T + 1), v(T + 2)))
        a("s_lshl_b32 %s, %s, 7" % (s(S_T0), s(S_RB)))
        a("s_sub_u32 %s, %s, 16" % (s(S_T0), s(S_T0)))
        a("v_add_u32 %s, %s, %s" % (v(T), s(S_T0), v(T)))
        a("v_max_i32 %s, 0, %s" % (v(T), v(T)))
        a("v_lshlrev_b32 %s, 10, %s" % (v(T), v(T)))
        a("v_lshl_add_u32 %s, %s, 4, %s" % (v(T + 3 + hh), v(T + 1), v(T)))
        a("s_lshl_b32 %s, %s, 11" % (s(S_T1), s(S_W)))
        a("s_add_u32 m0, %s, %d" % (s(S_T1), HALO + hh * 1024))
        a("s_lshl_b32 %s, %s, 7" % (s(S_T1), s(S_W)))
        a("buffer_load_dwordx4 %s, %s, %s offen lds" % (v(T + 3 + hh), s(SRD_X, 4), s(S_T1)))


def tail_loads(var):
    T = V_T
    g = []
    g.append("s_mul_i32 %s, %s, 20480" % (s(S_T0), s(S_CGI)))
    g.append("s_lshl_b32 %s, %s, 6" % (s(S_T1), s(S_W)))
    g.append("s_add_u32 %s, %s, %s" % (s(S_T0), s(S_T0), s(S_T1)))
    g.append("s_add_u32 %s, %s, %d" % (s(S_T0), s(S_T0), WS_CSP))
    g.append("v_and_b32 %s, 15, v0" % v(T))
    g.append("v_mul_u32_u24 %s, 1280, %s" % (v(T), v(T)))
    g.append("v_lshrrev_b32 %s, 4, v0" % v(T + 1))
    g.append("v_lshl_add_u32 %s, %s, 4, %s" % (v(T), v(T + 1), v(T)))
    g.append("v_add_u32 %s, %s, %s" % (v(T), s(S_T0), v(T)))
    g.append("buffer_load_dwordx4 %s, %s, %s, 0 offen sc1" % (v(V_CSP, 4), v(T), s(SRD_WS, 4)))
    g.append("buffer_load_dwordx4 %s, %s, %s, 0 offen offset:512 sc1" % (v(V_CSP + 4, 4), v(T), s(SRD_WS, 4)))
    g.append("buffer_load_dwordx4 %s, %s, %s, 0 offen offset:1024 sc1" % (v(V_CSP + 8, 4), v(T), s(SRD_WS, 4)))
    g.append("s_lshl_b32 %s, %s, 6" % (s(S_T0), s(S_W)))
    g.append("s_lshl_b32 %s, %s, 7" % (s(S_T1), s(S_RB)))
    g.append("s_add_u32 %s, %s, %s" % (s(S_T0), s(S_T0), s(S_T1)))
    g.append("s_sub_u32 %s, %s, 16" % (s(S_T0), s(S_T0)))
    g.append("v_add_u32 %s, %s, v0" % (v(T + 2), s(S_T0)))
    g.append("v_max_i32 %s, 0, %s" % (v(T + 2), v(T + 2)))
    g.append("v_min_i32 %s, 2047, %s" % (v(T + 2), v(T + 2)))
    g.append("v_lshlrev_b32 %s, 3, %s" % (v(T + 2), v(T + 2)))
    g.append("v_add_u32 %s, %d, %s" % (v(T + 2), WS_STATS, v(T + 2)))
    g.append("buffer_load_dwordx2 %s, %s, %s, 0 offen sc1" % (v(V_STAT, 2), v(T + 2), s(SRD_WS, 4)))
    return g


def tail_reduce():
    g = []
    regs = [V_CSP + i for i in range(12)]
    for ror in (8, 4, 2, 1):
        for r in regs:
            g.append("v_add_f32_dpp %s, %s, %s row_ror:%d row_mask:0xf bank_mask:0xf" % (v(r), v(r), v(r), ror))
    return g


def tail_publish(a):
    T = V_T
    a("v_lshrrev_b32 %s, 4, v0" % v(T))
    a("s_lshl_b32 %s, %s, 6" % (s(S_T0), s(S_W)))
    a("s_add_u32 %s, %s, %d" % (s(S_T0), s(S_T0), LB + O_CS))
    a("v_lshlrev_b32 %s, 4, %s" % (v(T), v(T)))
    a("v_add_u32 %s, %s, %s" % (v(T), s(S_T0), v(T)))
    a("s_mov_b64 %s, exec" % s(S_EX, 2))
    a("s_mov_b32 exec_lo, 0x00010001")
    a("s_mov_b32 exec_hi, 0x00010001")
    a("ds_write_b128 %s, %s" % (v(T), v(V_CSP, 4)))
    a("ds_write_b128 %s, %s offset:512" % (v(T), v(V_CSP + 4, 4)))
    lab = a.newlabel("cs3")
    a("s_cmp_ge_u32 %s, 4" % s(S_W))
    a("s_cbranch_scc1 %s" % lab)
    a("ds_write_b128 %s, %s offset:1024" % (v(T), v(V_CSP + 8, 4)))
    a.label(lab)
    a("s_mov_b64 exec, %s" % s(S_EX, 2))
    lab = a.newlabel("st")
    a("s_cmp_ge_u32 %s, 3" % s(S_W))
    a("s_cbranch_scc1 %s" % lab)
    a("s_lshl_b32 %s, %s, 6" % (s(S_T0), s(S_W)))
    a("v_add_u32 %s, %s, v0" % (v(T + 1), s(S_T0)))
    a("v_cmp_gt_u32 vcc, 144, %s" % v(T + 1))
    a("v_lshlrev_b32 %s, 2, %s" % (v(T + 1), v(T + 1)))
    a("v_add_u32 %s, %d, %s" % (v(T + 1), LB, v(T + 1)))
    a("s_and_saveexec_b64 %s, vcc" % s(S_EX, 2))
    a("ds_write_b32 %s, %s offset:%d" % (v(T + 1), v(V_STAT), O_MEAN))
    a("ds_write_b32 %s, %s offset:%d" % (v(T + 1), v(V_STAT + 1), O_RSTD))
    a("s_mov_b64 exec, %s" % s(S_EX, 2))
    a.label(lab)
    a("s_waitcnt lgkmcnt(0)")
    a("s_barrier")


C0 = -2.0 * 0.7978845608028654 * 1.4426950408889634
C1 = C0 * 0.044715
LOG2E = 1.4426950408889634


def gelu_tile(a, G, U, mt, rt, csg, csu, tmp, out, vc1):
    R = range(4)
    for r in R:
        a("v_fma_f32 %s, -%s, %s, %s" % (v(G + r), v(mt), v(csg + r), v(G + r)))
    for r in R:
        a("v_fma_f32 %s, -%s, %s, %s" % (v(U + r), v(mt), v(csu + r), v(U + r)))
    for r in R:
        a("v_mul_f32 %s, %s, %s" % (v(G + r), v(rt), v(G + r)))
    for r in R:
        a("v_mul_f32 %s, %s, %s" % (v(tmp + r), v(G + r), v(G + r)))
    for r in R:
        a("v_fmaak_f32 %s, %s, %s, %s" % (v(tmp + r), v(tmp + r), v(vc1), hexf(C0)))
    for r in R:
        a("v_mul_f32 %s, %s, %s" % (v(tmp + r), v(tmp + r), v(G + r)))
    for r in R:
        a("v_exp_f32 %s, %s" % (v(tmp + r), v(tmp + r)))
    for r in R:
        a("v_mul_f32 %s, %s, %s" % (v(U + r), v(rt), v(U + r)))
    for r in R:
        a("v_add_f32 %s, 1.0, %s" % (v(tmp + r), v(tmp + r)))
    for r in R:
        a("v_rcp_f32 %s, %s" % (v(tmp + r), v(tmp + r)))
    for r in R:
        a("v_mul_f32 %s, %s, %s" % (v(U + r), v(G + r), v(U + r)))
    for r in R:
        a("v_mul_f32 %s, %s, %s" % (v(U + r), v(tmp + r), v(U + r)))
    a("v_cvt_pk_bf16_f32 %s, %s, %s" % (v(out), v(U), v(U + 1)))
    a("v_cvt_pk_bf16_f32 %s, %s, %s" % (v(out + 1), v(U + 2), v(U + 3)))


def norm_ct(a, A, mt, rt, cs, out):
    for r in range(4):
        a("v_fma_f32 %s, -%s, %s, %s" % (v(A + r), v(mt), v(cs + r), v(A + r)))
    for r in range(4):
        a("v_mul_f32 %s, %s, %s" % (v(A + r), v(rt), v(A + r)))
    a("v_cvt_pk_bf16_f32 %s, %s, %s" % (v(out), v(A), v(A + 1)))
    a("v_cvt_pk_bf16_f32 %s, %s, %s" % (v(out + 1), v(A + 2), v(A + 3)))


def norm_v(a, A, mv, rv, csv, out):
    for r in range(4):
        a("v_fma_f32 %s, -%s, %s, %s" % (v(A + r), v(mv + r), v(csv), v(A + r)))
    for r in range(4):
        a("v_mul_f32 %s, %s, %s" % (v(A + r), v(rv + r), v(A + r)))
    a("v_cvt_pk_bf16_f32 %s, %s, %s" % (v(out), v(A), v(A + 1)))
    a("v_cvt_pk_bf16_f32 %s, %s, %s" % (v(out + 1), v(A + 2), v(A + 3)))


def act_store_pairs(a, P, vaddr, sc):
    a("s_nop 1")
    a("v_permlane16_swap_b32 %s, %s" % (v(P), v(P + 2)))
    a("v_permlane16_swap_b32 %s, %s" % (v(P + 1), v(P + 3)))
    a("v_permlane16_swap_b32 %s, %s" % (v(P + 4), v(P + 6)))
    a("v_permlane16_swap_b32 %s, %s" % (v(P + 5), v(P + 7)))
    a("s_nop 1")
    a("buffer_store_dwordx4 %s, %s, %s, 0 offen %s" % (v(P, 4), v(vaddr), s(SRD_WS, 4), sc))
    a("s_mov_b32 %s, %d" % (s(S_T3), 2 * ACT_T))
    a("buffer_store_dwordx4 %s, %s, %s, %s offen %s" % (v(P + 4, 4), v(vaddr), s(SRD_WS, 4), s(S_T3), sc))


def act_addr_base(a, vout, T):
    a("v_lshrrev_b32 %s, 4, v0" % v(T))
    a("v_and_b32 %s, 1, %s" % (v(T + 1), v(T)))
    a("s_lshl_b32 %s, %s, 3" % (s(S_T0), s(S_RB)))
    a("s_lshr_b32 %s, %s, 2" % (s(S_T1), s(S_W)))
    a("s_lshl_b32 %s, %s, 2" % (s(S_T1), s(S_T1)))
    a("s_add_u32 %s, %s, %s" % (s(S_T0), s(S_T0), s(S_T1)))
    a("v_add_u32 %s, %s, %s" % (v(T + 1), s(S_T0), v(T + 1)))
    a("s_mov_b32 %s, %d" % (s(S_T1), ACT_T))
    a("v_mul_lo_u32 %s, %s, %s" % (v(T + 1), v(T + 1), s(S_T1)))
    a("v_lshrrev_b32 %s, 1, %s" % (v(T), v(T)))
    a("v_lshl_add_u32 %s, %s, 8, %s" % (v(T + 1), v(T), v(T + 1)))
    a("v_and_b32 %s, 15, v0" % v(T))
    a("v_lshl_add_u32 %s, %s, 4, %s" % (v(vout), v(T), v(T + 1)))


def epilogue_x(a, var, sc):
    m = var.m
    MT, RT = 48, 52
    MH, RH = 56, 57
    CSQ, CSK, CSG, CSU = 60, 64, 68, 72
    CSV = 58
    MV, RV = 76, 92
    MVH, RVH = 108, 112
    KP = 116
    VP = 212
    QP = 222
    BP, BC, BP0 = 232, 236, 240
    HP = 244
    RQ = 252
    TMP = 20
    A_I16, A_G16 = 10, 11
    V_C1 = 12
    V_AO, V_AHH = 13, 14
    a.comment("---- X epilogue m=%d ----" % m)
    a("v_and_b32 %s, 15, v0" % v(TMP))
    a("v_lshlrev_b32 %s, 2, %s" % (v(A_I16), v(TMP)))
    a("v_add_u32 %s, %d, %s" % (v(A_I16), LB, v(A_I16)))
    a("v_lshrrev_b32 %s, 4, v0" % v(TMP + 1))
    a("v_lshlrev_b32 %s, 4, %s" % (v(A_G16), v(TMP + 1)))
    a("v_add_u32 %s, %d, %s" % (v(A_G16), LB, v(A_G16)))
    base = (16 + 64 * m) * 4
    for t in range(4):
        a("ds_read_b32 %s, %s offset:%d" % (v(MT + t), v(A_I16), O_MEAN + base + t * 64))
        a("ds_read_b32 %s, %s offset:%d" % (v(RT + t), v(A_I16), O_RSTD + base + t * 64))
    a("s_lshl_b32 %s, %s, 6" % (s(S_T0), s(S_J)))
    a("v_add_u32 %s, %s, %s" % (v(TMP + 2), s(S_T0), v(A_G16)))
    a("v_add_u32 %s, %s, %s" % (v(TMP + 3), s(S_T0), v(A_I16)))
    a("ds_read_b128 %s, %s offset:%d" % (v(CSK, 4), v(TMP + 2), O_CS + 256))
    a("ds_read_b32 %s, %s offset:%d" % (v(CSV), v(TMP + 3), O_CS + 512))
    a("ds_read_b128 %s, %s offset:%d" % (v(CSQ, 4), v(TMP + 2), O_CS))
    a("ds_read_b128 %s, %s offset:%d" % (v(CSG, 4), v(TMP + 2), O_CS + 768))
    a("ds_read_b128 %s, %s offset:%d" % (v(CSU, 4), v(TMP + 2), O_CS + 1024))
    a("s_waitcnt lgkmcnt(0)")
    for t in range(4):
        a("ds_read_b128 %s, %s offset:%d" % (v(MV + 4 * t, 4), v(A_G16), O_MEAN + base + t * 64))
        a("ds_read_b128 %s, %s offset:%d" % (v(RV + 4 * t, 4), v(A_G16), O_RSTD + base + t * 64))
    if m == 0:
        a("ds_read_b32 %s, %s offset:%d" % (v(MH), v(A_I16), O_MEAN))
        a("ds_read_b32 %s, %s offset:%d" % (v(RH), v(A_I16), O_RSTD))
    else:
        a("ds_read_b128 %s, %s offset:%d" % (v(MVH, 4), v(A_G16), O_MEAN))
        a("ds_read_b128 %s, %s offset:%d" % (v(RVH, 4), v(A_G16), O_RSTD))
    for t in range(4):
        norm_ct(a, ACC(1, t), MT + t, RT + t, CSK, KP + 2 + 2 * t)
    a("s_waitcnt lgkmcnt(0)")
    for t in range(4):
        norm_v(a, ACC(2, t), MV + 4 * t, RV + 4 * t, CSV, VP + 2 + 2 * t)
    a("s_mul_i32 %s, %s, 1536" % (s(S_T0), s(S_J)))
    a("s_add_u32 %s, %s, %d" % (s(S_T0), s(S_T0), LB))
    a("v_lshlrev_b32 %s, 3, v0" % v(TMP + 4))
    a("v_add_u32 %s, %s, %s" % (v(TMP + 4), s(S_T0), v(TMP + 4)))
    if m == 0:
        norm_ct(a, V_AH, MH, RH, CSK, KP)
        a("ds_write_b64 %s, %s offset:%d" % (v(TMP + 4), v(KP + 8, 2), O_XBUF))
        a("ds_write_b64 %s, %s offset:%d" % (v(TMP + 4), v(VP + 8, 2), O_XBUF + 512))
    else:
        norm_v(a, V_AH, MVH, RVH, CSV, VP)
        a("ds_write_b64 %s, %s offset:%d" % (v(TMP + 4), v(VP, 2), O_XBUF + 1024))
    for t in range(4):
        a("v_mul_f32 %s, %s, %s" % (v(RQ + t), hexf(0.25 * LOG2E), v(RT + t)))
    for t in range(4):
        norm_ct(a, ACC(0, t), MT + t, RQ + t, CSQ, QP + 2 * t)
    a("v_and_b32 %s, 15, v0" % v(TMP))
    a("v_lshrrev_b32 %s, 4, v0" % v(TMP + 1))
    a("v_lshlrev_b32 %s, 2, %s" % (v(TMP + 1), v(TMP + 1)))
    a("v_sub_u32 %s, %s, %s" % (v(TMP + 2), v(TMP), v(TMP + 1)))
    a("v_mov_b32 %s, %s" % (v(TMP + 3), hexf(-1e30)))
    for r in range(4):
        a("v_subrev_u32 %s, %d, %s" % (v(TMP + 5), r, v(TMP + 2)))
        a("v_and_b32 %s, 0x80000001, %s" % (v(TMP + 6), v(TMP + 5)))
        a("v_cmp_eq_u32 vcc, 0, %s" % v(TMP + 6))
        a("s_nop 1")
        a("v_cndmask_b32_e64 %s, %s, 0, vcc" % (v(BC + r), v(TMP + 3)))
        a("v_sub_u32 %s, -2, %s" % (v(TMP + 5), v(TMP + 5)))
        a("v_and_b32 %s, 0x80000001, %s" % (v(TMP + 6), v(TMP + 5)))
        a("v_cmp_eq_u32 vcc, 0, %s" % v(TMP + 6))
        a("s_nop 1")
        a("v_cndmask_b32_e64 %s, %s, 0, vcc" % (v(BP + r), v(TMP + 3)))
    for r in range(4):
        a("v_mov_b32 %s, %s" % (v(BP0 + r), v(BP + r)))
    if m == 0:
        lab = a.newlabel("notfirst")
        a("s_cmp_eq_u32 %s, 0" % s(S_RB))
        a("s_cbranch_scc0 %s" % lab)
        for r in range(4):
            a("v_mov_b32 %s, %s" % (v(BP0 + r), v(TMP + 3)))
        a.label(lab)
    a("s_waitcnt lgkmcnt(0)")
    a("s_barrier")
    if m == 0:
        a("ds_read_b64 %s, %s offset:%d" % (v(VP, 2), v(TMP + 4), O_XBUF + 1024))
    else:
        a("ds_read_b64 %s, %s offset:%d" % (v(KP, 2), v(TMP + 4), O_XBUF))
        a("ds_read_b64 %s, %s offset:%d" % (v(VP, 2), v(TMP + 4), O_XBUF + 512))
    a("v_mov_b32 %s, %s" % (v(V_C1), hexf(C1)))
    for t in range(4):
        gelu_tile(a, ACC(3, t), ACC(4, t), MT + t, RT + t, CSG, CSU, TMP + 8, HP + 2 * t, V_C1)
    act_addr_base(a, V_AO, TMP)
    a("s_lshl_b32 %s, %s, 1" % (s(S_T0), s(S_UU)))
    a("s_lshr_b32 %s, %s, 1" % (s(S_T1), s(S_J)))
    a("s_add_u32 %s, %s, %s" % (s(S_T0), s(S_T0), s(S_T1)))
    a("s_lshl_b32 %s, %s, 10" % (s(S_T0), s(S_T0)))
    a("s_and_b32 %s, %s, 1" % (s(S_T1), s(S_J)))
    a("s_lshl_b32 %s, %s, 9" % (s(S_T1), s(S_T1)))
    a("s_add_u32 %s, %s, %s" % (s(S_T0), s(S_T0), s(S_T1)))
    a("v_add_u32 %s, %s, %s" % (v(V_AO), s(S_T0), v(V_AO)))
    a("v_add_u32 %s, %d, %s" % (v(V_AHH), 16 * 1024, v(V_AO)))
    act_store_pairs(a, HP, V_AHH, sc)
    a("s_waitcnt lgkmcnt(0)")
    S0 = lambda t: ACC(0, t)
    S1 = lambda t: ACC(1, t)
    PP = lambda t: ACC(2, t)
    for t in range(4):
        a("v_mfma_f32_16x16x16_bf16 %s, %s, %s, %s" % (v(S0(t), 4), v(KP + 2 * t, 2), v(QP + 2 * t, 2), v(BP0 if t == 0 else BP, 4)))
        a("v_mfma_f32_16x16x16_bf16 %s, %s, %s, %s" % (v(S1(t), 4), v(KP + 2 + 2 * t, 2), v(QP + 2 * t, 2), v(BC, 4)))
    a("s_nop 7")
    MX = TMP
    TT = TMP + 4
    for t in range(4):
        a("v_max3_f32 %s, %s, %s, %s" % (v(MX + t), v(S0(t)), v(S0(t) + 1), v(S0(t) + 2)))
    for t in range(4):
        a("v_max3_f32 %s, %s, %s, %s" % (v(MX + t), v(MX + t), v(S0(t) + 3), v(S1(t))))
    for t in range(4):
        a("v_max3_f32 %s, %s, %s, %s" % (v(MX + t), v(MX + t), v(S1(t) + 1), v(S1(t) + 2)))
    for t in range(4):
        a("v_max_f32 %s, %s, %s" % (v(MX + t), v(MX + t), v(S1(t) + 3)))
    for swap in ("v_permlane16_swap_b32", "v_permlane32_swap_b32"):
        for t in range(4):
            a("v_mov_b32 %s, %s" % (v(TT + t), v(MX + t)))
        a("s_nop 1")
        for t in range(4):
            a("%s %s, %s" % (swap, v(MX + t), v(TT + t)))
        a("s_nop 1")
        for t in range(4):
            a("v_max_f32 %s, %s, %s" % (v(MX + t), v(MX + t), v(TT + t)))
    for t in range(4):
        for r in range(4):
            a("v_sub_f32 %s, %s, %s" % (v(S0(t) + r), v(S0(t) + r), v(MX + t)))
            a("v_sub_f32 %s, %s, %s" % (v(S1(t) + r), v(S1(t) + r), v(MX + t)))
    for t in range(4):
        for r in range(4):
            a("v_exp_f32 %s, %s" % (v(S0(t) + r), v(S0(t) + r)))
            a("v_exp_f32 %s, %s" % (v(S1(t) + r), v(S1(t) + r)))
    a("s_nop 0")
    for t in range(4):
        a("v_cvt_pk_bf16_f32 %s, %s, %s" % (v(PP(t)), v(S0(t)), v(S0(t) + 1)))
        a("v_cvt_pk_bf16_f32 %s, %s, %s" % (v(PP(t) + 1), v(S0(t) + 2), v(S0(t) + 3)))
        a("v_cvt_pk_bf16_f32 %s, %s, %s" % (v(PP(t) + 2), v(S1(t)), v(S1(t) + 1)))
        a("v_cvt_pk_bf16_f32 %s, %s, %s" % (v(PP(t) + 3), v(S1(t) + 2), v(S1(t) + 3)))
    a("s_nop 1")
    for t in range(4):
        a("v_mfma_f32_16x16x32_bf16 %s, %s, %s, 0" % (v(S1(t), 4), v(V_ONES, 4), v(PP(t), 4)))
        a("v_mfma_f32_16x16x32_bf16 %s, %s, %s, 0" % (v(S0(t), 4), v(VP + 2 * t, 4), v(PP(t), 4)))
    a("s_nop 7")
    for t in range(4):
        a("v_rcp_f32 %s, %s" % (v(MX + t), v(S1(t))))
    a("s_nop 0")
    for t in range(4):
        for r in range(4):
            a("v_mul_f32 %s, %s, %s" % (v(S0(t) + r), v(MX + t), v(S0(t) + r)))
    OP = HP
    OP = 116
    for t in range(4):
        a("v_cvt_pk_bf16_f32 %s, %s, %s" % (v(OP + 2 * t), v(S0(t)), v(S0(t) + 1)))
        a("v_cvt_pk_bf16_f32 %s, %s, %s" % (v(OP + 2 * t + 1), v(S0(t) + 2), v(S0(t) + 3)))
    act_store_pairs(a, OP, V_AO, sc)


def epilogue_y(a, var, sc):
    m = var.m
    MT, RT = 48, 52
    MTM, RTM = 56, 58
    CS = 60
    CSG4, CSU4 = 76, 80
    HPA, HPB, HM = 84, 92, 100
    TMP = 20
    A_I16, A_G16 = 10, 11
    V_C1 = 12
    V_A, V_B, V_M = 13, 14, 15
    a.comment("---- Y epilogue m=%d ----" % m)
    a("v_and_b32 %s, 15, v0" % v(TMP))
    a("v_lshlrev_b32 %s, 2, %s" % (v(A_I16), v(TMP)))
    a("v_add_u32 %s, %d, %s" % (v(A_I16), LB, v(A_I16)))
    a("v_lshrrev_b32 %s, 4, v0" % v(TMP + 1))
    a("v_lshlrev_b32 %s, 4, %s" % (v(A_G16), v(TMP + 1)))
    a("v_add_u32 %s, %d, %s" % (v(A_G16), LB, v(A_G16)))
    base = (16 + 64 * m) * 4
    for t in range(4):
        a("ds_read_b32 %s, %s offset:%d" % (v(MT + t), v(A_I16), O_MEAN + base + t * 64))
        a("ds_read_b32 %s, %s offset:%d" % (v(RT + t), v(A_I16), O_RSTD + base + t * 64))
    a("s_lshl_b32 %s, %s, 6" % (s(S_T0), s(S_J)))
    a("v_add_u32 %s, %s, %s" % (v(TMP + 2), s(S_T0), v(A_G16)))
    for tau in range(4):
        a("ds_read_b128 %s, %s offset:%d" % (v(CS + 4 * tau, 4), v(TMP + 2), O_CS + 256 * tau))
    a("s_waitcnt lgkmcnt(0)")
    a("v_lshrrev_b32 %s, 5, v0" % v(TMP + 3))
    a("v_lshl_add_u32 %s, %s, 6, %s" % (v(TMP + 3), v(TMP + 3), v(A_I16)))
    for p in range(2):
        a("ds_read_b32 %s, %s offset:%d" % (v(MTM + p), v(TMP + 3), O_MEAN + base + p * 128))
        a("ds_read_b32 %s, %s offset:%d" % (v(RTM + p), v(TMP + 3), O_RSTD + base + p * 128))
    a("v_and_b32 %s, 16, v0" % v(TMP + 4))
    a("v_add_u32 %s, %s, %s" % (v(TMP + 4), s(S_T0), v(TMP + 4)))
    a("v_add_u32 %s, %d, %s" % (v(TMP + 4), LB, v(TMP + 4)))
    a("ds_read_b128 %s, %s offset:%d" % (v(CSG4, 4), v(TMP + 4), O_CS + 1024))
    a("ds_read_b128 %s, %s offset:%d" % (v(CSU4, 4), v(TMP + 4), O_CS + 1024 + 32))
    a("v_mov_b32 %s, %s" % (v(V_C1), hexf(C1)))
    for t in range(4):
        gelu_tile(a, ACC(0, t), ACC(1, t), MT + t, RT + t, CS, CS + 4, TMP + 8, HPA + 2 * t, V_C1)
    act_addr_base(a, TMP + 5, TMP)
    a("s_lshl_b32 %s, %s, 4" % (s(S_T0), s(S_COL0)))
    a("s_lshl_b32 %s, %s, 9" % (s(S_T1), s(S_J)))
    a("s_add_u32 %s, %s, %s" % (s(S_T0), s(S_T0), s(S_T1)))
    a("s_add_u32 %s, %s, 16384" % (s(S_T0), s(S_T0)))
    a("v_add_u32 %s, %s, %s" % (v(V_A), s(S_T0), v(TMP + 5)))
    a("v_add_u32 %s, %d, %s" % (v(V_B), 64 * 32, v(V_A)))
    act_store_pairs(a, HPA, V_A, sc)
    for t in range(4):
        gelu_tile(a, ACC(2, t), ACC(3, t), MT + t, RT + t, CS + 8, CS + 12, TMP + 8, HPB + 2 * t, V_C1)
    act_store_pairs(a, HPB, V_B, sc)
    a("s_waitcnt lgkmcnt(0)")
    for p in range(2):
        for r in range(4):
            a("v_permlane32_swap_b32 %s, %s" % (v(ACC(4, 2 * p) + r), v(ACC(4, 2 * p + 1) + r)))
    a("s_nop 1")
    for p in range(2):
        gelu_tile(a, ACC(4, 2 * p), ACC(4, 2 * p + 1), MTM + p, RTM + p, CSG4, CSU4, TMP + 8, HM + 2 * p, V_C1)
    a("s_nop 1")
    a("v_permlane16_swap_b32 %s, %s" % (v(HM), v(HM + 2)))
    a("v_permlane16_swap_b32 %s, %s" % (v(HM + 1), v(HM + 3)))
    a("v_lshrrev_b32 %s, 4, v0" % v(TMP))
    a("v_and_b32 %s, 1, %s" % (v(TMP + 1), v(TMP)))
    a("v_lshlrev_b32 %s, 1, %s" % (v(TMP + 1), v(TMP + 1)))
    a("v_lshrrev_b32 %s, 1, %s" % (v(TMP), v(TMP)))
    a("v_add_u32 %s, %s, %s" % (v(TMP), v(TMP), v(TMP + 1)))
    a("s_lshl_b32 %s, %s, 3" % (s(S_T0), s(S_RB)))
    a("s_add_u32 %s, %s, %d" % (s(S_T0), s(S_T0), 4 * m))
    a("v_add_u32 %s, %s, %s" % (v(TMP), s(S_T0), v(TMP)))
    a("s_mov_b32 %s, %d" % (s(S_T1), ACT_T))
    a("v_mul_lo_u32 %s, %s, %s" % (v(TMP), v(TMP), s(S_T1)))
    a("v_and_b32 %s, 15, v0" % v(TMP + 1))
    a("v_lshl_add_u32 %s, %s, 4, %s" % (v(TMP), v(TMP + 1), v(TMP)))
    a("s_lshl_b32 %s, %s, 4" % (s(S_T0), s(S_COL2)))
    a("s_lshl_b32 %s, %s, 8" % (s(S_T1), s(S_J)))
    a("s_add_u32 %s, %s, %s" % (s(S_T0), s(S_T0), s(S_T1)))
    a("s_add_u32 %s, %s, 16384" % (s(S_T0), s(S_T0)))
    a("v_add_u32 %s, %s, %s" % (v(V_M), s(S_T0), v(TMP)))
    a("buffer_store_dwordx4 %s, %s, %s, 0 offen %s" % (v(HM, 4), v(V_M), s(SRD_WS, 4), sc))


def emit_variant(a, var, end_label, sc="sc1"):
    L = var.L
    a.label("K1_%s" % var.name)
    w_voffset_full(a, var.pitch)
    if var.typ == 'X':
        a("s_lshl_b32 %s, %s, 7" % (s(S_COL0), s(S_UU)))
        if var.m == 0:
            a("s_add_u32 %s, %s, 1024" % (s(S_COL1), s(S_COL0)))
            a("s_add_u32 %s, %s, 2048" % (s(S_COL2), s(S_COL0)))
        halo_issue(a)
        nh = 2
    else:
        y_cols(a)
        nh = 0
        if var.m == 1:
            w_voffset_g4(a)
            a("s_cmp_lt_u32 %s, 2" % s(S_J))
            a("s_cselect_b32 %s, %s, %s" % (s(SRD_MIX), s(SRD_G), s(SRD_U)))
            a("s_cselect_b32 %s, %s, %s" % (s(SRD_MIX + 1), s(SRD_G + 1), s(SRD_U + 1)))
            a("s_mov_b32 %s, 0x%x" % (s(SRD_MIX + 2), 512 * 3584))
            a("s_mov_b32 %s, 0x20000" % s(SRD_MIX + 3))
    for t in x_issue(0):
        a(t)
    n_after_row = nh + 1
    for vs in (-4, -3, -2):
        a_next = wslot_next()
        for g in w_issue(var):
            for t in g:
                a(t)
        for t in x_issue(h=1 if vs % 2 == 0 else 0):
            a(t)
        for t in a_next:
            a(t)
        a("s_mov_b32 %s, %s" % (s(S_WSLOT), s(S_WNEXT)))
        n_after_row += L
    for i in range(84):
        a("v_mov_b32 %s, 0" % v(128 + i))
    a("s_waitcnt vmcnt(%d)" % n_after_row)
    stats_compute(a)
    a("s_waitcnt vmcnt(%d)" % (2 * L))
    a("s_barrier")
    for g in w_issue(var):
        for t in g:
            a(t)
    for t in x_issue(0):
        a(t)
    a("s_mov_b32 %s, 0" % s(S_WNEXT))
    for t in frag_addr(var, kk=0, advance_x=False, wslot_reg=S_WNEXT):
        a(t)
    for t in frag_reads(var, 0):
        a(t)
    a("s_mov_b32 %s, 0" % s(S_WSLOT))
    loop = "K1_%s_loop" % var.name
    a.label(loop)
    emit_step(a, var, 0, 2 * L, cs_hook=lambda aa: colsum_block(aa, var, 0))
    emit_step(a, var, 1, 2 * L, cs_hook=lambda aa: colsum_block(aa, var, 1))
    a("s_sub_u32 %s, %s, 1" % (s(S_IT), s(S_IT)))
    a("s_cmp_lg_u32 %s, 0" % s(S_IT))
    a("s_cbranch_scc1 %s" % loop)
    tl = tail_loads(var)
    emit_step(a, var, 0, 2 * L, dma=False, extra=[(2 + i // 2, t) for i, t in enumerate(tl)])
    emit_step(a, var, 1, L + 4, dma=False)
    emit_step(a, var, 0, 4, dma=False)
    tr = tail_reduce()
    emit_step(a, var, 1, 0, dma=False, prefetch=False, extra=[(1 + i // 3, t) for i, t in enumerate(tr)])
    tail_publish(a)
    if var.typ == 'X':
        epilogue_x(a, var, sc)
    else:
        epilogue_y(a, var, sc)
    a("s_branch %s" % end_label)


def emit_k1(a, end_label):
    prologue_common(a)
    a("s_and_b32 %s, %s, 1" % (s(S_T0), s(S_CGI)))
    a("s_lshr_b32 %s, %s, 2" % (s(S_T1), s(S_W)))
    a("s_lshl_b32 %s, %s, 1" % (s(S_T0), s(S_T0)))
    a("s_or_b32 %s, %s, %s" % (s(S_T0), s(S_T0), s(S_T1)))
    a("s_cmp_eq_u32 %s, 1" % s(S_T0))
    a("s_cbranch_scc1 K1_X1")
    a("s_cmp_eq_u32 %s, 2" % s(S_T0))
    a("s_cbranch_scc1 K1_Y0")
    a("s_cmp_eq_u32 %s, 3" % s(S_T0))
    a("s_cbranch_scc1 K1_Y1")
    for typ, m in (('X', 0), ('X', 1), ('Y', 0), ('Y', 1)):
        emit_variant(a, Variant(typ, m), end_label)
```

```python
from asmlib import *
from layout import *

P_X, P_WO, P_WD, P_OUT, P_WS = 4, 6, 8, 10, 12
R_X, R_W, R_ACT, R_OUT = 16, 20, 24, 28
S_TG, S_CG2, S_W, S_MI, S_KH = 40, 41, 43, 44, 45
S_WROW = 46
S_AOFF = 47
S_SLOTW, S_SLOTR = 48, 49
S_M0B = 50
S_IT = 51
S_T0, S_T1, S_T2, S_T3 = 60, 61, 62, 63

V_WVO = 1
V_AVO = 2
V_WL = 4
V_WA = 8
V_XO = 12
V_XR = 16
V_T = 20
WF = lambda st, u: 48 + st * 16 + u * 4
ACT = lambda i: 80 + (i % 12) * 4
ACC_D = lambda u: 128 + u * 4
ACC_S = lambda u: 144 + u * 4

SLOT = 32768


def srd(a, base, ptr, nbytes):
    a("s_mov_b32 %s, %s" % (s(base), s(ptr)))
    a("s_and_b32 %s, %s, 0xffff" % (s(base + 1), s(ptr + 1)))
    a("s_mov_b32 %s, 0x%x" % (s(base + 2), nbytes))
    a("s_mov_b32 %s, 0x20000" % s(base + 3))


def w_issue(a):
    a("s_add_u32 %s, %s, %s" % (s(S_T0), s(S_SLOTW), s(S_M0B)))
    for i in range(4):
        a("s_add_u32 m0, %s, %d" % (s(S_T0), i * 8192))
        a("s_add_u32 %s, %s, %d" % (s(S_T1), s(S_WROW), i * 32768))
        a("buffer_load_dwordx4 %s, %s, %s offen lds" % (v(V_WVO), s(R_W, 4), s(S_T1)))
    a("s_add_u32 %s, %s, %d" % (s(S_WROW), s(S_WROW), 4 * 32768))
    a("s_add_u32 %s, %s, %d" % (s(S_SLOTW), s(S_SLOTW), SLOT))
    a("s_and_b32 %s, %s, 0x%x" % (s(S_SLOTW), s(S_SLOTW), 4 * SLOT - 1))


def switch_to_wd(a):
    lab = a.newlabel("nosw")
    a("s_cmp_eq_u32 %s, 0" % s(S_KH))
    a("s_cbranch_scc0 %s" % lab)
    srd(a, R_W, P_WD, 1792 * 1024)
    a("s_mov_b32 %s, 0" % s(S_WROW))
    a.label(lab)


def act_issue(a, i, sc):
    a("buffer_load_dwordx4 %s, %s, %s, %s offen %s" % (v(ACT(i), 4), v(V_AVO), s(R_ACT, 4), s(S_AOFF), sc))
    a("s_add_u32 %s, %s, 1024" % (s(S_AOFF), s(S_AOFF)))


def reads(a, st, step):
    for u in range(4):
        a("ds_read_b64_tr_b16 %s, %s offset:%d" % (v(WF(st, u), 2), v(V_WA + u), step * 8192))
        a("ds_read_b64_tr_b16 %s, %s offset:%d" % (v(WF(st, u) + 2, 2), v(V_WA + u), step * 8192 + 512))


def mm(a, st, i):
    for u in range(4):
        d = v(ACC_D(u), 4)
        a("v_mfma_f32_16x16x32_bf16 %s, %s, %s, %s" % (d, v(WF(st, u), 4), v(ACT(i), 4), d))


def super_step(a, slot_in_iter, vm_top, vm_steps, issue_w, issue_act, sc, pre_issue=None, acc_switch=False):
    a("s_waitcnt vmcnt(%d)" % vm_top)
    a("s_barrier")
    for u in range(4):
        a("v_add_u32 %s, %s, %s" % (v(V_WA + u), s(S_SLOTR), v(V_WL + u)))
    reads(a, 0, 0)
    a("s_add_u32 %s, %s, %d" % (s(S_SLOTR), s(S_SLOTR), SLOT))
    a("s_and_b32 %s, %s, 0x%x" % (s(S_SLOTR), s(S_SLOTR), 4 * SLOT - 1))
    if pre_issue:
        pre_issue(a)
    if issue_w:
        w_issue(a)
    if acc_switch:
        lab = a.newlabel("noacc")
        a("s_cmp_eq_u32 %s, 0" % s(S_KH))
        a("s_cbranch_scc0 %s" % lab)
        a("s_cmp_eq_u32 %s, 1" % s(S_IT))
        a("s_cbranch_scc0 %s" % lab)
        a("s_nop 7")
        for r in range(16):
            a("v_mov_b32 %s, %s" % (v(ACC_S(0) + r), v(ACC_D(0) + r)))
        for r in range(16):
            a("v_mov_b32 %s, 0" % v(ACC_D(0) + r))
        a("s_nop 1")
        a.label(lab)
    for i in range(4):
        idx = slot_in_iter * 4 + i
        st = i & 1
        a("s_waitcnt vmcnt(%d) lgkmcnt(0)" % vm_steps[i])
        if i + 1 < 4:
            reads(a, 1 - st, i + 1)
        mm(a, st, idx)
        if issue_act:
            act_issue(a, idx, sc)


def emit_k2_setup(a):
    a.comment("---- K2 setup ----")
    a("s_load_dwordx2 %s, s[0:1], 0" % s(P_X, 2))
    a("s_load_dwordx2 %s, s[0:1], 16" % s(P_WO, 2))
    a("s_load_dwordx4 %s, s[0:1], 48" % s(P_WD, 4))
    a("s_load_dwordx2 %s, s[0:1], 72" % s(P_WS, 2))


def emit_k2(a, fresh=True, sc=""):
    emit_k2_setup(a)
    if fresh:
        a("v_lshrrev_b32 v1, 6, v0")
        a("v_and_b32 v0, 63, v0")
        a("v_readfirstlane_b32 %s, v1" % s(S_W))
    a("s_and_b32 %s, s2, 7" % s(S_T0))
    a("s_lshr_b32 %s, s2, 3" % s(S_T1))
    a("s_lshl_b32 %s, %s, 2" % (s(S_T0), s(S_T0)))
    a("s_lshr_b32 %s, %s, 3" % (s(S_T2), s(S_T1)))
    a("s_add_u32 %s, %s, %s" % (s(S_TG), s(S_T0), s(S_T2)))
    a("s_and_b32 %s, %s, 7" % (s(S_CG2), s(S_T1)))
    a("s_and_b32 %s, %s, 3" % (s(S_MI), s(S_W)))
    a("s_lshr_b32 %s, %s, 2" % (s(S_KH), s(S_W)))
    a("s_lshl_b32 %s, %s, 12" % (s(S_M0B), s(S_KH)))
    a("s_lshl_b32 %s, %s, 10" % (s(S_T0), s(S_MI)))
    a("s_add_u32 %s, %s, %s" % (s(S_M0B), s(S_M0B), s(S_T0)))
    a("s_mov_b32 %s, 0" % s(S_SLOTW))
    a("s_mov_b32 %s, 0" % s(S_SLOTR))
    a("s_mov_b32 %s, 0" % s(S_IT))
    T = V_T
    a("v_lshrrev_b32 %s, 3, v0" % v(T))
    a("s_lshl_b32 %s, %s, 3" % (s(S_T0), s(S_MI)))
    a("v_add_u32 %s, %s, %s" % (v(T), s(S_T0), v(T)))
    a("v_lshlrev_b32 %s, 10, %s" % (v(T), v(T)))
    a("v_bfe_u32 %s, v0, 4, 1" % v(T + 1))
    a("s_and_b32 %s, %s, 1" % (s(S_T0), s(S_MI)))
    a("s_lshl_b32 %s, %s, 1" % (s(S_T0), s(S_T0)))
    a("v_or_b32 %s, %s, %s" % (v(T + 1), s(S_T0), v(T + 1)))
    a("v_bfe_u32 %s, v0, 1, 2" % v(T + 2))
    a("v_xor_b32 %s, %s, %s" % (v(T + 1), v(T + 1), v(T + 2)))
    a("v_lshl_add_u32 %s, %s, 5, %s" % (v(T), v(T + 1), v(T)))
    a("v_and_b32 %s, 1, v0" % v(T + 2))
    a("v_lshl_add_u32 %s, %s, 4, %s" % (v(T), v(T + 2), v(T)))
    a("s_lshl_b32 %s, %s, 7" % (s(S_T0), s(S_CG2)))
    a("v_add_u32 %s, %s, %s" % (v(V_WVO), s(S_T0), v(T)))
    a("s_lshl_b32 %s, %s, 2" % (s(S_T0), s(S_TG)))
    a("s_add_u32 %s, %s, %s" % (s(S_T0), s(S_T0), s(S_MI)))
    a("s_mul_i32 %s, %s, %d" % (s(S_T0), s(S_T0), ACT_T))
    a("v_lshlrev_b32 %s, 4, v0" % v(T))
    a("v_add_u32 %s, %s, %s" % (v(V_AVO), s(S_T0), v(T)))
    a("s_mul_i32 %s, %s, %d" % (s(S_AOFF), s(S_KH), 36 * 1024))
    a("v_lshrrev_b32 %s, 4, v0" % v(T + 1))
    a("v_bfe_u32 %s, v0, 2, 2" % v(T + 2))
    a("v_lshl_add_u32 %s, %s, 3, %s" % (v(T + 2), v(T + 1), v(T + 2)))
    a("v_lshlrev_b32 %s, 7, %s" % (v(T + 2), v(T + 2)))
    a("v_and_b32 %s, 3, v0" % v(T + 3))
    a("v_lshl_add_u32 %s, %s, 3, %s" % (v(T + 2), v(T + 3), v(T + 2)))
    a("s_lshl_b32 %s, %s, 12" % (s(S_T0), s(S_KH)))
    a("v_add_u32 %s, %s, %s" % (v(T + 2), s(S_T0), v(T + 2)))
    a("v_bfe_u32 %s, v0, 3, 2" % v(T + 3))
    for u in range(4):
        a("v_xor_b32 %s, %d, %s" % (v(T + 4), u, v(T + 3)))
        a("v_lshl_add_u32 %s, %s, 5, %s" % (v(V_WL + u), v(T + 4), v(T + 2)))
    a("s_lshl_b32 %s, %s, 6" % (s(S_T0), s(S_TG)))
    a("s_lshl_b32 %s, %s, 4" % (s(S_T1), s(S_MI)))
    a("s_add_u32 %s, %s, %s" % (s(S_T0), s(S_T0), s(S_T1)))
    a("v_and_b32 %s, 15, v0" % v(T + 4))
    a("v_add_u32 %s, %s, %s" % (v(T + 4), s(S_T0), v(T + 4)))
    a("v_lshlrev_b32 %s, 10, %s" % (v(T + 4), v(T + 4)))
    a("v_and_b32 %s, 1, %s" % (v(T + 5), v(T + 1)))
    a("v_lshl_add_u32 %s, %s, 5, %s" % (v(T + 4), v(T + 5), v(T + 4)))
    a("v_lshrrev_b32 %s, 1, %s" % (v(T + 5), v(T + 1)))
    a("v_lshl_add_u32 %s, %s, 4, %s" % (v(T + 4), v(T + 5), v(T + 4)))
    a("s_lshl_b32 %s, %s, 7" % (s(S_T0), s(S_CG2)))
    a("s_lshl_b32 %s, %s, 6" % (s(S_T1), s(S_KH)))
    a("s_add_u32 %s, %s, %s" % (s(S_T0), s(S_T0), s(S_T1)))
    a("v_add_u32 %s, %s, %s" % (v(V_XO), s(S_T0), v(T + 4)))
    for r in range(16):
        a("v_mov_b32 %s, 0" % v(ACC_D(0) + r))
    a("s_waitcnt lgkmcnt(0)")
    srd(a, R_X, P_X, 2048 * 1024)
    srd(a, R_ACT, P_WS, WS_USED)
    srd(a, R_OUT, P_OUT, 2048 * 1024)
    a("s_cmp_eq_u32 %s, 0" % s(S_KH))
    a("s_cselect_b32 %s, %s, %s" % (s(R_W), s(P_WO), s(P_WD)))
    a("s_cselect_b32 %s, %s, %s" % (s(R_W + 1), s(P_WO + 1), s(P_WD + 1)))
    a("s_cselect_b32 %s, 0, %d" % (s(S_WROW), 20 * 32768))
    a("s_mov_b32 %s, 0x%x" % (s(S_T0), 512 * 1024))
    a("s_mov_b32 %s, 0x%x" % (s(S_T1), 1792 * 1024))
    a("s_cselect_b32 %s, %s, %s" % (s(R_W + 2), s(S_T0), s(S_T1)))
    a("s_and_b32 %s, %s, 0xffff" % (s(R_W + 1), s(R_W + 1)))
    a("s_mov_b32 %s, 0x20000" % s(R_W + 3))
    a("buffer_load_dwordx4 %s, %s, %s, 0 offen" % (v(V_XR, 4), v(V_XO), s(R_X, 4)))
    for U in range(3):
        w_issue(a)
        for i in range(4):
            act_issue(a, U * 4 + i, sc)


def emit_k2_main(a, sc=""):
    loop = a.newlabel("k2loop")
    a.label(loop)

    def pre1(aa):
        lab = aa.newlabel("pre1")
        aa("s_cmp_eq_u32 %s, 0" % s(S_IT))
        aa("s_cbranch_scc0 %s" % lab)
        switch_to_wd(aa)
        aa.label(lab)
    super_step(a, 0, 20, [23] * 4, True, True, sc)
    super_step(a, 1, 20, [23] * 4, True, True, sc, pre_issue=pre1, acc_switch=True)
    super_step(a, 2, 20, [23] * 4, True, True, sc)
    a("s_add_u32 %s, %s, 1" % (s(S_IT), s(S_IT)))
    a("s_cmp_lt_u32 %s, 2" % s(S_IT))
    a("s_cbranch_scc1 %s" % loop)
    super_step(a, 0, 20, [19, 18, 17, 16], False, False, sc)
    super_step(a, 1, 12, [11, 10, 9, 8], False, False, sc)
    super_step(a, 2, 4, [3, 2, 1, 0], False, False, sc)
    T = V_T
    XB = 0
    a("s_nop 7")
    a("s_barrier")
    a("s_mul_i32 %s, %s, 6144" % (s(S_T0), s(S_MI)))
    a("v_lshlrev_b32 %s, 4, v0" % v(T))
    a("v_add_u32 %s, %s, %s" % (v(T), s(S_T0), v(T)))
    k1 = a.newlabel("k2_kh1")
    join = a.newlabel("k2_join")
    a("s_cmp_eq_u32 %s, 0" % s(S_KH))
    a("s_cbranch_scc0 %s" % k1)
    a("ds_write_b128 %s, %s" % (v(T), v(ACC_S(2), 4)))
    a("ds_write_b128 %s, %s offset:1024" % (v(T), v(ACC_S(3), 4)))
    a("ds_write_b128 %s, %s offset:2048" % (v(T), v(ACC_D(2), 4)))
    a("ds_write_b128 %s, %s offset:3072" % (v(T), v(ACC_D(3), 4)))
    a("s_waitcnt lgkmcnt(0)")
    a("s_barrier")
    a("ds_read_b128 %s, %s offset:4096" % (v(48, 4), v(T)))
    a("ds_read_b128 %s, %s offset:5120" % (v(52, 4), v(T)))
    a("s_waitcnt lgkmcnt(0)")
    for r in range(8):
        a("v_add_f32 %s, %s, %s" % (v(ACC_D(0) + r), v(ACC_D(0) + r), v(48 + r)))
    for r in range(8):
        a("v_mov_b32 %s, %s" % (v(56 + r), v(ACC_S(0) + r)))
        a("v_mov_b32 %s, %s" % (v(64 + r), v(ACC_D(0) + r)))
    a("s_branch %s" % join)
    a.label(k1)
    a("ds_write_b128 %s, %s offset:4096" % (v(T), v(ACC_D(0), 4)))
    a("ds_write_b128 %s, %s offset:5120" % (v(T), v(ACC_D(1), 4)))
    a("s_waitcnt lgkmcnt(0)")
    a("s_barrier")
    a("ds_read_b128 %s, %s" % (v(56, 4), v(T)))
    a("ds_read_b128 %s, %s offset:1024" % (v(60, 4), v(T)))
    a("ds_read_b128 %s, %s offset:2048" % (v(48, 4), v(T)))
    a("ds_read_b128 %s, %s offset:3072" % (v(52, 4), v(T)))
    a("s_waitcnt lgkmcnt(0)")
    for r in range(8):
        a("v_add_f32 %s, %s, %s" % (v(64 + r), v(ACC_D(2) + r), v(48 + r)))
    a.label(join)
    S, D, E = 56, 64, 72
    for r in range(8):
        a("v_mul_f32 %s, %s, %s" % (v(E + r), hexf(-1.4426950408889634), v(D + r)))
    for r in range(8):
        a("v_exp_f32 %s, %s" % (v(E + r), v(E + r)))
    for r in range(8):
        a("v_mul_f32 %s, %s, %s" % (v(S + r), v(S + r), v(D + r)))
    for r in range(8):
        a("v_add_f32 %s, 1.0, %s" % (v(E + r), v(E + r)))
    for r in range(8):
        a("v_rcp_f32 %s, %s" % (v(E + r), v(E + r)))
    a("s_nop 0")
    for r in range(8):
        a("v_mul_f32 %s, %s, %s" % (v(S + r), v(S + r), v(E + r)))
    a("s_nop 1")
    for r in range(4):
        a("v_permlane16_swap_b32 %s, %s" % (v(S + r), v(S + 4 + r)))
    for i in range(4):
        a("v_lshlrev_b32 %s, 16, %s" % (v(D + 2 * i), v(V_XR + i)))
        a("v_and_b32 %s, 0xffff0000, %s" % (v(D + 2 * i + 1), v(V_XR + i)))
    for r in range(8):
        a("v_add_f32 %s, %s, %s" % (v(S + r), v(S + r), v(D + r)))
    for i in range(4):
        a("v_cvt_pk_bf16_f32 %s, %s, %s" % (v(E + i), v(S + 2 * i), v(S + 2 * i + 1)))
    a("buffer_store_dwordx4 %s, %s, %s, 0 offen" % (v(E, 4), v(V_XO), s(R_OUT, 4)))
```

```python
ACT_T = 72 * 1024
WS_ACT = 0
WS_STATS = 0x900000
WS_CSP = 0x904000
WS_FLAGS = 0x960000
WS_USED = 0x970000
WSLOT = 20480
XRING = 4 * WSLOT
HALO = XRING + 3 * 16384
LB = HALO + 16384
O_MEAN = 0
O_RSTD = 576
O_CS = 1152
O_XBUF = O_CS + 1280
K1_LDS = LB + O_XBUF + 4 * 1536
```

```python
import sys
from asmlib import *
from layout import *
import k1, k2

NAME = "recurrent_scan__sliding_local_dilated__glu_gated_geglu__prompt"

HEADER = """; Kernarg layout (80 bytes, ptrs only, base s[0:1]):
"""

def descriptor(name, vgpr=256, sgpr=96):
    return """.section .rodata,"a"
.p2align 6
.amdhsa_kernel %s
  .amdhsa_next_free_vgpr %d
  .amdhsa_next_free_sgpr %d
  .amdhsa_accum_offset %d
  .amdhsa_group_segment_fixed_size 0
  .amdhsa_kernarg_size 80
  .amdhsa_user_sgpr_count 2
  .amdhsa_user_sgpr_kernarg_segment_ptr 1
  .amdhsa_system_sgpr_workgroup_id_x 1
  .amdhsa_float_denorm_mode_32 3
.end_amdhsa_kernel
.text
""" % (name, vgpr, sgpr, vgpr)


def kernel_head(a, name):
    a.raw(".globl %s" % name)
    a.raw(".p2align 8")
    a.raw(".type %s,@function" % name)
    a.raw("%s:" % name)


def build_multi():
    a = Asm()
    a.raw(HEADER.rstrip())
    a.raw("; @launch kernel=phase1_kernel grid=(256,1,1) block=(512,1,1) lds=%d" % K1_LDS)
    a.raw("; @launch kernel=phase1_kernel grid=(256,1,1) block=(512,1,1) lds=%d" % K1_LDS)
    a.raw("; @launch kernel=phase2_kernel grid=(256,1,1) block=(512,1,1) lds=131072")
    a.raw('.amdgcn_target "amdgcn-amd-amdhsa--gfx950"')
    a.raw(".text")
    kernel_head(a, "phase1_kernel")
    a("s_cmp_ge_u32 s2, 256")
    a("s_cbranch_scc1 K1_end")
    k1.emit_k1(a, "K1_end")
    a.label("K1_end")
    a("s_endpgm")
    kernel_head(a, "phase2_kernel")
    a("s_cmp_ge_u32 s2, 256")
    a("s_cbranch_scc1 K2_end")
    k2.emit_k2(a, fresh=True)
    k2.emit_k2_main(a)
    a.label("K2_end")
    a("s_endpgm")
    a.raw(descriptor("phase1_kernel"))
    a.raw(descriptor("phase2_kernel"))
    return a.text()


if __name__ == "__main__":
    out = sys.argv[1] if len(sys.argv) > 1 else "cdna_kernels/%s.s" % NAME
    mode = sys.argv[2] if len(sys.argv) > 2 else "multi"
    txt = build_multi()
    open(out, "w").write(txt)
    print("wrote", out, len(txt), "bytes")
```

```python
import struct


def f2u(x):
    return struct.unpack("<I", struct.pack("<f", x))[0]


def hexf(x):
    return "0x%08x" % f2u(x)


def v(i, n=1):
    return "v%d" % i if n == 1 else "v[%d:%d]" % (i, i + n - 1)


def s(i, n=1):
    return "s%d" % i if n == 1 else "s[%d:%d]" % (i, i + n - 1)


class Asm:
    def __init__(self):
        self.lines = []
        self.uid = 0

    def __call__(self, text):
        for ln in text.split("\n"):
            self.lines.append("  " + ln.strip() if ln.strip() else "")

    def raw(self, text):
        self.lines.append(text)

    def label(self, name):
        self.lines.append(name + ":")

    def newlabel(self, base):
        self.uid += 1
        return "L_%s_%d" % (base, self.uid)

    def comment(self, text):
        self.lines.append("  ; " + text)

    def text(self):
        return "\n".join(self.lines) + "\n"


def interleave(main, fillers):
    out = []
    by = {}
    for pos, t in fillers:
        by.setdefault(pos, []).append(t)
    for t in by.get(-1, []):
        out.append(t)
    for i, m in enumerate(main):
        out.append(m)
        for t in by.get(i, []):
            out.append(t)
    for pos in sorted(by):
        if pos >= len(main):
            out.extend(by[pos])
    return out


STAMPS = {"on": False, "n": 0}
STAMP_BASE = 76
WS_STAMP = 0x1000000


def stamp(a, idx):
    if not STAMPS["on"]:
        return
    a("s_memtime %s" % s(STAMP_BASE + 2 * idx, 2))


def stamp_real(a, idx):
    if not STAMPS["on"]:
        return
    a("s_memrealtime %s" % s(STAMP_BASE + 2 * idx, 2))


def stamp_flush(a, s_wave, s_ws, kernel_slot, nst=12):
    if not STAMPS["on"]:
        return
    a("s_waitcnt lgkmcnt(0)")
    a("s_lshl_b32 s60, s2, 3")
    a("s_add_u32 s60, s60, %s" % s(s_wave))
    a("s_lshl_b32 s60, s60, 7")
    a("s_add_u32 s60, s60, 0x%x" % (WS_STAMP + kernel_slot * 0x80000))
    a("s_add_u32 s100, %s, s60" % s(s_ws))
    a("s_addc_u32 s101, %s, 0" % s(s_ws + 1))
    a("v_mov_b32 v250, 0")
    for i in range(nst):
        a("v_mov_b32 v252, %s" % s(STAMP_BASE + 2 * i))
        a("v_mov_b32 v253, %s" % s(STAMP_BASE + 2 * i + 1))
        a("global_store_dwordx2 v250, v[252:253], s[100:101] offset:%d" % (8 * i))
        a("s_nop 1")


import os
EXP = set(os.environ.get("EXP", "").split(","))
```

```python
from asmlib import *
from layout import *

S_X, S_Q, S_G, S_U, S_WS, S_OUT = 4, 6, 8, 10, 12, 14
SRD_X, SRD_Q, SRD_G, SRD_U, SRD_WS, SRD_MIX = 16, 20, 24, 28, 32, 36
R_W, R_OUT = 20, 24
S_RB, S_CGI, S_UU, S_W, S_J, S_M, S_R0B = 40, 41, 42, 43, 44, 45, 46
S_KOFF = 47
S_M0X = 48
S_COL0, S_COL1, S_COL2 = 49, 50, 51
S_XO, S_XM0, S_XSLOTR, S_HK = 52, 53, 54, 55
S_IT, S_EV0, S_EV1 = 56, 57, 59
S_M0W = 58
S_T0, S_T1, S_T2, S_T3 = 60, 61, 62, 63
S_EX = 64
S2_WROW, S2_AOFF, S2_M0B, S2_TG = 66, 67, 68, 69
S_WO, S_WD = 70, 72
S2_CG2 = 74
S_XM0END = 75
S_SPIN = 47

V_WVO = 1
V_XVO = 4
V_XL = 6
V_HL = 8
V_WL, V_WL3, V_WM, V_WM3 = 10, 11, 12, 13
V_XA, V_HA = 14, 15
V_ONES = 16
V_T = 20
V_TAG, V_W2VO, V_CSST, V_PADDR, V_PRES, V_DUMMY = 40, 41, 42, 43, 44, 45
WF = lambda st, t: 48 + st * 20 + t * 4
XF = lambda st, t: 88 + st * 20 + t * 4
ACC = lambda tau, t: 128 + (tau * 4 + t) * 4
V_AH = 208
V_CSP = 212
V_STAT = 224
V_CSTMP = 226
BP, BC, BP0 = 232, 236, 240

OOB = 0x7FFFFF00
SPIN_MAX = 1 << 18

C0 = -2.0 * 0.7978845608028654 * 1.4426950408889634
C1 = C0 * 0.044715
LOG2E = 1.4426950408889634


class Cfg:
    merged = True
    sc = "sc1"


def srd(a, base, ptr, nbytes):
    a("s_mov_b32 %s, %s" % (s(base), s(ptr)))
    a("s_and_b32 %s, %s, 0xffff" % (s(base + 1), s(ptr + 1)))
    a("s_mov_b32 %s, 0x%x" % (s(base + 2), nbytes))
    a("s_mov_b32 %s, 0x20000" % s(base + 3))


def allreduce16(a, regs, op="v_add_f32"):
    for ror in (8, 4, 2, 1):
        for r in regs:
            a("%s_dpp %s, %s, %s row_ror:%d row_mask:0xf bank_mask:0xf" % (op, v(r), v(r), v(r), ror))
        pad = 2 - (len(regs) - 1)
        if pad > 0:
            a("s_nop %d" % (pad - 1))


def allreduce_rows(a, r, tmp, op="v_add_f32"):
    for swap in ("v_permlane16_swap_b32", "v_permlane32_swap_b32"):
        a("v_mov_b32 %s, %s" % (v(tmp), v(r)))
        a("s_nop 1")
        a("%s %s, %s" % (swap, v(r), v(tmp)))
        a("s_nop 1")
        a("%s %s, %s, %s" % (op, v(r), v(r), v(tmp)))
        a("s_nop 0")


class Variant:
    def __init__(self, typ, m):
        self.typ = typ
        self.m = m
        if typ == 'X' and m == 0:
            self.loads = [(SRD_Q, V_WVO, 0), (SRD_Q, V_WVO + 1, 1), (SRD_Q, V_WVO + 2, 2)]
            self.pitch = 3072
        elif typ == 'X':
            self.loads = [(SRD_G, V_WVO, 3), (SRD_U, V_WVO, 4)]
            self.pitch = 3584
        elif m == 0:
            self.loads = [(SRD_G, V_WVO, 0), (SRD_U, V_WVO, 1), (SRD_G, V_WVO + 1, 2)]
            self.pitch = 3584
        else:
            self.loads = [(SRD_U, V_WVO + 1, 3), (SRD_MIX, V_WVO + 2, 4)]
            self.pitch = 3584
        self.L = len(self.loads) + 1
        self.name = "%s%d" % (typ, m)
        self.nm = 21 if typ == 'X' else 20


def w_load(var, i, slot):
    srdr, vo, q = var.loads[i]
    return (["s_add_u32 m0, %s, %d" % (s(S_M0W), slot * WSLOT + q * 4096)],
            ["buffer_load_dwordx4 %s, %s, %s offen lds" % (v(vo), s(srdr, 4), s(S_KOFF))])


def koff_adv(var):
    st = 32 * var.pitch
    return ["s_add_u32 %s, %s, %d" % (s(S_KOFF), s(S_KOFF), st),
            "s_cmp_eq_u32 %s, %d" % (s(S_KOFF), 16 * st),
            "s_cselect_b32 %s, 0, %s" % (s(S_KOFF), s(S_KOFF))]


def x_load(h):
    return (["s_add_u32 m0, %s, %d" % (s(S_XM0), h * 8192)],
            ["buffer_load_dwordx4 %s, %s, %s offen lds" % (v(V_XVO + h), s(SRD_X, 4), s(S_XO))])


def x_adv():
    return [["s_add_u32 %s, %s, 128" % (s(S_T0), s(S_XO)),
             "s_and_b32 %s, %s, 0x380" % (s(S_T0), s(S_T0)),
             "s_or_b32 %s, %s, %s" % (s(S_XO), s(S_T0), s(S_R0B))],
            ["s_add_u32 %s, %s, 0x4000" % (s(S_XM0), s(S_XM0)),
             "s_cmp_eq_u32 %s, %s" % (s(S_XM0), s(S_XM0END)),
             "s_cselect_b32 %s, %s, %s" % (s(S_XM0), s(S_M0X), s(S_XM0))]]


def issue_plain(a, var, slot, h):
    if slot is not None:
        for i in range(len(var.loads)):
            pre, ld = w_load(var, i, slot)
            for t in pre:
                a(t)
            a("s_nop 0")
            for t in ld:
                a(t)
        for t in koff_adv(var):
            a(t)
    pre, ld = x_load(h)
    for t in pre:
        a(t)
    a("s_nop 0")
    for t in ld:
        a(t)
    if h:
        for g in x_adv():
            for t in g:
                a(t)


def frag_reads(var, st, slot):
    wl = V_WL3 if slot == 3 else V_WL
    wm = V_WM3 if slot == 3 else V_WM
    so = 0 if slot == 3 else slot * WSLOT
    W = []
    for tau in range(5):
        if var.typ == 'Y' and tau == 4:
            W.append(["ds_read_b64_tr_b16 %s, %s offset:%d" % (v(WF(st, tau), 2), v(wm), so),
                      "ds_read_b64_tr_b16 %s, %s offset:%d" % (v(WF(st, tau) + 2, 2), v(wm), so + 256)])
        else:
            W.append(["ds_read_b64_tr_b16 %s, %s offset:%d" % (v(WF(st, tau), 2), v(wl), so + tau * 4096),
                      "ds_read_b64_tr_b16 %s, %s offset:%d" % (v(WF(st, tau) + 2, 2), v(wl), so + tau * 4096 + 512)])
    X = ["ds_read_b128 %s, %s offset:%d" % (v(XF(st, t), 4), v(V_XA), t * 2048) for t in range(4)]
    r = W[0] + W[1] + [X[0]] + W[2] + [X[1]] + W[3] + [X[2]] + W[4] + [X[3]]
    if var.typ == 'X':
        r.append("ds_read_b128 %s, %s" % (v(XF(st, 4), 4), v(V_HA)))
    return r


def frag_addr(var, kk, advance):
    g = []
    if advance:
        g.append(["s_add_u32 %s, %s, 0x4000" % (s(S_XSLOTR), s(S_XSLOTR)),
                  "s_cmp_eq_u32 %s, 0xc000" % s(S_XSLOTR),
                  "s_cselect_b32 %s, 0, %s" % (s(S_XSLOTR), s(S_XSLOTR))])
    g.append(["v_add_u32 %s, %s, %s" % (v(V_XA), s(S_XSLOTR), v(V_XL + kk))])
    if var.typ == 'X':
        h = []
        if advance:
            h += ["s_add_u32 %s, %s, 0x800" % (s(S_HK), s(S_HK)),
                  "s_and_b32 %s, %s, 0x3fff" % (s(S_HK), s(S_HK))]
        h.append("v_add_u32 %s, %s, %s" % (v(V_HA), s(S_HK), v(V_HL + kk)))
        g.append(h)
    return g


def mfmas(var, st):
    out = []
    for t in range(4):
        for tau in range(5):
            d = v(ACC(tau, t), 4)
            if var.typ == 'X' and tau == 2:
                out.append("v_mfma_f32_16x16x32_bf16 %s, %s, %s, %s" % (d, v(XF(st, t), 4), v(WF(st, tau), 4), d))
            else:
                out.append("v_mfma_f32_16x16x32_bf16 %s, %s, %s, %s" % (d, v(WF(st, tau), 4), v(XF(st, t), 4), d))
    if var.typ == 'X':
        d = v(V_AH, 4)
        if var.m == 0:
            out.append("v_mfma_f32_16x16x32_bf16 %s, %s, %s, %s" % (d, v(WF(st, 1), 4), v(XF(st, 4), 4), d))
        else:
            out.append("v_mfma_f32_16x16x32_bf16 %s, %s, %s, %s" % (d, v(XF(st, 4), 4), v(WF(st, 2), 4), d))
    return out


def spread(items, p0, p1):
    n = len(items)
    if n == 0:
        return []
    return [(p0 + (i * (p1 - p0 + 1)) // n, t) for i, t in enumerate(items)]


def emit_step(a, var, s4, vm, dma=True, prefetch=True, extra=None, post=None, top=None):
    par = s4 & 1
    a("s_waitcnt vmcnt(%d) lgkmcnt(0)" % vm)
    if top:
        top(a)
    if "nobar" not in EXP:
        a("s_barrier")
    M = mfmas(var, par)
    F = []
    if prefetch:
        ga = frag_addr(var, kk=1 - par, advance=(par == 1))
        for i, g in enumerate(ga):
            for t in g:
                F.append((i, t))
        rd = frag_reads(var, 1 - par, (s4 + 1) & 3)
        if "noreads" in EXP:
            rd = []
        for i, t in enumerate(rd):
            F.append((i if i < 4 else i + 0, t))
    if dma and "nodma" not in EXP:
        nl = len(var.loads)
        poss = [3, 8, 13, 18] if var.m == 0 else [5, 10, 15]
        for i in range(nl):
            pre, ld = w_load(var, i, s4)
            F += [(poss[i] - 1, t) for t in pre] + [(poss[i], t) for t in ld]
        F += [(poss[nl - 1] + 1, t) for t in koff_adv(var)]
        h = 1 - par
        pre, ld = x_load(h)
        px = poss[nl]
        F += [(px - 1, t) for t in pre] + [(px, t) for t in ld]
        if h:
            g = x_adv()
            F += [(px + 1, t) for t in g[0]] + [(min(px + 2, len(M) - 1), t) for t in g[1]]
    if extra:
        F += extra
    F.sort(key=lambda x: x[0])
    for t in interleave(M, F):
        a(t)
    if post:
        post(a)


def event_site(a, var, which, ool):
    if var.m != 0:
        return
    lab = a.newlabel("ev")
    back = a.newlabel("evback")
    a("s_bitcmp1_b32 %s, %s" % (s(S_EV0 if which == 0 else S_EV1), s(S_IT)))
    a("s_cbranch_scc1 %s" % lab)
    a.label(back)
    b = Asm()
    b.uid = a.uid + 1000
    b.label(lab)
    other = b.newlabel("evo")
    b("s_cmp_eq_u32 %s, 0" % s(S_IT))
    b("s_cbranch_scc0 %s" % other)
    par = which
    for tau in range(5):
        b("v_mfma_f32_16x16x32_bf16 %s, %s, %s, 0" % (v(V_CSTMP + 4 * tau, 4), v(WF(par, tau), 4), v(V_ONES, 4)))
    b("s_nop 7")
    b("s_nop 1")
    for tau in range(5):
        b("buffer_store_dwordx4 %s, %s, %s, 0 offen offset:%d sc1" % (v(V_CSTMP + 4 * tau, 4), v(V_CSST), s(SRD_WS, 4), tau * 256))
    b("s_branch %s" % back)
    b.label(other)
    if Cfg.merged:
        if which == 0:
            T = V_T
            b("v_add_u32 %s, 1, %s" % (v(V_TAG), v(V_TAG)))
            b("s_lshl_b32 %s, %s, 7" % (s(S_T0), s(S_RB)))
            b("s_lshl_b32 %s, %s, 2" % (s(S_T1), s(S_CGI)))
            b("s_add_u32 %s, %s, %s" % (s(S_T0), s(S_T0), s(S_T1)))
            b("s_add_u32 %s, %s, %d" % (s(S_T0), s(S_T0), WS_FA))
            b("s_lshl_b32 %s, %s, 7" % (s(S_T1), s(S_CGI)))
            b("s_lshl_b32 %s, %s, 2" % (s(S_T2), s(S_RB)))
            b("s_add_u32 %s, %s, %s" % (s(S_T1), s(S_T1), s(S_T2)))
            b("s_add_u32 %s, %s, %d" % (s(S_T1), s(S_T1), WS_FB))
            b("v_mov_b32 %s, 0x%x" % (v(T), OOB))
            b("v_writelane_b32 %s, %s, 0" % (v(T), s(S_T0)))
            b("v_writelane_b32 %s, %s, 1" % (v(T), s(S_T1)))
            b("s_nop 1")
            b("buffer_store_dword %s, %s, %s, 0 offen sc1" % (v(V_TAG), v(T), s(SRD_WS, 4)))
        else:
            T = V_T
            b("v_and_b32 %s, 15, v0" % v(T))
            b("s_lshl_b32 %s, %s, 7" % (s(S_T0), s(S_RB)))
            b("s_add_u32 %s, %s, %d" % (s(S_T0), s(S_T0), WS_FA))
            b("v_lshl_add_u32 %s, %s, 2, %s" % (v(V_PADDR), v(T), s(S_T0)))
            b("s_lshl_b32 %s, %s, 7" % (s(S_T1), s(S_CGI)))
            b("s_add_u32 %s, %s, %d" % (s(S_T1), s(S_T1), WS_FB))
            b("v_lshl_add_u32 %s, %s, 2, %s" % (v(T + 1), v(T), s(S_T1)))
            b("v_lshrrev_b32 %s, 4, v0" % v(T + 2))
            b("v_cmp_eq_u32 vcc, 2, %s" % v(T + 2))
            b("s_nop 1")
            b("v_cndmask_b32 %s, %s, %s, vcc" % (v(V_PADDR), v(V_PADDR), v(T + 1)))
            b("s_cmp_eq_u32 %s, 0" % s(S_RB))
            b("s_cselect_b32 %s, 0, 128" % s(S_T1))
            b("s_sub_u32 %s, %s, %s" % (s(S_T0), s(S_T0), s(S_T1)))
            b("s_add_u32 %s, %s, 56" % (s(S_T0), s(S_T0)))
            b("s_add_u32 %s, %s, 4" % (s(S_T1), s(S_T0)))
            b("v_writelane_b32 %s, %s, 16" % (v(V_PADDR), s(S_T0)))
            b("v_writelane_b32 %s, %s, 17" % (v(V_PADDR), s(S_T1)))
            b("s_nop 1")
            b("buffer_load_dword %s, %s, %s, 0 offen sc1" % (v(V_PRES), v(V_PADDR), s(SRD_WS, 4)))
    b("s_branch %s" % back)
    ool.append(b.text())
    a.uid = b.uid + 1


def poll_check(a, ool, name):
    slow = a.newlabel(name + "_slow")
    back = a.newlabel(name + "_ok")
    a("v_cmp_ne_u32 vcc, %s, %s" % (v(V_TAG), v(V_PRES)))
    a("s_nop 1")
    a("s_cmp_lg_u64 vcc, 0")
    a("s_cbranch_scc1 %s" % slow)
    a.label(back)
    b = Asm()
    b.label(slow)
    b("s_mov_b32 %s, 0" % s(S_SPIN))
    loop = slow + "_loop"
    b.label(loop)
    b("buffer_load_dword %s, %s, %s, 0 offen sc1" % (v(V_PRES), v(V_PADDR), s(SRD_WS, 4)))
    b("s_add_u32 %s, %s, 1" % (s(S_SPIN), s(S_SPIN)))
    b("s_waitcnt vmcnt(0)")
    b("v_cmp_ne_u32 vcc, %s, %s" % (v(V_TAG), v(V_PRES)))
    b("s_nop 1")
    b("s_cmp_lg_u64 vcc, 0")
    b("s_cbranch_scc0 %s" % back)
    b("s_cmp_lt_u32 %s, %d" % (s(S_SPIN), SPIN_MAX))
    b("s_cbranch_scc1 %s" % loop)
    b("s_branch %s" % back)
    ool.append(b.text())


def prologue_common(a):
    a.comment("---- prologue ----")
    stamp_real(a, 0)
    stamp(a, 1)
    a("s_load_dwordx4 %s, s[0:1], 0" % s(S_X, 4))
    a("s_load_dwordx4 %s, s[0:1], 32" % s(S_G, 4))
    a("s_load_dwordx2 %s, s[0:1], 72" % s(S_WS, 2))
    a("s_load_dwordx2 %s, s[0:1], 16" % s(S_WO, 2))
    a("s_load_dwordx2 %s, s[0:1], 48" % s(S_WD, 2))
    a("s_load_dwordx2 %s, s[0:1], 56" % s(S_OUT, 2))
    a("v_lshrrev_b32 v1, 6, v0")
    a("v_and_b32 v0, 63, v0")
    a("v_readfirstlane_b32 %s, v1" % s(S_W))
    a("s_and_b32 %s, s2, 7" % s(S_T0))
    a("s_lshr_b32 %s, s2, 3" % s(S_T1))
    a("s_lshr_b32 %s, %s, 2" % (s(S_T2), s(S_T0)))
    a("s_lshl_b32 %s, %s, 3" % (s(S_T2), s(S_T2)))
    a("s_and_b32 %s, %s, 7" % (s(S_T3), s(S_T1)))
    a("s_or_b32 %s, %s, %s" % (s(S_RB), s(S_T2), s(S_T3)))
    a("s_and_b32 %s, %s, 3" % (s(S_T2), s(S_T0)))
    a("s_lshl_b32 %s, %s, 2" % (s(S_T2), s(S_T2)))
    a("s_lshr_b32 %s, %s, 3" % (s(S_T3), s(S_T1)))
    a("s_or_b32 %s, %s, %s" % (s(S_CGI), s(S_T2), s(S_T3)))
    a("s_lshl_b32 %s, %s, 2" % (s(S2_TG), s(S_T0)))
    a("s_add_u32 %s, %s, %s" % (s(S2_TG), s(S2_TG), s(S_T3)))
    a("s_and_b32 %s, %s, 7" % (s(S2_CG2), s(S_T1)))
    a("s_lshr_b32 %s, %s, 1" % (s(S_UU), s(S_CGI)))
    a("s_lshl_b32 %s, %s, 17" % (s(S_R0B), s(S_RB)))
    a("s_and_b32 %s, %s, 3" % (s(S_J), s(S_W)))
    a("s_lshr_b32 %s, %s, 2" % (s(S_M), s(S_W)))
    a("s_lshl_b32 %s, %s, 10" % (s(S_M0W), s(S_J)))
    a("s_lshl_b32 %s, %s, 10" % (s(S_M0X), s(S_W)))
    a("s_add_u32 %s, %s, %d" % (s(S_M0X), s(S_M0X), XRING))
    a("s_mov_b32 %s, %s" % (s(S_XM0), s(S_M0X)))
    a("s_add_u32 %s, %s, 0xc000" % (s(S_XM0END), s(S_M0X)))
    a("s_and_b32 %s, %s, 7" % (s(S_T0), s(S_RB)))
    a("s_lshl_b32 %s, %s, 7" % (s(S_XO), s(S_T0)))
    a("s_or_b32 %s, %s, %s" % (s(S_XO), s(S_XO), s(S_R0B)))
    a("s_lshl_b32 %s, %s, 11" % (s(S_HK), s(S_T0)))
    a("s_lshl_b32 %s, %s, 1" % (s(S_KOFF), s(S_T0)))
    a("s_mov_b32 %s, 0" % s(S_XSLOTR))
    a("s_mov_b32 %s, 0" % s(S_IT))
    a("s_lshr_b32 %s, %s, 3" % (s(S_T0), s(S_RB)))
    a("s_xor_b32 %s, %s, 1" % (s(S_EV0), s(S_T0)))
    a("s_mov_b32 %s, %s" % (s(S_EV1), s(S_T0)))
    if Cfg.merged:
        a("s_cmp_eq_u32 %s, 0" % s(S_W))
        a("s_cselect_b32 %s, 2, 0" % s(S_T0))
        a("s_cselect_b32 %s, 4, 0" % s(S_T1))
        a("s_or_b32 %s, %s, %s" % (s(S_EV0), s(S_EV0), s(S_T0)))
        a("s_or_b32 %s, %s, %s" % (s(S_EV1), s(S_EV1), s(S_T1)))
    T = V_T
    a("v_lshrrev_b32 %s, 3, v0" % v(T))
    a("s_lshl_b32 %s, %s, 3" % (s(S_T0), s(S_W)))
    a("v_add_u32 %s, %s, %s" % (v(T + 2), s(S_T0), v(T)))
    a("v_bfe_u32 %s, %s, 1, 3" % (v(T + 3), v(T + 2)))
    a("v_and_b32 %s, 7, v0" % v(T + 4))
    a("v_xor_b32 %s, %s, %s" % (v(T + 4), v(T + 4), v(T + 3)))
    a("v_lshlrev_b32 %s, 4, %s" % (v(T + 4), v(T + 4)))
    a("v_lshl_add_u32 %s, %s, 10, %s" % (v(V_XVO), v(T + 2), v(T + 4)))
    a("v_add_u32 %s, 0x10000, %s" % (v(V_XVO + 1), v(V_XVO)))
    a("v_lshlrev_b32 %s, 4, v0" % v(T + 12))
    a("v_mov_b32 %s, %d" % (v(V_PADDR), WS_FA))
    a("v_mov_b32 %s, 0" % v(V_TAG))


def w_voffset_full(a, pitch, out):
    T = V_T
    a("v_lshrrev_b32 %s, 3, v0" % v(T))
    a("s_lshl_b32 %s, %s, 3" % (s(S_T0), s(S_J)))
    a("v_add_u32 %s, %s, %s" % (v(T), s(S_T0), v(T)))
    a("v_mul_u32_u24 %s, %d, %s" % (v(T), pitch, v(T)))
    a("v_bfe_u32 %s, v0, 4, 1" % v(T + 1))
    a("s_and_b32 %s, %s, 1" % (s(S_T0), s(S_J)))
    a("s_lshl_b32 %s, %s, 1" % (s(S_T0), s(S_T0)))
    a("v_or_b32 %s, %s, %s" % (v(T + 1), s(S_T0), v(T + 1)))
    a("v_bfe_u32 %s, v0, 1, 2" % v(T + 2))
    a("v_xor_b32 %s, %s, %s" % (v(T + 1), v(T + 1), v(T + 2)))
    a("v_lshl_add_u32 %s, %s, 5, %s" % (v(T), v(T + 1), v(T)))
    a("v_and_b32 %s, 1, v0" % v(T + 2))
    a("v_lshl_add_u32 %s, %s, 4, %s" % (v(out), v(T + 2), v(T)))


def w_voffset_g4(a, out):
    T = V_T
    a("v_lshrrev_b32 %s, 2, v0" % v(T))
    a("s_and_b32 %s, %s, 1" % (s(S_T0), s(S_J)))
    a("s_lshl_b32 %s, %s, 4" % (s(S_T0), s(S_T0)))
    a("v_add_u32 %s, %s, %s" % (v(T), s(S_T0), v(T)))
    a("v_mul_u32_u24 %s, 3584, %s" % (v(T), v(T)))
    a("v_lshrrev_b32 %s, 5, v0" % v(T + 1))
    a("s_and_b32 %s, %s, 2" % (s(S_T0), s(S_J)))
    a("v_or_b32 %s, %s, %s" % (v(T + 1), s(S_T0), v(T + 1)))
    a("v_and_b32 %s, 3, v0" % v(T + 2))
    a("v_xor_b32 %s, %s, %s" % (v(T + 1), v(T + 1), v(T + 2)))
    a("v_lshl_add_u32 %s, %s, 4, %s" % (v(out), v(T + 1), v(T)))


def y_cols(a):
    a("s_mul_i32 %s, %s, 320" % (s(S_T0), s(S_UU)))
    a("s_add_u32 %s, %s, 1024" % (s(S_T0), s(S_T0)))
    a("s_and_b32 %s, %s, 1" % (s(S_T1), s(S_UU)))
    a("s_lshl_b32 %s, %s, 6" % (s(S_T1), s(S_T1)))
    a("s_add_u32 %s, %s, %s" % (s(S_COL0), s(S_T0), s(S_T1)))
    a("s_add_u32 %s, %s, 128" % (s(S_COL1), s(S_COL0)))
    a("s_cmp_eq_u32 %s, 0" % s(S_T1))
    a("s_cselect_b32 %s, 256, 0" % s(S_T1))
    a("s_add_u32 %s, %s, %s" % (s(S_COL2), s(S_T0), s(S_T1)))


def variant_addresses(a, var):
    T = V_T
    if var.typ == 'X':
        w_voffset_full(a, var.pitch, V_WVO)
        a("s_lshl_b32 %s, %s, 7" % (s(S_COL0), s(S_UU)))
        a("v_add_u32 %s, %s, %s" % (v(V_WVO), s(S_COL0), v(V_WVO)))
        if var.m == 0:
            a("v_add_u32 %s, 1024, %s" % (v(V_WVO + 1), v(V_WVO)))
            a("v_add_u32 %s, 2048, %s" % (v(V_WVO + 2), v(V_WVO)))
    else:
        y_cols(a)
        w_voffset_full(a, var.pitch, V_WVO)
        a("v_add_u32 %s, %s, %s" % (v(V_WVO + 1), s(S_COL1), v(V_WVO)))
        a("v_add_u32 %s, %s, %s" % (v(V_WVO), s(S_COL0), v(V_WVO)))
        if var.m == 1:
            w_voffset_g4(a, V_WVO + 2)
            a("v_add_u32 %s, %s, %s" % (v(V_WVO + 2), s(S_COL2), v(V_WVO + 2)))
    a("s_mul_i32 %s, %s, %d" % (s(S_KOFF), s(S_KOFF), 32 * var.pitch))
    if var.typ == 'X':
        for hh in range(2):
            a("v_lshrrev_b32 %s, 3, v0" % v(T))
            if hh:
                a("v_add_u32 %s, 8, %s" % (v(T), v(T)))
            a("v_lshrrev_b32 %s, 1, %s" % (v(T + 1), v(T)))
            a("v_and_b32 %s, 7, v0" % v(T + 2))
            a("v_xor_b32 %s, %s, %s" % (v(T + 1), v(T + 1), v(T + 2)))
            a("s_lshl_b32 %s, %s, 7" % (s(S_T0), s(S_RB)))
            a("s_sub_u32 %s, %s, 16" % (s(S_T0), s(S_T0)))
            a("v_add_u32 %s, %s, %s" % (v(T), s(S_T0), v(T)))
            a("v_max_i32 %s, 0, %s" % (v(T), v(T)))
            a("v_lshlrev_b32 %s, 10, %s" % (v(T), v(T)))
            a("v_lshl_add_u32 %s, %s, 4, %s" % (v(T + 13 + hh), v(T + 1), v(T)))


def halo_issue(a):
    T = V_T
    for hh in range(2):
        a("s_lshl_b32 %s, %s, 11" % (s(S_T1), s(S_W)))
        a("s_add_u32 m0, %s, %d" % (s(S_T1), HALO + hh * 1024))
        a("s_lshl_b32 %s, %s, 7" % (s(S_T1), s(S_W)))
        a("buffer_load_dwordx4 %s, %s, %s offen lds" % (v(T + 13 + hh), s(SRD_X, 4), s(S_T1)))


def frag_lane_addresses(a, var):
    T = V_T
    a("v_lshrrev_b32 %s, 3, v0" % v(T))
    a("v_lshrrev_b32 %s, 4, v0" % v(T + 1))
    a("v_and_b32 %s, 15, v0" % v(T + 5))
    a("v_lshrrev_b32 %s, 1, %s" % (v(T + 6), v(T + 5)))
    a("v_xor_b32 %s, %s, %s" % (v(T + 6), v(T + 6), v(T + 1)))
    a("v_lshlrev_b32 %s, 4, %s" % (v(T + 6), v(T + 6)))
    a("v_lshl_add_u32 %s, %s, 7, %s" % (v(T + 6), v(T + 5), v(T + 6)))
    if var.typ == 'X':
        a("v_add_u32 %s, %d, %s" % (v(V_HL), HALO, v(T + 6)))
        a("v_xor_b32 %s, 64, %s" % (v(V_HL + 1), v(V_HL)))
    a("v_add_u32 %s, %d, %s" % (v(V_XL), XRING + var.m * 8192, v(T + 6)))
    a("v_xor_b32 %s, 64, %s" % (v(V_XL + 1), v(V_XL)))
    a("v_bfe_u32 %s, v0, 2, 2" % v(T + 7))
    a("v_lshl_add_u32 %s, %s, 3, %s" % (v(T + 7), v(T + 1), v(T + 7)))
    a("v_and_b32 %s, 3, %s" % (v(T + 8), v(T)))
    a("v_xor_b32 %s, %s, %s" % (v(T + 8), s(S_J), v(T + 8)))
    a("v_lshlrev_b32 %s, 5, %s" % (v(T + 8), v(T + 8)))
    a("v_lshl_add_u32 %s, %s, 7, %s" % (v(T + 8), v(T + 7), v(T + 8)))
    a("v_and_b32 %s, 3, v0" % v(T + 9))
    a("v_lshl_add_u32 %s, %s, 3, %s" % (v(V_WL), v(T + 9), v(T + 8)))
    a("v_add_u32 %s, %d, %s" % (v(V_WL3), 3 * WSLOT, v(V_WL)))
    if var.typ == 'Y':
        a("v_and_b32 %s, 1, %s" % (v(T + 10), v(T + 1)))
        a("v_and_b32 %s, 2, %s" % (v(T + 11), v(T + 9)))
        a("v_or_b32 %s, %s, %s" % (v(T + 10), v(T + 10), v(T + 11)))
        a("v_xor_b32 %s, %s, %s" % (v(T + 10), s(S_J), v(T + 10)))
        a("v_lshlrev_b32 %s, 4, %s" % (v(T + 10), v(T + 10)))
        a("v_lshl_add_u32 %s, %s, 6, %s" % (v(T + 10), v(T + 7), v(T + 10)))
        a("v_lshl_add_u32 %s, %s, 10, %s" % (v(T + 10), v(T + 11), v(T + 10)))
        a("v_and_b32 %s, 1, %s" % (v(T + 11), v(T + 9)))
        a("v_lshl_add_u32 %s, %s, 3, %s" % (v(T + 10), v(T + 11), v(T + 10)))
        a("v_add_u32 %s, 16384, %s" % (v(V_WM), v(T + 10)))
        a("v_add_u32 %s, %d, %s" % (v(V_WM3), 3 * WSLOT, v(V_WM)))
    for i in range(4):
        a("v_mov_b32 %s, 0x3f803f80" % v(V_ONES + i))
    if var.m == 0:
        a("s_mul_i32 %s, %s, 20480" % (s(S_T0), s(S_CGI)))
        a("s_mul_i32 %s, %s, 1280" % (s(S_T1), s(S_RB)))
        a("s_add_u32 %s, %s, %s" % (s(S_T0), s(S_T0), s(S_T1)))
        a("s_lshl_b32 %s, %s, 6" % (s(S_T1), s(S_J)))
        a("s_add_u32 %s, %s, %s" % (s(S_T0), s(S_T0), s(S_T1)))
        a("s_add_u32 %s, %s, %d" % (s(S_T0), s(S_T0), WS_CSP))
        a("v_lshlrev_b32 %s, 4, %s" % (v(V_CSST), v(T + 1)))
        a("v_add_u32 %s, %s, %s" % (v(V_CSST), s(S_T0), v(V_CSST)))
        a("v_cmp_eq_u32 vcc, 0, %s" % v(T + 5))
        a("v_mov_b32 %s, 0x%x" % (v(T + 11), OOB))
        a("s_nop 0")
        a("v_cndmask_b32 %s, %s, %s, vcc" % (v(V_CSST), v(T + 11), v(V_CSST)))


def stats_compute(a):
    T = V_T
    A = T
    for i in range(4):
        a("v_lshlrev_b32 %s, 16, %s" % (v(A + 2 * i), v(V_CSP + i)))
        a("v_and_b32 %s, 0xffff0000, %s" % (v(A + 2 * i + 1), v(V_CSP + i)))
    R = T + 8
    a("v_add_f32 %s, %s, %s" % (v(R), v(A), v(A + 1)))
    a("v_add_f32 %s, %s, %s" % (v(R + 1), v(A + 2), v(A + 3)))
    a("v_add_f32 %s, %s, %s" % (v(R + 2), v(A + 4), v(A + 5)))
    a("v_add_f32 %s, %s, %s" % (v(R + 3), v(A + 6), v(A + 7)))
    a("v_add_f32 %s, %s, %s" % (v(R), v(R), v(R + 1)))
    a("v_add_f32 %s, %s, %s" % (v(R + 2), v(R + 2), v(R + 3)))
    a("v_add_f32 %s, %s, %s" % (v(R), v(R), v(R + 2)))
    a("s_nop 1")
    allreduce16(a, [R])
    allreduce_rows(a, R, R + 1)
    a("v_mul_f32 %s, %s, %s" % (v(R), hexf(1.0 / 512), v(R)))
    for i in range(8):
        a("v_sub_f32 %s, %s, %s" % (v(A + i), v(A + i), v(R)))
    a("v_mul_f32 %s, %s, %s" % (v(R + 1), v(A), v(A)))
    a("v_mul_f32 %s, %s, %s" % (v(R + 2), v(A + 1), v(A + 1)))
    for i in range(2, 8, 2):
        a("v_fmac_f32 %s, %s, %s" % (v(R + 1), v(A + i), v(A + i)))
        a("v_fmac_f32 %s, %s, %s" % (v(R + 2), v(A + i + 1), v(A + i + 1)))
    a("v_add_f32 %s, %s, %s" % (v(R + 1), v(R + 1), v(R + 2)))
    a("s_nop 1")
    allreduce16(a, [R + 1])
    allreduce_rows(a, R + 1, R + 2)
    a("v_mov_b32 %s, %s" % (v(R + 2), hexf(1e-5)))
    a("v_fmac_f32 %s, %s, %s" % (v(R + 2), hexf(1.0 / 512), v(R + 1)))
    a("v_rsq_f32 %s, %s" % (v(R + 1), v(R + 2)))
    a("s_lshl_b32 %s, %s, 3" % (s(S_T0), s(S_CGI)))
    a("s_add_u32 %s, %s, %s" % (s(S_T0), s(S_T0), s(S_W)))
    a("s_lshl_b32 %s, %s, 7" % (s(S_T1), s(S_RB)))
    a("s_add_u32 %s, %s, %s" % (s(S_T0), s(S_T0), s(S_T1)))
    a("s_lshl_b32 %s, %s, 3" % (s(S_T0), s(S_T0)))
    a("s_add_u32 %s, %s, %d" % (s(S_T0), s(S_T0), WS_STATS))
    a("v_mov_b32 %s, 0x%x" % (v(R + 2), OOB))
    a("v_writelane_b32 %s, %s, 0" % (v(R + 2), s(S_T0)))
    a("s_nop 1")
    a("buffer_store_dwordx2 %s, %s, %s, 0 offen sc1" % (v(R, 2), v(R + 2), s(SRD_WS, 4)))


def tail_loads():
    T = V_T
    g = []
    g.append("s_mul_i32 %s, %s, 20480" % (s(S_T0), s(S_CGI)))
    g.append("s_lshl_b32 %s, %s, 6" % (s(S_T1), s(S_W)))
    g.append("s_add_u32 %s, %s, %s" % (s(S_T0), s(S_T0), s(S_T1)))
    g.append("s_add_u32 %s, %s, %d" % (s(S_T0), s(S_T0), WS_CSP))
    g.append("v_and_b32 %s, 15, v0" % v(T))
    g.append("v_mul_u32_u24 %s, 1280, %s" % (v(T), v(T)))
    g.append("v_lshrrev_b32 %s, 4, v0" % v(T + 1))
    g.append("v_lshl_add_u32 %s, %s, 4, %s" % (v(T), v(T + 1), v(T)))
    g.append("v_add_u32 %s, %s, %s" % (v(T), s(S_T0), v(T)))
    g.append("buffer_load_dwordx4 %s, %s, %s, 0 offen sc1" % (v(V_CSP, 4), v(T), s(SRD_WS, 4)))
    g.append("buffer_load_dwordx4 %s, %s, %s, 0 offen offset:512 sc1" % (v(V_CSP + 4, 4), v(T), s(SRD_WS, 4)))
    g.append("buffer_load_dwordx4 %s, %s, %s, 0 offen offset:1024 sc1" % (v(V_CSP + 8, 4), v(T), s(SRD_WS, 4)))
    g.append("s_lshl_b32 %s, %s, 6" % (s(S_T0), s(S_W)))
    g.append("s_lshl_b32 %s, %s, 7" % (s(S_T1), s(S_RB)))
    g.append("s_add_u32 %s, %s, %s" % (s(S_T0), s(S_T0), s(S_T1)))
    g.append("s_sub_u32 %s, %s, 16" % (s(S_T0), s(S_T0)))
    g.append("v_add_u32 %s, %s, v0" % (v(T + 2), s(S_T0)))
    g.append("v_max_i32 %s, 0, %s" % (v(T + 2), v(T + 2)))
    g.append("v_min_i32 %s, 2047, %s" % (v(T + 2), v(T + 2)))
    g.append("v_lshlrev_b32 %s, 3, %s" % (v(T + 2), v(T + 2)))
    g.append("v_add_u32 %s, %d, %s" % (v(T + 2), WS_STATS, v(T + 2)))
    g.append("buffer_load_dwordx2 %s, %s, %s, 0 offen sc1" % (v(V_STAT, 2), v(T + 2), s(SRD_WS, 4)))
    return g


def k2_setup_fillers():
    T = V_T + 4
    g = []
    g.append("s_cmp_eq_u32 %s, 0" % s(S_M))
    g.append("s_cselect_b32 %s, %s, %s" % (s(R_W), s(S_WO), s(S_WD)))
    g.append("s_cselect_b32 %s, %s, %s" % (s(R_W + 1), s(S_WO + 1), s(S_WD + 1)))
    g.append("s_cselect_b32 %s, 0, %d" % (s(S2_WROW), 20 * 32768))
    g.append("s_mov_b32 %s, 0x%x" % (s(S_T0), 512 * 1024))
    g.append("s_mov_b32 %s, 0x%x" % (s(S_T1), 1792 * 1024))
    g.append("s_cselect_b32 %s, %s, %s" % (s(R_W + 2), s(S_T0), s(S_T1)))
    g.append("s_and_b32 %s, %s, 0xffff" % (s(R_W + 1), s(R_W + 1)))
    g.append("s_mov_b32 %s, 0x20000" % s(R_W + 3))
    g.append("s_lshl_b32 %s, %s, 12" % (s(S2_M0B), s(S_M)))
    g.append("s_lshl_b32 %s, %s, 10" % (s(S_T0), s(S_J)))
    g.append("s_add_u32 %s, %s, %s" % (s(S2_M0B), s(S2_M0B), s(S_T0)))
    g.append("v_lshrrev_b32 %s, 3, v0" % v(T))
    g.append("s_lshl_b32 %s, %s, 3" % (s(S_T0), s(S_J)))
    g.append("v_add_u32 %s, %s, %s" % (v(T), s(S_T0), v(T)))
    g.append("v_lshlrev_b32 %s, 10, %s" % (v(T), v(T)))
    g.append("v_bfe_u32 %s, v0, 4, 1" % v(T + 1))
    g.append("s_and_b32 %s, %s, 1" % (s(S_T0), s(S_J)))
    g.append("s_lshl_b32 %s, %s, 1" % (s(S_T0), s(S_T0)))
    g.append("v_or_b32 %s, %s, %s" % (v(T + 1), s(S_T0), v(T + 1)))
    g.append("v_bfe_u32 %s, v0, 1, 2" % v(T + 2))
    g.append("v_xor_b32 %s, %s, %s" % (v(T + 1), v(T + 1), v(T + 2)))
    g.append("v_lshl_add_u32 %s, %s, 5, %s" % (v(T), v(T + 1), v(T)))
    g.append("v_and_b32 %s, 1, v0" % v(T + 2))
    g.append("v_lshl_add_u32 %s, %s, 4, %s" % (v(T), v(T + 2), v(T)))
    g.append("s_lshl_b32 %s, %s, 7" % (s(S_T0), s(S2_CG2)))
    g.append("v_add_u32 %s, %s, %s" % (v(V_W2VO), s(S_T0), v(T)))
    return g


def touch_fillers():
    T = V_T + 8
    g = []
    g.append("s_and_b32 %s, %s, 3" % (s(S_T0), s(S2_TG)))
    g.append("s_lshl_b32 %s, %s, 2" % (s(S_T0), s(S_T0)))
    g.append("s_add_u32 %s, %s, %s" % (s(S_T0), s(S_T0), s(S_J)))
    g.append("s_mul_i32 %s, %s, 44" % (s(S_T0), s(S_T0)))
    g.append("s_mul_i32 %s, %s, 1088" % (s(S_T1), s(S_M)))
    g.append("s_add_u32 %s, %s, %s" % (s(S_T0), s(S_T0), s(S_T1)))
    g.append("v_min_u32 %s, 43, v0" % v(T))
    g.append("v_add_u32 %s, %s, %s" % (v(T), s(S_T0), v(T)))
    g.append("v_lshlrev_b32 %s, 10, %s" % (v(T), v(T)))
    g.append("s_lshl_b32 %s, %s, 7" % (s(S_T0), s(S2_CG2)))
    g.append("v_add_u32 %s, %s, %s" % (v(T), s(S_T0), v(T)))
    g.append("s_mov_b32 %s, %s" % (s(SRD_U), s(S_WD)))
    g.append("s_and_b32 %s, %s, 0xffff" % (s(SRD_U + 1), s(S_WD + 1)))
    g.append("s_mov_b32 %s, 0x%x" % (s(SRD_U + 2), 1792 * 1024))
    g.append("s_mov_b32 %s, 0x20000" % s(SRD_U + 3))
    g.append("buffer_load_dword %s, %s, %s, 0 offen" % (v(V_DUMMY), v(T), s(SRD_U, 4)))
    return g


def bias_fillers(var):
    T = V_T + 12
    g = []
    g.append("v_and_b32 %s, 15, v0" % v(T))
    g.append("v_lshrrev_b32 %s, 4, v0" % v(T + 1))
    g.append("v_lshlrev_b32 %s, 2, %s" % (v(T + 1), v(T + 1)))
    g.append("v_sub_u32 %s, %s, %s" % (v(T + 2), v(T), v(T + 1)))
    g.append("v_mov_b32 %s, %s" % (v(T + 3), hexf(-1e30)))
    for r in range(4):
        g.append("v_subrev_u32 %s, %d, %s" % (v(T + 4), r, v(T + 2)))
        g.append("v_and_b32 %s, 0x80000001, %s" % (v(T + 5), v(T + 4)))
        g.append("v_sub_u32 %s, -2, %s" % (v(T + 4), v(T + 4)))
        g.append("v_cmp_eq_u32 vcc, 0, %s" % v(T + 5))
        g.append("v_and_b32 %s, 0x80000001, %s" % (v(T + 4), v(T + 4)))
        g.append("s_nop 0")
        g.append("v_cndmask_b32_e64 %s, %s, 0, vcc" % (v(BC + r), v(T + 3)))
        g.append("v_cmp_eq_u32 vcc, 0, %s" % v(T + 4))
        g.append("s_nop 1")
        g.append("v_cndmask_b32_e64 %s, %s, 0, vcc" % (v(BP + r), v(T + 3)))
    if var.m == 0:
        g.append("s_cmp_eq_u32 %s, 0" % s(S_RB))
        g.append("s_cselect_b64 vcc, -1, 0")
        g.append("s_nop 0")
        for r in range(4):
            g.append("v_cndmask_b32 %s, %s, %s, vcc" % (v(BP0 + r), v(BP + r), v(T + 3)))
    else:
        for r in range(4):
            g.append("v_mov_b32 %s, %s" % (v(BP0 + r), v(BP + r)))
    return g


def tail_reduce():
    g = []
    regs = [V_CSP + i for i in range(12)]
    for ror in (8, 4, 2, 1):
        for r in regs:
            g.append("v_add_f32_dpp %s, %s, %s row_ror:%d row_mask:0xf bank_mask:0xf" % (v(r), v(r), v(r), ror))
    return g


def tail_publish(a):
    T = V_T
    a("v_lshrrev_b32 %s, 4, v0" % v(T))
    a("s_lshl_b32 %s, %s, 6" % (s(S_T0), s(S_W)))
    a("s_add_u32 %s, %s, %d" % (s(S_T0), s(S_T0), LB + O_CS))
    a("v_lshlrev_b32 %s, 4, %s" % (v(T), v(T)))
    a("v_add_u32 %s, %s, %s" % (v(T), s(S_T0), v(T)))
    a("s_lshl_b32 %s, %s, 6" % (s(S_T0), s(S_W)))
    a("v_add_u32 %s, %s, v0" % (v(T + 1), s(S_T0)))
    a("v_cmp_gt_u32 vcc, 144, %s" % v(T + 1))
    a("v_lshlrev_b32 %s, 2, %s" % (v(T + 1), v(T + 1)))
    a("v_add_u32 %s, %d, %s" % (v(T + 1), LB, v(T + 1)))
    a("s_mov_b64 %s, exec" % s(S_EX, 2))
    a("s_mov_b32 exec_lo, 0x00010001")
    a("s_mov_b32 exec_hi, 0x00010001")
    a("ds_write_b128 %s, %s" % (v(T), v(V_CSP, 4)))
    a("ds_write_b128 %s, %s offset:512" % (v(T), v(V_CSP + 4, 4)))
    lab = a.newlabel("cs3")
    a("s_cmp_ge_u32 %s, 4" % s(S_W))
    a("s_cbranch_scc1 %s" % lab)
    a("ds_write_b128 %s, %s offset:1024" % (v(T), v(V_CSP + 8, 4)))
    a("s_cmp_ge_u32 %s, 3" % s(S_W))
    a("s_cbranch_scc1 %s" % lab)
    a("s_mov_b64 exec, vcc")
    a("ds_write_b32 %s, %s offset:%d" % (v(T + 1), v(V_STAT), O_MEAN))
    a("ds_write_b32 %s, %s offset:%d" % (v(T + 1), v(V_STAT + 1), O_RSTD))
    a.label(lab)
    a("s_mov_b64 exec, %s" % s(S_EX, 2))
    a("s_waitcnt lgkmcnt(0)")
    a("s_barrier")


class BG:
    def __init__(self, a, groups):
        self.a = a
        self.groups = list(groups)

    def tick(self, n=1):
        for _ in range(n):
            if self.groups:
                for t in self.groups.pop(0):
                    self.a(t)

    def flush(self):
        self.tick(len(self.groups))


def w2_load_group(tile):
    return ["s_add_u32 m0, %s, %d" % (s(S2_M0B), (tile % NTILE2) * TILE2),
            "s_nop 0",
            "buffer_load_dwordx4 %s, %s, %s offen lds" % (v(V_W2VO), s(R_W, 4), s(S2_WROW)),
            "s_add_u32 %s, %s, 32768" % (s(S2_WROW), s(S2_WROW))]


def gelu_tile(a, G, U, mt, rt, csg, csu, tmp, out, vc1):
    R = range(4)
    for r in R:
        a("v_fma_f32 %s, -%s, %s, %s" % (v(G + r), v(mt), v(csg + r), v(G + r)))
    for r in R:
        a("v_fma_f32 %s, -%s, %s, %s" % (v(U + r), v(mt), v(csu + r), v(U + r)))
    for r in R:
        a("v_mul_f32 %s, %s, %s" % (v(G + r), v(rt), v(G + r)))
    for r in R:
        a("v_mul_f32 %s, %s, %s" % (v(tmp + r), v(G + r), v(G + r)))
    for r in R:
        a("v_fmaak_f32 %s, %s, %s, %s" % (v(tmp + r), v(tmp + r), v(vc1), hexf(C0)))
    for r in R:
        a("v_mul_f32 %s, %s, %s" % (v(tmp + r), v(tmp + r), v(G + r)))
    for r in R:
        a("v_exp_f32 %s, %s" % (v(tmp + r), v(tmp + r)))
    for r in R:
        a("v_mul_f32 %s, %s, %s" % (v(U + r), v(rt), v(U + r)))
    for r in R:
        a("v_add_f32 %s, 1.0, %s" % (v(tmp + r), v(tmp + r)))
    for r in R:
        a("v_rcp_f32 %s, %s" % (v(tmp + r), v(tmp + r)))
    for r in R:
        a("v_mul_f32 %s, %s, %s" % (v(U + r), v(G + r), v(U + r)))
    for r in R:
        a("v_mul_f32 %s, %s, %s" % (v(U + r), v(tmp + r), v(U + r)))
    a("v_cvt_pk_bf16_f32 %s, %s, %s" % (v(out), v(U), v(U + 1)))
    a("v_cvt_pk_bf16_f32 %s, %s, %s" % (v(out + 1), v(U + 2), v(U + 3)))


def norm_ct(a, A, mt, rt, cs, out):
    for r in range(4):
        a("v_fma_f32 %s, -%s, %s, %s" % (v(A + r), v(mt), v(cs + r), v(A + r)))
    for r in range(4):
        a("v_mul_f32 %s, %s, %s" % (v(A + r), v(rt), v(A + r)))
    a("v_cvt_pk_bf16_f32 %s, %s, %s" % (v(out), v(A), v(A + 1)))
    a("v_cvt_pk_bf16_f32 %s, %s, %s" % (v(out + 1), v(A + 2), v(A + 3)))


def norm_v(a, A, mv, rv, csv, out):
    for r in range(4):
        a("v_fma_f32 %s, -%s, %s, %s" % (v(A + r), v(mv + r), v(csv), v(A + r)))
    for r in range(4):
        a("v_mul_f32 %s, %s, %s" % (v(A + r), v(rv + r), v(A + r)))
    a("v_cvt_pk_bf16_f32 %s, %s, %s" % (v(out), v(A), v(A + 1)))
    a("v_cvt_pk_bf16_f32 %s, %s, %s" % (v(out + 1), v(A + 2), v(A + 3)))


def act_store_pairs(a, P, vaddr):
    a("s_nop 1")
    a("v_permlane16_swap_b32 %s, %s" % (v(P), v(P + 2)))
    a("v_permlane16_swap_b32 %s, %s" % (v(P + 1), v(P + 3)))
    a("v_permlane16_swap_b32 %s, %s" % (v(P + 4), v(P + 6)))
    a("v_permlane16_swap_b32 %s, %s" % (v(P + 5), v(P + 7)))
    a("s_mov_b32 %s, %d" % (s(S_T3), 2 * ACT_T))
    a("buffer_store_dwordx4 %s, %s, %s, 0 offen %s" % (v(P, 4), v(vaddr), s(SRD_WS, 4), Cfg.sc))
    a("buffer_store_dwordx4 %s, %s, %s, %s offen %s" % (v(P + 4, 4), v(vaddr), s(SRD_WS, 4), s(S_T3), Cfg.sc))


def act_addr_base(a, vout, T, m):
    a("v_bfe_u32 %s, v0, 4, 1" % v(T + 1))
    a("s_lshl_b32 %s, %s, 3" % (s(S_T0), s(S_RB)))
    a("s_add_u32 %s, %s, %d" % (s(S_T0), s(S_T0), 4 * m))
    a("v_add_u32 %s, %s, %s" % (v(T + 1), s(S_T0), v(T + 1)))
    a("v_mul_u32_u24 %s, %d, %s" % (v(T + 1), ACT_T, v(T + 1)))
    a("v_lshrrev_b32 %s, 5, v0" % v(T))
    a("v_lshl_add_u32 %s, %s, 8, %s" % (v(T + 1), v(T), v(T + 1)))
    a("v_and_b32 %s, 15, v0" % v(T))
    a("v_lshl_add_u32 %s, %s, 4, %s" % (v(vout), v(T), v(T + 1)))


def epilogue_x(a, var, bg):
    m = var.m
    MT, RT = 48, 52
    MH, RH = 56, 57
    CSQ, CSK, CSG, CSU = 60, 64, 68, 72
    CSV = 58
    MV, RV = 76, 92
    MVH, RVH = 108, 112
    KP = 116
    VP = 212
    QP = 222
    HP = 244
    RQ = 252
    TMP = 20
    A_I16, A_G16 = 10, 11
    V_C1 = 12
    V_AO, V_AHH = 13, 14
    a.comment("---- X epilogue m=%d ----" % m)
    a("v_and_b32 %s, 15, v0" % v(TMP))
    a("v_lshlrev_b32 %s, 2, %s" % (v(A_I16), v(TMP)))
    a("v_add_u32 %s, %d, %s" % (v(A_I16), LB, v(A_I16)))
    a("v_and_b32 %s, 48, v0" % v(A_G16))
    a("v_add_u32 %s, %d, %s" % (v(A_G16), LB, v(A_G16)))
    base = (16 + 64 * m) * 4
    a("s_lshl_b32 %s, %s, 6" % (s(S_T0), s(S_J)))
    a("v_add_u32 %s, %s, %s" % (v(TMP + 2), s(S_T0), v(A_G16)))
    a("v_add_u32 %s, %s, %s" % (v(TMP + 3), s(S_T0), v(A_I16)))
    a("ds_read_b128 %s, %s offset:%d" % (v(CSK, 4), v(TMP + 2), O_CS + 256))
    for t in range(4):
        a("ds_read_b32 %s, %s offset:%d" % (v(MT + t), v(A_I16), O_MEAN + base + t * 64))
        a("ds_read_b32 %s, %s offset:%d" % (v(RT + t), v(A_I16), O_RSTD + base + t * 64))
    a("ds_read_b32 %s, %s offset:%d" % (v(CSV), v(TMP + 3), O_CS + 512))
    a("ds_read_b128 %s, %s offset:%d" % (v(CSQ, 4), v(TMP + 2), O_CS))
    a("ds_read_b128 %s, %s offset:%d" % (v(CSG, 4), v(TMP + 2), O_CS + 768))
    a("ds_read_b128 %s, %s offset:%d" % (v(CSU, 4), v(TMP + 2), O_CS + 1024))
    bg.tick()
    a("s_waitcnt lgkmcnt(0)")
    for t in range(4):
        a("ds_read_b128 %s, %s offset:%d" % (v(MV + 4 * t, 4), v(A_G16), O_MEAN + base + t * 64))
        a("ds_read_b128 %s, %s offset:%d" % (v(RV + 4 * t, 4), v(A_G16), O_RSTD + base + t * 64))
    if m == 0:
        a("ds_read_b32 %s, %s offset:%d" % (v(MH), v(A_I16), O_MEAN))
        a("ds_read_b32 %s, %s offset:%d" % (v(RH), v(A_I16), O_RSTD))
    else:
        a("ds_read_b128 %s, %s offset:%d" % (v(MVH, 4), v(A_G16), O_MEAN))
        a("ds_read_b128 %s, %s offset:%d" % (v(RVH, 4), v(A_G16), O_RSTD))
    for t in range(4):
        norm_ct(a, ACC(1, t), MT + t, RT + t, CSK, KP + 2 + 2 * t)
    bg.tick()
    a("s_waitcnt lgkmcnt(0)")
    for t in (3, 0, 1, 2):
        norm_v(a, ACC(2, t), MV + 4 * t, RV + 4 * t, CSV, VP + 2 + 2 * t)
        if t == 3:
            a("s_mul_i32 %s, %s, 1536" % (s(S_T0), s(S_J)))
            a("s_add_u32 %s, %s, %d" % (s(S_T0), s(S_T0), LB))
            a("v_lshlrev_b32 %s, 3, v0" % v(TMP + 4))
            a("v_add_u32 %s, %s, %s" % (v(TMP + 4), s(S_T0), v(TMP + 4)))
            if m == 0:
                a("ds_write_b64 %s, %s offset:%d" % (v(TMP + 4), v(KP + 8, 2), O_XBUF))
                a("ds_write_b64 %s, %s offset:%d" % (v(TMP + 4), v(VP + 8, 2), O_XBUF + 512))
                norm_ct(a, V_AH, MH, RH, CSK, KP)
            else:
                norm_v(a, V_AH, MVH, RVH, CSV, VP)
                a("ds_write_b64 %s, %s offset:%d" % (v(TMP + 4), v(VP, 2), O_XBUF + 1024))
    bg.tick()
    for t in range(4):
        a("v_mul_f32 %s, %s, %s" % (v(RQ + t), hexf(0.25 * LOG2E), v(RT + t)))
    for t in range(4):
        norm_ct(a, ACC(0, t), MT + t, RQ + t, CSQ, QP + 2 * t)
    bg.tick()
    a("s_waitcnt lgkmcnt(0)")
    a("s_barrier")
    if m == 0:
        a("ds_read_b64 %s, %s offset:%d" % (v(VP, 2), v(TMP + 4), O_XBUF + 1024))
    else:
        a("ds_read_b64 %s, %s offset:%d" % (v(KP, 2), v(TMP + 4), O_XBUF))
        a("ds_read_b64 %s, %s offset:%d" % (v(VP, 2), v(TMP + 4), O_XBUF + 512))
    S0 = lambda t: ACC(0, t)
    S1 = lambda t: ACC(1, t)
    PP = lambda t: ACC(2, t)
    a("v_mov_b32 %s, %s" % (v(V_C1), hexf(C1)))
    gelu_tile(a, ACC(3, 0), ACC(4, 0), MT, RT, CSG, CSU, TMP + 8, HP, V_C1)
    bg.tick()
    a("s_waitcnt lgkmcnt(0)")
    for t in range(4):
        a("v_mfma_f32_16x16x16_bf16 %s, %s, %s, %s" % (v(S0(t), 4), v(KP + 2 * t, 2), v(QP + 2 * t, 2), v(BP0 if t == 0 else BP, 4)))
        a("v_mfma_f32_16x16x16_bf16 %s, %s, %s, %s" % (v(S1(t), 4), v(KP + 2 + 2 * t, 2), v(QP + 2 * t, 2), v(BC, 4)))
    gelu_tile(a, ACC(3, 1), ACC(4, 1), MT + 1, RT + 1, CSG, CSU, TMP + 8, HP + 2, V_C1)
    bg.tick()
    MX = TMP
    TT = TMP + 4
    for t in range(4):
        a("v_max3_f32 %s, %s, %s, %s" % (v(MX + t), v(S0(t)), v(S0(t) + 1), v(S0(t) + 2)))
    for t in range(4):
        a("v_max3_f32 %s, %s, %s, %s" % (v(MX + t), v(MX + t), v(S0(t) + 3), v(S1(t))))
    for t in range(4):
        a("v_max3_f32 %s, %s, %s, %s" % (v(MX + t), v(MX + t), v(S1(t) + 1), v(S1(t) + 2)))
    for t in range(4):
        a("v_max_f32 %s, %s, %s" % (v(MX + t), v(MX + t), v(S1(t) + 3)))
    for swap in ("v_permlane16_swap_b32", "v_permlane32_swap_b32"):
        for t in range(4):
            a("v_mov_b32 %s, %s" % (v(TT + t), v(MX + t)))
        for t in range(4):
            a("%s %s, %s" % (swap, v(MX + t), v(TT + t)))
        for t in range(4):
            a("v_max_f32 %s, %s, %s" % (v(MX + t), v(MX + t), v(TT + t)))
    bg.tick()
    for t in range(4):
        for r in range(4):
            a("v_sub_f32 %s, %s, %s" % (v(S0(t) + r), v(S0(t) + r), v(MX + t)))
            a("v_sub_f32 %s, %s, %s" % (v(S1(t) + r), v(S1(t) + r), v(MX + t)))
    bg.tick()
    for t in range(4):
        for r in range(4):
            a("v_exp_f32 %s, %s" % (v(S0(t) + r), v(S0(t) + r)))
            a("v_exp_f32 %s, %s" % (v(S1(t) + r), v(S1(t) + r)))
        if t == 1:
            bg.tick()
    bg.tick()
    for t in range(4):
        a("v_cvt_pk_bf16_f32 %s, %s, %s" % (v(PP(t)), v(S0(t)), v(S0(t) + 1)))
        a("v_cvt_pk_bf16_f32 %s, %s, %s" % (v(PP(t) + 1), v(S0(t) + 2), v(S0(t) + 3)))
        a("v_cvt_pk_bf16_f32 %s, %s, %s" % (v(PP(t) + 2), v(S1(t)), v(S1(t) + 1)))
        a("v_cvt_pk_bf16_f32 %s, %s, %s" % (v(PP(t) + 3), v(S1(t) + 2), v(S1(t) + 3)))
    a("s_nop 1")
    for t in range(4):
        a("v_mfma_f32_16x16x32_bf16 %s, %s, %s, 0" % (v(S1(t), 4), v(V_ONES, 4), v(PP(t), 4)))
        a("v_mfma_f32_16x16x32_bf16 %s, %s, %s, 0" % (v(S0(t), 4), v(VP + 2 * t, 4), v(PP(t), 4)))
    gelu_tile(a, ACC(3, 2), ACC(4, 2), MT + 2, RT + 2, CSG, CSU, TMP + 8, HP + 4, V_C1)
    bg.tick()
    for t in range(4):
        a("v_rcp_f32 %s, %s" % (v(MX + t), v(S1(t))))
    act_addr_base(a, V_AO, TMP + 4, m)
    a("s_lshl_b32 %s, %s, 11" % (s(S_T0), s(S_UU)))
    a("s_lshl_b32 %s, %s, 9" % (s(S_T1), s(S_J)))
    a("s_add_u32 %s, %s, %s" % (s(S_T0), s(S_T0), s(S_T1)))
    a("v_add_u32 %s, %s, %s" % (v(V_AO), s(S_T0), v(V_AO)))
    a("v_add_u32 %s, %d, %s" % (v(V_AHH), 16 * 1024, v(V_AO)))
    for t in range(4):
        for r in range(4):
            a("v_mul_f32 %s, %s, %s" % (v(S0(t) + r), v(MX + t), v(S0(t) + r)))
    OP = 116
    for t in range(4):
        a("v_cvt_pk_bf16_f32 %s, %s, %s" % (v(OP + 2 * t), v(S0(t)), v(S0(t) + 1)))
        a("v_cvt_pk_bf16_f32 %s, %s, %s" % (v(OP + 2 * t + 1), v(S0(t) + 2), v(S0(t) + 3)))
    bg.flush()
    act_store_pairs(a, OP, V_AO)
    gelu_tile(a, ACC(3, 3), ACC(4, 3), MT + 3, RT + 3, CSG, CSU, TMP + 8, HP + 6, V_C1)
    act_store_pairs(a, HP, V_AHH)


def epilogue_y(a, var, bg):
    m = var.m
    MT, RT = 48, 52
    MTM, RTM = 56, 58
    CS = 60
    CSG4, CSU4 = 76, 80
    HPA, HPB, HM = 84, 92, 100
    TMP = 20
    A_I16, A_G16 = 10, 11
    V_C1 = 12
    V_A, V_B, V_M = 13, 14, 15
    a.comment("---- Y epilogue m=%d ----" % m)
    a("v_and_b32 %s, 15, v0" % v(TMP))
    a("v_lshlrev_b32 %s, 2, %s" % (v(A_I16), v(TMP)))
    a("v_add_u32 %s, %d, %s" % (v(A_I16), LB, v(A_I16)))
    a("v_and_b32 %s, 48, v0" % v(A_G16))
    a("v_add_u32 %s, %d, %s" % (v(A_G16), LB, v(A_G16)))
    base = (16 + 64 * m) * 4
    a("s_lshl_b32 %s, %s, 6" % (s(S_T0), s(S_J)))
    a("v_add_u32 %s, %s, %s" % (v(TMP + 2), s(S_T0), v(A_G16)))
    for tau in range(2):
        a("ds_read_b128 %s, %s offset:%d" % (v(CS + 4 * tau, 4), v(TMP + 2), O_CS + 256 * tau))
    for t in range(4):
        a("ds_read_b32 %s, %s offset:%d" % (v(MT + t), v(A_I16), O_MEAN + base + t * 64))
        a("ds_read_b32 %s, %s offset:%d" % (v(RT + t), v(A_I16), O_RSTD + base + t * 64))
    for tau in range(2, 4):
        a("ds_read_b128 %s, %s offset:%d" % (v(CS + 4 * tau, 4), v(TMP + 2), O_CS + 256 * tau))
    a("v_lshrrev_b32 %s, 5, v0" % v(TMP + 3))
    a("v_lshl_add_u32 %s, %s, 6, %s" % (v(TMP + 3), v(TMP + 3), v(A_I16)))
    a("v_and_b32 %s, 16, v0" % v(TMP + 4))
    a("v_add_u32 %s, %s, %s" % (v(TMP + 4), s(S_T0), v(TMP + 4)))
    a("v_add_u32 %s, %d, %s" % (v(TMP + 4), LB, v(TMP + 4)))
    a("v_mov_b32 %s, %s" % (v(V_C1), hexf(C1)))
    bg.tick()
    a("s_waitcnt lgkmcnt(0)")
    for p in range(2):
        a("ds_read_b32 %s, %s offset:%d" % (v(MTM + p), v(TMP + 3), O_MEAN + base + p * 128))
        a("ds_read_b32 %s, %s offset:%d" % (v(RTM + p), v(TMP + 3), O_RSTD + base + p * 128))
    a("ds_read_b128 %s, %s offset:%d" % (v(CSG4, 4), v(TMP + 4), O_CS + 1024))
    a("ds_read_b128 %s, %s offset:%d" % (v(CSU4, 4), v(TMP + 4), O_CS + 1024 + 32))
    act_addr_base(a, TMP + 5, TMP, m)
    a("s_lshl_b32 %s, %s, 4" % (s(S_T0), s(S_COL0)))
    a("s_lshl_b32 %s, %s, 9" % (s(S_T1), s(S_J)))
    a("s_add_u32 %s, %s, %s" % (s(S_T0), s(S_T0), s(S_T1)))
    a("s_add_u32 %s, %s, 16384" % (s(S_T0), s(S_T0)))
    a("v_add_u32 %s, %s, %s" % (v(V_A), s(S_T0), v(TMP + 5)))
    a("v_add_u32 %s, %d, %s" % (v(V_B), 64 * 32, v(V_A)))
    for t in range(4):
        gelu_tile(a, ACC(0, t), ACC(1, t), MT + t, RT + t, CS, CS + 4, TMP + 8, HPA + 2 * t, V_C1)
        bg.tick(2)
    act_store_pairs(a, HPA, V_A)
    for t in range(4):
        gelu_tile(a, ACC(2, t), ACC(3, t), MT + t, RT + t, CS + 8, CS + 12, TMP + 8, HPB + 2 * t, V_C1)
        bg.tick(2)
    bg.flush()
    act_store_pairs(a, HPB, V_B)
    a("s_waitcnt lgkmcnt(0)")
    for p in range(2):
        for r in range(4):
            a("v_permlane32_swap_b32 %s, %s" % (v(ACC(4, 2 * p) + r), v(ACC(4, 2 * p + 1) + r)))
    a("v_bfe_u32 %s, v0, 4, 1" % v(TMP + 1))
    a("v_lshlrev_b32 %s, 1, %s" % (v(TMP + 1), v(TMP + 1)))
    a("v_lshrrev_b32 %s, 5, v0" % v(TMP))
    a("v_add_u32 %s, %s, %s" % (v(TMP), v(TMP), v(TMP + 1)))
    a("s_lshl_b32 %s, %s, 3" % (s(S_T0), s(S_RB)))
    a("s_add_u32 %s, %s, %d" % (s(S_T0), s(S_T0), 4 * m))
    a("v_add_u32 %s, %s, %s" % (v(TMP), s(S_T0), v(TMP)))
    a("v_mul_u32_u24 %s, %d, %s" % (v(TMP), ACT_T, v(TMP)))
    a("v_and_b32 %s, 15, v0" % v(TMP + 1))
    a("v_lshl_add_u32 %s, %s, 4, %s" % (v(TMP), v(TMP + 1), v(TMP)))
    a("s_lshl_b32 %s, %s, 4" % (s(S_T0), s(S_COL2)))
    a("s_lshl_b32 %s, %s, 8" % (s(S_T1), s(S_J)))
    a("s_add_u32 %s, %s, %s" % (s(S_T0), s(S_T0), s(S_T1)))
    a("s_add_u32 %s, %s, 16384" % (s(S_T0), s(S_T0)))
    a("v_add_u32 %s, %s, %s" % (v(V_M), s(S_T0), v(TMP)))
    for p in range(2):
        gelu_tile(a, ACC(4, 2 * p), ACC(4, 2 * p + 1), MTM + p, RTM + p, CSG4, CSU4, TMP + 8, HM + 2 * p, V_C1)
    a("s_nop 1")
    a("v_permlane16_swap_b32 %s, %s" % (v(HM), v(HM + 2)))
    a("v_permlane16_swap_b32 %s, %s" % (v(HM + 1), v(HM + 3)))
    a("buffer_store_dwordx4 %s, %s, %s, 0 offen %s" % (v(HM, 4), v(V_M), s(SRD_WS, 4), Cfg.sc))


def emit_variant(a, var, after_label):
    L = var.L
    ool = []
    a.label("P1_%s" % var.name)
    variant_addresses(a, var)
    T = V_T
    a("s_lshl_b32 %s, %s, 3" % (s(S_T2), s(S_CGI)))
    a("s_add_u32 %s, %s, %s" % (s(S_T2), s(S_T2), s(S_W)))
    a("s_lshl_b32 %s, %s, 10" % (s(S_T2), s(S_T2)))
    a("s_add_u32 %s, %s, %s" % (s(S_T2), s(S_T2), s(S_R0B)))
    a("s_waitcnt lgkmcnt(0)")
    srd(a, SRD_X, S_X, 2048 * 1024)
    a("buffer_load_dwordx4 %s, %s, %s, %s offen" % (v(V_CSP, 4), v(T + 12), s(SRD_X, 4), s(S_T2)))
    srd(a, SRD_WS, S_WS, WS_USED)
    if var.typ == 'X' and var.m == 0:
        srd(a, SRD_Q, S_Q, 512 * 3072)
    else:
        srd(a, SRD_G, S_G, 512 * 3584)
        srd(a, SRD_U, S_U, 512 * 3584)
        if var.typ == 'Y' and var.m == 1:
            a("s_cmp_lt_u32 %s, 2" % s(S_J))
            a("s_cselect_b32 %s, %s, %s" % (s(SRD_MIX), s(SRD_G), s(SRD_U)))
            a("s_cselect_b32 %s, %s, %s" % (s(SRD_MIX + 1), s(SRD_G + 1), s(SRD_U + 1)))
            a("s_mov_b32 %s, 0x%x" % (s(SRD_MIX + 2), 512 * 3584))
            a("s_mov_b32 %s, 0x20000" % s(SRD_MIX + 3))
    n_after_row = 0
    if Cfg.merged and var.m == 0:
        lab = a.newlabel("noep")
        a("s_cmp_eq_u32 %s, 0" % s(S_W))
        a("s_cbranch_scc0 %s" % lab)
        a("v_mov_b32 %s, %d" % (v(T + 15), WS_EPOCH))
        a("buffer_load_dword %s, %s, %s, 0 offen sc1" % (v(V_TAG), v(T + 15), s(SRD_WS, 4)))
        a.label(lab)
    issue_plain(a, var, None, 0)
    n_after_row += 1
    issue_plain(a, var, 0, 1)
    n_after_row += L
    if var.typ == 'X':
        halo_issue(a)
        n_after_row += 2
    issue_plain(a, var, 1, 0)
    issue_plain(a, var, 2, 1)
    n_after_row += 2 * L
    frag_lane_addresses(a, var)
    for i in range(84 if var.typ == 'X' else 80):
        a("v_mov_b32 %s, 0" % v(128 + i))
    a("s_waitcnt vmcnt(%d)" % n_after_row)
    stats_compute(a)
    a("s_waitcnt vmcnt(%d)" % (2 * L))
    a("s_barrier")
    stamp(a, 3)
    for g in frag_addr(var, kk=0, advance=False):
        for t in g:
            a(t)
    for t in frag_reads(var, 0, 0):
        a(t)
    issue_plain(a, var, 3, 0)
    loop = "P1_%s_loop" % var.name
    a.label(loop)
    emit_step(a, var, 0, 2 * L, post=lambda aa: event_site(aa, var, 0, ool))
    emit_step(a, var, 1, 2 * L, post=lambda aa: event_site(aa, var, 1, ool))
    emit_step(a, var, 2, 2 * L)
    emit_step(a, var, 3, 2 * L)
    a("s_add_u32 %s, %s, 1" % (s(S_IT), s(S_IT)))
    a("s_cmp_lt_u32 %s, 3" % s(S_IT))
    a("s_cbranch_scc1 %s" % loop)
    stamp(a, 4)
    nm = var.nm

    def top12(aa):
        if Cfg.merged and var.m == 0:
            lab = aa.newlabel("nochk")
            aa("s_cmp_eq_u32 %s, 0" % s(S_W))
            aa("s_cbranch_scc0 %s" % lab)
            poll_check(aa, ool, "early")
            aa.label(lab)
    f12 = []
    if var.typ == 'X':
        f12 += spread(bias_fillers(var), 1, nm - 2)
    emit_step(a, var, 0, 2 * L, dma=False, extra=f12, top=top12)
    emit_step(a, var, 1, L, dma=False, extra=spread(tail_loads() + touch_fillers(), 2, nm - 1))
    emit_step(a, var, 2, 5, dma=False, extra=spread(k2_setup_fillers(), 1, nm - 2))
    emit_step(a, var, 3, 1, dma=False, prefetch=False, extra=spread(tail_reduce(), 1, nm - 3))
    stamp(a, 5)
    tail_publish(a)
    stamp(a, 6)
    groups = [w2_load_group(t) for t in range(PRE2)] if Cfg.merged else []
    bg = BG(a, groups)
    if var.typ == 'X':
        epilogue_x(a, var, bg)
    else:
        epilogue_y(a, var, bg)
    stamp(a, 7)
    a("s_branch %s" % after_label)
    for t in ool:
        a.raw(t)


def emit_phase1(a, after_label):
    prologue_common(a)
    a("s_and_b32 %s, %s, 1" % (s(S_T0), s(S_CGI)))
    a("s_lshl_b32 %s, %s, 1" % (s(S_T0), s(S_T0)))
    a("s_or_b32 %s, %s, %s" % (s(S_T0), s(S_T0), s(S_M)))
    a("s_cmp_eq_u32 %s, 1" % s(S_T0))
    a("s_cbranch_scc1 P1_X1")
    a("s_cmp_eq_u32 %s, 2" % s(S_T0))
    a("s_cbranch_scc1 P1_Y0")
    a("s_cmp_eq_u32 %s, 3" % s(S_T0))
    a("s_cbranch_scc1 P1_Y1")
    for typ, m in (('X', 0), ('X', 1), ('Y', 0), ('Y', 1)):
        emit_variant(a, Variant(typ, m), after_label)


def emit_handoff(a):
    ool = []
    T = V_T
    a("s_waitcnt vmcnt(0)")
    a("s_barrier")
    stamp(a, 8)
    lab = a.newlabel("ho_skip")
    a("s_cmp_eq_u32 %s, 0" % s(S_W))
    a("s_cbranch_scc0 %s" % lab)
    a("s_lshl_b32 %s, %s, 7" % (s(S_T0), s(S_RB)))
    a("s_lshl_b32 %s, %s, 2" % (s(S_T1), s(S_CGI)))
    a("s_add_u32 %s, %s, %s" % (s(S_T0), s(S_T0), s(S_T1)))
    a("s_add_u32 %s, %s, %d" % (s(S_T0), s(S_T0), WS_FD))
    a("v_mov_b32 %s, 0x%x" % (v(T), OOB))
    a("v_writelane_b32 %s, %s, 0" % (v(T), s(S_T0)))
    a("s_lshr_b32 %s, %s, 1" % (s(S_T1), s(S2_TG)))
    a("s_lshl_b32 %s, %s, 7" % (s(S_T1), s(S_T1)))
    a("s_add_u32 %s, %s, %d" % (s(S_T1), s(S_T1), WS_FD))
    a("buffer_store_dword %s, %s, %s, 0 offen sc1" % (v(V_TAG), v(T), s(SRD_WS, 4)))
    a("v_and_b32 %s, 15, v0" % v(T + 1))
    a("v_lshl_add_u32 %s, %s, 2, %s" % (v(V_PADDR), v(T + 1), s(S_T1)))
    a("buffer_load_dword %s, %s, %s, 0 offen sc1" % (v(V_PRES), v(V_PADDR), s(SRD_WS, 4)))
    a("s_waitcnt vmcnt(0)")
    poll_check(a, ool, "done")
    a.label(lab)
    a("s_barrier")
    return ool


P2_AVO = 2
P2_WL = 4
P2_XO = 12
P2_XR = 16
P2_T = 20
P2_EP = 46
WF2 = lambda st, u: 48 + st * 16 + u * 4
ACT2 = lambda i: 80 + (i % 12) * 4
ACC_D = lambda u: 128 + u * 4
ACC_S = lambda u: 144 + u * 4
V_EPF = 212


def p2_addresses(a):
    T = P2_T
    a("s_lshl_b32 %s, %s, 2" % (s(S_T0), s(S2_TG)))
    a("s_add_u32 %s, %s, %s" % (s(S_T0), s(S_T0), s(S_J)))
    a("s_mul_i32 %s, %s, %d" % (s(S_T0), s(S_T0), ACT_T))
    a("v_lshlrev_b32 %s, 4, v0" % v(T))
    a("v_add_u32 %s, %s, %s" % (v(P2_AVO), s(S_T0), v(T)))
    a("s_mul_i32 %s, %s, %d" % (s(S2_AOFF), s(S_M), 36 * 1024))
    a("v_lshrrev_b32 %s, 4, v0" % v(T + 1))
    a("v_bfe_u32 %s, v0, 2, 2" % v(T + 2))
    a("v_lshl_add_u32 %s, %s, 3, %s" % (v(T + 2), v(T + 1), v(T + 2)))
    a("v_lshlrev_b32 %s, 7, %s" % (v(T + 2), v(T + 2)))
    a("v_and_b32 %s, 3, v0" % v(T + 3))
    a("v_lshl_add_u32 %s, %s, 3, %s" % (v(T + 2), v(T + 3), v(T + 2)))
    a("s_lshl_b32 %s, %s, 12" % (s(S_T0), s(S_M)))
    a("v_add_u32 %s, %s, %s" % (v(T + 2), s(S_T0), v(T + 2)))
    a("v_bfe_u32 %s, v0, 3, 2" % v(T + 3))
    for u in range(4):
        a("v_xor_b32 %s, %d, %s" % (v(T + 4), u, v(T + 3)))
        a("v_lshl_add_u32 %s, %s, 5, %s" % (v(P2_WL + u), v(T + 4), v(T + 2)))
        a("v_add_u32 %s, 0x10000, %s" % (v(P2_WL + 4 + u), v(P2_WL + u)))
    a("s_lshl_b32 %s, %s, 6" % (s(S_T0), s(S2_TG)))
    a("s_lshl_b32 %s, %s, 4" % (s(S_T1), s(S_J)))
    a("s_add_u32 %s, %s, %s" % (s(S_T0), s(S_T0), s(S_T1)))
    a("v_and_b32 %s, 15, v0" % v(T + 4))
    a("v_add_u32 %s, %s, %s" % (v(T + 4), s(S_T0), v(T + 4)))
    a("v_lshlrev_b32 %s, 10, %s" % (v(T + 4), v(T + 4)))
    a("v_and_b32 %s, 1, %s" % (v(T + 5), v(T + 1)))
    a("v_lshl_add_u32 %s, %s, 5, %s" % (v(T + 4), v(T + 5), v(T + 4)))
    a("v_lshrrev_b32 %s, 1, %s" % (v(T + 5), v(T + 1)))
    a("v_lshl_add_u32 %s, %s, 4, %s" % (v(T + 4), v(T + 5), v(T + 4)))
    a("s_lshl_b32 %s, %s, 7" % (s(S_T0), s(S2_CG2)))
    a("s_lshl_b32 %s, %s, 6" % (s(S_T1), s(S_M)))
    a("s_add_u32 %s, %s, %s" % (s(S_T0), s(S_T0), s(S_T1)))
    a("v_add_u32 %s, %s, %s" % (v(P2_XO), s(S_T0), v(T + 4)))
    for r in range(16):
        a("v_mov_b32 %s, 0" % v(ACC_D(0) + r))
    srd(a, R_OUT, S_OUT, 2048 * 1024)


class VmSim:
    def __init__(self):
        self.ops = []

    def issue(self, tag):
        self.ops.append(tag)

    def need(self, tag):
        if tag not in self.ops:
            return None
        return len(self.ops) - 1 - self.ops.index(tag)


def p2_reads(tile, u):
    st = tile & 1
    slot = tile % NTILE2
    base = P2_WL + (4 if slot >= 8 else 0) + u
    off = (slot % 8) * TILE2
    return ["ds_read_b64_tr_b16 %s, %s offset:%d" % (v(WF2(st, u), 2), v(base), off),
            "ds_read_b64_tr_b16 %s, %s offset:%d" % (v(WF2(st, u) + 2, 2), v(base), off + 512)]


def p2_act(i):
    return "buffer_load_dwordx4 %s, %s, %s, %s offen offset:%d %s" % (
        v(ACT2(i), 4), v(P2_AVO), s(SRD_WS, 4), s(S2_AOFF), (i % 4) * 1024, Cfg.sc if Cfg.merged else "")


def emit_phase2_main(a):
    sim = VmSim()
    a("buffer_load_dwordx4 %s, %s, %s, 0 offen" % (v(P2_XR, 4), v(P2_XO), s(SRD_X, 4)))
    sim.issue("xr")
    if Cfg.merged:
        lab = a.newlabel("noepl")
        a("s_cmp_eq_u32 s2, 0")
        a("s_cbranch_scc0 %s" % lab)
        a("s_cmp_eq_u32 %s, 0" % s(S_W))
        a("s_cbranch_scc0 %s" % lab)
        a("v_lshrrev_b32 %s, 2, v0" % v(P2_T))
        a("v_lshlrev_b32 %s, 7, %s" % (v(P2_T), v(P2_T)))
        a("v_and_b32 %s, 3, v0" % v(P2_T + 1))
        a("v_lshl_add_u32 %s, %s, 4, %s" % (v(P2_T), v(P2_T + 1), v(P2_T)))
        a("v_add_u32 %s, %d, %s" % (v(V_PADDR), WS_FA, v(P2_T)))
        a("buffer_load_dwordx4 %s, %s, %s, 0 offen sc1" % (v(V_EPF, 4), v(V_PADDR), s(SRD_WS, 4)))
        a.label(lab)
    for i in range(12):
        a(p2_act(i))
        sim.issue(("a", i))
        if i % 4 == 3:
            a("s_add_u32 %s, %s, 4096" % (s(S2_AOFF), s(S2_AOFF)))
    for u in range(4):
        for t in p2_reads(0, u):
            a(t)
    a("s_waitcnt lgkmcnt(0)")
    for u in range(4):
        for t in p2_reads(1, u):
            a(t)
    for sg in range(36):
        if sg % 4 == 2 and sg <= 30:
            V = (sg - 2) // 4
            last_tile = 4 * V + 7
            n = sim.need(("w", last_tile))
            if n is not None:
                a("s_waitcnt vmcnt(%d)" % n)
            a("s_barrier")
        if sg == 16:
            lab = a.newlabel("noacc")
            a("s_cmp_eq_u32 %s, 0" % s(S_M))
            a("s_cbranch_scc0 %s" % lab)
            a("s_nop 7")
            for r in range(16):
                a("v_mov_b32 %s, %s" % (v(ACC_S(0) + r), v(ACC_D(0) + r)))
            for r in range(16):
                a("v_mov_b32 %s, 0" % v(ACC_D(0) + r))
            a("s_nop 1")
            a.label(lab)
        n = sim.need(("a", sg))
        st = sg & 1
        for u in range(4):
            if u == 0:
                a("s_waitcnt vmcnt(%d) lgkmcnt(%d)" % (n, 13 if sg <= 34 else 6))
            else:
                if sg + 2 < 36:
                    a("s_waitcnt lgkmcnt(13)")
                elif sg == 34:
                    a("s_waitcnt lgkmcnt(%d)" % (8 + 2 * (3 - u)))
                else:
                    a("s_waitcnt lgkmcnt(%d)" % (2 * (3 - u)))
            d = v(ACC_D(u), 4)
            a("v_mfma_f32_16x16x32_bf16 %s, %s, %s, %s" % (d, v(WF2(st, u), 4), v(ACT2(sg), 4), d))
            if sg + 2 < 36:
                for t in p2_reads(sg + 2, u):
                    a(t)
            if u == 1 and sg >= 2 and sg + 12 < 36:
                tile = sg + 12
                if tile == 16:
                    lab = a.newlabel("nosw")
                    a("s_cmp_eq_u32 %s, 0" % s(S_M))
                    a("s_cbranch_scc0 %s" % lab)
                    srd(a, R_W, S_WD, 1792 * 1024)
                    a("s_mov_b32 %s, 0" % s(S2_WROW))
                    a.label(lab)
                for t in w2_load_group(tile):
                    a(t)
                sim.issue(("w", tile))
        if sg + 12 < 36:
            a(p2_act(sg + 12))
            sim.issue(("a", sg + 12))
            if (sg + 12) % 4 == 3:
                a("s_add_u32 %s, %s, 4096" % (s(S2_AOFF), s(S2_AOFF)))


def emit_phase2_epilogue(a):
    T = P2_T
    a("s_nop 7")
    a("s_barrier")
    a("s_mul_i32 %s, %s, 6144" % (s(S_T0), s(S_J)))
    a("v_lshlrev_b32 %s, 4, v0" % v(T))
    a("v_add_u32 %s, %s, %s" % (v(T), s(S_T0), v(T)))
    k1 = a.newlabel("k2_kh1")
    join = a.newlabel("k2_join")
    S, D, E = 56, 64, 72
    a("s_cmp_eq_u32 %s, 0" % s(S_M))
    a("s_cbranch_scc0 %s" % k1)
    a("ds_write_b128 %s, %s" % (v(T), v(ACC_S(2), 4)))
    a("ds_write_b128 %s, %s offset:1024" % (v(T), v(ACC_S(3), 4)))
    a("ds_write_b128 %s, %s offset:2048" % (v(T), v(ACC_D(2), 4)))
    a("ds_write_b128 %s, %s offset:3072" % (v(T), v(ACC_D(3), 4)))
    for r in range(8):
        a("v_mov_b32 %s, %s" % (v(S + r), v(ACC_S(0) + r)))
    a("s_waitcnt lgkmcnt(0)")
    a("s_barrier")
    a("ds_read_b128 %s, %s offset:4096" % (v(48, 4), v(T)))
    a("ds_read_b128 %s, %s offset:5120" % (v(52, 4), v(T)))
    a("s_waitcnt lgkmcnt(0)")
    for r in range(8):
        a("v_add_f32 %s, %s, %s" % (v(D + r), v(ACC_D(0) + r), v(48 + r)))
    a("s_branch %s" % join)
    a.label(k1)
    a("ds_write_b128 %s, %s offset:4096" % (v(T), v(ACC_D(0), 4)))
    a("ds_write_b128 %s, %s offset:5120" % (v(T), v(ACC_D(1), 4)))
    a("s_waitcnt lgkmcnt(0)")
    a("s_barrier")
    a("ds_read_b128 %s, %s" % (v(S, 4), v(T)))
    a("ds_read_b128 %s, %s offset:1024" % (v(S + 4, 4), v(T)))
    a("ds_read_b128 %s, %s offset:2048" % (v(48, 4), v(T)))
    a("ds_read_b128 %s, %s offset:3072" % (v(52, 4), v(T)))
    a("s_waitcnt lgkmcnt(0)")
    for r in range(8):
        a("v_add_f32 %s, %s, %s" % (v(D + r), v(ACC_D(2) + r), v(48 + r)))
    a.label(join)
    for r in range(8):
        a("v_mul_f32 %s, %s, %s" % (v(E + r), hexf(-LOG2E), v(D + r)))
    for r in range(8):
        a("v_exp_f32 %s, %s" % (v(E + r), v(E + r)))
    for r in range(8):
        a("v_mul_f32 %s, %s, %s" % (v(S + r), v(S + r), v(D + r)))
    for r in range(8):
        a("v_add_f32 %s, 1.0, %s" % (v(E + r), v(E + r)))
    for r in range(8):
        a("v_rcp_f32 %s, %s" % (v(E + r), v(E + r)))
    for i in range(4):
        a("v_lshlrev_b32 %s, 16, %s" % (v(D + 2 * i), v(P2_XR + i)))
        a("v_and_b32 %s, 0xffff0000, %s" % (v(D + 2 * i + 1), v(P2_XR + i)))
    for r in range(8):
        a("v_mul_f32 %s, %s, %s" % (v(S + r), v(S + r), v(E + r)))
    a("s_nop 1")
    for r in range(4):
        a("v_permlane16_swap_b32 %s, %s" % (v(S + r), v(S + 4 + r)))
    a("s_nop 1")
    for r in range(8):
        a("v_add_f32 %s, %s, %s" % (v(S + r), v(S + r), v(D + r)))
    for i in range(4):
        a("v_cvt_pk_bf16_f32 %s, %s, %s" % (v(E + i), v(S + 2 * i), v(S + 2 * i + 1)))
    a("buffer_store_dwordx4 %s, %s, %s, 0 offen" % (v(E, 4), v(P2_XO), s(R_OUT, 4)))


def emit_epoch_bump(a):
    lab = a.newlabel("nobump")
    loop = a.newlabel("bumploop")
    go = a.newlabel("bumpgo")
    a("s_cmp_eq_u32 s2, 0")
    a("s_cbranch_scc0 %s" % lab)
    a("s_cmp_eq_u32 %s, 0" % s(S_W))
    a("s_cbranch_scc0 %s" % lab)
    a("s_mov_b32 %s, 0" % s(S_SPIN))
    a.label(loop)
    a("v_xor_b32 %s, %s, %s" % (v(V_EPF), v(V_TAG), v(V_EPF)))
    a("v_xor_b32 %s, %s, %s" % (v(V_EPF + 1), v(V_TAG), v(V_EPF + 1)))
    a("v_xor_b32 %s, %s, %s" % (v(V_EPF + 2), v(V_TAG), v(V_EPF + 2)))
    a("v_xor_b32 %s, %s, %s" % (v(V_EPF + 3), v(V_TAG), v(V_EPF + 3)))
    a("v_or_b32 %s, %s, %s" % (v(V_EPF), v(V_EPF), v(V_EPF + 1)))
    a("v_or3_b32 %s, %s, %s, %s" % (v(V_EPF), v(V_EPF), v(V_EPF + 2), v(V_EPF + 3)))
    a("v_cmp_ne_u32 vcc, 0, %s" % v(V_EPF))
    a("s_nop 1")
    a("s_cmp_lg_u64 vcc, 0")
    a("s_cbranch_scc0 %s" % go)
    a("buffer_load_dwordx4 %s, %s, %s, 0 offen sc1" % (v(V_EPF, 4), v(V_PADDR), s(SRD_WS, 4)))
    a("s_add_u32 %s, %s, 1" % (s(S_SPIN), s(S_SPIN)))
    a("s_waitcnt vmcnt(0)")
    a("s_cmp_lt_u32 %s, %d" % (s(S_SPIN), SPIN_MAX))
    a("s_cbranch_scc1 %s" % loop)
    a.label(go)
    a("v_mov_b32 %s, 0x%x" % (v(P2_T), OOB))
    a("s_mov_b32 %s, %d" % (s(S_T0), WS_EPOCH))
    a("v_writelane_b32 %s, %s, 0" % (v(P2_T), s(S_T0)))
    a("s_nop 1")
    a("buffer_store_dword %s, %s, %s, 0 offen sc1" % (v(V_TAG), v(P2_T), s(SRD_WS, 4)))
    a.label(lab)


def emit_merged(a, end_label):
    emit_phase1(a, "P1_done")
    a.label("P1_done")
    p2_addresses(a)
    ool = emit_handoff(a)
    stamp(a, 9)
    emit_phase2_main(a)
    stamp(a, 11)
    emit_phase2_epilogue(a)
    emit_epoch_bump(a)
    if STAMPS["on"]:
        a("s_waitcnt vmcnt(0)")
        stamp(a, 10)
        stamp_real(a, 2)
    stamp_flush(a, S_W, S_WS, 0)
    a("s_branch %s" % end_label)
    for t in ool:
        a.raw(t)


def emit_phase2_standalone(a):
    a("s_load_dwordx2 %s, s[0:1], 0" % s(S_X, 2))
    a("s_load_dwordx2 %s, s[0:1], 72" % s(S_WS, 2))
    a("s_load_dwordx2 %s, s[0:1], 16" % s(S_WO, 2))
    a("s_load_dwordx2 %s, s[0:1], 48" % s(S_WD, 2))
    a("s_load_dwordx2 %s, s[0:1], 56" % s(S_OUT, 2))
    a("v_lshrrev_b32 v1, 6, v0")
    a("v_and_b32 v0, 63, v0")
    a("v_readfirstlane_b32 %s, v1" % s(S_W))
    a("s_and_b32 %s, s2, 7" % s(S_T0))
    a("s_lshr_b32 %s, s2, 3" % s(S_T1))
    a("s_lshr_b32 %s, %s, 3" % (s(S_T3), s(S_T1)))
    a("s_lshl_b32 %s, %s, 2" % (s(S2_TG), s(S_T0)))
    a("s_add_u32 %s, %s, %s" % (s(S2_TG), s(S2_TG), s(S_T3)))
    a("s_and_b32 %s, %s, 7" % (s(S2_CG2), s(S_T1)))
    a("s_and_b32 %s, %s, 3" % (s(S_J), s(S_W)))
    a("s_lshr_b32 %s, %s, 2" % (s(S_M), s(S_W)))
    a("s_waitcnt lgkmcnt(0)")
    srd(a, SRD_X, S_X, 2048 * 1024)
    srd(a, SRD_WS, S_WS, WS_USED)
    for t in k2_setup_fillers():
        a(t)
    for t in range(PRE2):
        for x in w2_load_group(t):
            a(x)
    p2_addresses(a)
    a("s_waitcnt vmcnt(0)")
    a("s_barrier")
    emit_phase2_main(a)
    emit_phase2_epilogue(a)
```

```python
ACT_T = 72 * 1024
WS_ACT = 0
WS_STATS = 0x900000
WS_CSP = 0x904000
WS_FLAGS = 0x960000
WS_FA = WS_FLAGS
WS_FB = WS_FLAGS + 0x800
WS_FD = WS_FLAGS + 0x1000
WS_EPOCH = WS_FLAGS + 0x2000
WS_USED = 0x970000
WSLOT = 20480
XRING = 4 * WSLOT
HALO = XRING + 3 * 16384
LB = HALO + 16384
O_MEAN = 0
O_RSTD = 576
O_CS = 1152
O_XBUF = O_CS + 1280
K1_LDS = LB + O_XBUF + 4 * 1536
TILE2 = 8192
NTILE2 = 18
PRE2 = 18
```

```python
import sys
from asmlib import *
from layout import *
import fused

NAME = "recurrent_scan__sliding_local_dilated__glu_gated_geglu__prompt"

HEADER = """; Kernarg layout (80 bytes, ptrs only, base s[0:1]):
"""

def descriptor(name, vgpr=256, sgpr=102):
    return """.section .rodata,"a"
.p2align 6
.amdhsa_kernel %s
  .amdhsa_next_free_vgpr %d
  .amdhsa_next_free_sgpr %d
  .amdhsa_accum_offset %d
  .amdhsa_group_segment_fixed_size 0
  .amdhsa_kernarg_size 80
  .amdhsa_user_sgpr_count 2
  .amdhsa_user_sgpr_kernarg_segment_ptr 1
  .amdhsa_system_sgpr_workgroup_id_x 1
  .amdhsa_float_denorm_mode_32 3
.end_amdhsa_kernel
.text
""" % (name, vgpr, sgpr, vgpr)


def kernel_head(a, name):
    a.raw(".globl %s" % name)
    a.raw(".p2align 8")
    a.raw(".type %s,@function" % name)
    a.raw("%s:" % name)


def build_multi():
    fused.Cfg.merged = False
    a = Asm()
    a.raw(HEADER.rstrip())
    a.raw("; @launch kernel=phase1_kernel grid=(256,1,1) block=(512,1,1) lds=%d" % K1_LDS)
    a.raw("; @launch kernel=phase1_kernel grid=(256,1,1) block=(512,1,1) lds=%d" % K1_LDS)
    a.raw("; @launch kernel=phase2_kernel grid=(256,1,1) block=(512,1,1) lds=147456")
    a.raw('.amdgcn_target "amdgcn-amd-amdhsa--gfx950"')
    a.raw(".text")
    kernel_head(a, "phase1_kernel")
    a("s_cmp_ge_u32 s2, 256")
    a("s_cbranch_scc1 K1_end")
    fused.emit_phase1(a, "K1_end")
    a.label("K1_end")
    a("s_endpgm")
    kernel_head(a, "phase2_kernel")
    a("s_cmp_ge_u32 s2, 256")
    a("s_cbranch_scc1 K2_end")
    fused.emit_phase2_standalone(a)
    a.label("K2_end")
    a("s_endpgm")
    a.raw(descriptor("phase1_kernel"))
    a.raw(descriptor("phase2_kernel"))
    return a.text()


def build_merged():
    fused.Cfg.merged = True
    a = Asm()
    a.raw(HEADER.rstrip())
    a.raw("; @launch grid=(256,1,1) block=(512,1,1) lds=%d" % K1_LDS)
    a.raw('.amdgcn_target "amdgcn-amd-amdhsa--gfx950"')
    a.raw(".text")
    name = NAME + "_kernel"
    kernel_head(a, name)
    a("s_cmp_ge_u32 s2, 256")
    a("s_cbranch_scc1 K_end")
    fused.emit_merged(a, "K_end")
    a.label("K_end")
    a("s_endpgm")
    a.raw(descriptor(name))
    return a.text()


if __name__ == "__main__":
    out = sys.argv[1] if len(sys.argv) > 1 else "cdna_kernels/%s.s" % NAME
    mode = sys.argv[2] if len(sys.argv) > 2 else "merged"
    if "stamps" in sys.argv[3:]:
        STAMPS["on"] = True
    txt = build_multi() if mode == "multi" else build_merged()
    open(out, "w").write(txt)
    print("wrote", out, len(txt), "bytes")
```

```python
from asmlib import *
from layout import *

S_X, S_Q, S_G, S_U, S_WS, S_OUT = 4, 6, 8, 10, 12, 14
SRD_X, SRD_Q, SRD_G, SRD_U, SRD_WS, SRD_MIX = 16, 20, 24, 28, 32, 36
R_W, R_OUT = 20, 24
S_RB, S_CGI, S_UU, S_W, S_J, S_M, S_R0B = 40, 41, 42, 43, 44, 45, 46
S_KOFF = 47
S_M0X = 48
S_COL0, S_COL1, S_COL2 = 49, 50, 51
S_XO, S_XM0, S_XSLOTR, S_HK = 52, 53, 54, 55
S_IT, S_EV0, S_EV1 = 56, 57, 59
S_M0W = 58
S_T0, S_T1, S_T2, S_T3 = 60, 61, 62, 63
S_EX = 64
S2_WROW, S2_AOFF, S2_M0B, S2_TG = 66, 67, 68, 69
S_WO, S_WD = 70, 72
S2_CG2 = 74
S_XM0END = 75
S_SPIN = 47

V_WVO = 1
V_XVO = 4
V_XL = 6
V_HL = 8
V_WL, V_WL3, V_WM, V_WM3 = 10, 11, 12, 13
V_XA, V_HA = 14, 15
V_ONES = 16
V_T = 20
V_TAG, V_W2VO, V_CSST, V_PADDR, V_PRES, V_DUMMY = 40, 41, 42, 43, 44, 45
WF = lambda st, t: 48 + st * 20 + t * 4
XF = lambda st, t: 88 + st * 20 + t * 4
ACC = lambda tau, t: 128 + (tau * 4 + t) * 4
V_AH = 208
V_CSP = 212
V_STAT = 224
V_CSTMP = 226
BP, BC, BP0 = 232, 236, 240

OOB = 0x7FFFFF00
SPIN_MAX = 1 << 18

C0 = -2.0 * 0.7978845608028654 * 1.4426950408889634
C1 = C0 * 0.044715
LOG2E = 1.4426950408889634


class Cfg:
    merged = True
    sc = "sc1"


_stamp0 = stamp


def stamp(a, idx, mode="main"):
    active = "main"
    for m in ("st_pro", "st_loop", "st_p2", "st_epi"):
        if m in EXP:
            active = m
    if idx in (1, 10) and mode == "main":
        _stamp0(a, idx)
    elif mode == active:
        _stamp0(a, idx)


def srd(a, base, ptr, nbytes):
    a("s_mov_b32 %s, %s" % (s(base), s(ptr)))
    a("s_and_b32 %s, %s, 0xffff" % (s(base + 1), s(ptr + 1)))
    a("s_mov_b32 %s, 0x%x" % (s(base + 2), nbytes))
    a("s_mov_b32 %s, 0x20000" % s(base + 3))


def allreduce16(a, regs, op="v_add_f32"):
    for ror in (8, 4, 2, 1):
        for r in regs:
            a("%s_dpp %s, %s, %s row_ror:%d row_mask:0xf bank_mask:0xf" % (op, v(r), v(r), v(r), ror))
        pad = 2 - (len(regs) - 1)
        if pad > 0:
            a("s_nop %d" % (pad - 1))


def allreduce_rows(a, r, tmp, op="v_add_f32"):
    for swap in ("v_permlane16_swap_b32", "v_permlane32_swap_b32"):
        a("v_mov_b32 %s, %s" % (v(tmp), v(r)))
        a("s_nop 1")
        a("%s %s, %s" % (swap, v(r), v(tmp)))
        a("s_nop 1")
        a("%s %s, %s, %s" % (op, v(r), v(r), v(tmp)))
        a("s_nop 0")


class Variant:
    def __init__(self, typ, m):
        self.typ = typ
        self.m = m
        if typ == 'X' and m == 0:
            self.loads = [(SRD_Q, V_WVO, 0), (SRD_Q, V_WVO + 1, 1), (SRD_Q, V_WVO + 2, 2)]
            self.pitch = 3072
        elif typ == 'X':
            self.loads = [(SRD_G, V_WVO, 3), (SRD_U, V_WVO, 4)]
            self.pitch = 3584
        elif m == 0:
            self.loads = [(SRD_G, V_WVO, 0), (SRD_U, V_WVO, 1), (SRD_G, V_WVO + 1, 2)]
            self.pitch = 3584
        else:
            self.loads = [(SRD_U, V_WVO + 1, 3), (SRD_MIX, V_WVO + 2, 4)]
            self.pitch = 3584
        self.L = len(self.loads) + 1
        self.name = "%s%d" % (typ, m)
        self.nm = 21 if typ == 'X' else 20


def w_load(var, i, slot):
    srdr, vo, q = var.loads[i]
    return (["s_add_u32 m0, %s, %d" % (s(S_M0W), slot * WSLOT + q * 4096)],
            ["buffer_load_dwordx4 %s, %s, %s offen lds" % (v(vo), s(srdr, 4), s(S_KOFF))])


def koff_adv(var):
    st = 32 * var.pitch
    return ["s_add_u32 %s, %s, %d" % (s(S_KOFF), s(S_KOFF), st),
            "s_cmp_eq_u32 %s, %d" % (s(S_KOFF), 16 * st),
            "s_cselect_b32 %s, 0, %s" % (s(S_KOFF), s(S_KOFF))]


def x_load(h):
    return (["s_add_u32 m0, %s, %d" % (s(S_XM0), h * 8192)],
            ["buffer_load_dwordx4 %s, %s, %s offen lds" % (v(V_XVO + h), s(SRD_X, 4), s(S_XO))])


def x_adv():
    return [["s_add_u32 %s, %s, 128" % (s(S_T0), s(S_XO)),
             "s_and_b32 %s, %s, 0x380" % (s(S_T0), s(S_T0)),
             "s_or_b32 %s, %s, %s" % (s(S_XO), s(S_T0), s(S_R0B))],
            ["s_add_u32 %s, %s, 0x4000" % (s(S_XM0), s(S_XM0)),
             "s_cmp_eq_u32 %s, %s" % (s(S_XM0), s(S_XM0END)),
             "s_cselect_b32 %s, %s, %s" % (s(S_XM0), s(S_M0X), s(S_XM0))]]


def issue_plain(a, var, slot, h):
    if slot is not None:
        for i in range(len(var.loads)):
            pre, ld = w_load(var, i, slot)
            for t in pre:
                a(t)
            a("s_nop 0")
            for t in ld:
                a(t)
        for t in koff_adv(var):
            a(t)
    pre, ld = x_load(h)
    for t in pre:
        a(t)
    a("s_nop 0")
    for t in ld:
        a(t)
    if h:
        for g in x_adv():
            for t in g:
                a(t)


def frag_reads(var, st, slot):
    wl = V_WL3 if slot == 3 else V_WL
    wm = V_WM3 if slot == 3 else V_WM
    so = 0 if slot == 3 else slot * WSLOT
    W = []
    for tau in range(5):
        if var.typ == 'Y' and tau == 4:
            W.append(["ds_read_b64_tr_b16 %s, %s offset:%d" % (v(WF(st, tau), 2), v(wm), so),
                      "ds_read_b64_tr_b16 %s, %s offset:%d" % (v(WF(st, tau) + 2, 2), v(wm), so + 256)])
        else:
            W.append(["ds_read_b64_tr_b16 %s, %s offset:%d" % (v(WF(st, tau), 2), v(wl), so + tau * 4096),
                      "ds_read_b64_tr_b16 %s, %s offset:%d" % (v(WF(st, tau) + 2, 2), v(wl), so + tau * 4096 + 512)])
    X = ["ds_read_b128 %s, %s offset:%d" % (v(XF(st, t), 4), v(V_XA), t * 2048) for t in range(4)]
    r = W[0] + W[1] + [X[0]] + W[2] + [X[1]] + W[3] + [X[2]] + W[4] + [X[3]]
    if var.typ == 'X':
        r.append("ds_read_b128 %s, %s" % (v(XF(st, 4), 4), v(V_HA)))
    return r


def frag_addr(var, kk, advance):
    g = []
    if advance:
        g.append(["s_add_u32 %s, %s, 0x4000" % (s(S_XSLOTR), s(S_XSLOTR)),
                  "s_cmp_eq_u32 %s, 0xc000" % s(S_XSLOTR),
                  "s_cselect_b32 %s, 0, %s" % (s(S_XSLOTR), s(S_XSLOTR))])
    g.append(["v_add_u32 %s, %s, %s" % (v(V_XA), s(S_XSLOTR), v(V_XL + kk))])
    if var.typ == 'X':
        h = []
        if advance:
            h += ["s_add_u32 %s, %s, 0x800" % (s(S_HK), s(S_HK)),
                  "s_and_b32 %s, %s, 0x3fff" % (s(S_HK), s(S_HK))]
        h.append("v_add_u32 %s, %s, %s" % (v(V_HA), s(S_HK), v(V_HL + kk)))
        g.append(h)
    return g


def mfmas(var, st):
    out = []
    for t in range(4):
        for tau in range(5):
            d = v(ACC(tau, t), 4)
            if var.typ == 'X' and tau == 2:
                out.append("v_mfma_f32_16x16x32_bf16 %s, %s, %s, %s" % (d, v(XF(st, t), 4), v(WF(st, tau), 4), d))
            else:
                out.append("v_mfma_f32_16x16x32_bf16 %s, %s, %s, %s" % (d, v(WF(st, tau), 4), v(XF(st, t), 4), d))
    if var.typ == 'X':
        d = v(V_AH, 4)
        if var.m == 0:
            out.append("v_mfma_f32_16x16x32_bf16 %s, %s, %s, %s" % (d, v(WF(st, 1), 4), v(XF(st, 4), 4), d))
        else:
            out.append("v_mfma_f32_16x16x32_bf16 %s, %s, %s, %s" % (d, v(XF(st, 4), 4), v(WF(st, 2), 4), d))
    return out


def spread(items, p0, p1):
    n = len(items)
    if n == 0:
        return []
    return [(p0 + (i * (p1 - p0 + 1)) // n, t) for i, t in enumerate(items)]


def emit_step(a, var, s4, vm, dma=True, prefetch=True, extra=None, post=None, top=None):
    par = s4 & 1
    a("s_waitcnt vmcnt(%d) lgkmcnt(0)" % vm)
    if top:
        top(a)
    if "nobar" not in EXP:
        a("s_barrier")
    M = mfmas(var, par)
    F = []
    if prefetch:
        ga = frag_addr(var, kk=1 - par, advance=(par == 1))
        for i, g in enumerate(ga):
            for t in g:
                F.append((i, t))
        rd = frag_reads(var, 1 - par, (s4 + 1) & 3)
        if "noreads" in EXP:
            rd = []
        for i, t in enumerate(rd):
            F.append((i if i < 4 else i + 0, t))
    if dma and "nodma" not in EXP:
        nl = len(var.loads)
        poss = [3, 8, 13, 18] if var.m == 0 else [5, 10, 15]
        for i in range(nl):
            pre, ld = w_load(var, i, s4)
            F += [(poss[i] - 1, t) for t in pre] + [(poss[i], t) for t in ld]
        F += [(poss[nl - 1] + 1, t) for t in koff_adv(var)]
        h = 1 - par
        pre, ld = x_load(h)
        px = poss[nl]
        F += [(px - 1, t) for t in pre] + [(px, t) for t in ld]
        if h:
            g = x_adv()
            F += [(px + 1, t) for t in g[0]] + [(min(px + 2, len(M) - 1), t) for t in g[1]]
    if extra:
        F += extra
    F.sort(key=lambda x: x[0])
    for t in interleave(M, F):
        a(t)
    if post:
        post(a)


def w2_touch(b, part):
    T = V_T
    b("s_and_b32 %s, %s, 3" % (s(S_T0), s(S2_TG)))
    b("s_mul_i32 %s, %s, 576" % (s(S_T1), s(S_T0)))
    if part == 0:
        b("s_lshl_b32 %s, %s, 6" % (s(S_T2), s(S_W)))
        b("s_add_u32 %s, %s, %s" % (s(S_T3), s(S_T1), s(S_T2)))
        b("s_sub_u32 %s, %s, 512" % (s(S_T3), s(S_T3)))
        b("s_cmp_eq_u32 %s, 0" % s(S_T0))
        b("s_cselect_b32 %s, %s, %s" % (s(S_T3), s(S_T2), s(S_T3)))
        b("s_cselect_b32 %s, %s, %s" % (s(S_EX), s(S_WO), s(S_WD)))
        b("s_cselect_b32 %s, %s, %s" % (s(S_EX + 1), s(S_WO + 1), s(S_WD + 1)))
        b("v_add_u32 %s, %s, v0" % (v(T + 3), s(S_T3)))
        b("v_lshlrev_b32 %s, 10, %s" % (v(T + 3), v(T + 3)))
        b("s_lshl_b32 %s, %s, 7" % (s(S_T2), s(S2_CG2)))
        b("v_add_u32 %s, %s, %s" % (v(T + 3), s(S_T2), v(T + 3)))
        b("global_load_dword %s, %s, %s" % (v(V_DUMMY), v(T + 3), s(S_EX, 2)))
    else:
        lab = b.newlabel("tx")
        b("s_cmp_eq_u32 %s, 7" % s(S_W))
        b("s_cbranch_scc0 %s" % lab)
        b("s_lshl_b32 %s, %s, 7" % (s(S_T2), s(S2_CG2)))
        b("v_add_u32 %s, %s, v0" % (v(T + 3), s(S_T1)))
        b("v_lshlrev_b32 %s, 10, %s" % (v(T + 3), v(T + 3)))
        b("v_add_u32 %s, %s, %s" % (v(T + 3), s(S_T2), v(T + 3)))
        b("global_load_dword %s, %s, %s" % (v(V_DUMMY + 1), v(T + 3), s(S_WD, 2)))
        b.label(lab)


def event_site(a, var, which, ool):
    if var.m != 0:
        return
    lab = a.newlabel("ev")
    back = a.newlabel("evback")
    a("s_bitcmp1_b32 %s, %s" % (s(S_EV0 if which == 0 else S_EV1), s(S_IT)))
    a("s_cbranch_scc1 %s" % lab)
    a.label(back)
    b = Asm()
    b.uid = a.uid + 1000
    b.label(lab)
    other = b.newlabel("evo")
    b("s_cmp_eq_u32 %s, 0" % s(S_IT))
    b("s_cbranch_scc0 %s" % other)
    par = which
    for tau in range(5):
        b("v_mfma_f32_16x16x32_bf16 %s, %s, %s, 0" % (v(V_CSTMP + 4 * tau, 4), v(WF(par, tau), 4), v(V_ONES, 4)))
    b("s_nop 7")
    b("s_nop 1")
    for tau in range(5):
        b("buffer_store_dwordx4 %s, %s, %s, 0 offen offset:%d sc1" % (v(V_CSTMP + 4 * tau, 4), v(V_CSST), s(SRD_WS, 4), tau * 256))
    b("s_branch %s" % back)
    b.label(other)
    if Cfg.merged:
        if which == 0:
            T = V_T
            b("v_add_u32 %s, 1, %s" % (v(V_TAG), v(V_TAG)))
            b("s_lshl_b32 %s, %s, 7" % (s(S_T0), s(S_RB)))
            b("s_lshl_b32 %s, %s, 2" % (s(S_T1), s(S_CGI)))
            b("s_add_u32 %s, %s, %s" % (s(S_T0), s(S_T0), s(S_T1)))
            b("s_add_u32 %s, %s, %d" % (s(S_T0), s(S_T0), WS_FA))
            b("s_lshl_b32 %s, %s, 7" % (s(S_T1), s(S_CGI)))
            b("s_lshl_b32 %s, %s, 2" % (s(S_T2), s(S_RB)))
            b("s_add_u32 %s, %s, %s" % (s(S_T1), s(S_T1), s(S_T2)))
            b("s_add_u32 %s, %s, %d" % (s(S_T1), s(S_T1), WS_FB))
            b("v_mov_b32 %s, 0x%x" % (v(T), OOB))
            b("v_writelane_b32 %s, %s, 0" % (v(T), s(S_T0)))
            b("v_writelane_b32 %s, %s, 1" % (v(T), s(S_T1)))
            b("s_nop 1")
            b("buffer_store_dword %s, %s, %s, 0 offen sc1" % (v(V_TAG), v(T), s(SRD_WS, 4)))
        else:
            T = V_T
            b("v_and_b32 %s, 15, v0" % v(T))
            b("s_lshl_b32 %s, %s, 7" % (s(S_T0), s(S_RB)))
            b("s_add_u32 %s, %s, %d" % (s(S_T0), s(S_T0), WS_FA))
            b("v_lshl_add_u32 %s, %s, 2, %s" % (v(V_PADDR), v(T), s(S_T0)))
            b("s_lshl_b32 %s, %s, 7" % (s(S_T1), s(S_CGI)))
            b("s_add_u32 %s, %s, %d" % (s(S_T1), s(S_T1), WS_FB))
            b("v_lshl_add_u32 %s, %s, 2, %s" % (v(T + 1), v(T), s(S_T1)))
            b("v_lshrrev_b32 %s, 4, v0" % v(T + 2))
            b("v_cmp_eq_u32 vcc, 2, %s" % v(T + 2))
            b("s_nop 1")
            b("v_cndmask_b32 %s, %s, %s, vcc" % (v(V_PADDR), v(V_PADDR), v(T + 1)))
            b("s_cmp_eq_u32 %s, 0" % s(S_RB))
            b("s_cselect_b32 %s, 0, 128" % s(S_T1))
            b("s_sub_u32 %s, %s, %s" % (s(S_T0), s(S_T0), s(S_T1)))
            b("s_add_u32 %s, %s, 56" % (s(S_T0), s(S_T0)))
            b("s_add_u32 %s, %s, 4" % (s(S_T1), s(S_T0)))
            b("v_writelane_b32 %s, %s, 16" % (v(V_PADDR), s(S_T0)))
            b("v_writelane_b32 %s, %s, 17" % (v(V_PADDR), s(S_T1)))
            b("s_nop 1")
            b("buffer_load_dword %s, %s, %s, 0 offen sc1" % (v(V_PRES), v(V_PADDR), s(SRD_WS, 4)))
    b("s_branch %s" % back)
    ool.append(b.text())
    a.uid = b.uid + 1


def poll_check(a, ool, name):
    slow = a.newlabel(name + "_slow")
    back = a.newlabel(name + "_ok")
    a("v_cmp_ne_u32 vcc, %s, %s" % (v(V_TAG), v(V_PRES)))
    a("s_nop 1")
    a("s_cmp_lg_u64 vcc, 0")
    a("s_cbranch_scc1 %s" % slow)
    a.label(back)
    b = Asm()
    b.label(slow)
    b("s_mov_b32 %s, 0" % s(S_SPIN))
    loop = slow + "_loop"
    b.label(loop)
    b("buffer_load_dword %s, %s, %s, 0 offen sc1" % (v(V_PRES), v(V_PADDR), s(SRD_WS, 4)))
    b("s_add_u32 %s, %s, 1" % (s(S_SPIN), s(S_SPIN)))
    b("s_waitcnt vmcnt(0)")
    b("v_cmp_ne_u32 vcc, %s, %s" % (v(V_TAG), v(V_PRES)))
    b("s_nop 1")
    b("s_cmp_lg_u64 vcc, 0")
    b("s_cbranch_scc0 %s" % back)
    b("s_cmp_lt_u32 %s, %d" % (s(S_SPIN), SPIN_MAX))
    b("s_cbranch_scc1 %s" % loop)
    b("s_branch %s" % back)
    ool.append(b.text())


def prologue_common(a):
    a.comment("---- prologue ----")
    stamp_real(a, 0)
    stamp(a, 1)
    a("s_load_dwordx4 %s, s[0:1], 0" % s(S_X, 4))
    a("s_load_dwordx4 %s, s[0:1], 32" % s(S_G, 4))
    a("s_load_dwordx2 %s, s[0:1], 72" % s(S_WS, 2))
    a("s_load_dwordx2 %s, s[0:1], 16" % s(S_WO, 2))
    a("s_load_dwordx2 %s, s[0:1], 48" % s(S_WD, 2))
    a("s_load_dwordx2 %s, s[0:1], 56" % s(S_OUT, 2))
    a("v_lshrrev_b32 v1, 6, v0")
    a("v_and_b32 v0, 63, v0")
    a("v_readfirstlane_b32 %s, v1" % s(S_W))
    a("s_and_b32 %s, s2, 7" % s(S_T0))
    a("s_lshr_b32 %s, s2, 3" % s(S_T1))
    a("s_lshr_b32 %s, %s, 2" % (s(S_T2), s(S_T0)))
    a("s_lshl_b32 %s, %s, 3" % (s(S_T2), s(S_T2)))
    a("s_and_b32 %s, %s, 7" % (s(S_T3), s(S_T1)))
    a("s_or_b32 %s, %s, %s" % (s(S_RB), s(S_T2), s(S_T3)))
    a("s_and_b32 %s, %s, 3" % (s(S_T2), s(S_T0)))
    a("s_lshl_b32 %s, %s, 2" % (s(S_T2), s(S_T2)))
    a("s_lshr_b32 %s, %s, 3" % (s(S_T3), s(S_T1)))
    a("s_or_b32 %s, %s, %s" % (s(S_CGI), s(S_T2), s(S_T3)))
    a("s_lshl_b32 %s, %s, 2" % (s(S2_TG), s(S_T0)))
    a("s_add_u32 %s, %s, %s" % (s(S2_TG), s(S2_TG), s(S_T3)))
    a("s_and_b32 %s, %s, 7" % (s(S2_CG2), s(S_T1)))
    a("s_lshr_b32 %s, %s, 1" % (s(S_UU), s(S_CGI)))
    a("s_lshl_b32 %s, %s, 17" % (s(S_R0B), s(S_RB)))
    a("s_and_b32 %s, %s, 3" % (s(S_J), s(S_W)))
    a("s_lshr_b32 %s, %s, 2" % (s(S_M), s(S_W)))
    a("s_lshl_b32 %s, %s, 10" % (s(S_M0W), s(S_J)))
    a("s_lshl_b32 %s, %s, 10" % (s(S_M0X), s(S_W)))
    a("s_add_u32 %s, %s, %d" % (s(S_M0X), s(S_M0X), XRING))
    a("s_mov_b32 %s, %s" % (s(S_XM0), s(S_M0X)))
    a("s_add_u32 %s, %s, 0xc000" % (s(S_XM0END), s(S_M0X)))
    a("s_and_b32 %s, %s, 7" % (s(S_T0), s(S_RB)))
    a("s_lshl_b32 %s, %s, 7" % (s(S_XO), s(S_T0)))
    a("s_or_b32 %s, %s, %s" % (s(S_XO), s(S_XO), s(S_R0B)))
    a("s_lshl_b32 %s, %s, 11" % (s(S_HK), s(S_T0)))
    a("s_lshl_b32 %s, %s, 1" % (s(S_KOFF), s(S_T0)))
    a("s_mov_b32 %s, 0" % s(S_XSLOTR))
    a("s_mov_b32 %s, 0" % s(S_IT))
    a("s_lshr_b32 %s, %s, 3" % (s(S_T0), s(S_RB)))
    a("s_xor_b32 %s, %s, 1" % (s(S_EV0), s(S_T0)))
    a("s_mov_b32 %s, %s" % (s(S_EV1), s(S_T0)))
    if Cfg.merged:
        a("s_cmp_eq_u32 %s, 0" % s(S_W))
        a("s_cselect_b32 %s, 2, 0" % s(S_T0))
        a("s_cselect_b32 %s, 4, 0" % s(S_T1))
        a("s_or_b32 %s, %s, %s" % (s(S_EV0), s(S_EV0), s(S_T0)))
        a("s_or_b32 %s, %s, %s" % (s(S_EV1), s(S_EV1), s(S_T1)))
    T = V_T
    a("v_lshrrev_b32 %s, 3, v0" % v(T))
    a("s_lshl_b32 %s, %s, 3" % (s(S_T0), s(S_W)))
    a("v_add_u32 %s, %s, %s" % (v(T + 2), s(S_T0), v(T)))
    a("v_bfe_u32 %s, %s, 1, 3" % (v(T + 3), v(T + 2)))
    a("v_and_b32 %s, 7, v0" % v(T + 4))
    a("v_xor_b32 %s, %s, %s" % (v(T + 4), v(T + 4), v(T + 3)))
    a("v_lshlrev_b32 %s, 4, %s" % (v(T + 4), v(T + 4)))
    a("v_lshl_add_u32 %s, %s, 10, %s" % (v(V_XVO), v(T + 2), v(T + 4)))
    a("v_add_u32 %s, 0x10000, %s" % (v(V_XVO + 1), v(V_XVO)))
    a("v_lshlrev_b32 %s, 4, v0" % v(T + 12))
    a("v_mov_b32 %s, %d" % (v(V_PADDR), WS_FA))
    a("v_mov_b32 %s, 0" % v(V_TAG))


def w_voffset_full(a, pitch, out):
    T = V_T
    a("v_lshrrev_b32 %s, 3, v0" % v(T))
    a("s_lshl_b32 %s, %s, 3" % (s(S_T0), s(S_J)))
    a("v_add_u32 %s, %s, %s" % (v(T), s(S_T0), v(T)))
    a("v_mul_u32_u24 %s, %d, %s" % (v(T), pitch, v(T)))
    a("v_bfe_u32 %s, v0, 4, 1" % v(T + 1))
    a("s_and_b32 %s, %s, 1" % (s(S_T0), s(S_J)))
    a("s_lshl_b32 %s, %s, 1" % (s(S_T0), s(S_T0)))
    a("v_or_b32 %s, %s, %s" % (v(T + 1), s(S_T0), v(T + 1)))
    a("v_bfe_u32 %s, v0, 1, 2" % v(T + 2))
    a("v_xor_b32 %s, %s, %s" % (v(T + 1), v(T + 1), v(T + 2)))
    a("v_lshl_add_u32 %s, %s, 5, %s" % (v(T), v(T + 1), v(T)))
    a("v_and_b32 %s, 1, v0" % v(T + 2))
    a("v_lshl_add_u32 %s, %s, 4, %s" % (v(out), v(T + 2), v(T)))


def w_voffset_g4(a, out):
    T = V_T
    a("v_lshrrev_b32 %s, 2, v0" % v(T))
    a("s_and_b32 %s, %s, 1" % (s(S_T0), s(S_J)))
    a("s_lshl_b32 %s, %s, 4" % (s(S_T0), s(S_T0)))
    a("v_add_u32 %s, %s, %s" % (v(T), s(S_T0), v(T)))
    a("v_mul_u32_u24 %s, 3584, %s" % (v(T), v(T)))
    a("v_lshrrev_b32 %s, 5, v0" % v(T + 1))
    a("s_and_b32 %s, %s, 2" % (s(S_T0), s(S_J)))
    a("v_or_b32 %s, %s, %s" % (v(T + 1), s(S_T0), v(T + 1)))
    a("v_and_b32 %s, 3, v0" % v(T + 2))
    a("v_xor_b32 %s, %s, %s" % (v(T + 1), v(T + 1), v(T + 2)))
    a("v_lshl_add_u32 %s, %s, 4, %s" % (v(out), v(T + 1), v(T)))


def y_cols(a):
    a("s_mul_i32 %s, %s, 320" % (s(S_T0), s(S_UU)))
    a("s_add_u32 %s, %s, 1024" % (s(S_T0), s(S_T0)))
    a("s_and_b32 %s, %s, 1" % (s(S_T1), s(S_UU)))
    a("s_lshl_b32 %s, %s, 6" % (s(S_T1), s(S_T1)))
    a("s_add_u32 %s, %s, %s" % (s(S_COL0), s(S_T0), s(S_T1)))
    a("s_add_u32 %s, %s, 128" % (s(S_COL1), s(S_COL0)))
    a("s_cmp_eq_u32 %s, 0" % s(S_T1))
    a("s_cselect_b32 %s, 256, 0" % s(S_T1))
    a("s_add_u32 %s, %s, %s" % (s(S_COL2), s(S_T0), s(S_T1)))


def variant_addresses(a, var):
    T = V_T
    if var.typ == 'X':
        w_voffset_full(a, var.pitch, V_WVO)
        a("s_lshl_b32 %s, %s, 7" % (s(S_COL0), s(S_UU)))
        a("v_add_u32 %s, %s, %s" % (v(V_WVO), s(S_COL0), v(V_WVO)))
        if var.m == 0:
            a("v_add_u32 %s, 1024, %s" % (v(V_WVO + 1), v(V_WVO)))
            a("v_add_u32 %s, 2048, %s" % (v(V_WVO + 2), v(V_WVO)))
    else:
        y_cols(a)
        w_voffset_full(a, var.pitch, V_WVO)
        a("v_add_u32 %s, %s, %s" % (v(V_WVO + 1), s(S_COL1), v(V_WVO)))
        a("v_add_u32 %s, %s, %s" % (v(V_WVO), s(S_COL0), v(V_WVO)))
        if var.m == 1:
            w_voffset_g4(a, V_WVO + 2)
            a("v_add_u32 %s, %s, %s" % (v(V_WVO + 2), s(S_COL2), v(V_WVO + 2)))
    a("s_mul_i32 %s, %s, %d" % (s(S_KOFF), s(S_KOFF), 32 * var.pitch))
    if var.typ == 'X':
        for hh in range(2):
            a("v_lshrrev_b32 %s, 3, v0" % v(T))
            if hh:
                a("v_add_u32 %s, 8, %s" % (v(T), v(T)))
            a("v_lshrrev_b32 %s, 1, %s" % (v(T + 1), v(T)))
            a("v_and_b32 %s, 7, v0" % v(T + 2))
            a("v_xor_b32 %s, %s, %s" % (v(T + 1), v(T + 1), v(T + 2)))
            a("s_lshl_b32 %s, %s, 7" % (s(S_T0), s(S_RB)))
            a("s_sub_u32 %s, %s, 16" % (s(S_T0), s(S_T0)))
            a("v_add_u32 %s, %s, %s" % (v(T), s(S_T0), v(T)))
            a("v_max_i32 %s, 0, %s" % (v(T), v(T)))
            a("v_lshlrev_b32 %s, 10, %s" % (v(T), v(T)))
            a("v_lshl_add_u32 %s, %s, 4, %s" % (v(T + 13 + hh), v(T + 1), v(T)))


def halo_issue(a):
    T = V_T
    a("s_lshr_b32 %s, %s, 11" % (s(S_T0), s(S_HK)))
    a("s_add_u32 %s, %s, %s" % (s(S_T0), s(S_T0), s(S_W)))
    a("s_and_b32 %s, %s, 7" % (s(S_T0), s(S_T0)))
    for hh in range(2):
        a("s_lshl_b32 %s, %s, 11" % (s(S_T1), s(S_T0)))
        a("s_add_u32 m0, %s, %d" % (s(S_T1), HALO + hh * 1024))
        a("s_lshl_b32 %s, %s, 7" % (s(S_T1), s(S_T0)))
        a("buffer_load_dwordx4 %s, %s, %s offen lds" % (v(T + 13 + hh), s(SRD_X, 4), s(S_T1)))


def frag_lane_addresses(a, var):
    T = V_T
    a("v_lshrrev_b32 %s, 3, v0" % v(T))
    a("v_lshrrev_b32 %s, 4, v0" % v(T + 1))
    a("v_and_b32 %s, 15, v0" % v(T + 5))
    a("v_lshrrev_b32 %s, 1, %s" % (v(T + 6), v(T + 5)))
    a("v_xor_b32 %s, %s, %s" % (v(T + 6), v(T + 6), v(T + 1)))
    a("v_lshlrev_b32 %s, 4, %s" % (v(T + 6), v(T + 6)))
    a("v_lshl_add_u32 %s, %s, 7, %s" % (v(T + 6), v(T + 5), v(T + 6)))
    if var.typ == 'X':
        a("v_add_u32 %s, %d, %s" % (v(V_HL), HALO, v(T + 6)))
        a("v_xor_b32 %s, 64, %s" % (v(V_HL + 1), v(V_HL)))
    a("v_add_u32 %s, %d, %s" % (v(V_XL), XRING + var.m * 8192, v(T + 6)))
    a("v_xor_b32 %s, 64, %s" % (v(V_XL + 1), v(V_XL)))
    a("v_bfe_u32 %s, v0, 2, 2" % v(T + 7))
    a("v_lshl_add_u32 %s, %s, 3, %s" % (v(T + 7), v(T + 1), v(T + 7)))
    a("v_and_b32 %s, 3, %s" % (v(T + 8), v(T)))
    a("v_xor_b32 %s, %s, %s" % (v(T + 8), s(S_J), v(T + 8)))
    a("v_lshlrev_b32 %s, 5, %s" % (v(T + 8), v(T + 8)))
    a("v_lshl_add_u32 %s, %s, 7, %s" % (v(T + 8), v(T + 7), v(T + 8)))
    a("v_and_b32 %s, 3, v0" % v(T + 9))
    a("v_lshl_add_u32 %s, %s, 3, %s" % (v(V_WL), v(T + 9), v(T + 8)))
    a("v_add_u32 %s, %d, %s" % (v(V_WL3), 3 * WSLOT, v(V_WL)))
    if var.typ == 'Y':
        a("v_and_b32 %s, 1, %s" % (v(T + 10), v(T + 1)))
        a("v_and_b32 %s, 2, %s" % (v(T + 11), v(T + 9)))
        a("v_or_b32 %s, %s, %s" % (v(T + 10), v(T + 10), v(T + 11)))
        a("v_xor_b32 %s, %s, %s" % (v(T + 10), s(S_J), v(T + 10)))
        a("v_lshlrev_b32 %s, 4, %s" % (v(T + 10), v(T + 10)))
        a("v_lshl_add_u32 %s, %s, 6, %s" % (v(T + 10), v(T + 7), v(T + 10)))
        a("v_lshl_add_u32 %s, %s, 10, %s" % (v(T + 10), v(T + 11), v(T + 10)))
        a("v_and_b32 %s, 1, %s" % (v(T + 11), v(T + 9)))
        a("v_lshl_add_u32 %s, %s, 3, %s" % (v(T + 10), v(T + 11), v(T + 10)))
        a("v_add_u32 %s, 16384, %s" % (v(V_WM), v(T + 10)))
        a("v_add_u32 %s, %d, %s" % (v(V_WM3), 3 * WSLOT, v(V_WM)))
    for i in range(4):
        a("v_mov_b32 %s, 0x3f803f80" % v(V_ONES + i))
    if var.m == 0:
        a("s_mul_i32 %s, %s, 20480" % (s(S_T0), s(S_CGI)))
        a("s_mul_i32 %s, %s, 1280" % (s(S_T1), s(S_RB)))
        a("s_add_u32 %s, %s, %s" % (s(S_T0), s(S_T0), s(S_T1)))
        a("s_lshl_b32 %s, %s, 6" % (s(S_T1), s(S_J)))
        a("s_add_u32 %s, %s, %s" % (s(S_T0), s(S_T0), s(S_T1)))
        a("s_add_u32 %s, %s, %d" % (s(S_T0), s(S_T0), WS_CSP))
        a("v_lshlrev_b32 %s, 4, %s" % (v(V_CSST), v(T + 1)))
        a("v_add_u32 %s, %s, %s" % (v(V_CSST), s(S_T0), v(V_CSST)))
        a("v_cmp_eq_u32 vcc, 0, %s" % v(T + 5))
        a("v_mov_b32 %s, 0x%x" % (v(T + 11), OOB))
        a("s_nop 0")
        a("v_cndmask_b32 %s, %s, %s, vcc" % (v(V_CSST), v(T + 11), v(V_CSST)))


def stats_compute(a):
    T = V_T
    A = T
    for i in range(4):
        a("v_lshlrev_b32 %s, 16, %s" % (v(A + 2 * i), v(V_CSP + i)))
        a("v_and_b32 %s, 0xffff0000, %s" % (v(A + 2 * i + 1), v(V_CSP + i)))
    R = T + 8
    a("v_add_f32 %s, %s, %s" % (v(R), v(A), v(A + 1)))
    a("v_add_f32 %s, %s, %s" % (v(R + 1), v(A + 2), v(A + 3)))
    a("v_add_f32 %s, %s, %s" % (v(R + 2), v(A + 4), v(A + 5)))
    a("v_add_f32 %s, %s, %s" % (v(R + 3), v(A + 6), v(A + 7)))
    a("v_add_f32 %s, %s, %s" % (v(R), v(R), v(R + 1)))
    a("v_add_f32 %s, %s, %s" % (v(R + 2), v(R + 2), v(R + 3)))
    a("v_add_f32 %s, %s, %s" % (v(R), v(R), v(R + 2)))
    a("s_nop 1")
    allreduce16(a, [R])
    allreduce_rows(a, R, R + 1)
    a("v_mul_f32 %s, %s, %s" % (v(R), hexf(1.0 / 512), v(R)))
    for i in range(8):
        a("v_sub_f32 %s, %s, %s" % (v(A + i), v(A + i), v(R)))
    a("v_mul_f32 %s, %s, %s" % (v(R + 1), v(A), v(A)))
    a("v_mul_f32 %s, %s, %s" % (v(R + 2), v(A + 1), v(A + 1)))
    for i in range(2, 8, 2):
        a("v_fmac_f32 %s, %s, %s" % (v(R + 1), v(A + i), v(A + i)))
        a("v_fmac_f32 %s, %s, %s" % (v(R + 2), v(A + i + 1), v(A + i + 1)))
    a("v_add_f32 %s, %s, %s" % (v(R + 1), v(R + 1), v(R + 2)))
    a("s_nop 1")
    allreduce16(a, [R + 1])
    allreduce_rows(a, R + 1, R + 2)
    a("v_mov_b32 %s, %s" % (v(R + 2), hexf(1e-5)))
    a("v_fmac_f32 %s, %s, %s" % (v(R + 2), hexf(1.0 / 512), v(R + 1)))
    a("v_rsq_f32 %s, %s" % (v(R + 1), v(R + 2)))
    a("s_lshl_b32 %s, %s, 3" % (s(S_T0), s(S_CGI)))
    a("s_add_u32 %s, %s, %s" % (s(S_T0), s(S_T0), s(S_W)))
    a("s_lshl_b32 %s, %s, 7" % (s(S_T1), s(S_RB)))
    a("s_add_u32 %s, %s, %s" % (s(S_T0), s(S_T0), s(S_T1)))
    a("s_lshl_b32 %s, %s, 3" % (s(S_T0), s(S_T0)))
    a("s_add_u32 %s, %s, %d" % (s(S_T0), s(S_T0), WS_STATS))
    a("v_mov_b32 %s, 0x%x" % (v(R + 2), OOB))
    a("v_writelane_b32 %s, %s, 0" % (v(R + 2), s(S_T0)))
    a("s_nop 1")
    a("buffer_store_dwordx2 %s, %s, %s, 0 offen sc1" % (v(R, 2), v(R + 2), s(SRD_WS, 4)))


def tail_loads():
    T = V_T
    g = []
    g.append("s_mul_i32 %s, %s, 20480" % (s(S_T0), s(S_CGI)))
    g.append("s_lshl_b32 %s, %s, 6" % (s(S_T1), s(S_W)))
    g.append("s_add_u32 %s, %s, %s" % (s(S_T0), s(S_T0), s(S_T1)))
    g.append("s_add_u32 %s, %s, %d" % (s(S_T0), s(S_T0), WS_CSP))
    g.append("v_and_b32 %s, 15, v0" % v(T))
    g.append("v_mul_u32_u24 %s, 1280, %s" % (v(T), v(T)))
    g.append("v_lshrrev_b32 %s, 4, v0" % v(T + 1))
    g.append("v_lshl_add_u32 %s, %s, 4, %s" % (v(T), v(T + 1), v(T)))
    g.append("v_add_u32 %s, %s, %s" % (v(T), s(S_T0), v(T)))
    g.append("buffer_load_dwordx4 %s, %s, %s, 0 offen sc1" % (v(V_CSP, 4), v(T), s(SRD_WS, 4)))
    g.append("buffer_load_dwordx4 %s, %s, %s, 0 offen offset:512 sc1" % (v(V_CSP + 4, 4), v(T), s(SRD_WS, 4)))
    g.append("buffer_load_dwordx4 %s, %s, %s, 0 offen offset:1024 sc1" % (v(V_CSP + 8, 4), v(T), s(SRD_WS, 4)))
    g.append("s_lshl_b32 %s, %s, 6" % (s(S_T0), s(S_W)))
    g.append("s_lshl_b32 %s, %s, 7" % (s(S_T1), s(S_RB)))
    g.append("s_add_u32 %s, %s, %s" % (s(S_T0), s(S_T0), s(S_T1)))
    g.append("s_sub_u32 %s, %s, 16" % (s(S_T0), s(S_T0)))
    g.append("v_add_u32 %s, %s, v0" % (v(T + 2), s(S_T0)))
    g.append("v_max_i32 %s, 0, %s" % (v(T + 2), v(T + 2)))
    g.append("v_min_i32 %s, 2047, %s" % (v(T + 2), v(T + 2)))
    g.append("v_lshlrev_b32 %s, 3, %s" % (v(T + 2), v(T + 2)))
    g.append("v_add_u32 %s, %d, %s" % (v(T + 2), WS_STATS, v(T + 2)))
    g.append("buffer_load_dwordx2 %s, %s, %s, 0 offen sc1" % (v(V_STAT, 2), v(T + 2), s(SRD_WS, 4)))
    return g


def k2_setup_fillers():
    T = V_T + 4
    g = []
    g.append("s_cmp_eq_u32 %s, 0" % s(S_M))
    g.append("s_cselect_b32 %s, %s, %s" % (s(R_W), s(S_WO), s(S_WD)))
    g.append("s_cselect_b32 %s, %s, %s" % (s(R_W + 1), s(S_WO + 1), s(S_WD + 1)))
    g.append("s_cselect_b32 %s, 0, %d" % (s(S2_WROW), 20 * 32768))
    g.append("s_mov_b32 %s, 0x%x" % (s(S_T0), 512 * 1024))
    g.append("s_mov_b32 %s, 0x%x" % (s(S_T1), 1792 * 1024))
    g.append("s_cselect_b32 %s, %s, %s" % (s(R_W + 2), s(S_T0), s(S_T1)))
    g.append("s_and_b32 %s, %s, 0xffff" % (s(R_W + 1), s(R_W + 1)))
    g.append("s_mov_b32 %s, 0x20000" % s(R_W + 3))
    g.append("s_lshl_b32 %s, %s, 12" % (s(S2_M0B), s(S_M)))
    g.append("s_lshl_b32 %s, %s, 10" % (s(S_T0), s(S_J)))
    g.append("s_add_u32 %s, %s, %s" % (s(S2_M0B), s(S2_M0B), s(S_T0)))
    g.append("v_lshrrev_b32 %s, 3, v0" % v(T))
    g.append("s_lshl_b32 %s, %s, 3" % (s(S_T0), s(S_J)))
    g.append("v_add_u32 %s, %s, %s" % (v(T), s(S_T0), v(T)))
    g.append("v_lshlrev_b32 %s, 10, %s" % (v(T), v(T)))
    g.append("v_bfe_u32 %s, v0, 4, 1" % v(T + 1))
    g.append("s_and_b32 %s, %s, 1" % (s(S_T0), s(S_J)))
    g.append("s_lshl_b32 %s, %s, 1" % (s(S_T0), s(S_T0)))
    g.append("v_or_b32 %s, %s, %s" % (v(T + 1), s(S_T0), v(T + 1)))
    g.append("v_bfe_u32 %s, v0, 1, 2" % v(T + 2))
    g.append("v_xor_b32 %s, %s, %s" % (v(T + 1), v(T + 1), v(T + 2)))
    g.append("v_lshl_add_u32 %s, %s, 5, %s" % (v(T), v(T + 1), v(T)))
    g.append("v_and_b32 %s, 1, v0" % v(T + 2))
    g.append("v_lshl_add_u32 %s, %s, 4, %s" % (v(T), v(T + 2), v(T)))
    g.append("s_lshl_b32 %s, %s, 7" % (s(S_T0), s(S2_CG2)))
    g.append("v_add_u32 %s, %s, %s" % (v(V_W2VO), s(S_T0), v(T)))
    return g


def touch_fillers():
    T = V_T + 8
    g = []
    g.append("s_and_b32 %s, %s, 3" % (s(S_T0), s(S2_TG)))
    g.append("s_lshl_b32 %s, %s, 2" % (s(S_T0), s(S_T0)))
    g.append("s_add_u32 %s, %s, %s" % (s(S_T0), s(S_T0), s(S_J)))
    g.append("s_mul_i32 %s, %s, 44" % (s(S_T0), s(S_T0)))
    g.append("s_mul_i32 %s, %s, 1088" % (s(S_T1), s(S_M)))
    g.append("s_add_u32 %s, %s, %s" % (s(S_T0), s(S_T0), s(S_T1)))
    g.append("v_min_u32 %s, 43, v0" % v(T))
    g.append("v_add_u32 %s, %s, %s" % (v(T), s(S_T0), v(T)))
    g.append("v_lshlrev_b32 %s, 10, %s" % (v(T), v(T)))
    g.append("s_lshl_b32 %s, %s, 7" % (s(S_T0), s(S2_CG2)))
    g.append("v_add_u32 %s, %s, %s" % (v(T), s(S_T0), v(T)))
    g.append("s_mov_b32 %s, %s" % (s(SRD_U), s(S_WD)))
    g.append("s_and_b32 %s, %s, 0xffff" % (s(SRD_U + 1), s(S_WD + 1)))
    g.append("s_mov_b32 %s, 0x%x" % (s(SRD_U + 2), 1792 * 1024))
    g.append("s_mov_b32 %s, 0x20000" % s(SRD_U + 3))
    g.append("buffer_load_dword %s, %s, %s, 0 offen" % (v(V_DUMMY), v(T), s(SRD_U, 4)))
    return g


def bias_fillers(var):
    T = V_T + 12
    g = []
    g.append("v_and_b32 %s, 15, v0" % v(T))
    g.append("v_lshrrev_b32 %s, 4, v0" % v(T + 1))
    g.append("v_lshlrev_b32 %s, 2, %s" % (v(T + 1), v(T + 1)))
    g.append("v_sub_u32 %s, %s, %s" % (v(T + 2), v(T), v(T + 1)))
    g.append("v_mov_b32 %s, %s" % (v(T + 3), hexf(-1e30)))
    for r in range(4):
        g.append("v_subrev_u32 %s, %d, %s" % (v(T + 4), r, v(T + 2)))
        g.append("v_and_b32 %s, 0x80000001, %s" % (v(T + 5), v(T + 4)))
        g.append("v_sub_u32 %s, -2, %s" % (v(T + 4), v(T + 4)))
        g.append("v_cmp_eq_u32 vcc, 0, %s" % v(T + 5))
        g.append("v_and_b32 %s, 0x80000001, %s" % (v(T + 4), v(T + 4)))
        g.append("s_nop 0")
        g.append("v_cndmask_b32_e64 %s, %s, 0, vcc" % (v(BC + r), v(T + 3)))
        g.append("v_cmp_eq_u32 vcc, 0, %s" % v(T + 4))
        g.append("s_nop 1")
        g.append("v_cndmask_b32_e64 %s, %s, 0, vcc" % (v(BP + r), v(T + 3)))
    if var.m == 0:
        g.append("s_cmp_eq_u32 %s, 0" % s(S_RB))
        g.append("s_cselect_b64 vcc, -1, 0")
        g.append("s_nop 0")
        for r in range(4):
            g.append("v_cndmask_b32 %s, %s, %s, vcc" % (v(BP0 + r), v(BP + r), v(T + 3)))
    else:
        for r in range(4):
            g.append("v_mov_b32 %s, %s" % (v(BP0 + r), v(BP + r)))
    return g


def tail_reduce():
    g = []
    regs = [V_CSP + i for i in range(12)]
    for ror in (8, 4, 2, 1):
        for r in regs:
            g.append("v_add_f32_dpp %s, %s, %s row_ror:%d row_mask:0xf bank_mask:0xf" % (v(r), v(r), v(r), ror))
    return g


def tail_publish(a):
    T = V_T
    a("v_lshrrev_b32 %s, 4, v0" % v(T))
    a("s_lshl_b32 %s, %s, 6" % (s(S_T0), s(S_W)))
    a("s_add_u32 %s, %s, %d" % (s(S_T0), s(S_T0), LB + O_CS))
    a("v_lshlrev_b32 %s, 4, %s" % (v(T), v(T)))
    a("v_add_u32 %s, %s, %s" % (v(T), s(S_T0), v(T)))
    a("s_lshl_b32 %s, %s, 6" % (s(S_T0), s(S_W)))
    a("v_add_u32 %s, %s, v0" % (v(T + 1), s(S_T0)))
    a("v_cmp_gt_u32 vcc, 144, %s" % v(T + 1))
    a("v_lshlrev_b32 %s, 2, %s" % (v(T + 1), v(T + 1)))
    a("v_add_u32 %s, %d, %s" % (v(T + 1), LB, v(T + 1)))
    a("s_mov_b64 %s, exec" % s(S_EX, 2))
    a("s_mov_b32 exec_lo, 0x00010001")
    a("s_mov_b32 exec_hi, 0x00010001")
    a("ds_write_b128 %s, %s" % (v(T), v(V_CSP, 4)))
    a("ds_write_b128 %s, %s offset:512" % (v(T), v(V_CSP + 4, 4)))
    lab = a.newlabel("cs3")
    a("s_cmp_ge_u32 %s, 4" % s(S_W))
    a("s_cbranch_scc1 %s" % lab)
    a("ds_write_b128 %s, %s offset:1024" % (v(T), v(V_CSP + 8, 4)))
    a("s_cmp_ge_u32 %s, 3" % s(S_W))
    a("s_cbranch_scc1 %s" % lab)
    a("s_mov_b64 exec, vcc")
    a("ds_write_b32 %s, %s offset:%d" % (v(T + 1), v(V_STAT), O_MEAN))
    a("ds_write_b32 %s, %s offset:%d" % (v(T + 1), v(V_STAT + 1), O_RSTD))
    a.label(lab)
    a("s_mov_b64 exec, %s" % s(S_EX, 2))
    a("s_waitcnt lgkmcnt(0)")
    a("s_barrier")


class BG:
    def __init__(self, a, groups):
        self.a = a
        self.groups = list(groups)

    def tick(self, n=1):
        for _ in range(n):
            if self.groups:
                for t in self.groups.pop(0):
                    self.a(t)

    def flush(self):
        self.tick(len(self.groups))


def w2_load_group(tile):
    return ["s_add_u32 m0, %s, %d" % (s(S2_M0B), (tile % NTILE2) * TILE2),
            "s_nop 0",
            "buffer_load_dwordx4 %s, %s, %s offen lds" % (v(V_W2VO), s(R_W, 4), s(S2_WROW)),
            "s_add_u32 %s, %s, 32768" % (s(S2_WROW), s(S2_WROW))]


def gelu_tile(a, G, U, mt, rt, csg, csu, tmp, out, vc1):
    R = range(4)
    for r in R:
        a("v_fma_f32 %s, -%s, %s, %s" % (v(G + r), v(mt), v(csg + r), v(G + r)))
    for r in R:
        a("v_fma_f32 %s, -%s, %s, %s" % (v(U + r), v(mt), v(csu + r), v(U + r)))
    for r in R:
        a("v_mul_f32 %s, %s, %s" % (v(G + r), v(rt), v(G + r)))
    for r in R:
        a("v_mul_f32 %s, %s, %s" % (v(tmp + r), v(G + r), v(G + r)))
    for r in R:
        a("v_fmaak_f32 %s, %s, %s, %s" % (v(tmp + r), v(tmp + r), v(vc1), hexf(C0)))
    for r in R:
        a("v_mul_f32 %s, %s, %s" % (v(tmp + r), v(tmp + r), v(G + r)))
    for r in R:
        a("v_exp_f32 %s, %s" % (v(tmp + r), v(tmp + r)))
    for r in R:
        a("v_mul_f32 %s, %s, %s" % (v(U + r), v(rt), v(U + r)))
    for r in R:
        a("v_add_f32 %s, 1.0, %s" % (v(tmp + r), v(tmp + r)))
    for r in R:
        a("v_rcp_f32 %s, %s" % (v(tmp + r), v(tmp + r)))
    for r in R:
        a("v_mul_f32 %s, %s, %s" % (v(U + r), v(G + r), v(U + r)))
    for r in R:
        a("v_mul_f32 %s, %s, %s" % (v(U + r), v(tmp + r), v(U + r)))
    a("v_cvt_pk_bf16_f32 %s, %s, %s" % (v(out), v(U), v(U + 1)))
    a("v_cvt_pk_bf16_f32 %s, %s, %s" % (v(out + 1), v(U + 2), v(U + 3)))


def norm_ct(a, A, mt, rt, cs, out):
    for r in range(4):
        a("v_fma_f32 %s, -%s, %s, %s" % (v(A + r), v(mt), v(cs + r), v(A + r)))
    for r in range(4):
        a("v_mul_f32 %s, %s, %s" % (v(A + r), v(rt), v(A + r)))
    a("v_cvt_pk_bf16_f32 %s, %s, %s" % (v(out), v(A), v(A + 1)))
    a("v_cvt_pk_bf16_f32 %s, %s, %s" % (v(out + 1), v(A + 2), v(A + 3)))


def norm_v(a, A, mv, rv, csv, out):
    for r in range(4):
        a("v_fma_f32 %s, -%s, %s, %s" % (v(A + r), v(mv + r), v(csv), v(A + r)))
    for r in range(4):
        a("v_mul_f32 %s, %s, %s" % (v(A + r), v(rv + r), v(A + r)))
    a("v_cvt_pk_bf16_f32 %s, %s, %s" % (v(out), v(A), v(A + 1)))
    a("v_cvt_pk_bf16_f32 %s, %s, %s" % (v(out + 1), v(A + 2), v(A + 3)))


def act_store_pairs(a, P, vaddr):
    a("s_nop 1")
    a("v_permlane16_swap_b32 %s, %s" % (v(P), v(P + 2)))
    a("v_permlane16_swap_b32 %s, %s" % (v(P + 1), v(P + 3)))
    a("v_permlane16_swap_b32 %s, %s" % (v(P + 4), v(P + 6)))
    a("v_permlane16_swap_b32 %s, %s" % (v(P + 5), v(P + 7)))
    a("s_mov_b32 %s, %d" % (s(S_T3), 2 * ACT_T))
    a("buffer_store_dwordx4 %s, %s, %s, 0 offen %s" % (v(P, 4), v(vaddr), s(SRD_WS, 4), Cfg.sc))
    a("buffer_store_dwordx4 %s, %s, %s, %s offen %s" % (v(P + 4, 4), v(vaddr), s(SRD_WS, 4), s(S_T3), Cfg.sc))


def act_addr_base(a, vout, T, m):
    a("v_bfe_u32 %s, v0, 4, 1" % v(T + 1))
    a("s_lshl_b32 %s, %s, 3" % (s(S_T0), s(S_RB)))
    a("s_add_u32 %s, %s, %d" % (s(S_T0), s(S_T0), 4 * m))
    a("v_add_u32 %s, %s, %s" % (v(T + 1), s(S_T0), v(T + 1)))
    a("v_mul_u32_u24 %s, %d, %s" % (v(T + 1), ACT_T, v(T + 1)))
    a("v_lshrrev_b32 %s, 5, v0" % v(T))
    a("v_lshl_add_u32 %s, %s, 8, %s" % (v(T + 1), v(T), v(T + 1)))
    a("v_and_b32 %s, 15, v0" % v(T))
    a("v_lshl_add_u32 %s, %s, 4, %s" % (v(vout), v(T), v(T + 1)))


def epilogue_x(a, var, bg):
    m = var.m
    MT, RT = 48, 52
    MH, RH = 56, 57
    CSQ, CSK, CSG, CSU = 60, 64, 68, 72
    CSV = 58
    MV, RV = 76, 92
    MVH, RVH = 108, 112
    KP = 116
    VP = 212
    QP = 222
    HP = 244
    RQ = 252
    TMP = 20
    A_I16, A_G16 = 10, 11
    V_C1 = 12
    V_AO, V_AHH = 13, 14
    a.comment("---- X epilogue m=%d ----" % m)
    a("v_and_b32 %s, 15, v0" % v(TMP))
    a("v_lshlrev_b32 %s, 2, %s" % (v(A_I16), v(TMP)))
    a("v_add_u32 %s, %d, %s" % (v(A_I16), LB, v(A_I16)))
    a("v_and_b32 %s, 48, v0" % v(A_G16))
    a("v_add_u32 %s, %d, %s" % (v(A_G16), LB, v(A_G16)))
    base = (16 + 64 * m) * 4
    a("s_lshl_b32 %s, %s, 6" % (s(S_T0), s(S_J)))
    a("v_add_u32 %s, %s, %s" % (v(TMP + 2), s(S_T0), v(A_G16)))
    a("v_add_u32 %s, %s, %s" % (v(TMP + 3), s(S_T0), v(A_I16)))
    a("ds_read_b128 %s, %s offset:%d" % (v(CSK, 4), v(TMP + 2), O_CS + 256))
    for t in range(4):
        a("ds_read_b32 %s, %s offset:%d" % (v(MT + t), v(A_I16), O_MEAN + base + t * 64))
        a("ds_read_b32 %s, %s offset:%d" % (v(RT + t), v(A_I16), O_RSTD + base + t * 64))
    a("ds_read_b32 %s, %s offset:%d" % (v(CSV), v(TMP + 3), O_CS + 512))
    a("ds_read_b128 %s, %s offset:%d" % (v(CSQ, 4), v(TMP + 2), O_CS))
    a("ds_read_b128 %s, %s offset:%d" % (v(CSG, 4), v(TMP + 2), O_CS + 768))
    a("ds_read_b128 %s, %s offset:%d" % (v(CSU, 4), v(TMP + 2), O_CS + 1024))
    bg.tick()
    a("s_waitcnt lgkmcnt(0)")
    for t in range(4):
        a("ds_read_b128 %s, %s offset:%d" % (v(MV + 4 * t, 4), v(A_G16), O_MEAN + base + t * 64))
        a("ds_read_b128 %s, %s offset:%d" % (v(RV + 4 * t, 4), v(A_G16), O_RSTD + base + t * 64))
    if m == 0:
        a("ds_read_b32 %s, %s offset:%d" % (v(MH), v(A_I16), O_MEAN))
        a("ds_read_b32 %s, %s offset:%d" % (v(RH), v(A_I16), O_RSTD))
    else:
        a("ds_read_b128 %s, %s offset:%d" % (v(MVH, 4), v(A_G16), O_MEAN))
        a("ds_read_b128 %s, %s offset:%d" % (v(RVH, 4), v(A_G16), O_RSTD))
    for t in range(4):
        norm_ct(a, ACC(1, t), MT + t, RT + t, CSK, KP + 2 + 2 * t)
    bg.tick()
    a("s_waitcnt lgkmcnt(0)")
    for t in (3, 0, 1, 2):
        norm_v(a, ACC(2, t), MV + 4 * t, RV + 4 * t, CSV, VP + 2 + 2 * t)
        if t == 3:
            a("s_mul_i32 %s, %s, 1536" % (s(S_T0), s(S_J)))
            a("s_add_u32 %s, %s, %d" % (s(S_T0), s(S_T0), LB))
            a("v_lshlrev_b32 %s, 3, v0" % v(TMP + 4))
            a("v_add_u32 %s, %s, %s" % (v(TMP + 4), s(S_T0), v(TMP + 4)))
            if m == 0:
                a("ds_write_b64 %s, %s offset:%d" % (v(TMP + 4), v(KP + 8, 2), O_XBUF))
                a("ds_write_b64 %s, %s offset:%d" % (v(TMP + 4), v(VP + 8, 2), O_XBUF + 512))
                norm_ct(a, V_AH, MH, RH, CSK, KP)
            else:
                norm_v(a, V_AH, MVH, RVH, CSV, VP)
                a("ds_write_b64 %s, %s offset:%d" % (v(TMP + 4), v(VP, 2), O_XBUF + 1024))
    bg.tick()
    for t in range(4):
        a("v_mul_f32 %s, %s, %s" % (v(RQ + t), hexf(0.25 * LOG2E), v(RT + t)))
    for t in range(4):
        norm_ct(a, ACC(0, t), MT + t, RQ + t, CSQ, QP + 2 * t)
    bg.tick()
    a("s_waitcnt lgkmcnt(0)")
    a("s_barrier")
    if m == 0:
        a("ds_read_b64 %s, %s offset:%d" % (v(VP, 2), v(TMP + 4), O_XBUF + 1024))
    else:
        a("ds_read_b64 %s, %s offset:%d" % (v(KP, 2), v(TMP + 4), O_XBUF))
        a("ds_read_b64 %s, %s offset:%d" % (v(VP, 2), v(TMP + 4), O_XBUF + 512))
    S0 = lambda t: ACC(0, t)
    S1 = lambda t: ACC(1, t)
    PP = lambda t: ACC(2, t)
    a("v_mov_b32 %s, %s" % (v(V_C1), hexf(C1)))
    gelu_tile(a, ACC(3, 0), ACC(4, 0), MT, RT, CSG, CSU, TMP + 8, HP, V_C1)
    bg.tick()
    a("s_waitcnt lgkmcnt(0)")
    for t in range(4):
        a("v_mfma_f32_16x16x16_bf16 %s, %s, %s, %s" % (v(S0(t), 4), v(KP + 2 * t, 2), v(QP + 2 * t, 2), v(BP0 if t == 0 else BP, 4)))
        a("v_mfma_f32_16x16x16_bf16 %s, %s, %s, %s" % (v(S1(t), 4), v(KP + 2 + 2 * t, 2), v(QP + 2 * t, 2), v(BC, 4)))
    gelu_tile(a, ACC(3, 1), ACC(4, 1), MT + 1, RT + 1, CSG, CSU, TMP + 8, HP + 2, V_C1)
    bg.tick()
    MX = TMP
    TT = TMP + 4
    for t in range(4):
        a("v_max3_f32 %s, %s, %s, %s" % (v(MX + t), v(S0(t)), v(S0(t) + 1), v(S0(t) + 2)))
    for t in range(4):
        a("v_max3_f32 %s, %s, %s, %s" % (v(MX + t), v(MX + t), v(S0(t) + 3), v(S1(t))))
    for t in range(4):
        a("v_max3_f32 %s, %s, %s, %s" % (v(MX + t), v(MX + t), v(S1(t) + 1), v(S1(t) + 2)))
    for t in range(4):
        a("v_max_f32 %s, %s, %s" % (v(MX + t), v(MX + t), v(S1(t) + 3)))
    for swap in ("v_permlane16_swap_b32", "v_permlane32_swap_b32"):
        for t in range(4):
            a("v_mov_b32 %s, %s" % (v(TT + t), v(MX + t)))
        for t in range(4):
            a("%s %s, %s" % (swap, v(MX + t), v(TT + t)))
        for t in range(4):
            a("v_max_f32 %s, %s, %s" % (v(MX + t), v(MX + t), v(TT + t)))
    bg.tick()
    for t in range(4):
        for r in range(4):
            a("v_sub_f32 %s, %s, %s" % (v(S0(t) + r), v(S0(t) + r), v(MX + t)))
            a("v_sub_f32 %s, %s, %s" % (v(S1(t) + r), v(S1(t) + r), v(MX + t)))
    bg.tick()
    for t in range(4):
        for r in range(4):
            a("v_exp_f32 %s, %s" % (v(S0(t) + r), v(S0(t) + r)))
            a("v_exp_f32 %s, %s" % (v(S1(t) + r), v(S1(t) + r)))
        if t == 1:
            bg.tick()
    bg.tick()
    for t in range(4):
        a("v_cvt_pk_bf16_f32 %s, %s, %s" % (v(PP(t)), v(S0(t)), v(S0(t) + 1)))
        a("v_cvt_pk_bf16_f32 %s, %s, %s" % (v(PP(t) + 1), v(S0(t) + 2), v(S0(t) + 3)))
        a("v_cvt_pk_bf16_f32 %s, %s, %s" % (v(PP(t) + 2), v(S1(t)), v(S1(t) + 1)))
        a("v_cvt_pk_bf16_f32 %s, %s, %s" % (v(PP(t) + 3), v(S1(t) + 2), v(S1(t) + 3)))
    a("s_nop 1")
    for t in range(4):
        a("v_mfma_f32_16x16x32_bf16 %s, %s, %s, 0" % (v(S1(t), 4), v(V_ONES, 4), v(PP(t), 4)))
        a("v_mfma_f32_16x16x32_bf16 %s, %s, %s, 0" % (v(S0(t), 4), v(VP + 2 * t, 4), v(PP(t), 4)))
    gelu_tile(a, ACC(3, 2), ACC(4, 2), MT + 2, RT + 2, CSG, CSU, TMP + 8, HP + 4, V_C1)
    bg.tick()
    for t in range(4):
        a("v_rcp_f32 %s, %s" % (v(MX + t), v(S1(t))))
    act_addr_base(a, V_AO, TMP + 4, m)
    a("s_lshl_b32 %s, %s, 11" % (s(S_T0), s(S_UU)))
    a("s_lshl_b32 %s, %s, 9" % (s(S_T1), s(S_J)))
    a("s_add_u32 %s, %s, %s" % (s(S_T0), s(S_T0), s(S_T1)))
    a("v_add_u32 %s, %s, %s" % (v(V_AO), s(S_T0), v(V_AO)))
    a("v_add_u32 %s, %d, %s" % (v(V_AHH), 16 * 1024, v(V_AO)))
    for t in range(4):
        for r in range(4):
            a("v_mul_f32 %s, %s, %s" % (v(S0(t) + r), v(MX + t), v(S0(t) + r)))
    OP = 116
    for t in range(4):
        a("v_cvt_pk_bf16_f32 %s, %s, %s" % (v(OP + 2 * t), v(S0(t)), v(S0(t) + 1)))
        a("v_cvt_pk_bf16_f32 %s, %s, %s" % (v(OP + 2 * t + 1), v(S0(t) + 2), v(S0(t) + 3)))
    bg.flush()
    act_store_pairs(a, OP, V_AO)
    gelu_tile(a, ACC(3, 3), ACC(4, 3), MT + 3, RT + 3, CSG, CSU, TMP + 8, HP + 6, V_C1)
    act_store_pairs(a, HP, V_AHH)


def epilogue_y(a, var, bg):
    m = var.m
    MT, RT = 48, 52
    MTM, RTM = 56, 58
    CS = 60
    CSG4, CSU4 = 76, 80
    HPA, HPB, HM = 84, 92, 100
    TMP = 20
    A_I16, A_G16 = 10, 11
    V_C1 = 12
    V_A, V_B, V_M = 13, 14, 15
    a.comment("---- Y epilogue m=%d ----" % m)
    a("v_and_b32 %s, 15, v0" % v(TMP))
    a("v_lshlrev_b32 %s, 2, %s" % (v(A_I16), v(TMP)))
    a("v_add_u32 %s, %d, %s" % (v(A_I16), LB, v(A_I16)))
    a("v_and_b32 %s, 48, v0" % v(A_G16))
    a("v_add_u32 %s, %d, %s" % (v(A_G16), LB, v(A_G16)))
    base = (16 + 64 * m) * 4
    a("s_lshl_b32 %s, %s, 6" % (s(S_T0), s(S_J)))
    a("v_add_u32 %s, %s, %s" % (v(TMP + 2), s(S_T0), v(A_G16)))
    for tau in range(2):
        a("ds_read_b128 %s, %s offset:%d" % (v(CS + 4 * tau, 4), v(TMP + 2), O_CS + 256 * tau))
    for t in range(4):
        a("ds_read_b32 %s, %s offset:%d" % (v(MT + t), v(A_I16), O_MEAN + base + t * 64))
        a("ds_read_b32 %s, %s offset:%d" % (v(RT + t), v(A_I16), O_RSTD + base + t * 64))
    for tau in range(2, 4):
        a("ds_read_b128 %s, %s offset:%d" % (v(CS + 4 * tau, 4), v(TMP + 2), O_CS + 256 * tau))
    a("v_lshrrev_b32 %s, 5, v0" % v(TMP + 3))
    a("v_lshl_add_u32 %s, %s, 6, %s" % (v(TMP + 3), v(TMP + 3), v(A_I16)))
    a("v_and_b32 %s, 16, v0" % v(TMP + 4))
    a("v_add_u32 %s, %s, %s" % (v(TMP + 4), s(S_T0), v(TMP + 4)))
    a("v_add_u32 %s, %d, %s" % (v(TMP + 4), LB, v(TMP + 4)))
    a("v_mov_b32 %s, %s" % (v(V_C1), hexf(C1)))
    bg.tick()
    a("s_waitcnt lgkmcnt(0)")
    for p in range(2):
        a("ds_read_b32 %s, %s offset:%d" % (v(MTM + p), v(TMP + 3), O_MEAN + base + p * 128))
        a("ds_read_b32 %s, %s offset:%d" % (v(RTM + p), v(TMP + 3), O_RSTD + base + p * 128))
    a("ds_read_b128 %s, %s offset:%d" % (v(CSG4, 4), v(TMP + 4), O_CS + 1024))
    a("ds_read_b128 %s, %s offset:%d" % (v(CSU4, 4), v(TMP + 4), O_CS + 1024 + 32))
    act_addr_base(a, TMP + 5, TMP, m)
    a("s_lshl_b32 %s, %s, 4" % (s(S_T0), s(S_COL0)))
    a("s_lshl_b32 %s, %s, 9" % (s(S_T1), s(S_J)))
    a("s_add_u32 %s, %s, %s" % (s(S_T0), s(S_T0), s(S_T1)))
    a("s_add_u32 %s, %s, 16384" % (s(S_T0), s(S_T0)))
    a("v_add_u32 %s, %s, %s" % (v(V_A), s(S_T0), v(TMP + 5)))
    a("v_add_u32 %s, %d, %s" % (v(V_B), 64 * 32, v(V_A)))
    for t in range(4):
        gelu_tile(a, ACC(0, t), ACC(1, t), MT + t, RT + t, CS, CS + 4, TMP + 8, HPA + 2 * t, V_C1)
        bg.tick(2)
    act_store_pairs(a, HPA, V_A)
    for t in range(4):
        gelu_tile(a, ACC(2, t), ACC(3, t), MT + t, RT + t, CS + 8, CS + 12, TMP + 8, HPB + 2 * t, V_C1)
        bg.tick(2)
    bg.flush()
    act_store_pairs(a, HPB, V_B)
    a("s_waitcnt lgkmcnt(0)")
    for p in range(2):
        for r in range(4):
            a("v_permlane32_swap_b32 %s, %s" % (v(ACC(4, 2 * p) + r), v(ACC(4, 2 * p + 1) + r)))
    a("v_bfe_u32 %s, v0, 4, 1" % v(TMP + 1))
    a("v_lshlrev_b32 %s, 1, %s" % (v(TMP + 1), v(TMP + 1)))
    a("v_lshrrev_b32 %s, 5, v0" % v(TMP))
    a("v_add_u32 %s, %s, %s" % (v(TMP), v(TMP), v(TMP + 1)))
    a("s_lshl_b32 %s, %s, 3" % (s(S_T0), s(S_RB)))
    a("s_add_u32 %s, %s, %d" % (s(S_T0), s(S_T0), 4 * m))
    a("v_add_u32 %s, %s, %s" % (v(TMP), s(S_T0), v(TMP)))
    a("v_mul_u32_u24 %s, %d, %s" % (v(TMP), ACT_T, v(TMP)))
    a("v_and_b32 %s, 15, v0" % v(TMP + 1))
    a("v_lshl_add_u32 %s, %s, 4, %s" % (v(TMP), v(TMP + 1), v(TMP)))
    a("s_lshl_b32 %s, %s, 4" % (s(S_T0), s(S_COL2)))
    a("s_lshl_b32 %s, %s, 8" % (s(S_T1), s(S_J)))
    a("s_add_u32 %s, %s, %s" % (s(S_T0), s(S_T0), s(S_T1)))
    a("s_add_u32 %s, %s, 16384" % (s(S_T0), s(S_T0)))
    a("v_add_u32 %s, %s, %s" % (v(V_M), s(S_T0), v(TMP)))
    for p in range(2):
        gelu_tile(a, ACC(4, 2 * p), ACC(4, 2 * p + 1), MTM + p, RTM + p, CSG4, CSU4, TMP + 8, HM + 2 * p, V_C1)
    a("s_nop 1")
    a("v_permlane16_swap_b32 %s, %s" % (v(HM), v(HM + 2)))
    a("v_permlane16_swap_b32 %s, %s" % (v(HM + 1), v(HM + 3)))
    a("buffer_store_dwordx4 %s, %s, %s, 0 offen %s" % (v(HM, 4), v(V_M), s(SRD_WS, 4), Cfg.sc))


def emit_variant(a, var, after_label):
    L = var.L
    ool = []
    a.label("P1_%s" % var.name)
    variant_addresses(a, var)
    T = V_T
    a("s_lshl_b32 %s, %s, 3" % (s(S_T2), s(S_CGI)))
    a("s_add_u32 %s, %s, %s" % (s(S_T2), s(S_T2), s(S_W)))
    a("s_lshl_b32 %s, %s, 10" % (s(S_T2), s(S_T2)))
    a("s_add_u32 %s, %s, %s" % (s(S_T2), s(S_T2), s(S_R0B)))
    stamp(a, 4, "st_pro")
    a("s_waitcnt lgkmcnt(0)")
    stamp(a, 5, "st_pro")
    srd(a, SRD_X, S_X, 2048 * 1024)
    a("buffer_load_dwordx4 %s, %s, %s, %s offen" % (v(V_CSP, 4), v(T + 12), s(SRD_X, 4), s(S_T2)))
    srd(a, SRD_WS, S_WS, WS_USED)
    if var.typ == 'X' and var.m == 0:
        srd(a, SRD_Q, S_Q, 512 * 3072)
    else:
        srd(a, SRD_G, S_G, 512 * 3584)
        srd(a, SRD_U, S_U, 512 * 3584)
        if var.typ == 'Y' and var.m == 1:
            a("s_cmp_lt_u32 %s, 2" % s(S_J))
            a("s_cselect_b32 %s, %s, %s" % (s(SRD_MIX), s(SRD_G), s(SRD_U)))
            a("s_cselect_b32 %s, %s, %s" % (s(SRD_MIX + 1), s(SRD_G + 1), s(SRD_U + 1)))
            a("s_mov_b32 %s, 0x%x" % (s(SRD_MIX + 2), 512 * 3584))
            a("s_mov_b32 %s, 0x20000" % s(SRD_MIX + 3))
    if Cfg.merged and var.m == 0:
        lab = a.newlabel("noep")
        a("s_cmp_eq_u32 %s, 0" % s(S_W))
        a("s_cbranch_scc0 %s" % lab)
        a("v_mov_b32 %s, %d" % (v(T + 15), WS_EPOCH))
        a("buffer_load_dword %s, %s, %s, 0 offen sc1" % (v(V_TAG), v(T + 15), s(SRD_WS, 4)))
        a.label(lab)
    n_after_row = 0
    issue_plain(a, var, None, 0)
    n_after_row += 1
    issue_plain(a, var, 0, 1)
    n_after_row += L
    if var.typ == 'X' and var.m == 0:
        lab = a.newlabel("halo0")
        a("s_cmp_eq_u32 %s, 0" % s(S_W))
        a("s_cbranch_scc0 %s" % lab)
        halo_issue(a)
        a.label(lab)
    frag_lane_addresses(a, var)
    for i in range(84 if var.typ == 'X' else 80):
        a("v_mov_b32 %s, 0" % v(128 + i))
    stamp(a, 6, "st_pro")
    a("s_waitcnt vmcnt(%d)" % n_after_row)
    stamp(a, 7, "st_pro")
    stats_compute(a)
    stamp(a, 8, "st_pro")
    issue_plain(a, var, 1, 0)
    pre, ld = x_load(1)
    for t_ in pre:
        a(t_)
    a("s_nop 0")
    for t_ in ld:
        a(t_)
    for g_ in x_adv():
        for t_ in g_:
            a(t_)
    n2 = L + 1
    if var.typ == 'X' and var.m == 0:
        lab = a.newlabel("halo1")
        a("s_cmp_eq_u32 %s, 1" % s(S_W))
        a("s_cbranch_scc0 %s" % lab)
        halo_issue(a)
        a.label(lab)
        l0, l1 = a.newlabel("w0"), a.newlabel("w1")
        a("s_cmp_eq_u32 %s, 1" % s(S_W))
        a("s_cbranch_scc0 %s" % l0)
        a("s_waitcnt vmcnt(%d)" % (n2 + 3))
        a("s_branch %s" % l1)
        a.label(l0)
        a("s_waitcnt vmcnt(%d)" % (n2 + 1))
        a.label(l1)
    else:
        a("s_waitcnt vmcnt(%d)" % (n2 + 1))
    a("s_barrier")
    stamp(a, 3)
    stamp(a, 3, "st_pro")
    stamp(a, 3, "st_loop")
    for g in frag_addr(var, kk=0, advance=False):
        for t in g:
            a(t)
    for t in frag_reads(var, 0, 0):
        a(t)
    for i in range(len(var.loads)):
        pre, ld = w_load(var, i, 2)
        for t_ in pre:
            a(t_)
        a("s_nop 0")
        for t_ in ld:
            a(t_)
    for t_ in koff_adv(var):
        a(t_)
    if var.typ == 'X':
        if var.m == 0:
            lab = a.newlabel("halo2")
            a("s_cmp_lt_u32 %s, 2" % s(S_W))
            a("s_cbranch_scc1 %s" % lab)
            halo_issue(a)
            a.label(lab)
        else:
            halo_issue(a)
    issue_plain(a, var, 3, 0)
    loop = "P1_%s_loop" % var.name
    a.label(loop)
    emit_step(a, var, 0, 2 * L, post=lambda aa: event_site(aa, var, 0, ool))
    emit_step(a, var, 1, 2 * L, post=lambda aa: event_site(aa, var, 1, ool))
    emit_step(a, var, 2, 2 * L)
    emit_step(a, var, 3, 2 * L)
    if STAMPS["on"] and "st_loop" in EXP:
        for it in range(3):
            lab = a.newlabel("stl")
            a("s_cmp_eq_u32 %s, %d" % (s(S_IT), it))
            a("s_cbranch_scc0 %s" % lab)
            stamp(a, 4 + it, "st_loop")
            a.label(lab)
    a("s_add_u32 %s, %s, 1" % (s(S_IT), s(S_IT)))
    a("s_cmp_lt_u32 %s, 3" % s(S_IT))
    a("s_cbranch_scc1 %s" % loop)
    stamp(a, 4)
    nm = var.nm

    def top12(aa):
        if Cfg.merged and var.m == 0:
            lab = aa.newlabel("nochk")
            aa("s_cmp_eq_u32 %s, 0" % s(S_W))
            aa("s_cbranch_scc0 %s" % lab)
            poll_check(aa, ool, "early")
            aa.label(lab)
    f12 = []
    if var.typ == 'X':
        f12 += spread(bias_fillers(var), 1, nm - 2)
    emit_step(a, var, 0, 2 * L, dma=False, extra=f12, top=top12)
    stamp(a, 7, "st_loop")
    emit_step(a, var, 1, L, dma=False, extra=spread(tail_loads(), 2, nm - 6))
    stamp(a, 8, "st_loop")
    ntouch = 0
    emit_step(a, var, 2, 4 + ntouch, dma=False, extra=spread(k2_setup_fillers(), 1, nm - 2))
    stamp(a, 9, "st_loop")
    emit_step(a, var, 3, ntouch, dma=False, prefetch=False, extra=spread(tail_reduce(), 1, nm - 3),
              post=(lambda aa: (w2_touch(aa, 0), w2_touch(aa, 1) if var.m == 1 else None)) if Cfg.merged else None)
    stamp(a, 5)
    stamp(a, 11, "st_loop")
    tail_publish(a)
    stamp(a, 6)
    groups = [w2_load_group(t) for t in range(PRE2)] if (Cfg.merged and "w2late" not in EXP) else []
    bg = BG(a, groups)
    if var.typ == 'X':
        epilogue_x(a, var, bg)
    else:
        epilogue_y(a, var, bg)
    stamp(a, 7)
    a("s_branch %s" % after_label)
    for t in ool:
        a.raw(t)


def emit_phase1(a, after_label):
    prologue_common(a)
    a("s_and_b32 %s, %s, 1" % (s(S_T0), s(S_CGI)))
    a("s_lshl_b32 %s, %s, 1" % (s(S_T0), s(S_T0)))
    a("s_or_b32 %s, %s, %s" % (s(S_T0), s(S_T0), s(S_M)))
    a("s_cmp_eq_u32 %s, 1" % s(S_T0))
    a("s_cbranch_scc1 P1_X1")
    a("s_cmp_eq_u32 %s, 2" % s(S_T0))
    a("s_cbranch_scc1 P1_Y0")
    a("s_cmp_eq_u32 %s, 3" % s(S_T0))
    a("s_cbranch_scc1 P1_Y1")
    for typ, m in (('X', 0), ('X', 1), ('Y', 0), ('Y', 1)):
        emit_variant(a, Variant(typ, m), after_label)


def emit_handoff(a):
    ool = []
    T = V_T
    a("s_waitcnt vmcnt(0)")
    a("s_barrier")
    stamp(a, 8)
    lab = a.newlabel("ho_skip")
    a("s_cmp_eq_u32 %s, 0" % s(S_W))
    a("s_cbranch_scc0 %s" % lab)
    a("s_lshl_b32 %s, %s, 7" % (s(S_T0), s(S_RB)))
    a("s_lshl_b32 %s, %s, 2" % (s(S_T1), s(S_CGI)))
    a("s_add_u32 %s, %s, %s" % (s(S_T0), s(S_T0), s(S_T1)))
    a("s_add_u32 %s, %s, %d" % (s(S_T0), s(S_T0), WS_FD))
    a("v_mov_b32 %s, 0x%x" % (v(T), OOB))
    a("v_writelane_b32 %s, %s, 0" % (v(T), s(S_T0)))
    a("s_lshr_b32 %s, %s, 1" % (s(S_T1), s(S2_TG)))
    a("s_lshl_b32 %s, %s, 7" % (s(S_T1), s(S_T1)))
    a("s_add_u32 %s, %s, %d" % (s(S_T1), s(S_T1), WS_FD))
    a("buffer_store_dword %s, %s, %s, 0 offen sc1" % (v(V_TAG), v(T), s(SRD_WS, 4)))
    a("v_and_b32 %s, 15, v0" % v(T + 1))
    a("v_lshl_add_u32 %s, %s, 2, %s" % (v(V_PADDR), v(T + 1), s(S_T1)))
    a.label(lab)
    if "w2late" in EXP:
        for t_ in range(PRE2):
            for x in w2_load_group(t_):
                a(x)
    lab2 = a.newlabel("ho_skip2")
    a("s_cmp_eq_u32 %s, 0" % s(S_W))
    a("s_cbranch_scc0 %s" % lab2)
    a("buffer_load_dword %s, %s, %s, 0 offen sc1" % (v(V_PRES), v(V_PADDR), s(SRD_WS, 4)))
    a("s_waitcnt vmcnt(0)")
    poll_check(a, ool, "done")
    a.label(lab2)
    if "w2late" in EXP:
        a("s_waitcnt vmcnt(0)")
    a("s_barrier")
    return ool


P2_AVO = 2
P2_WL = 4
P2_XO = 12
P2_XR = 16
P2_T = 20
P2_EP = 46
WF2 = lambda st, u: 48 + st * 16 + u * 4
ACT2 = lambda i: 80 + (i % 12) * 4
ACC_D = lambda u: 128 + u * 4
ACC_S = lambda u: 144 + u * 4
V_EPF = 212


def p2_addresses(a):
    T = P2_T
    a("s_lshl_b32 %s, %s, 2" % (s(S_T0), s(S2_TG)))
    a("s_add_u32 %s, %s, %s" % (s(S_T0), s(S_T0), s(S_J)))
    a("s_mul_i32 %s, %s, %d" % (s(S_T0), s(S_T0), ACT_T))
    a("v_lshlrev_b32 %s, 4, v0" % v(T))
    a("v_add_u32 %s, %s, %s" % (v(P2_AVO), s(S_T0), v(T)))
    a("s_mul_i32 %s, %s, %d" % (s(S2_AOFF), s(S_M), 36 * 1024))
    a("v_lshrrev_b32 %s, 4, v0" % v(T + 1))
    a("v_bfe_u32 %s, v0, 2, 2" % v(T + 2))
    a("v_lshl_add_u32 %s, %s, 3, %s" % (v(T + 2), v(T + 1), v(T + 2)))
    a("v_lshlrev_b32 %s, 7, %s" % (v(T + 2), v(T + 2)))
    a("v_and_b32 %s, 3, v0" % v(T + 3))
    a("v_lshl_add_u32 %s, %s, 3, %s" % (v(T + 2), v(T + 3), v(T + 2)))
    a("s_lshl_b32 %s, %s, 12" % (s(S_T0), s(S_M)))
    a("v_add_u32 %s, %s, %s" % (v(T + 2), s(S_T0), v(T + 2)))
    a("v_bfe_u32 %s, v0, 3, 2" % v(T + 3))
    for u in range(4):
        a("v_xor_b32 %s, %d, %s" % (v(T + 4), u, v(T + 3)))
        a("v_lshl_add_u32 %s, %s, 5, %s" % (v(P2_WL + u), v(T + 4), v(T + 2)))
        a("v_add_u32 %s, 0x10000, %s" % (v(P2_WL + 4 + u), v(P2_WL + u)))
    a("s_lshl_b32 %s, %s, 6" % (s(S_T0), s(S2_TG)))
    a("s_lshl_b32 %s, %s, 4" % (s(S_T1), s(S_J)))
    a("s_add_u32 %s, %s, %s" % (s(S_T0), s(S_T0), s(S_T1)))
    a("v_and_b32 %s, 15, v0" % v(T + 4))
    a("v_add_u32 %s, %s, %s" % (v(T + 4), s(S_T0), v(T + 4)))
    a("v_lshlrev_b32 %s, 10, %s" % (v(T + 4), v(T + 4)))
    a("v_and_b32 %s, 1, %s" % (v(T + 5), v(T + 1)))
    a("v_lshl_add_u32 %s, %s, 5, %s" % (v(T + 4), v(T + 5), v(T + 4)))
    a("v_lshrrev_b32 %s, 1, %s" % (v(T + 5), v(T + 1)))
    a("v_lshl_add_u32 %s, %s, 4, %s" % (v(T + 4), v(T + 5), v(T + 4)))
    a("s_lshl_b32 %s, %s, 7" % (s(S_T0), s(S2_CG2)))
    a("s_lshl_b32 %s, %s, 6" % (s(S_T1), s(S_M)))
    a("s_add_u32 %s, %s, %s" % (s(S_T0), s(S_T0), s(S_T1)))
    a("v_add_u32 %s, %s, %s" % (v(P2_XO), s(S_T0), v(T + 4)))
    for r in range(16):
        a("v_mov_b32 %s, 0" % v(ACC_D(0) + r))
    srd(a, R_OUT, S_OUT, 2048 * 1024)


class VmSim:
    def __init__(self):
        self.ops = []

    def issue(self, tag):
        self.ops.append(tag)

    def need(self, tag):
        if tag not in self.ops:
            return None
        return len(self.ops) - 1 - self.ops.index(tag)


def p2_reads(tile, u):
    st = tile & 1
    slot = tile % NTILE2
    base = P2_WL + (4 if slot >= 8 else 0) + u
    off = (slot % 8) * TILE2
    return ["ds_read_b64_tr_b16 %s, %s offset:%d" % (v(WF2(st, u), 2), v(base), off),
            "ds_read_b64_tr_b16 %s, %s offset:%d" % (v(WF2(st, u) + 2, 2), v(base), off + 512)]


def p2_act(i):
    return "buffer_load_dwordx4 %s, %s, %s, %s offen offset:%d %s" % (
        v(ACT2(i), 4), v(P2_AVO), s(SRD_WS, 4), s(S2_AOFF), (i % 4) * 1024, Cfg.sc if Cfg.merged else "")


def emit_phase2_main(a):
    sim = VmSim()
    a("buffer_load_dwordx4 %s, %s, %s, 0 offen" % (v(P2_XR, 4), v(P2_XO), s(SRD_X, 4)))
    sim.issue("xr")
    if Cfg.merged:
        lab = a.newlabel("noepl")
        a("s_cmp_eq_u32 s2, 0")
        a("s_cbranch_scc0 %s" % lab)
        a("s_cmp_eq_u32 %s, 0" % s(S_W))
        a("s_cbranch_scc0 %s" % lab)
        a("v_lshrrev_b32 %s, 2, v0" % v(P2_T))
        a("v_lshlrev_b32 %s, 7, %s" % (v(P2_T), v(P2_T)))
        a("v_and_b32 %s, 3, v0" % v(P2_T + 1))
        a("v_lshl_add_u32 %s, %s, 4, %s" % (v(P2_T), v(P2_T + 1), v(P2_T)))
        a("v_add_u32 %s, %d, %s" % (v(V_PADDR), WS_FA, v(P2_T)))
        a("buffer_load_dwordx4 %s, %s, %s, 0 offen sc1" % (v(V_EPF, 4), v(V_PADDR), s(SRD_WS, 4)))
        a.label(lab)
    if Cfg.merged and "noacttouch" not in EXP:
        lab = a.newlabel("noat")
        a("s_cmp_lt_u32 %s, 3" % s(S_W))
        a("s_cbranch_scc0 %s" % lab)
        T = P2_T
        a("s_lshl_b32 %s, %s, 3" % (s(S_T0), s(S_W)))
        a("s_add_u32 %s, %s, %s" % (s(S_T0), s(S_T0), s(S2_CG2)))
        a("s_add_u32 %s, %s, 12" % (s(S_T0), s(S_T0)))
        a("s_lshl_b32 %s, %s, 10" % (s(S_T0), s(S_T0)))
        a("s_lshl_b32 %s, %s, 2" % (s(S_T1), s(S2_TG)))
        a("s_mul_i32 %s, %s, %d" % (s(S_T1), s(S_T1), ACT_T))
        a("s_add_u32 %s, %s, %s" % (s(S_T0), s(S_T0), s(S_T1)))
        a("v_bfe_u32 %s, v0, 3, 2" % v(T))
        a("v_mul_u32_u24 %s, %d, %s" % (v(T), ACT_T, v(T)))
        a("v_lshrrev_b32 %s, 5, v0" % v(T + 1))
        a("v_mul_u32_u24 %s, %d, %s" % (v(T + 1), 36 * 1024, v(T + 1)))
        a("v_and_b32 %s, 7, v0" % v(T + 2))
        a("v_lshl_add_u32 %s, %s, 7, %s" % (v(T), v(T + 2), v(T)))
        a("v_add3_u32 %s, %s, %s, %s" % (v(T), v(T), v(T + 1), s(S_T0)))
        a("buffer_load_dword %s, %s, %s, 0 offen sc1" % (v(V_DUMMY), v(T), s(SRD_WS, 4)))
        a.label(lab)
    for i in range(12):
        a(p2_act(i))
        sim.issue(("a", i))
        if i % 4 == 3:
            a("s_add_u32 %s, %s, 4096" % (s(S2_AOFF), s(S2_AOFF)))
    for u in range(4):
        for t in p2_reads(0, u):
            a(t)
    a("s_waitcnt lgkmcnt(0)")
    for u in range(4):
        for t in p2_reads(1, u):
            a(t)
    stamp(a, 3, "st_p2")
    for sg in range(36):
        if sg in (2, 6, 10, 14, 18, 26, 34):
            stamp(a, {2: 4, 6: 5, 10: 6, 14: 7, 18: 8, 26: 9, 34: 11}[sg], "st_p2")
        if sg % 4 == 2 and sg <= 30:
            V = (sg - 2) // 4
            last_tile = 4 * V + 7
            n = sim.need(("w", last_tile))
            if n is not None:
                a("s_waitcnt vmcnt(%d)" % n)
            a("s_barrier")
        if sg == 16:
            lab = a.newlabel("noacc")
            a("s_cmp_eq_u32 %s, 0" % s(S_M))
            a("s_cbranch_scc0 %s" % lab)
            a("s_nop 7")
            for r in range(16):
                a("v_mov_b32 %s, %s" % (v(ACC_S(0) + r), v(ACC_D(0) + r)))
            for r in range(16):
                a("v_mov_b32 %s, 0" % v(ACC_D(0) + r))
            a("s_nop 1")
            a.label(lab)
        n = sim.need(("a", sg))
        st = sg & 1
        for u in range(4):
            if u == 0:
                a("s_waitcnt vmcnt(%d) lgkmcnt(%d)" % (n, 13 if sg <= 34 else 6))
            else:
                if sg + 2 < 36:
                    a("s_waitcnt lgkmcnt(13)")
                elif sg == 34:
                    a("s_waitcnt lgkmcnt(%d)" % (8 + 2 * (3 - u)))
                else:
                    a("s_waitcnt lgkmcnt(%d)" % (2 * (3 - u)))
            d = v(ACC_D(u), 4)
            a("v_mfma_f32_16x16x32_bf16 %s, %s, %s, %s" % (d, v(WF2(st, u), 4), v(ACT2(sg), 4), d))
            if sg + 2 < 36:
                for t in p2_reads(sg + 2, u):
                    a(t)
            if u == 1 and sg >= 2 and sg + 12 < 36:
                tile = sg + 12
                if tile == 16:
                    lab = a.newlabel("nosw")
                    a("s_cmp_eq_u32 %s, 0" % s(S_M))
                    a("s_cbranch_scc0 %s" % lab)
                    srd(a, R_W, S_WD, 1792 * 1024)
                    a("s_mov_b32 %s, 0" % s(S2_WROW))
                    a.label(lab)
                for t in w2_load_group(tile):
                    a(t)
                sim.issue(("w", tile))
        if sg + 12 < 36:
            a(p2_act(sg + 12))
            sim.issue(("a", sg + 12))
            if (sg + 12) % 4 == 3:
                a("s_add_u32 %s, %s, 4096" % (s(S2_AOFF), s(S2_AOFF)))


def emit_phase2_epilogue(a):
    T = P2_T
    a("s_nop 7")
    a("s_barrier")
    a("s_mul_i32 %s, %s, 6144" % (s(S_T0), s(S_J)))
    a("v_lshlrev_b32 %s, 4, v0" % v(T))
    a("v_add_u32 %s, %s, %s" % (v(T), s(S_T0), v(T)))
    k1 = a.newlabel("k2_kh1")
    join = a.newlabel("k2_join")
    S, D, E = 56, 64, 72
    a("s_cmp_eq_u32 %s, 0" % s(S_M))
    a("s_cbranch_scc0 %s" % k1)
    a("ds_write_b128 %s, %s" % (v(T), v(ACC_S(2), 4)))
    a("ds_write_b128 %s, %s offset:1024" % (v(T), v(ACC_S(3), 4)))
    a("ds_write_b128 %s, %s offset:2048" % (v(T), v(ACC_D(2), 4)))
    a("ds_write_b128 %s, %s offset:3072" % (v(T), v(ACC_D(3), 4)))
    for r in range(8):
        a("v_mov_b32 %s, %s" % (v(S + r), v(ACC_S(0) + r)))
    a("s_waitcnt lgkmcnt(0)")
    a("s_barrier")
    a("ds_read_b128 %s, %s offset:4096" % (v(48, 4), v(T)))
    a("ds_read_b128 %s, %s offset:5120" % (v(52, 4), v(T)))
    a("s_waitcnt lgkmcnt(0)")
    for r in range(8):
        a("v_add_f32 %s, %s, %s" % (v(D + r), v(ACC_D(0) + r), v(48 + r)))
    a("s_branch %s" % join)
    a.label(k1)
    a("ds_write_b128 %s, %s offset:4096" % (v(T), v(ACC_D(0), 4)))
    a("ds_write_b128 %s, %s offset:5120" % (v(T), v(ACC_D(1), 4)))
    a("s_waitcnt lgkmcnt(0)")
    a("s_barrier")
    a("ds_read_b128 %s, %s" % (v(S, 4), v(T)))
    a("ds_read_b128 %s, %s offset:1024" % (v(S + 4, 4), v(T)))
    a("ds_read_b128 %s, %s offset:2048" % (v(48, 4), v(T)))
    a("ds_read_b128 %s, %s offset:3072" % (v(52, 4), v(T)))
    a("s_waitcnt lgkmcnt(0)")
    for r in range(8):
        a("v_add_f32 %s, %s, %s" % (v(D + r), v(ACC_D(2) + r), v(48 + r)))
    a.label(join)
    for r in range(8):
        a("v_mul_f32 %s, %s, %s" % (v(E + r), hexf(-LOG2E), v(D + r)))
    for r in range(8):
        a("v_exp_f32 %s, %s" % (v(E + r), v(E + r)))
    for r in range(8):
        a("v_mul_f32 %s, %s, %s" % (v(S + r), v(S + r), v(D + r)))
    for r in range(8):
        a("v_add_f32 %s, 1.0, %s" % (v(E + r), v(E + r)))
    for r in range(8):
        a("v_rcp_f32 %s, %s" % (v(E + r), v(E + r)))
    for i in range(4):
        a("v_lshlrev_b32 %s, 16, %s" % (v(D + 2 * i), v(P2_XR + i)))
        a("v_and_b32 %s, 0xffff0000, %s" % (v(D + 2 * i + 1), v(P2_XR + i)))
    for r in range(8):
        a("v_mul_f32 %s, %s, %s" % (v(S + r), v(S + r), v(E + r)))
    a("s_nop 1")
    for r in range(4):
        a("v_permlane16_swap_b32 %s, %s" % (v(S + r), v(S + 4 + r)))
    a("s_nop 1")
    for r in range(8):
        a("v_add_f32 %s, %s, %s" % (v(S + r), v(S + r), v(D + r)))
    for i in range(4):
        a("v_cvt_pk_bf16_f32 %s, %s, %s" % (v(E + i), v(S + 2 * i), v(S + 2 * i + 1)))
    a("buffer_store_dwordx4 %s, %s, %s, 0 offen" % (v(E, 4), v(P2_XO), s(R_OUT, 4)))


def emit_epoch_bump(a):
    lab = a.newlabel("nobump")
    loop = a.newlabel("bumploop")
    go = a.newlabel("bumpgo")
    a("s_cmp_eq_u32 s2, 0")
    a("s_cbranch_scc0 %s" % lab)
    a("s_cmp_eq_u32 %s, 0" % s(S_W))
    a("s_cbranch_scc0 %s" % lab)
    a("s_mov_b32 %s, 0" % s(S_SPIN))
    a.label(loop)
    a("v_xor_b32 %s, %s, %s" % (v(V_EPF), v(V_TAG), v(V_EPF)))
    a("v_xor_b32 %s, %s, %s" % (v(V_EPF + 1), v(V_TAG), v(V_EPF + 1)))
    a("v_xor_b32 %s, %s, %s" % (v(V_EPF + 2), v(V_TAG), v(V_EPF + 2)))
    a("v_xor_b32 %s, %s, %s" % (v(V_EPF + 3), v(V_TAG), v(V_EPF + 3)))
    a("v_or_b32 %s, %s, %s" % (v(V_EPF), v(V_EPF), v(V_EPF + 1)))
    a("v_or3_b32 %s, %s, %s, %s" % (v(V_EPF), v(V_EPF), v(V_EPF + 2), v(V_EPF + 3)))
    a("v_cmp_ne_u32 vcc, 0, %s" % v(V_EPF))
    a("s_nop 1")
    a("s_cmp_lg_u64 vcc, 0")
    a("s_cbranch_scc0 %s" % go)
    a("buffer_load_dwordx4 %s, %s, %s, 0 offen sc1" % (v(V_EPF, 4), v(V_PADDR), s(SRD_WS, 4)))
    a("s_add_u32 %s, %s, 1" % (s(S_SPIN), s(S_SPIN)))
    a("s_waitcnt vmcnt(0)")
    a("s_cmp_lt_u32 %s, %d" % (s(S_SPIN), SPIN_MAX))
    a("s_cbranch_scc1 %s" % loop)
    a.label(go)
    a("v_mov_b32 %s, 0x%x" % (v(P2_T), OOB))
    a("s_mov_b32 %s, %d" % (s(S_T0), WS_EPOCH))
    a("v_writelane_b32 %s, %s, 0" % (v(P2_T), s(S_T0)))
    a("s_nop 1")
    a("buffer_store_dword %s, %s, %s, 0 offen sc1" % (v(V_TAG), v(P2_T), s(SRD_WS, 4)))
    a.label(lab)


def emit_merged(a, end_label):
    emit_phase1(a, "P1_done")
    a.label("P1_done")
    p2_addresses(a)
    ool = emit_handoff(a)
    stamp(a, 9)
    emit_phase2_main(a)
    stamp(a, 11)
    emit_phase2_epilogue(a)
    emit_epoch_bump(a)
    if STAMPS["on"]:
        a("s_waitcnt vmcnt(0)")
        stamp(a, 10)
        stamp_real(a, 2)
    stamp_flush(a, S_W, S_WS, 0)
    a("s_branch %s" % end_label)
    for t in ool:
        a.raw(t)


def emit_phase2_standalone(a):
    a("s_load_dwordx2 %s, s[0:1], 0" % s(S_X, 2))
    a("s_load_dwordx2 %s, s[0:1], 72" % s(S_WS, 2))
    a("s_load_dwordx2 %s, s[0:1], 16" % s(S_WO, 2))
    a("s_load_dwordx2 %s, s[0:1], 48" % s(S_WD, 2))
    a("s_load_dwordx2 %s, s[0:1], 56" % s(S_OUT, 2))
    a("v_lshrrev_b32 v1, 6, v0")
    a("v_and_b32 v0, 63, v0")
    a("v_readfirstlane_b32 %s, v1" % s(S_W))
    a("s_and_b32 %s, s2, 7" % s(S_T0))
    a("s_lshr_b32 %s, s2, 3" % s(S_T1))
    a("s_lshr_b32 %s, %s, 3" % (s(S_T3), s(S_T1)))
    a("s_lshl_b32 %s, %s, 2" % (s(S2_TG), s(S_T0)))
    a("s_add_u32 %s, %s, %s" % (s(S2_TG), s(S2_TG), s(S_T3)))
    a("s_and_b32 %s, %s, 7" % (s(S2_CG2), s(S_T1)))
    a("s_and_b32 %s, %s, 3" % (s(S_J), s(S_W)))
    a("s_lshr_b32 %s, %s, 2" % (s(S_M), s(S_W)))
    a("s_waitcnt lgkmcnt(0)")
    srd(a, SRD_X, S_X, 2048 * 1024)
    srd(a, SRD_WS, S_WS, WS_USED)
    for t in k2_setup_fillers():
        a(t)
    for t in range(PRE2):
        for x in w2_load_group(t):
            a(x)
    p2_addresses(a)
    a("s_waitcnt vmcnt(0)")
    a("s_barrier")
    emit_phase2_main(a)
    emit_phase2_epilogue(a)
```

```python
import struct


def f2u(x):
    return struct.unpack("<I", struct.pack("<f", x))[0]


def hexf(x):
    return "0x%08x" % f2u(x)


def v(i, n=1):
    return "v%d" % i if n == 1 else "v[%d:%d]" % (i, i + n - 1)


def s(i, n=1):
    return "s%d" % i if n == 1 else "s[%d:%d]" % (i, i + n - 1)


class Asm:
    def __init__(self):
        self.lines = []
        self.uid = 0

    def __call__(self, text):
        for ln in text.split("\n"):
            self.lines.append("  " + ln.strip() if ln.strip() else "")

    def raw(self, text):
        self.lines.append(text)

    def label(self, name):
        self.lines.append(name + ":")

    def newlabel(self, base):
        self.uid += 1
        return "L_%s_%d" % (base, self.uid)

    def comment(self, text):
        self.lines.append("  ; " + text)

    def text(self):
        return "\n".join(self.lines) + "\n"


def interleave(main, fillers):
    out = []
    by = {}
    for pos, t in fillers:
        by.setdefault(pos, []).append(t)
    for t in by.get(-1, []):
        out.append(t)
    for i, m in enumerate(main):
        out.append(m)
        for t in by.get(i, []):
            out.append(t)
    for pos in sorted(by):
        if pos >= len(main):
            out.extend(by[pos])
    return out


STAMPS = {"on": False, "n": 0}
STAMP_BASE = 76
WS_STAMP = 0x1000000


def stamp(a, idx):
    if not STAMPS["on"]:
        return
    a("s_memtime %s" % s(STAMP_BASE + 2 * idx, 2))


def stamp_real(a, idx):
    if not STAMPS["on"]:
        return
    a("s_memrealtime %s" % s(STAMP_BASE + 2 * idx, 2))


def stamp_flush(a, s_wave, s_ws, kernel_slot, nst=12):
    if not STAMPS["on"]:
        return
    a("s_waitcnt lgkmcnt(0)")
    a("s_lshl_b32 s60, s2, 3")
    a("s_add_u32 s60, s60, %s" % s(s_wave))
    a("s_lshl_b32 s60, s60, 7")
    a("s_add_u32 s60, s60, 0x%x" % (WS_STAMP + kernel_slot * 0x80000))
    a("s_add_u32 s100, %s, s60" % s(s_ws))
    a("s_addc_u32 s101, %s, 0" % s(s_ws + 1))
    a("v_mov_b32 v250, 0")
    for i in range(nst):
        a("v_mov_b32 v252, %s" % s(STAMP_BASE + 2 * i))
        a("v_mov_b32 v253, %s" % s(STAMP_BASE + 2 * i + 1))
        a("global_store_dwordx2 v250, v[252:253], s[100:101] offset:%d" % (8 * i))
        a("s_nop 1")


import os
EXP = set(os.environ.get("EXP", "").split(","))


def _pk_src(x):
    k, r = x[0], x[1]
    if k == 'p':
        assert r % 2 == 0
        return v(r, 2), 0, 1
    if k == 'b':
        return v(r & ~1, 2), r & 1, r & 1
    if k == 's':
        return s(r & ~1, 2), r & 1, r & 1
    return r, 0, 0


def pk(op, d, srcs, neg=None):
    assert d % 2 == 0
    parts = [_pk_src(x) for x in srcs]
    txt = "v_pk_%s_f32 %s, %s" % (op, v(d, 2), ", ".join(p[0] for p in parts))
    lo = [p[1] for p in parts]
    hi = [p[2] for p in parts]
    if any(lo):
        txt += " op_sel:[%s]" % ",".join(map(str, lo))
    if not all(hi):
        txt += " op_sel_hi:[%s]" % ",".join(map(str, hi))
    if neg and any(neg):
        n = ",".join(map(str, neg))
        txt += " neg_lo:[%s] neg_hi:[%s]" % (n, n)
    return txt
```

```python
import os
from asmlib import *
from layout import *

S_X, S_Q, S_G, S_U, S_WS, S_OUT = 4, 6, 8, 10, 12, 14
SRD_X, SRD_Q, SRD_G, SRD_U, SRD_WS, SRD_MIX = 16, 20, 24, 28, 32, 36
R_W, R_OUT = 20, 24
S_RB, S_CGI, S_UU, S_W, S_J, S_M, S_R0B = 40, 41, 42, 43, 44, 45, 46
S_KOFF = 47
S_M0X = 48
S_COL0, S_COL1, S_COL2 = 49, 50, 51
S_XO, S_XM0, S_XSLOTR, S_HK = 52, 53, 54, 55
S_IT, S_EV0, S_EV1 = 56, 57, 59
S_M0W = 58
S_T0, S_T1, S_T2, S_T3 = 60, 61, 62, 63
S_EX = 64
S2_WROW, S2_AOFF, S2_M0B, S2_TG = 66, 67, 68, 69
S_WO, S_WD = 70, 72
S2_CG2 = 74
S_XM0END = 75
S_SPIN = 3

V_WVO = 1
V_XVO = 4
V_XL = 6
V_HL = 8
V_WL, V_WL3, V_WM, V_WM3 = 10, 11, 12, 13
V_XA, V_HA = 14, 15
V_ONES = 16
V_T = 20
V_TAG, V_W2VO, V_CSST, V_PADDR, V_PRES, V_DUMMY = 40, 41, 42, 43, 44, 45
V_TVO = 47
WF = lambda st, t: 48 + st * 20 + t * 4
XF = lambda st, t: 88 + st * 20 + t * 4
ACC = lambda tau, t: 128 + (tau * 4 + t) * 4
V_AH = 208
V_CSP = 212
V_STAT = 224
V_CSTMP = 226
BP, BC, BP0 = 232, 236, 240

OOB = 0x7FFFFF00
SPIN_MAX = 1 << 18
N15 = int(os.environ.get("N15", "9"))
TOUCH_AT = int(os.environ.get("TOUCH_AT", "15"))

C0 = -2.0 * 0.7978845608028654 * 1.4426950408889634
C1 = C0 * 0.044715
LOG2E = 1.4426950408889634


class Cfg:
    merged = True
    sc = "sc1"


_stamp0 = stamp


def stamp(a, idx, mode="main"):
    active = "main"
    for m in ("st_pro", "st_loop", "st_p2", "st_epi"):
        if m in EXP:
            active = m
    if idx in (1, 10) and mode == "main":
        _stamp0(a, idx)
    elif mode == active:
        _stamp0(a, idx)


def srd(a, base, ptr, nbytes):
    a("s_mov_b32 %s, %s" % (s(base), s(ptr)))
    a("s_and_b32 %s, %s, 0xffff" % (s(base + 1), s(ptr + 1)))
    a("s_mov_b32 %s, 0x%x" % (s(base + 2), nbytes))
    a("s_mov_b32 %s, 0x20000" % s(base + 3))


def allreduce16(a, regs, op="v_add_f32"):
    for ror in (8, 4, 2, 1):
        for r in regs:
            a("%s_dpp %s, %s, %s row_ror:%d row_mask:0xf bank_mask:0xf" % (op, v(r), v(r), v(r), ror))
        pad = 2 - (len(regs) - 1)
        if pad > 0:
            a("s_nop %d" % (pad - 1))


def allreduce_rows(a, r, tmp, op="v_add_f32"):
    for swap in ("v_permlane16_swap_b32", "v_permlane32_swap_b32"):
        a("v_mov_b32 %s, %s" % (v(tmp), v(r)))
        a("s_nop 1")
        a("%s %s, %s" % (swap, v(r), v(tmp)))
        a("s_nop 1")
        a("%s %s, %s, %s" % (op, v(r), v(r), v(tmp)))
        a("s_nop 0")


class Variant:
    def __init__(self, typ, m):
        self.typ = typ
        self.m = m
        if typ == 'X' and m == 0:
            self.loads = [(SRD_Q, V_WVO, 0), (SRD_Q, V_WVO + 1, 1), (SRD_Q, V_WVO + 2, 2)]
            self.pitch = 3072
        elif typ == 'X':
            self.loads = [(SRD_G, V_WVO, 3), (SRD_U, V_WVO, 4)]
            self.pitch = 3584
        elif m == 0:
            self.loads = [(SRD_G, V_WVO, 0), (SRD_U, V_WVO, 1), (SRD_G, V_WVO + 1, 2)]
            self.pitch = 3584
        else:
            self.loads = [(SRD_U, V_WVO + 1, 3), (SRD_MIX, V_WVO + 2, 4)]
            self.pitch = 3584
        self.L = len(self.loads) + 1
        self.name = "%s%d" % (typ, m)
        self.nm = 21 if typ == 'X' else 20


def w_load(var, i, slot):
    srdr, vo, q = var.loads[i]
    return (["s_add_u32 m0, %s, %d" % (s(S_M0W), slot * WSLOT + q * 4096)],
            ["buffer_load_dwordx4 %s, %s, %s offen lds" % (v(vo), s(srdr, 4), s(S_KOFF))])


def koff_adv(var):
    st = 32 * var.pitch
    return ["s_add_u32 %s, %s, %d" % (s(S_KOFF), s(S_KOFF), st),
            "s_cmp_eq_u32 %s, %d" % (s(S_KOFF), 16 * st),
            "s_cselect_b32 %s, 0, %s" % (s(S_KOFF), s(S_KOFF))]


def x_load(h):
    return (["s_add_u32 m0, %s, %d" % (s(S_XM0), h * 8192)],
            ["buffer_load_dwordx4 %s, %s, %s offen lds" % (v(V_XVO + h), s(SRD_X, 4), s(S_XO))])


def x_adv():
    return [["s_add_u32 %s, %s, 128" % (s(S_T0), s(S_XO)),
             "s_and_b32 %s, %s, 0x380" % (s(S_T0), s(S_T0)),
             "s_or_b32 %s, %s, %s" % (s(S_XO), s(S_T0), s(S_R0B))],
            ["s_add_u32 %s, %s, 0x4000" % (s(S_XM0), s(S_XM0)),
             "s_cmp_eq_u32 %s, %s" % (s(S_XM0), s(S_XM0END)),
             "s_cselect_b32 %s, %s, %s" % (s(S_XM0), s(S_M0X), s(S_XM0))]]


def issue_plain(a, var, slot, h):
    if slot is not None:
        for i in range(len(var.loads)):
            pre, ld = w_load(var, i, slot)
            for t in pre:
                a(t)
            a("s_nop 0")
            for t in ld:
                a(t)
        for t in koff_adv(var):
            a(t)
    pre, ld = x_load(h)
    for t in pre:
        a(t)
    a("s_nop 0")
    for t in ld:
        a(t)
    if h:
        for g in x_adv():
            for t in g:
                a(t)


def frag_reads(var, st, slot):
    wl = V_WL3 if slot == 3 else V_WL
    wm = V_WM3 if slot == 3 else V_WM
    so = 0 if slot == 3 else slot * WSLOT
    W = []
    for tau in range(5):
        if var.typ == 'Y' and tau == 4:
            W.append(["ds_read_b64_tr_b16 %s, %s offset:%d" % (v(WF(st, tau), 2), v(wm), so),
                      "ds_read_b64_tr_b16 %s, %s offset:%d" % (v(WF(st, tau) + 2, 2), v(wm), so + 256)])
        else:
            W.append(["ds_read_b64_tr_b16 %s, %s offset:%d" % (v(WF(st, tau), 2), v(wl), so + tau * 4096),
                      "ds_read_b64_tr_b16 %s, %s offset:%d" % (v(WF(st, tau) + 2, 2), v(wl), so + tau * 4096 + 512)])
    X = ["ds_read_b128 %s, %s offset:%d" % (v(XF(st, t), 4), v(V_XA), t * 2048) for t in range(4)]
    r = W[0] + W[1] + [X[0]] + W[2] + [X[1]] + W[3] + [X[2]] + W[4] + [X[3]]
    if var.typ == 'X':
        r.append("ds_read_b128 %s, %s" % (v(XF(st, 4), 4), v(V_HA)))
    return r


def frag_addr(var, kk, advance):
    g = []
    if advance:
        g.append(["s_add_u32 %s, %s, 0x4000" % (s(S_XSLOTR), s(S_XSLOTR)),
                  "s_cmp_eq_u32 %s, 0xc000" % s(S_XSLOTR),
                  "s_cselect_b32 %s, 0, %s" % (s(S_XSLOTR), s(S_XSLOTR))])
    g.append(["v_add_u32 %s, %s, %s" % (v(V_XA), s(S_XSLOTR), v(V_XL + kk))])
    if var.typ == 'X':
        h = []
        if advance:
            h += ["s_add_u32 %s, %s, 0x800" % (s(S_HK), s(S_HK)),
                  "s_and_b32 %s, %s, 0x3fff" % (s(S_HK), s(S_HK))]
        h.append("v_add_u32 %s, %s, %s" % (v(V_HA), s(S_HK), v(V_HL + kk)))
        g.append(h)
    return g


def mfmas(var, st):
    out = []
    for t in range(4):
        for tau in range(5):
            d = v(ACC(tau, t), 4)
            if var.typ == 'X' and tau == 2:
                out.append("v_mfma_f32_16x16x32_bf16 %s, %s, %s, %s" % (d, v(XF(st, t), 4), v(WF(st, tau), 4), d))
            else:
                out.append("v_mfma_f32_16x16x32_bf16 %s, %s, %s, %s" % (d, v(WF(st, tau), 4), v(XF(st, t), 4), d))
    if var.typ == 'X':
        d = v(V_AH, 4)
        if var.m == 0:
            out.append("v_mfma_f32_16x16x32_bf16 %s, %s, %s, %s" % (d, v(WF(st, 1), 4), v(XF(st, 4), 4), d))
        else:
            out.append("v_mfma_f32_16x16x32_bf16 %s, %s, %s, %s" % (d, v(XF(st, 4), 4), v(WF(st, 2), 4), d))
    return out


def spread(items, p0, p1):
    n = len(items)
    if n == 0:
        return []
    return [(p0 + (i * (p1 - p0 + 1)) // n, t) for i, t in enumerate(items)]


def emit_step(a, var, s4, vm, dma=True, prefetch=True, extra=None, post=None, top=None):
    par = s4 & 1
    a("s_waitcnt vmcnt(%d) lgkmcnt(0)" % vm)
    if top:
        top(a)
    if "nobar" not in EXP:
        a("s_barrier")
    M = mfmas(var, par)
    F = []
    if prefetch:
        ga = frag_addr(var, kk=1 - par, advance=(par == 1))
        for i, g in enumerate(ga):
            for t in g:
                F.append((i, t))
        rd = frag_reads(var, 1 - par, (s4 + 1) & 3)
        if "noreads" in EXP:
            rd = []
        for i, t in enumerate(rd):
            F.append((i if i < 4 else i + 0, t))
    if dma and "nodma" not in EXP:
        nl = len(var.loads)
        poss = [3, 8, 13, 18] if var.m == 0 else [5, 10, 15]
        for i in range(nl):
            pre, ld = w_load(var, i, s4)
            F += [(poss[i] - 1, t) for t in pre] + [(poss[i], t) for t in ld]
        F += [(poss[nl - 1] + 1, t) for t in koff_adv(var)]
        h = 1 - par
        pre, ld = x_load(h)
        px = poss[nl]
        F += [(px - 1, t) for t in pre] + [(px, t) for t in ld]
        if h:
            g = x_adv()
            F += [(px + 1, t) for t in g[0]] + [(min(px + 2, len(M) - 1), t) for t in g[1]]
    if extra:
        F += extra
    F.sort(key=lambda x: x[0])
    for t in interleave(M, F):
        a(t)
    if post:
        post(a)


def w2_touch(b, part):
    if "notouch" in EXP or not Cfg.merged:
        return
    T = V_T
    lab = b.newlabel("tch")
    if part == 0:
        b("s_cmp_lt_u32 %s, 5" % s(S_W))
        b("s_cbranch_scc0 %s" % lab)
        b("s_mov_b32 %s, %s" % (s(S_T1), s(S_W)))
    else:
        b("s_cmp_ge_u32 %s, 3" % s(S_W))
        b("s_cbranch_scc0 %s" % lab)
        b("s_sub_u32 %s, %s, 3" % (s(S_T1), s(S_W)))
    b("s_lshr_b32 %s, s2, 3" % s(S_T0))
    b("s_mul_i32 %s, %s, 5" % (s(S_T0), s(S_T0)))
    b("s_add_u32 %s, %s, %s" % (s(S_T0), s(S_T0), s(S_T1)))
    b("s_min_u32 %s, %s, 143" % (s(S_T0), s(S_T0)))
    if part == 0:
        b("s_sub_u32 %s, %s, 64" % (s(S_T1), s(S_T0)))
        b("s_add_u32 %s, %s, 8" % (s(S_T2), s(S_T0)))
        b("s_cmp_lt_u32 %s, 72" % s(S_T0))
        b("s_cselect_b32 %s, %s, %s" % (s(S_T1), s(S_T1), s(S_T2)))
        b("s_cmp_lt_u32 %s, 64" % s(S_T0))
        b("s_cselect_b32 %s, %s, %s" % (s(S_T0), s(S_T0), s(S_T1)))
        b("s_cselect_b32 %s, %s, %s" % (s(S_EX), s(S_WO), s(S_WD)))
        b("s_cselect_b32 %s, %s, %s" % (s(S_EX + 1), s(S_WO + 1), s(S_WD + 1)))
        base = S_EX
    else:
        b("s_add_u32 %s, %s, 8" % (s(S_T1), s(S_T0)))
        b("s_add_u32 %s, %s, 80" % (s(S_T2), s(S_T0)))
        b("s_cmp_lt_u32 %s, 72" % s(S_T0))
        b("s_cselect_b32 %s, %s, %s" % (s(S_T0), s(S_T1), s(S_T2)))
        base = S_WD
    b("s_lshl_b32 %s, %s, 13" % (s(S_T0), s(S_T0)))
    b("v_lshlrev_b32 %s, 7, v0" % v(T + 3))
    b("v_add_u32 %s, %s, %s" % (v(T + 3), s(S_T0), v(T + 3)))
    b("global_load_dword %s, %s, %s" % (v(V_DUMMY + part), v(T + 3), s(base, 2)))
    b.label(lab)


def colsum_block(b, par):
    for tau in range(5):
        b("v_mfma_f32_16x16x32_bf16 %s, %s, %s, 0" % (v(V_CSTMP + 4 * tau, 4), v(WF(par, tau), 4), v(V_ONES, 4)))
    b("s_nop 7")
    b("s_nop 1")
    for tau in range(5):
        b("buffer_store_dwordx4 %s, %s, %s, 0 offen offset:%d sc1" % (v(V_CSTMP + 4 * tau, 4), v(V_CSST), s(SRD_WS, 4), tau * 256))


def publish_block(b):
    T = V_T
    b("v_add_u32 %s, 1, %s" % (v(V_TAG), v(V_TAG)))
    b("s_lshl_b32 %s, %s, 7" % (s(S_T0), s(S_RB)))
    b("s_lshl_b32 %s, %s, 2" % (s(S_T1), s(S_CGI)))
    b("s_add_u32 %s, %s, %s" % (s(S_T0), s(S_T0), s(S_T1)))
    b("s_add_u32 %s, %s, %d" % (s(S_T0), s(S_T0), WS_FA))
    b("s_lshl_b32 %s, %s, 7" % (s(S_T1), s(S_CGI)))
    b("s_lshl_b32 %s, %s, 2" % (s(S_T2), s(S_RB)))
    b("s_add_u32 %s, %s, %s" % (s(S_T1), s(S_T1), s(S_T2)))
    b("s_add_u32 %s, %s, %d" % (s(S_T1), s(S_T1), WS_FB))
    b("v_mov_b32 %s, 0x%x" % (v(T), OOB))
    b("v_writelane_b32 %s, %s, 0" % (v(T), s(S_T0)))
    b("v_writelane_b32 %s, %s, 1" % (v(T), s(S_T1)))
    b("s_nop 1")
    b("buffer_store_dword %s, %s, %s, 0 offen sc1" % (v(V_TAG), v(T), s(SRD_WS, 4)))


def poll_block(b):
    T = V_T
    b("v_and_b32 %s, 15, v0" % v(T))
    b("s_lshl_b32 %s, %s, 7" % (s(S_T0), s(S_RB)))
    b("s_add_u32 %s, %s, %d" % (s(S_T0), s(S_T0), WS_FA))
    b("v_lshl_add_u32 %s, %s, 2, %s" % (v(V_PADDR), v(T), s(S_T0)))
    b("s_lshl_b32 %s, %s, 7" % (s(S_T1), s(S_CGI)))
    b("s_add_u32 %s, %s, %d" % (s(S_T1), s(S_T1), WS_FB))
    b("v_lshl_add_u32 %s, %s, 2, %s" % (v(T + 1), v(T), s(S_T1)))
    b("v_lshrrev_b32 %s, 4, v0" % v(T + 2))
    b("v_cmp_eq_u32 vcc, 2, %s" % v(T + 2))
    b("s_nop 1")
    b("v_cndmask_b32 %s, %s, %s, vcc" % (v(V_PADDR), v(V_PADDR), v(T + 1)))
    b("s_cmp_eq_u32 %s, 0" % s(S_RB))
    b("s_cselect_b32 %s, 0, 128" % s(S_T1))
    b("s_sub_u32 %s, %s, %s" % (s(S_T0), s(S_T0), s(S_T1)))
    b("s_add_u32 %s, %s, 56" % (s(S_T0), s(S_T0)))
    b("s_add_u32 %s, %s, 4" % (s(S_T1), s(S_T0)))
    b("v_writelane_b32 %s, %s, 16" % (v(V_PADDR), s(S_T0)))
    b("v_writelane_b32 %s, %s, 17" % (v(V_PADDR), s(S_T1)))
    b("s_nop 1")
    b("buffer_load_dword %s, %s, %s, 0 offen sc1" % (v(V_PRES), v(V_PADDR), s(SRD_WS, 4)))


def event_site(a, var, s4, ool):
    if var.m == 1 or s4 > 1:
        return
    lab = a.newlabel("ev")
    back = a.newlabel("evback")
    a("s_bitcmp1_b32 %s, %d" % (s(S_EV0), s4))
    a("s_cbranch_scc1 %s" % lab)
    a.label(back)
    b = Asm()
    b.uid = a.uid + 1000
    b.label(lab)
    if s4 == 0 and Cfg.merged:
        other = b.newlabel("evo")
        b("s_cmp_eq_u32 %s, 0" % s(S_IT))
        b("s_cbranch_scc0 %s" % other)
        colsum_block(b, s4)
        b("s_branch %s" % back)
        b.label(other)
        pl = b.newlabel("evp")
        b("s_cmp_eq_u32 %s, 1" % s(S_IT))
        b("s_cbranch_scc0 %s" % pl)
        publish_block(b)
        b("s_branch %s" % back)
        b.label(pl)
        poll_block(b)
    else:
        colsum_block(b, s4)
    b("s_branch %s" % back)
    ool.append(b.text())
    a.uid = b.uid + 1


def poll_check(a, ool, name):
    slow = a.newlabel(name + "_slow")
    back = a.newlabel(name + "_ok")
    a("v_cmp_ne_u32 vcc, %s, %s" % (v(V_TAG), v(V_PRES)))
    a("s_nop 1")
    a("s_cmp_lg_u64 vcc, 0")
    a("s_cbranch_scc1 %s" % slow)
    a.label(back)
    b = Asm()
    b.label(slow)
    b("s_mov_b32 %s, 0" % s(S_SPIN))
    loop = slow + "_loop"
    b.label(loop)
    b("buffer_load_dword %s, %s, %s, 0 offen sc1" % (v(V_PRES), v(V_PADDR), s(SRD_WS, 4)))
    b("s_add_u32 %s, %s, 1" % (s(S_SPIN), s(S_SPIN)))
    b("s_waitcnt vmcnt(0)")
    b("v_cmp_ne_u32 vcc, %s, %s" % (v(V_TAG), v(V_PRES)))
    b("s_nop 1")
    b("s_cmp_lg_u64 vcc, 0")
    b("s_cbranch_scc0 %s" % back)
    b("s_cmp_lt_u32 %s, %d" % (s(S_SPIN), SPIN_MAX))
    b("s_cbranch_scc1 %s" % loop)
    b("s_branch %s" % back)
    ool.append(b.text())


def prologue_common(a):
    a.comment("---- prologue ----")
    stamp_real(a, 0)
    stamp(a, 1)
    a("s_load_dwordx4 %s, s[0:1], 0" % s(S_X, 4))
    a("s_load_dwordx4 %s, s[0:1], 32" % s(S_G, 4))
    a("s_load_dwordx2 %s, s[0:1], 72" % s(S_WS, 2))
    a("v_lshrrev_b32 v1, 6, v0")
    a("v_and_b32 v0, 63, v0")
    a("v_readfirstlane_b32 %s, v1" % s(S_W))
    a("s_and_b32 %s, s2, 7" % s(S_T0))
    a("s_lshr_b32 %s, s2, 3" % s(S_T1))
    if "map8x4" in EXP:
        a("s_lshr_b32 %s, %s, 2" % (s(S_T2), s(S_T0)))
        a("s_lshl_b32 %s, %s, 3" % (s(S_T2), s(S_T2)))
        a("s_and_b32 %s, %s, 7" % (s(S_T3), s(S_T1)))
        a("s_or_b32 %s, %s, %s" % (s(S_RB), s(S_T2), s(S_T3)))
        a("s_and_b32 %s, %s, 3" % (s(S_T2), s(S_T0)))
        a("s_lshl_b32 %s, %s, 2" % (s(S_T2), s(S_T2)))
        a("s_lshr_b32 %s, %s, 3" % (s(S_CGI), s(S_T1)))
        a("s_or_b32 %s, %s, %s" % (s(S_CGI), s(S_T2), s(S_CGI)))
    else:
        a("s_and_b32 %s, %s, 15" % (s(S_RB), s(S_T1)))
        a("s_and_b32 %s, %s, 7" % (s(S_T3), s(S_T1)))
        a("s_lshl_b32 %s, %s, 1" % (s(S_T2), s(S_T0)))
        a("s_lshr_b32 %s, %s, 4" % (s(S_CGI), s(S_T1)))
        a("s_or_b32 %s, %s, %s" % (s(S_CGI), s(S_T2), s(S_CGI)))
    a("s_lshl_b32 %s, %s, 17" % (s(S_R0B), s(S_RB)))
    a("s_lshl_b32 %s, %s, 7" % (s(S_XO), s(S_T3)))
    a("s_or_b32 %s, %s, %s" % (s(S_XO), s(S_XO), s(S_R0B)))
    a("s_lshl_b32 %s, %s, 11" % (s(S_HK), s(S_T3)))
    a("s_lshl_b32 %s, %s, 1" % (s(S_KOFF), s(S_T3)))
    a("s_lshl_b32 %s, %s, 10" % (s(S_M0X), s(S_W)))
    a("s_add_u32 %s, %s, %d" % (s(S_M0X), s(S_M0X), XRING))
    a("s_mov_b32 %s, %s" % (s(S_XM0), s(S_M0X)))
    a("s_add_u32 %s, %s, 0xc000" % (s(S_XM0END), s(S_M0X)))
    T = V_T
    a("v_lshrrev_b32 %s, 3, v0" % v(T))
    a("s_lshl_b32 %s, %s, 3" % (s(S_T0), s(S_W)))
    a("v_add_u32 %s, %s, %s" % (v(T + 2), s(S_T0), v(T)))
    a("v_bfe_u32 %s, %s, 1, 3" % (v(T + 3), v(T + 2)))
    a("v_and_b32 %s, 7, v0" % v(T + 4))
    a("v_xor_b32 %s, %s, %s" % (v(T + 4), v(T + 4), v(T + 3)))
    a("v_lshlrev_b32 %s, 4, %s" % (v(T + 4), v(T + 4)))
    a("v_lshl_add_u32 %s, %s, 10, %s" % (v(V_XVO), v(T + 2), v(T + 4)))
    a("v_add_u32 %s, 0x10000, %s" % (v(V_XVO + 1), v(V_XVO)))
    a("v_lshlrev_b32 %s, 4, v0" % v(T + 12))
    a("s_lshl_b32 %s, %s, 3" % (s(S_T2), s(S_CGI)))
    a("s_add_u32 %s, %s, %s" % (s(S_T2), s(S_T2), s(S_W)))
    a("s_lshl_b32 %s, %s, 10" % (s(S_T2), s(S_T2)))
    a("s_add_u32 %s, %s, %s" % (s(S_T2), s(S_T2), s(S_R0B)))
    a("s_and_b32 %s, %s, 3" % (s(S_J), s(S_W)))
    a("s_lshr_b32 %s, %s, 2" % (s(S_M), s(S_W)))
    a("s_lshr_b32 %s, %s, 1" % (s(S_UU), s(S_CGI)))
    a("s_lshl_b32 %s, %s, 10" % (s(S_M0W), s(S_J)))
    stamp(a, 4, "st_pro")
    a("s_waitcnt lgkmcnt(0)")
    stamp(a, 5, "st_pro")
    srd(a, SRD_X, S_X, 2048 * 1024)
    a("buffer_load_dwordx4 %s, %s, %s, %s offen" % (v(V_CSP, 4), v(T + 12), s(SRD_X, 4), s(S_T2)))
    for h in range(2):
        pre, ld = x_load(h)
        for t_ in pre:
            a(t_)
        a("s_nop 0")
        for t_ in ld:
            a(t_)
    for g_ in x_adv():
        for t_ in g_:
            a(t_)


def prologue_late(a):
    a("s_load_dwordx2 %s, s[0:1], 16" % s(S_WO, 2))
    a("s_load_dwordx2 %s, s[0:1], 48" % s(S_WD, 2))
    a("s_load_dwordx2 %s, s[0:1], 56" % s(S_OUT, 2))
    a("s_and_b32 %s, s2, 7" % s(S_T0))
    a("s_lshr_b32 %s, s2, 3" % s(S_T1))
    a("s_lshr_b32 %s, %s, 3" % (s(S_T3), s(S_T1)))
    a("s_lshl_b32 %s, %s, 2" % (s(S2_TG), s(S_T0)))
    a("s_add_u32 %s, %s, %s" % (s(S2_TG), s(S2_TG), s(S_T3)))
    a("s_and_b32 %s, %s, 7" % (s(S2_CG2), s(S_T1)))
    a("s_mov_b32 %s, 0" % s(S_XSLOTR))
    a("s_mov_b32 %s, 0" % s(S_IT))
    a("s_lshr_b32 %s, %s, 3" % (s(S_T0), s(S_RB)))
    a("s_lshl_b32 %s, 1, %s" % (s(S_T0), s(S_T0)))
    a("s_cmp_eq_u32 %s, 0" % s(S_M))
    a("s_cselect_b32 %s, %s, 0" % (s(S_EV0), s(S_T0)))
    a("s_mov_b32 %s, 99" % s(S_EV1))
    if Cfg.merged:
        a("s_cmp_eq_u32 %s, 0" % s(S_W))
        a("s_cselect_b32 %s, 0x110, 0" % s(S_T0))
        a("s_cselect_b32 %s, 2, 99" % s(S_EV1))
        a("s_or_b32 %s, %s, %s" % (s(S_EV0), s(S_EV0), s(S_T0)))
    a("v_mov_b32 %s, %d" % (v(V_PADDR), WS_FA))
    a("v_mov_b32 %s, 0" % v(V_TAG))


def w_voffset_full(a, pitch, out):
    T = V_T
    a("v_lshrrev_b32 %s, 3, v0" % v(T))
    a("s_lshl_b32 %s, %s, 3" % (s(S_T0), s(S_J)))
    a("v_add_u32 %s, %s, %s" % (v(T), s(S_T0), v(T)))
    a("v_mul_u32_u24 %s, %d, %s" % (v(T), pitch, v(T)))
    a("v_bfe_u32 %s, v0, 4, 1" % v(T + 1))
    a("s_and_b32 %s, %s, 1" % (s(S_T0), s(S_J)))
    a("s_lshl_b32 %s, %s, 1" % (s(S_T0), s(S_T0)))
    a("v_or_b32 %s, %s, %s" % (v(T + 1), s(S_T0), v(T + 1)))
    a("v_bfe_u32 %s, v0, 1, 2" % v(T + 2))
    a("v_xor_b32 %s, %s, %s" % (v(T + 1), v(T + 1), v(T + 2)))
    a("v_lshl_add_u32 %s, %s, 5, %s" % (v(T), v(T + 1), v(T)))
    a("v_and_b32 %s, 1, v0" % v(T + 2))
    a("v_lshl_add_u32 %s, %s, 4, %s" % (v(out), v(T + 2), v(T)))


def w_voffset_g4(a, out):
    T = V_T
    a("v_lshrrev_b32 %s, 2, v0" % v(T))
    a("s_and_b32 %s, %s, 1" % (s(S_T0), s(S_J)))
    a("s_lshl_b32 %s, %s, 4" % (s(S_T0), s(S_T0)))
    a("v_add_u32 %s, %s, %s" % (v(T), s(S_T0), v(T)))
    a("v_mul_u32_u24 %s, 3584, %s" % (v(T), v(T)))
    a("v_lshrrev_b32 %s, 5, v0" % v(T + 1))
    a("s_and_b32 %s, %s, 2" % (s(S_T0), s(S_J)))
    a("v_or_b32 %s, %s, %s" % (v(T + 1), s(S_T0), v(T + 1)))
    a("v_and_b32 %s, 3, v0" % v(T + 2))
    a("v_xor_b32 %s, %s, %s" % (v(T + 1), v(T + 1), v(T + 2)))
    a("v_lshl_add_u32 %s, %s, 4, %s" % (v(out), v(T + 1), v(T)))


def y_cols(a):
    a("s_mul_i32 %s, %s, 320" % (s(S_T0), s(S_UU)))
    a("s_add_u32 %s, %s, 1024" % (s(S_T0), s(S_T0)))
    a("s_and_b32 %s, %s, 1" % (s(S_T1), s(S_UU)))
    a("s_lshl_b32 %s, %s, 6" % (s(S_T1), s(S_T1)))
    a("s_add_u32 %s, %s, %s" % (s(S_COL0), s(S_T0), s(S_T1)))
    a("s_add_u32 %s, %s, 128" % (s(S_COL1), s(S_COL0)))
    a("s_cmp_eq_u32 %s, 0" % s(S_T1))
    a("s_cselect_b32 %s, 256, 0" % s(S_T1))
    a("s_add_u32 %s, %s, %s" % (s(S_COL2), s(S_T0), s(S_T1)))


def variant_addresses(a, var):
    T = V_T
    if var.typ == 'X':
        w_voffset_full(a, var.pitch, V_WVO)
        a("s_lshl_b32 %s, %s, 7" % (s(S_COL0), s(S_UU)))
        a("v_add_u32 %s, %s, %s" % (v(V_WVO), s(S_COL0), v(V_WVO)))
        if var.m == 0:
            a("v_add_u32 %s, 1024, %s" % (v(V_WVO + 1), v(V_WVO)))
            a("v_add_u32 %s, 2048, %s" % (v(V_WVO + 2), v(V_WVO)))
    else:
        y_cols(a)
        w_voffset_full(a, var.pitch, V_WVO)
        a("v_add_u32 %s, %s, %s" % (v(V_WVO + 1), s(S_COL1), v(V_WVO)))
        a("v_add_u32 %s, %s, %s" % (v(V_WVO), s(S_COL0), v(V_WVO)))
        if var.m == 1:
            w_voffset_g4(a, V_WVO + 2)
            a("v_add_u32 %s, %s, %s" % (v(V_WVO + 2), s(S_COL2), v(V_WVO + 2)))
    a("s_mul_i32 %s, %s, %d" % (s(S_KOFF), s(S_KOFF), 32 * var.pitch))


def halo_addresses(a):
    T = V_T
    if True:
        for hh in range(2):
            a("v_lshrrev_b32 %s, 3, v0" % v(T))
            if hh:
                a("v_add_u32 %s, 8, %s" % (v(T), v(T)))
            a("v_lshrrev_b32 %s, 1, %s" % (v(T + 1), v(T)))
            a("v_and_b32 %s, 7, v0" % v(T + 2))
            a("v_xor_b32 %s, %s, %s" % (v(T + 1), v(T + 1), v(T + 2)))
            a("s_lshl_b32 %s, %s, 7" % (s(S_T0), s(S_RB)))
            a("s_sub_u32 %s, %s, 16" % (s(S_T0), s(S_T0)))
            a("v_add_u32 %s, %s, %s" % (v(T), s(S_T0), v(T)))
            a("v_max_i32 %s, 0, %s" % (v(T), v(T)))
            a("v_lshlrev_b32 %s, 10, %s" % (v(T), v(T)))
            a("v_lshl_add_u32 %s, %s, 4, %s" % (v(T + 13 + hh), v(T + 1), v(T)))


def halo_issue(a):
    T = V_T
    a("s_lshr_b32 %s, %s, 11" % (s(S_T0), s(S_HK)))
    a("s_add_u32 %s, %s, %s" % (s(S_T0), s(S_T0), s(S_W)))
    a("s_and_b32 %s, %s, 7" % (s(S_T0), s(S_T0)))
    for hh in range(2):
        a("s_lshl_b32 %s, %s, 11" % (s(S_T1), s(S_T0)))
        a("s_add_u32 m0, %s, %d" % (s(S_T1), HALO + hh * 1024))
        a("s_lshl_b32 %s, %s, 7" % (s(S_T1), s(S_T0)))
        a("buffer_load_dwordx4 %s, %s, %s offen lds" % (v(T + 13 + hh), s(SRD_X, 4), s(S_T1)))


def frag_lane_addresses(a, var):
    T = V_T
    a("v_lshrrev_b32 %s, 3, v0" % v(T))
    a("v_lshrrev_b32 %s, 4, v0" % v(T + 1))
    a("v_and_b32 %s, 15, v0" % v(T + 5))
    a("v_lshrrev_b32 %s, 1, %s" % (v(T + 6), v(T + 5)))
    a("v_xor_b32 %s, %s, %s" % (v(T + 6), v(T + 6), v(T + 1)))
    a("v_lshlrev_b32 %s, 4, %s" % (v(T + 6), v(T + 6)))
    a("v_lshl_add_u32 %s, %s, 7, %s" % (v(T + 6), v(T + 5), v(T + 6)))
    if var.typ == 'X':
        a("v_add_u32 %s, %d, %s" % (v(V_HL), HALO, v(T + 6)))
        a("v_xor_b32 %s, 64, %s" % (v(V_HL + 1), v(V_HL)))
    a("v_add_u32 %s, %d, %s" % (v(V_XL), XRING + var.m * 8192, v(T + 6)))
    a("v_xor_b32 %s, 64, %s" % (v(V_XL + 1), v(V_XL)))
    a("v_bfe_u32 %s, v0, 2, 2" % v(T + 7))
    a("v_lshl_add_u32 %s, %s, 3, %s" % (v(T + 7), v(T + 1), v(T + 7)))
    a("v_and_b32 %s, 3, %s" % (v(T + 8), v(T)))
    a("v_xor_b32 %s, %s, %s" % (v(T + 8), s(S_J), v(T + 8)))
    a("v_lshlrev_b32 %s, 5, %s" % (v(T + 8), v(T + 8)))
    a("v_lshl_add_u32 %s, %s, 7, %s" % (v(T + 8), v(T + 7), v(T + 8)))
    a("v_and_b32 %s, 3, v0" % v(T + 9))
    a("v_lshl_add_u32 %s, %s, 3, %s" % (v(V_WL), v(T + 9), v(T + 8)))
    a("v_add_u32 %s, %d, %s" % (v(V_WL3), 3 * WSLOT, v(V_WL)))
    if var.typ == 'Y':
        a("v_and_b32 %s, 1, %s" % (v(T + 10), v(T + 1)))
        a("v_and_b32 %s, 2, %s" % (v(T + 11), v(T + 9)))
        a("v_or_b32 %s, %s, %s" % (v(T + 10), v(T + 10), v(T + 11)))
        a("v_xor_b32 %s, %s, %s" % (v(T + 10), s(S_J), v(T + 10)))
        a("v_lshlrev_b32 %s, 4, %s" % (v(T + 10), v(T + 10)))
        a("v_lshl_add_u32 %s, %s, 6, %s" % (v(T + 10), v(T + 7), v(T + 10)))
        a("v_lshl_add_u32 %s, %s, 10, %s" % (v(T + 10), v(T + 11), v(T + 10)))
        a("v_and_b32 %s, 1, %s" % (v(T + 11), v(T + 9)))
        a("v_lshl_add_u32 %s, %s, 3, %s" % (v(T + 10), v(T + 11), v(T + 10)))
        a("v_add_u32 %s, 16384, %s" % (v(V_WM), v(T + 10)))
        a("v_add_u32 %s, %d, %s" % (v(V_WM3), 3 * WSLOT, v(V_WM)))
    for i in range(4):
        a("v_mov_b32 %s, 0x3f803f80" % v(V_ONES + i))
    if var.m == 0:
        a("s_mul_i32 %s, %s, 20480" % (s(S_T0), s(S_CGI)))
        a("s_mul_i32 %s, %s, 1280" % (s(S_T1), s(S_RB)))
        a("s_add_u32 %s, %s, %s" % (s(S_T0), s(S_T0), s(S_T1)))
        a("s_lshl_b32 %s, %s, 6" % (s(S_T1), s(S_J)))
        a("s_add_u32 %s, %s, %s" % (s(S_T0), s(S_T0), s(S_T1)))
        a("s_add_u32 %s, %s, %d" % (s(S_T0), s(S_T0), WS_CSP))
        a("v_lshlrev_b32 %s, 4, %s" % (v(V_CSST), v(T + 1)))
        a("v_add_u32 %s, %s, %s" % (v(V_CSST), s(S_T0), v(V_CSST)))
        a("v_cmp_eq_u32 vcc, 0, %s" % v(T + 5))
        a("v_mov_b32 %s, 0x%x" % (v(T + 11), OOB))
        a("s_nop 0")
        a("v_cndmask_b32 %s, %s, %s, vcc" % (v(V_CSST), v(T + 11), v(V_CSST)))


def stats_compute(a):
    T = V_T
    A = T
    for i in range(4):
        a("v_lshlrev_b32 %s, 16, %s" % (v(A + 2 * i), v(V_CSP + i)))
        a("v_and_b32 %s, 0xffff0000, %s" % (v(A + 2 * i + 1), v(V_CSP + i)))
    R = T + 8
    a("v_add_f32 %s, %s, %s" % (v(R), v(A), v(A + 1)))
    a("v_add_f32 %s, %s, %s" % (v(R + 1), v(A + 2), v(A + 3)))
    a("v_add_f32 %s, %s, %s" % (v(R + 2), v(A + 4), v(A + 5)))
    a("v_add_f32 %s, %s, %s" % (v(R + 3), v(A + 6), v(A + 7)))
    a("v_add_f32 %s, %s, %s" % (v(R), v(R), v(R + 1)))
    a("v_add_f32 %s, %s, %s" % (v(R + 2), v(R + 2), v(R + 3)))
    a("v_add_f32 %s, %s, %s" % (v(R), v(R), v(R + 2)))
    a("s_nop 1")
    allreduce16(a, [R])
    allreduce_rows(a, R, R + 1)
    a("v_mul_f32 %s, %s, %s" % (v(R), hexf(1.0 / 512), v(R)))
    for i in range(8):
        a("v_sub_f32 %s, %s, %s" % (v(A + i), v(A + i), v(R)))
    a("v_mul_f32 %s, %s, %s" % (v(R + 1), v(A), v(A)))
    a("v_mul_f32 %s, %s, %s" % (v(R + 2), v(A + 1), v(A + 1)))
    for i in range(2, 8, 2):
        a("v_fmac_f32 %s, %s, %s" % (v(R + 1), v(A + i), v(A + i)))
        a("v_fmac_f32 %s, %s, %s" % (v(R + 2), v(A + i + 1), v(A + i + 1)))
    a("v_add_f32 %s, %s, %s" % (v(R + 1), v(R + 1), v(R + 2)))
    a("s_nop 1")
    allreduce16(a, [R + 1])
    allreduce_rows(a, R + 1, R + 2)
    a("v_mov_b32 %s, %s" % (v(R + 2), hexf(1e-5)))
    a("v_fmac_f32 %s, %s, %s" % (v(R + 2), hexf(1.0 / 512), v(R + 1)))
    a("v_rsq_f32 %s, %s" % (v(R + 1), v(R + 2)))
    a("s_lshl_b32 %s, %s, 3" % (s(S_T0), s(S_CGI)))
    a("s_add_u32 %s, %s, %s" % (s(S_T0), s(S_T0), s(S_W)))
    a("s_lshl_b32 %s, %s, 7" % (s(S_T1), s(S_RB)))
    a("s_add_u32 %s, %s, %s" % (s(S_T0), s(S_T0), s(S_T1)))
    a("s_lshl_b32 %s, %s, 3" % (s(S_T0), s(S_T0)))
    a("s_add_u32 %s, %s, %d" % (s(S_T0), s(S_T0), WS_STATS))
    a("v_mov_b32 %s, 0x%x" % (v(R + 2), OOB))
    a("v_writelane_b32 %s, %s, 0" % (v(R + 2), s(S_T0)))
    a("s_nop 1")
    a("buffer_store_dwordx2 %s, %s, %s, 0 offen sc1" % (v(R, 2), v(R + 2), s(SRD_WS, 4)))


def tail_loads():
    T = V_T
    g = []
    g.append("s_mul_i32 %s, %s, 20480" % (s(S_T0), s(S_CGI)))
    g.append("s_lshl_b32 %s, %s, 6" % (s(S_T1), s(S_W)))
    g.append("s_add_u32 %s, %s, %s" % (s(S_T0), s(S_T0), s(S_T1)))
    g.append("s_add_u32 %s, %s, %d" % (s(S_T0), s(S_T0), WS_CSP))
    g.append("v_and_b32 %s, 15, v0" % v(T))
    g.append("v_mul_u32_u24 %s, 1280, %s" % (v(T), v(T)))
    g.append("v_lshrrev_b32 %s, 4, v0" % v(T + 1))
    g.append("v_lshl_add_u32 %s, %s, 4, %s" % (v(T), v(T + 1), v(T)))
    g.append("v_add_u32 %s, %s, %s" % (v(T), s(S_T0), v(T)))
    g.append("buffer_load_dwordx4 %s, %s, %s, 0 offen sc1" % (v(V_CSP, 4), v(T), s(SRD_WS, 4)))
    g.append("buffer_load_dwordx4 %s, %s, %s, 0 offen offset:512 sc1" % (v(V_CSP + 4, 4), v(T), s(SRD_WS, 4)))
    g.append("buffer_load_dwordx4 %s, %s, %s, 0 offen offset:1024 sc1" % (v(V_CSP + 8, 4), v(T), s(SRD_WS, 4)))
    g.append("s_lshl_b32 %s, %s, 6" % (s(S_T0), s(S_W)))
    g.append("s_lshl_b32 %s, %s, 7" % (s(S_T1), s(S_RB)))
    g.append("s_add_u32 %s, %s, %s" % (s(S_T0), s(S_T0), s(S_T1)))
    g.append("s_sub_u32 %s, %s, 16" % (s(S_T0), s(S_T0)))
    g.append("v_add_u32 %s, %s, v0" % (v(T + 2), s(S_T0)))
    g.append("v_max_i32 %s, 0, %s" % (v(T + 2), v(T + 2)))
    g.append("v_min_i32 %s, 2047, %s" % (v(T + 2), v(T + 2)))
    g.append("v_lshlrev_b32 %s, 3, %s" % (v(T + 2), v(T + 2)))
    g.append("v_add_u32 %s, %d, %s" % (v(T + 2), WS_STATS, v(T + 2)))
    g.append("buffer_load_dwordx2 %s, %s, %s, 0 offen sc1" % (v(V_STAT, 2), v(T + 2), s(SRD_WS, 4)))
    return g


def k2_setup_fillers():
    T = V_T + 4
    g = []
    g.append("s_mov_b32 %s, 0x%x" % (s(S_T0), 512 * 1024))
    g.append("s_mov_b32 %s, 0x%x" % (s(S_T1), 1792 * 1024))
    g.append("\n".join([
        "s_cmp_eq_u32 %s, 0" % s(S_M),
        "s_cselect_b32 %s, %s, %s" % (s(R_W), s(S_WO), s(S_WD)),
        "s_cselect_b32 %s, %s, %s" % (s(R_W + 1), s(S_WO + 1), s(S_WD + 1)),
        "s_cselect_b32 %s, 0, %d" % (s(S2_WROW), 20 * 32768),
        "s_cselect_b32 %s, %s, %s" % (s(R_W + 2), s(S_T0), s(S_T1))]))
    g.append("s_and_b32 %s, %s, 0xffff" % (s(R_W + 1), s(R_W + 1)))
    g.append("s_mov_b32 %s, 0x20000" % s(R_W + 3))
    g.append("s_lshl_b32 %s, %s, 12" % (s(S2_M0B), s(S_M)))
    g.append("s_lshl_b32 %s, %s, 10" % (s(S_T0), s(S_J)))
    g.append("s_add_u32 %s, %s, %s" % (s(S2_M0B), s(S2_M0B), s(S_T0)))
    g.append("v_lshrrev_b32 %s, 3, v0" % v(T))
    g.append("s_lshl_b32 %s, %s, 3" % (s(S_T0), s(S_J)))
    g.append("v_add_u32 %s, %s, %s" % (v(T), s(S_T0), v(T)))
    g.append("v_lshlrev_b32 %s, 10, %s" % (v(T), v(T)))
    g.append("v_bfe_u32 %s, v0, 4, 1" % v(T + 1))
    g.append("s_and_b32 %s, %s, 1" % (s(S_T0), s(S_J)))
    g.append("s_lshl_b32 %s, %s, 1" % (s(S_T0), s(S_T0)))
    g.append("v_or_b32 %s, %s, %s" % (v(T + 1), s(S_T0), v(T + 1)))
    g.append("v_bfe_u32 %s, v0, 1, 2" % v(T + 2))
    g.append("v_xor_b32 %s, %s, %s" % (v(T + 1), v(T + 1), v(T + 2)))
    g.append("v_lshl_add_u32 %s, %s, 5, %s" % (v(T), v(T + 1), v(T)))
    g.append("v_and_b32 %s, 1, v0" % v(T + 2))
    g.append("v_lshl_add_u32 %s, %s, 4, %s" % (v(T), v(T + 2), v(T)))
    g.append("s_lshl_b32 %s, %s, 7" % (s(S_T0), s(S2_CG2)))
    g.append("v_add_u32 %s, %s, %s" % (v(V_W2VO), s(S_T0), v(T)))
    return g


def touch_fillers():
    T = V_T + 8
    g = []
    g.append("s_and_b32 %s, %s, 3" % (s(S_T0), s(S2_TG)))
    g.append("s_lshl_b32 %s, %s, 2" % (s(S_T0), s(S_T0)))
    g.append("s_add_u32 %s, %s, %s" % (s(S_T0), s(S_T0), s(S_J)))
    g.append("s_mul_i32 %s, %s, 44" % (s(S_T0), s(S_T0)))
    g.append("s_mul_i32 %s, %s, 1088" % (s(S_T1), s(S_M)))
    g.append("s_add_u32 %s, %s, %s" % (s(S_T0), s(S_T0), s(S_T1)))
    g.append("v_min_u32 %s, 43, v0" % v(T))
    g.append("v_add_u32 %s, %s, %s" % (v(T), s(S_T0), v(T)))
    g.append("v_lshlrev_b32 %s, 10, %s" % (v(T), v(T)))
    g.append("s_lshl_b32 %s, %s, 7" % (s(S_T0), s(S2_CG2)))
    g.append("v_add_u32 %s, %s, %s" % (v(T), s(S_T0), v(T)))
    g.append("s_mov_b32 %s, %s" % (s(SRD_U), s(S_WD)))
    g.append("s_and_b32 %s, %s, 0xffff" % (s(SRD_U + 1), s(S_WD + 1)))
    g.append("s_mov_b32 %s, 0x%x" % (s(SRD_U + 2), 1792 * 1024))
    g.append("s_mov_b32 %s, 0x20000" % s(SRD_U + 3))
    g.append("buffer_load_dword %s, %s, %s, 0 offen" % (v(V_DUMMY), v(T), s(SRD_U, 4)))
    return g


def bias_fillers(var):
    T = V_T + 12
    g = []
    g.append("v_and_b32 %s, 15, v0" % v(T))
    g.append("v_lshrrev_b32 %s, 4, v0" % v(T + 1))
    g.append("v_lshlrev_b32 %s, 2, %s" % (v(T + 1), v(T + 1)))
    g.append("v_sub_u32 %s, %s, %s" % (v(T + 2), v(T), v(T + 1)))
    g.append("v_mov_b32 %s, %s" % (v(T + 3), hexf(-1e30)))
    for r in range(4):
        g.append("v_subrev_u32 %s, %d, %s" % (v(T + 4), r, v(T + 2)))
        g.append("v_and_b32 %s, 0x80000001, %s" % (v(T + 5), v(T + 4)))
        g.append("v_sub_u32 %s, -2, %s" % (v(T + 4), v(T + 4)))
        g.append("v_cmp_eq_u32 vcc, 0, %s" % v(T + 5))
        g.append("v_and_b32 %s, 0x80000001, %s" % (v(T + 4), v(T + 4)))
        g.append("s_nop 0")
        g.append("v_cndmask_b32_e64 %s, %s, 0, vcc" % (v(BC + r), v(T + 3)))
        g.append("v_cmp_eq_u32 vcc, 0, %s" % v(T + 4))
        g.append("s_nop 1")
        g.append("v_cndmask_b32_e64 %s, %s, 0, vcc" % (v(BP + r), v(T + 3)))
    if var.m == 0:
        g.append("s_cmp_eq_u32 %s, 0" % s(S_RB))
        g.append("s_cselect_b64 vcc, -1, 0")
        g.append("s_nop 0")
        for r in range(4):
            g.append("v_cndmask_b32 %s, %s, %s, vcc" % (v(BP0 + r), v(BP + r), v(T + 3)))
    else:
        for r in range(4):
            g.append("v_mov_b32 %s, %s" % (v(BP0 + r), v(BP + r)))
    return g


def tail_reduce():
    g = []
    regs = [V_CSP + i for i in range(12)]
    for ror in (8, 4, 2, 1):
        for r in regs:
            g.append("v_add_f32_dpp %s, %s, %s row_ror:%d row_mask:0xf bank_mask:0xf" % (v(r), v(r), v(r), ror))
    return g


V_CSW, V_CSW3, V_STW = 32, 33, 34


def publish_addr():
    T = V_T + 4
    g = []
    g.append("v_lshlrev_b32 %s, 4, v0" % v(T))
    g.append("v_add_u32 %s, %d, %s" % (v(T), LB + O_XBUF, v(T)))
    g.append("v_and_b32 %s, 48, v0" % v(T + 1))
    g.append("s_lshl_b32 %s, %s, 6" % (s(S_T0), s(S_W)))
    g.append("s_add_u32 %s, %s, %d" % (s(S_T0), s(S_T0), LB + O_CS))
    g.append("v_add_u32 %s, %s, %s" % (v(T + 1), s(S_T0), v(T + 1)))
    g.append("v_and_b32 %s, 15, v0" % v(T + 2))
    g.append("v_cmp_eq_u32 vcc, 0, %s" % v(T + 2))
    g.append("s_lshl_b32 %s, %s, 6" % (s(S_T1), s(S_W)))
    g.append("v_add_u32 %s, %s, v0" % (v(T + 3), s(S_T1)))
    g.append("v_cndmask_b32 %s, %s, %s, vcc" % (v(V_CSW), v(T), v(T + 1)))
    g.append("s_cmp_lt_u32 %s, 4\ns_cselect_b64 %s, vcc, 0" % (s(S_W), s(S_EX, 2)))
    g.append("v_add_u32 %s, 1024, %s" % (v(T + 1), v(T + 1)))
    g.append("v_cndmask_b32 %s, %s, %s, %s" % (v(V_CSW3), v(T), v(T + 1), s(S_EX, 2)))
    g.append("v_cmp_gt_u32 vcc, 144, %s" % v(T + 3))
    g.append("v_lshlrev_b32 %s, 2, %s" % (v(T + 3), v(T + 3)))
    g.append("v_add_u32 %s, %d, %s" % (v(T + 3), LB, v(T + 3)))
    g.append("s_nop 0")
    g.append("v_cndmask_b32 %s, %s, %s, vcc" % (v(V_STW), v(T), v(T + 3)))
    return g


def publish_writes():
    return ["ds_write_b128 %s, %s" % (v(V_CSW), v(V_CSP, 4)),
            "ds_write_b128 %s, %s offset:512" % (v(V_CSW), v(V_CSP + 4, 4)),
            "ds_write_b128 %s, %s" % (v(V_CSW3), v(V_CSP + 8, 4)),
            "ds_write_b32 %s, %s offset:%d" % (v(V_STW), v(V_STAT), O_MEAN),
            "ds_write_b32 %s, %s offset:%d" % (v(V_STW), v(V_STAT + 1), O_RSTD)]


class BG:
    def __init__(self, a, groups):
        self.a = a
        self.groups = list(groups)

    def tick(self, n=1):
        for _ in range(n):
            if self.groups:
                for t in self.groups.pop(0):
                    self.a(t)

    def flush(self):
        self.tick(len(self.groups))


def w2_load_group(tile):
    adv = ["s_add_u32 %s, %s, 32768" % (s(S2_WROW), s(S2_WROW))]
    pre = "s_add_u32 m0, %s, %d" % (s(S2_M0B), (tile % NTILE2) * TILE2)
    ld = "buffer_load_dwordx4 %s, %s, %s offen lds" % (v(V_W2VO), s(R_W, 4), s(S2_WROW))
    if tile == 15:
        adv = "\n".join([
            "s_add_u32 %s, %s, 32768" % (s(S2_WROW), s(S2_WROW)),
            "s_cmp_eq_u32 %s, 0" % s(S_M),
            "s_cselect_b32 %s, 0, %s" % (s(S2_WROW), s(S2_WROW)),
            "s_mov_b32 %s, %s" % (s(R_W), s(S_WD)),
            "s_and_b32 %s, %s, 0xffff" % (s(R_W + 1), s(S_WD + 1)),
            "s_mov_b32 %s, 0x%x" % (s(R_W + 2), 1792 * 1024),
            "s_mov_b32 %s, 0x20000" % s(R_W + 3)])
        return [pre, "s_nop 0", ld, adv]
    return [pre, "s_nop 0", ld, adv[0]]


S_C0 = 64


def gelu_tile(a, G, U, mt, rt, csg, csu, tmp, out, vc1):
    H = (0, 2)
    for h in H:
        a(pk("fma", G + h, [('b', mt), ('p', csg + h), ('p', G + h)], neg=[1, 0, 0]))
    for h in H:
        a(pk("fma", U + h, [('b', mt), ('p', csu + h), ('p', U + h)], neg=[1, 0, 0]))
    for h in H:
        a(pk("mul", G + h, [('b', rt), ('p', G + h)]))
    for h in H:
        a(pk("mul", U + h, [('b', rt), ('p', U + h)]))
    for h in H:
        a(pk("mul", tmp + h, [('p', G + h), ('p', G + h)]))
    for h in H:
        a(pk("fma", tmp + h, [('p', tmp + h), ('b', vc1), ('s', S_C0)]))
    for h in H:
        a(pk("mul", tmp + h, [('p', tmp + h), ('p', G + h)]))
    for r in range(4):
        a("v_exp_f32 %s, %s" % (v(tmp + r), v(tmp + r)))
    for h in H:
        a(pk("mul", U + h, [('p', G + h), ('p', U + h)]))
    for h in H:
        a(pk("add", tmp + h, [('p', tmp + h), ('c', "1.0")]))
    for r in range(4):
        a("v_rcp_f32 %s, %s" % (v(tmp + r), v(tmp + r)))
    a("s_nop 0")
    for h in H:
        a(pk("mul", U + h, [('p', tmp + h), ('p', U + h)]))
    a("v_cvt_pk_bf16_f32 %s, %s, %s" % (v(out), v(U), v(U + 1)))
    a("v_cvt_pk_bf16_f32 %s, %s, %s" % (v(out + 1), v(U + 2), v(U + 3)))


def gelu_tiles2(a, tiles, tmp, vc1):
    H = (0, 2)
    T = [tmp, tmp + 4]
    for (G, U, mt, rt, csg, csu, out) in tiles:
        for h in H:
            a(pk("fma", G + h, [('b', mt), ('p', csg + h), ('p', G + h)], neg=[1, 0, 0]))
    for (G, U, mt, rt, csg, csu, out) in tiles:
        for h in H:
            a(pk("mul", G + h, [('b', rt), ('p', G + h)]))
    for i, (G, U, mt, rt, csg, csu, out) in enumerate(tiles):
        for h in H:
            a(pk("mul", T[i] + h, [('p', G + h), ('p', G + h)]))
    for (G, U, mt, rt, csg, csu, out) in tiles:
        for h in H:
            a(pk("fma", U + h, [('b', mt), ('p', csu + h), ('p', U + h)], neg=[1, 0, 0]))
    for i, (G, U, mt, rt, csg, csu, out) in enumerate(tiles):
        for h in H:
            a(pk("fma", T[i] + h, [('p', T[i] + h), ('b', vc1), ('s', S_C0)]))
    for (G, U, mt, rt, csg, csu, out) in tiles:
        for h in H:
            a(pk("mul", U + h, [('b', rt), ('p', U + h)]))
    for i, (G, U, mt, rt, csg, csu, out) in enumerate(tiles):
        for h in H:
            a(pk("mul", T[i] + h, [('p', T[i] + h), ('p', G + h)]))
    for i in range(len(tiles)):
        for r in range(4):
            a("v_exp_f32 %s, %s" % (v(T[i] + r), v(T[i] + r)))
    for (G, U, mt, rt, csg, csu, out) in tiles:
        for h in H:
            a(pk("mul", U + h, [('p', G + h), ('p', U + h)]))
    for i in range(len(tiles)):
        for h in H:
            a(pk("add", T[i] + h, [('p', T[i] + h), ('c', "1.0")]))
    for i in range(len(tiles)):
        for r in range(4):
            a("v_rcp_f32 %s, %s" % (v(T[i] + r), v(T[i] + r)))
    a("s_nop 0")
    for i, (G, U, mt, rt, csg, csu, out) in enumerate(tiles):
        for h in H:
            a(pk("mul", U + h, [('p', T[i] + h), ('p', U + h)]))
    for (G, U, mt, rt, csg, csu, out) in tiles:
        a("v_cvt_pk_bf16_f32 %s, %s, %s" % (v(out), v(U), v(U + 1)))
        a("v_cvt_pk_bf16_f32 %s, %s, %s" % (v(out + 1), v(U + 2), v(U + 3)))


def norm_ct(a, A, mt, rt, cs, out):
    for h in (0, 2):
        a(pk("fma", A + h, [('b', mt), ('p', cs + h), ('p', A + h)], neg=[1, 0, 0]))
    for h in (0, 2):
        a(pk("mul", A + h, [('b', rt), ('p', A + h)]))
    a("v_cvt_pk_bf16_f32 %s, %s, %s" % (v(out), v(A), v(A + 1)))
    a("v_cvt_pk_bf16_f32 %s, %s, %s" % (v(out + 1), v(A + 2), v(A + 3)))


def norm_ct4(a, As, mts, rts, cs, outs):
    for A, mt in zip(As, mts):
        for h in (0, 2):
            a(pk("fma", A + h, [('b', mt), ('p', cs + h), ('p', A + h)], neg=[1, 0, 0]))
    for A, rt in zip(As, rts):
        for h in (0, 2):
            a(pk("mul", A + h, [('b', rt), ('p', A + h)]))
    for A, out in zip(As, outs):
        a("v_cvt_pk_bf16_f32 %s, %s, %s" % (v(out), v(A), v(A + 1)))
        a("v_cvt_pk_bf16_f32 %s, %s, %s" % (v(out + 1), v(A + 2), v(A + 3)))


def norm_v(a, A, mv, rv, csv, out):
    for h in (0, 2):
        a(pk("fma", A + h, [('p', mv + h), ('b', csv), ('p', A + h)], neg=[1, 0, 0]))
    for h in (0, 2):
        a(pk("mul", A + h, [('p', rv + h), ('p', A + h)]))
    a("v_cvt_pk_bf16_f32 %s, %s, %s" % (v(out), v(A), v(A + 1)))
    a("v_cvt_pk_bf16_f32 %s, %s, %s" % (v(out + 1), v(A + 2), v(A + 3)))


def act_store_pairs(a, P, vaddr):
    a("s_nop 1")
    a("v_permlane16_swap_b32 %s, %s" % (v(P), v(P + 2)))
    a("v_permlane16_swap_b32 %s, %s" % (v(P + 1), v(P + 3)))
    a("v_permlane16_swap_b32 %s, %s" % (v(P + 4), v(P + 6)))
    a("v_permlane16_swap_b32 %s, %s" % (v(P + 5), v(P + 7)))
    a("s_mov_b32 %s, %d" % (s(S_T3), 2 * ACT_T))
    a("buffer_store_dwordx4 %s, %s, %s, 0 offen %s" % (v(P, 4), v(vaddr), s(SRD_WS, 4), Cfg.sc))
    a("buffer_store_dwordx4 %s, %s, %s, %s offen %s" % (v(P + 4, 4), v(vaddr), s(SRD_WS, 4), s(S_T3), Cfg.sc))


def act_addr_base(a, vout, T, m):
    a("v_bfe_u32 %s, v0, 4, 1" % v(T + 1))
    a("s_lshl_b32 %s, %s, 3" % (s(S_T0), s(S_RB)))
    a("s_add_u32 %s, %s, %d" % (s(S_T0), s(S_T0), 4 * m))
    a("v_add_u32 %s, %s, %s" % (v(T + 1), s(S_T0), v(T + 1)))
    a("v_mul_u32_u24 %s, %d, %s" % (v(T + 1), ACT_T, v(T + 1)))
    a("v_lshrrev_b32 %s, 5, v0" % v(T))
    a("v_lshl_add_u32 %s, %s, 8, %s" % (v(T + 1), v(T), v(T + 1)))
    a("v_and_b32 %s, 15, v0" % v(T))
    a("v_lshl_add_u32 %s, %s, 4, %s" % (v(vout), v(T), v(T + 1)))


def lane_mask(fn):
    m = 0
    for l in range(64):
        if fn(l & 15, l >> 4):
            m |= 1 << l
    return m


def smov64(a, reg, val):
    a("s_mov_b32 %s, 0x%x" % (s(reg), val & 0xffffffff))
    a("s_mov_b32 %s, 0x%x" % (s(reg + 1), val >> 32))


M_PAR, M_CA, M_CB, M_FA, M_FB = 28, 30, 36, 38, 52


def epilogue_x(a, var, bg):
    m = var.m
    MT, RT = 48, 52
    MH, RH = 56, 57
    CSQ, CSK, CSG, CSU = 60, 64, 68, 72
    CSV = 58
    MV, RV = 76, 92
    MVH, RVH = 108, 112
    KP = 116
    VP = 212
    QP = 222
    MK = 232
    HP = 244
    RQ = 252
    TMP = 20
    A_I16, A_G16 = 10, 11
    V_C1 = 12
    V_AO, V_AHH = 13, 14
    a.comment("---- X epilogue m=%d ----" % m)
    stamp(a, 3, "st_epi")
    a("v_and_b32 %s, 15, v0" % v(TMP))
    a("v_lshlrev_b32 %s, 2, %s" % (v(A_I16), v(TMP)))
    a("v_add_u32 %s, %d, %s" % (v(A_I16), LB, v(A_I16)))
    a("v_and_b32 %s, 48, v0" % v(A_G16))
    a("v_add_u32 %s, %d, %s" % (v(A_G16), LB, v(A_G16)))
    base = (16 + 64 * m) * 4
    a("s_lshl_b32 %s, %s, 6" % (s(S_T0), s(S_J)))
    a("v_add_u32 %s, %s, %s" % (v(TMP + 2), s(S_T0), v(A_G16)))
    a("v_add_u32 %s, %s, %s" % (v(TMP + 3), s(S_T0), v(A_I16)))
    a("ds_read_b128 %s, %s offset:%d" % (v(CSK, 4), v(TMP + 2), O_CS + 256))
    for t in range(4):
        a("ds_read_b32 %s, %s offset:%d" % (v(MT + t), v(A_I16), O_MEAN + base + t * 64))
        a("ds_read_b32 %s, %s offset:%d" % (v(RT + t), v(A_I16), O_RSTD + base + t * 64))
    a("ds_read_b32 %s, %s offset:%d" % (v(CSV), v(TMP + 3), O_CS + 512))
    a("ds_read_b128 %s, %s offset:%d" % (v(MV + 12, 4), v(A_G16), O_MEAN + base + 3 * 64))
    a("ds_read_b128 %s, %s offset:%d" % (v(RV + 12, 4), v(A_G16), O_RSTD + base + 3 * 64))
    if m == 0:
        a("ds_read_b32 %s, %s offset:%d" % (v(MH), v(A_I16), O_MEAN))
        a("ds_read_b32 %s, %s offset:%d" % (v(RH), v(A_I16), O_RSTD))
    else:
        a("ds_read_b128 %s, %s offset:%d" % (v(MVH, 4), v(A_G16), O_MEAN))
        a("ds_read_b128 %s, %s offset:%d" % (v(RVH, 4), v(A_G16), O_RSTD))
    a("v_mov_b32 %s, %s" % (v(V_C1), hexf(C1)))
    a("s_mov_b32 %s, %s" % (s(S_C0), hexf(C0)))
    par = lane_mask(lambda i, g: i & 1)
    ca = lane_mask(lambda i, g: 4 * g + (i & 1) <= i)
    cb = lane_mask(lambda i, g: 4 * g + (i & 1) + 2 <= i)
    smov64(a, M_PAR, par)
    smov64(a, M_CA, ca)
    smov64(a, M_CB, cb)
    if m == 0:
        a("s_cmp_eq_u32 %s, 0" % s(S_RB))
        a("s_cselect_b32 %s, -1, 0" % s(S_T0))
        a("s_andn2_b32 %s, %s, %s" % (s(M_FA), s(S_T0), s(M_CA)))
        a("s_andn2_b32 %s, %s, %s" % (s(M_FA + 1), s(S_T0), s(M_CA + 1)))
        a("s_andn2_b32 %s, %s, %s" % (s(M_FB), s(S_T0), s(M_CB)))
        a("s_andn2_b32 %s, %s, %s" % (s(M_FB + 1), s(S_T0), s(M_CB + 1)))
    a("v_mov_b32 %s, 0xffff" % v(TMP + 5))
    a("v_mov_b32 %s, 0xffff0000" % v(TMP + 6))
    a("v_cndmask_b32 %s, %s, %s, %s" % (v(TMP + 5), v(TMP + 5), v(TMP + 6), s(M_PAR, 2)))
    a("v_cndmask_b32 %s, %s, 0, %s" % (v(MK), v(TMP + 5), s(M_CA, 2)))
    a("v_cndmask_b32 %s, %s, 0, %s" % (v(MK + 1), v(TMP + 5), s(M_CB, 2)))
    a("v_cndmask_b32 %s, 0, %s, %s" % (v(MK + 2), v(TMP + 5), s(M_CA, 2)))
    a("v_cndmask_b32 %s, 0, %s, %s" % (v(MK + 3), v(TMP + 5), s(M_CB, 2)))
    a("s_mul_i32 %s, %s, 1536" % (s(S_T0), s(S_J)))
    a("s_add_u32 %s, %s, %d" % (s(S_T0), s(S_T0), LB))
    a("v_lshlrev_b32 %s, 3, v0" % v(TMP + 4))
    a("v_add_u32 %s, %s, %s" % (v(TMP + 4), s(S_T0), v(TMP + 4)))
    bg.tick()
    a("s_waitcnt lgkmcnt(0)")
    stamp(a, 4, "st_epi")
    for t in range(3):
        a("ds_read_b128 %s, %s offset:%d" % (v(MV + 4 * t, 4), v(A_G16), O_MEAN + base + t * 64))
        a("ds_read_b128 %s, %s offset:%d" % (v(RV + 4 * t, 4), v(A_G16), O_RSTD + base + t * 64))
    a("ds_read_b128 %s, %s offset:%d" % (v(CSG, 4), v(TMP + 2), O_CS + 768))
    a("ds_read_b128 %s, %s offset:%d" % (v(CSU, 4), v(TMP + 2), O_CS + 1024))
    a("ds_read_b128 %s, %s offset:%d" % (v(CSQ, 4), v(TMP + 2), O_CS))
    if m == 0:
        norm_ct(a, ACC(1, 3), MT + 3, RT + 3, CSK, KP + 8)
        norm_v(a, ACC(2, 3), MV + 12, RV + 12, CSV, VP + 8)
        a("ds_write_b64 %s, %s offset:%d" % (v(TMP + 4), v(KP + 8, 2), O_XBUF))
        a("ds_write_b64 %s, %s offset:%d" % (v(TMP + 4), v(VP + 8, 2), O_XBUF + 512))
        norm_ct4(a, [ACC(1, t) for t in range(3)] + [V_AH], [MT + t for t in range(3)] + [MH],
                 [RT + t for t in range(3)] + [RH], CSK, [KP + 2 + 2 * t for t in range(3)] + [KP])
    else:
        norm_v(a, V_AH, MVH, RVH, CSV, VP)
        a("ds_write_b64 %s, %s offset:%d" % (v(TMP + 4), v(VP, 2), O_XBUF + 1024))
        norm_ct4(a, [ACC(1, t) for t in range(4)], [MT + t for t in range(4)], [RT + t for t in range(4)], CSK,
                 [KP + 2 + 2 * t for t in range(4)])
        norm_v(a, ACC(2, 3), MV + 12, RV + 12, CSV, VP + 8)
    bg.tick()
    a("s_waitcnt lgkmcnt(0)")
    stamp(a, 5, "st_epi")
    for t0 in (0, 2):
        gelu_tiles2(a, [(ACC(3, t), ACC(4, t), MT + t, RT + t, CSG, CSU, HP + 2 * t) for t in (t0, t0 + 1)], TMP + 8, V_C1)
        bg.tick(2)
    act_addr_base(a, V_AO, TMP + 6, m)
    a("s_lshl_b32 %s, %s, 11" % (s(S_T0), s(S_UU)))
    a("s_lshl_b32 %s, %s, 9" % (s(S_T1), s(S_J)))
    a("s_add_u32 %s, %s, %s" % (s(S_T0), s(S_T0), s(S_T1)))
    a("v_add_u32 %s, %s, %s" % (v(V_AO), s(S_T0), v(V_AO)))
    a("v_add_u32 %s, %d, %s" % (v(V_AHH), 16 * 1024, v(V_AO)))
    act_store_pairs(a, HP, V_AHH)
    stamp(a, 6, "st_epi")
    a("s_barrier")
    stamp(a, 7, "st_epi")
    if m == 0:
        a("ds_read_b64 %s, %s offset:%d" % (v(VP, 2), v(TMP + 4), O_XBUF + 1024))
    else:
        a("ds_read_b64 %s, %s offset:%d" % (v(KP, 2), v(TMP + 4), O_XBUF))
        a("ds_read_b64 %s, %s offset:%d" % (v(VP, 2), v(TMP + 4), O_XBUF + 512))
    for t in range(3):
        norm_v(a, ACC(2, t), MV + 4 * t, RV + 4 * t, CSV, VP + 2 + 2 * t)
    for t in range(4):
        a("v_mul_f32 %s, %s, %s" % (v(RQ + t), hexf(0.25 * LOG2E), v(RT + t)))
    norm_ct4(a, [ACC(0, t) for t in range(4)], [MT + t for t in range(4)], [RQ + t for t in range(4)], CSQ,
             [QP + 2 * t for t in range(4)])
    bg.tick(2)
    S0 = lambda t: ACC(0, t)
    S1 = lambda t: ACC(1, t)
    PP = lambda t: ACC(2, t)
    a("s_waitcnt lgkmcnt(0)")
    for t in range(4):
        a("v_mfma_f32_16x16x16_bf16 %s, %s, %s, 0" % (v(S1(t), 4), v(KP + 2 + 2 * t, 2), v(QP + 2 * t, 2)))
        a("v_mfma_f32_16x16x16_bf16 %s, %s, %s, 0" % (v(S0(t), 4), v(KP + 2 * t, 2), v(QP + 2 * t, 2)))
    bg.tick(2)
    a("v_mov_b32 %s, %s" % (v(TMP + 8), hexf(-1e30)))
    a("s_nop 4")
    stamp(a, 8, "st_epi")
    AB = lambda t: ACC(3, t)
    for t in range(4):
        a("v_cndmask_b32 %s, %s, %s, %s" % (v(AB(t)), v(S1(t)), v(S1(t) + 1), s(M_PAR, 2)))
        a("v_cndmask_b32 %s, %s, %s, %s" % (v(AB(t) + 1), v(S1(t) + 2), v(S1(t) + 3), s(M_PAR, 2)))
    for t in range(4):
        a("v_cndmask_b32 %s, %s, %s, %s" % (v(AB(t) + 2), v(S0(t)), v(S0(t) + 1), s(M_PAR, 2)))
        a("v_cndmask_b32 %s, %s, %s, %s" % (v(AB(t) + 3), v(S0(t) + 2), v(S0(t) + 3), s(M_PAR, 2)))
    for t in range(4):
        a("v_cndmask_b32 %s, %s, %s, %s" % (v(AB(t)), v(AB(t) + 2), v(AB(t)), s(M_CA, 2)))
        a("v_cndmask_b32 %s, %s, %s, %s" % (v(AB(t) + 1), v(AB(t) + 3), v(AB(t) + 1), s(M_CB, 2)))
    if m == 0:
        a("v_cndmask_b32 %s, %s, %s, %s" % (v(AB(0)), v(AB(0)), v(TMP + 8), s(M_FA, 2)))
        a("v_cndmask_b32 %s, %s, %s, %s" % (v(AB(0) + 1), v(AB(0) + 1), v(TMP + 8), s(M_FB, 2)))
    MX = TMP
    TT = TMP + 4
    for t in range(4):
        a("v_max_f32 %s, %s, %s" % (v(MX + t), v(AB(t)), v(AB(t) + 1)))
    for swap in ("v_permlane16_swap_b32", "v_permlane32_swap_b32"):
        for t in range(4):
            a("v_mov_b32 %s, %s" % (v(TT + t), v(MX + t)))
        for t in range(4):
            a("%s %s, %s" % (swap, v(MX + t), v(TT + t)))
        for t in range(4):
            a("v_max_f32 %s, %s, %s" % (v(MX + t), v(MX + t), v(TT + t)))
    for t in range(4):
        a(pk("add", AB(t), [('p', AB(t)), ('b', MX + t)], neg=[0, 1]))
    for t in range(4):
        a("v_exp_f32 %s, %s" % (v(AB(t)), v(AB(t))))
        a("v_exp_f32 %s, %s" % (v(AB(t) + 1), v(AB(t) + 1)))
    bg.tick(2)
    for t in range(4):
        a("v_cvt_pk_bf16_f32 %s, %s, %s" % (v(AB(t) + 2), v(AB(t)), v(AB(t))))
        a("v_cvt_pk_bf16_f32 %s, %s, %s" % (v(AB(t) + 3), v(AB(t) + 1), v(AB(t) + 1)))
    for t in range(4):
        a("v_and_b32 %s, %s, %s" % (v(PP(t)), v(AB(t) + 2), v(MK)))
        a("v_and_b32 %s, %s, %s" % (v(PP(t) + 1), v(AB(t) + 3), v(MK + 1)))
        a("v_and_b32 %s, %s, %s" % (v(PP(t) + 2), v(AB(t) + 2), v(MK + 2)))
        a("v_and_b32 %s, %s, %s" % (v(PP(t) + 3), v(AB(t) + 3), v(MK + 3)))
    stamp(a, 9, "st_epi")
    a("s_nop 1")
    for t in range(4):
        a("v_mfma_f32_16x16x32_bf16 %s, %s, %s, 0" % (v(S1(t), 4), v(V_ONES, 4), v(PP(t), 4)))
    for t in range(4):
        a("v_mfma_f32_16x16x32_bf16 %s, %s, %s, 0" % (v(S0(t), 4), v(VP + 2 * t, 4), v(PP(t), 4)))
    bg.flush()
    a("s_nop 3")
    for t in range(4):
        a("v_rcp_f32 %s, %s" % (v(MX + t), v(S1(t))))
    a("s_nop 4")
    for t in range(4):
        for h in (0, 2):
            a(pk("mul", S0(t) + h, [('b', MX + t), ('p', S0(t) + h)]))
    OP = 116
    for t in range(4):
        a("v_cvt_pk_bf16_f32 %s, %s, %s" % (v(OP + 2 * t), v(S0(t)), v(S0(t) + 1)))
        a("v_cvt_pk_bf16_f32 %s, %s, %s" % (v(OP + 2 * t + 1), v(S0(t) + 2), v(S0(t) + 3)))
    act_store_pairs(a, OP, V_AO)
    stamp(a, 11, "st_epi")


def epilogue_y(a, var, bg):
    m = var.m
    MT, RT = 48, 52
    MTM, RTM = 56, 58
    CS = 60
    CSG4, CSU4 = 76, 80
    HPA, HPB, HM = 84, 92, 100
    TMP = 20
    A_I16, A_G16 = 10, 11
    V_C1 = 12
    V_A, V_B, V_M = 13, 14, 15
    a.comment("---- Y epilogue m=%d ----" % m)
    a("v_and_b32 %s, 15, v0" % v(TMP))
    a("v_lshlrev_b32 %s, 2, %s" % (v(A_I16), v(TMP)))
    a("v_add_u32 %s, %d, %s" % (v(A_I16), LB, v(A_I16)))
    a("v_and_b32 %s, 48, v0" % v(A_G16))
    a("v_add_u32 %s, %d, %s" % (v(A_G16), LB, v(A_G16)))
    base = (16 + 64 * m) * 4
    a("s_lshl_b32 %s, %s, 6" % (s(S_T0), s(S_J)))
    a("v_add_u32 %s, %s, %s" % (v(TMP + 2), s(S_T0), v(A_G16)))
    for tau in range(2):
        a("ds_read_b128 %s, %s offset:%d" % (v(CS + 4 * tau, 4), v(TMP + 2), O_CS + 256 * tau))
    for t in range(4):
        a("ds_read_b32 %s, %s offset:%d" % (v(MT + t), v(A_I16), O_MEAN + base + t * 64))
        a("ds_read_b32 %s, %s offset:%d" % (v(RT + t), v(A_I16), O_RSTD + base + t * 64))
    for tau in range(2, 4):
        a("ds_read_b128 %s, %s offset:%d" % (v(CS + 4 * tau, 4), v(TMP + 2), O_CS + 256 * tau))
    a("v_lshrrev_b32 %s, 5, v0" % v(TMP + 3))
    a("v_lshl_add_u32 %s, %s, 6, %s" % (v(TMP + 3), v(TMP + 3), v(A_I16)))
    a("v_and_b32 %s, 16, v0" % v(TMP + 4))
    a("v_add_u32 %s, %s, %s" % (v(TMP + 4), s(S_T0), v(TMP + 4)))
    a("v_add_u32 %s, %d, %s" % (v(TMP + 4), LB, v(TMP + 4)))
    a("v_mov_b32 %s, %s" % (v(V_C1), hexf(C1)))
    a("s_mov_b32 %s, %s" % (s(S_C0), hexf(C0)))
    bg.tick()
    a("s_waitcnt lgkmcnt(0)")
    for p in range(2):
        a("ds_read_b32 %s, %s offset:%d" % (v(MTM + p), v(TMP + 3), O_MEAN + base + p * 128))
        a("ds_read_b32 %s, %s offset:%d" % (v(RTM + p), v(TMP + 3), O_RSTD + base + p * 128))
    a("ds_read_b128 %s, %s offset:%d" % (v(CSG4, 4), v(TMP + 4), O_CS + 1024))
    a("ds_read_b128 %s, %s offset:%d" % (v(CSU4, 4), v(TMP + 4), O_CS + 1024 + 32))
    act_addr_base(a, TMP + 5, TMP, m)
    a("s_lshl_b32 %s, %s, 4" % (s(S_T0), s(S_COL0)))
    a("s_lshl_b32 %s, %s, 9" % (s(S_T1), s(S_J)))
    a("s_add_u32 %s, %s, %s" % (s(S_T0), s(S_T0), s(S_T1)))
    a("s_add_u32 %s, %s, 16384" % (s(S_T0), s(S_T0)))
    a("v_add_u32 %s, %s, %s" % (v(V_A), s(S_T0), v(TMP + 5)))
    a("v_add_u32 %s, %d, %s" % (v(V_B), 64 * 32, v(V_A)))
    for t0 in (0, 2):
        gelu_tiles2(a, [(ACC(0, t), ACC(1, t), MT + t, RT + t, CS, CS + 4, HPA + 2 * t) for t in (t0, t0 + 1)], TMP + 8, V_C1)
        bg.tick(4)
    act_store_pairs(a, HPA, V_A)
    for t0 in (0, 2):
        gelu_tiles2(a, [(ACC(2, t), ACC(3, t), MT + t, RT + t, CS + 8, CS + 12, HPB + 2 * t) for t in (t0, t0 + 1)], TMP + 8, V_C1)
        bg.tick(4)
    bg.flush()
    act_store_pairs(a, HPB, V_B)
    a("s_waitcnt lgkmcnt(0)")
    for p in range(2):
        for r in range(4):
            a("v_permlane32_swap_b32 %s, %s" % (v(ACC(4, 2 * p) + r), v(ACC(4, 2 * p + 1) + r)))
    a("v_bfe_u32 %s, v0, 4, 1" % v(TMP + 1))
    a("v_lshlrev_b32 %s, 1, %s" % (v(TMP + 1), v(TMP + 1)))
    a("v_lshrrev_b32 %s, 5, v0" % v(TMP))
    a("v_add_u32 %s, %s, %s" % (v(TMP), v(TMP), v(TMP + 1)))
    a("s_lshl_b32 %s, %s, 3" % (s(S_T0), s(S_RB)))
    a("s_add_u32 %s, %s, %d" % (s(S_T0), s(S_T0), 4 * m))
    a("v_add_u32 %s, %s, %s" % (v(TMP), s(S_T0), v(TMP)))
    a("v_mul_u32_u24 %s, %d, %s" % (v(TMP), ACT_T, v(TMP)))
    a("v_and_b32 %s, 15, v0" % v(TMP + 1))
    a("v_lshl_add_u32 %s, %s, 4, %s" % (v(TMP), v(TMP + 1), v(TMP)))
    a("s_lshl_b32 %s, %s, 4" % (s(S_T0), s(S_COL2)))
    a("s_lshl_b32 %s, %s, 8" % (s(S_T1), s(S_J)))
    a("s_add_u32 %s, %s, %s" % (s(S_T0), s(S_T0), s(S_T1)))
    a("s_add_u32 %s, %s, 16384" % (s(S_T0), s(S_T0)))
    a("v_add_u32 %s, %s, %s" % (v(V_M), s(S_T0), v(TMP)))
    gelu_tiles2(a, [(ACC(4, 2 * p), ACC(4, 2 * p + 1), MTM + p, RTM + p, CSG4, CSU4, HM + 2 * p) for p in range(2)], TMP + 8, V_C1)
    a("s_nop 1")
    a("v_permlane16_swap_b32 %s, %s" % (v(HM), v(HM + 2)))
    a("v_permlane16_swap_b32 %s, %s" % (v(HM + 1), v(HM + 3)))
    a("buffer_store_dwordx4 %s, %s, %s, 0 offen %s" % (v(HM, 4), v(V_M), s(SRD_WS, 4), Cfg.sc))


def emit_variant(a, var, after_label):
    L = var.L
    ool = []
    a.label("P1_%s" % var.name)
    T = V_T
    variant_addresses(a, var)
    if var.typ == 'X' and var.m == 0:
        srd(a, SRD_Q, S_Q, 512 * 3072)
    else:
        srd(a, SRD_G, S_G, 512 * 3584)
        srd(a, SRD_U, S_U, 512 * 3584)
        if var.typ == 'Y' and var.m == 1:
            a("s_cmp_lt_u32 %s, 2" % s(S_J))
            a("s_cselect_b32 %s, %s, %s" % (s(SRD_MIX), s(SRD_G), s(SRD_U)))
            a("s_cselect_b32 %s, %s, %s" % (s(SRD_MIX + 1), s(SRD_G + 1), s(SRD_U + 1)))
            a("s_mov_b32 %s, 0x%x" % (s(SRD_MIX + 2), 512 * 3584))
            a("s_mov_b32 %s, 0x20000" % s(SRD_MIX + 3))
    for slot in range(2):
        for i in range(len(var.loads)):
            pre, ld = w_load(var, i, slot)
            for t_ in pre:
                a(t_)
            a("s_nop 0")
            for t_ in ld:
                a(t_)
        for t_ in koff_adv(var):
            a(t_)
    n_after_row = 2 + 2 * (L - 1)
    srd(a, SRD_WS, S_WS, WS_USED)
    prologue_late(a)
    if Cfg.merged and var.m == 0:
        lab = a.newlabel("noep")
        a("s_cmp_eq_u32 %s, 0" % s(S_W))
        a("s_cbranch_scc0 %s" % lab)
        a("v_mov_b32 %s, %d" % (v(T + 15), WS_EPOCH))
        a("buffer_load_dword %s, %s, %s, 0 offen sc1" % (v(V_TAG), v(T + 15), s(SRD_WS, 4)))
        a.label(lab)
    if var.typ == 'X':
        halo_addresses(a)
    frag_lane_addresses(a, var)
    for i in range(84 if var.typ == 'X' else 80):
        a("v_mov_b32 %s, 0" % v(128 + i))
    stamp(a, 6, "st_pro")
    if var.typ == 'X' and var.m == 0:
        lab = a.newlabel("halo0")
        a("s_cmp_eq_u32 %s, 0" % s(S_W))
        a("s_cbranch_scc0 %s" % lab)
        halo_issue(a)
        a.label(lab)
    for h in range(2):
        pre, ld = x_load(h)
        for t_ in pre:
            a(t_)
        a("s_nop 0")
        for t_ in ld:
            a(t_)
    for g_ in x_adv():
        for t_ in g_:
            a(t_)
    if var.typ == 'X' and var.m == 0:
        lab = a.newlabel("halo1")
        a("s_cmp_eq_u32 %s, 1" % s(S_W))
        a("s_cbranch_scc0 %s" % lab)
        halo_issue(a)
        a.label(lab)
    a("s_waitcnt vmcnt(%d)" % (n_after_row + 2))
    stamp(a, 7, "st_pro")
    stats_compute(a)
    stamp(a, 8, "st_pro")
    if var.typ == 'X' and var.m == 0:
        l0, l1 = a.newlabel("w0"), a.newlabel("w1")
        a("s_cmp_eq_u32 %s, 1" % s(S_W))
        a("s_cbranch_scc0 %s" % l0)
        a("s_waitcnt vmcnt(5)")
        a("s_branch %s" % l1)
        a.label(l0)
        a("s_waitcnt vmcnt(3)")
        a.label(l1)
    else:
        a("s_waitcnt vmcnt(3)")
    a("s_barrier")
    stamp(a, 3)
    stamp(a, 3, "st_pro")
    stamp(a, 3, "st_loop")
    for g in frag_addr(var, kk=0, advance=False):
        for t in g:
            a(t)
    for t in frag_reads(var, 0, 0):
        a(t)
    for i in range(len(var.loads)):
        pre, ld = w_load(var, i, 2)
        for t_ in pre:
            a(t_)
        a("s_nop 0")
        for t_ in ld:
            a(t_)
    for t_ in koff_adv(var):
        a(t_)
    if var.typ == 'X':
        if var.m == 0:
            lab = a.newlabel("halo2")
            a("s_cmp_lt_u32 %s, 2" % s(S_W))
            a("s_cbranch_scc1 %s" % lab)
            halo_issue(a)
            a.label(lab)
        else:
            halo_issue(a)
    issue_plain(a, var, 3, 0)
    loop = "P1_%s_loop" % var.name
    a.label(loop)
    def top11(aa):
        lab = aa.newlabel("chk")
        back = aa.newlabel("chkback")
        aa("s_cmp_eq_u32 %s, %s" % (s(S_IT), s(S_EV1)))
        aa("s_cbranch_scc1 %s" % lab)
        aa.label(back)
        b = Asm()
        b.uid = aa.uid + 1000
        b.label(lab)
        o2 = []
        poll_check(b, o2, "early")
        b("s_branch %s" % back)
        ool.append(b.text())
        ool.extend(o2)
        aa.uid = b.uid + 1
    for s4 in range(4):
        emit_step(a, var, s4, 2 * L, post=(lambda k: (lambda aa: event_site(aa, var, k, ool)))(s4),
                  top=top11 if (s4 == 3 and var.m == 0 and Cfg.merged) else None)
    a("s_lshr_b32 %s, %s, 4" % (s(S_EV0), s(S_EV0)))
    if STAMPS["on"] and "st_loop" in EXP:
        for it in range(3):
            lab = a.newlabel("stl")
            a("s_cmp_eq_u32 %s, %d" % (s(S_IT), it))
            a("s_cbranch_scc0 %s" % lab)
            stamp(a, 4 + it, "st_loop")
            a.label(lab)
    a("s_add_u32 %s, %s, 1" % (s(S_IT), s(S_IT)))
    a("s_cmp_lt_u32 %s, 3" % s(S_IT))
    a("s_cbranch_scc1 %s" % loop)
    stamp(a, 4)
    nm = var.nm
    nA = 1 if Cfg.merged and "notouch" not in EXP else 0
    emit_step(a, var, 0, 2 * L, dma=False, extra=spread(tail_loads() + publish_addr(), 1, nm - 2),
              post=lambda aa: (w2_touch(aa, 0), w2_touch(aa, 1) if "touchBlate" not in EXP else None))
    stamp(a, 7, "st_loop")
    emit_step(a, var, 1, L + 4, dma=False, extra=spread(k2_setup_fillers(), 3, nm - 1))
    stamp(a, 8, "st_loop")

    def top14(aa):
        pass
    if nA:
        both = "touchBlate" not in EXP
        if var.m == 0:
            if both:
                lab0, lab1 = a.newlabel("t14a"), a.newlabel("t14b")
                a("s_cmp_eq_u32 %s, 3" % s(S_W))
                a("s_cbranch_scc1 %s" % lab0)
                a("s_waitcnt vmcnt(1)")
                a("s_branch %s" % lab1)
                a.label(lab0)
                a("s_waitcnt vmcnt(2)")
                a.label(lab1)
            else:
                a("s_waitcnt vmcnt(1)")
        else:
            lab0, lab1 = a.newlabel("t14a"), a.newlabel("t14b")
            a("s_cmp_eq_u32 %s, 4" % s(S_W))
            a("s_cbranch_scc1 %s" % lab0)
            a("s_waitcnt vmcnt(%d)" % (1 if both else 0))
            a("s_branch %s" % lab1)
            a.label(lab0)
            a("s_waitcnt vmcnt(%d)" % (2 if both else 1))
            a.label(lab1)
    else:
        a("s_waitcnt vmcnt(0)")
    emit_step(a, var, 2, 63, dma=False, extra=spread(tail_reduce(), 1, nm - 2))
    stamp(a, 9, "st_loop")
    f15 = spread(publish_writes(), 0, 4)
    n15 = 0
    if Cfg.merged and "w2late" not in EXP and "w2split" not in EXP:
        n15 = N15
        for i in range(n15):
            g = w2_load_group(i)
            pos = 1 + (i * (nm - 2)) // n15
            f15 += [(pos - 1, g[0]), (pos, g[2]), (pos, g[3])]
    emit_step(a, var, 3, 63, dma=False, prefetch=False, extra=f15)
    stamp(a, 5)
    stamp(a, 11, "st_loop")
    a("s_waitcnt lgkmcnt(0)")
    a("s_barrier")
    stamp(a, 6)
    groups = [w2_load_group(t) for t in range(n15, PRE2)] if (Cfg.merged and "w2late" not in EXP and "w2split" not in EXP) else []
    bg = BG(a, groups)
    if "prio1" in EXP and var.m == 1:
        a("s_setprio 1")
    if "prio0" in EXP and var.m == 0:
        a("s_setprio 1")
    if var.typ == 'X':
        epilogue_x(a, var, bg)
    else:
        epilogue_y(a, var, bg)
    stamp(a, 7)
    if Cfg.merged and "w2split" in EXP and var.m == 0:
        for t_ in range(PRE2):
            for x_ in w2_load_group(t_):
                a(x_)
    if "prio1" in EXP or "prio0" in EXP:
        a("s_setprio 0")
    a("s_branch %s" % after_label)
    for t in ool:
        a.raw(t)


def emit_phase1(a, after_label):
    prologue_common(a)
    a("s_and_b32 %s, %s, 1" % (s(S_T0), s(S_CGI)))
    a("s_lshl_b32 %s, %s, 1" % (s(S_T0), s(S_T0)))
    a("s_or_b32 %s, %s, %s" % (s(S_T0), s(S_T0), s(S_M)))
    a("s_cmp_eq_u32 %s, 1" % s(S_T0))
    a("s_cbranch_scc1 P1_X1")
    a("s_cmp_eq_u32 %s, 2" % s(S_T0))
    a("s_cbranch_scc1 P1_Y0")
    a("s_cmp_eq_u32 %s, 3" % s(S_T0))
    a("s_cbranch_scc1 P1_Y1")
    for typ, m in (('X', 0), ('X', 1), ('Y', 0), ('Y', 1)):
        emit_variant(a, Variant(typ, m), after_label)


def emit_handoff(a):
    ool = []
    T = V_T
    split = "w2split" in EXP
    if split:
        l0, l1 = a.newlabel("hw0"), a.newlabel("hw1")
        a("s_cmp_eq_u32 %s, 0" % s(S_M))
        a("s_cbranch_scc1 %s" % l0)
        a("s_waitcnt vmcnt(0)")
        a("s_branch %s" % l1)
        a.label(l0)
        a("s_waitcnt vmcnt(%d)" % PRE2)
        a.label(l1)
    else:
        a("s_waitcnt vmcnt(0)")
    a("s_barrier")
    stamp(a, 8)
    lab = a.newlabel("ho_skip")
    a("s_cmp_eq_u32 %s, 0" % s(S_W))
    a("s_cbranch_scc0 %s" % lab)
    a("s_lshl_b32 %s, %s, 7" % (s(S_T0), s(S_RB)))
    a("s_lshl_b32 %s, %s, 2" % (s(S_T1), s(S_CGI)))
    a("s_add_u32 %s, %s, %s" % (s(S_T0), s(S_T0), s(S_T1)))
    a("s_add_u32 %s, %s, %d" % (s(S_T0), s(S_T0), WS_FD))
    a("v_mov_b32 %s, 0x%x" % (v(T), OOB))
    a("v_writelane_b32 %s, %s, 0" % (v(T), s(S_T0)))
    a("s_lshr_b32 %s, %s, 1" % (s(S_T1), s(S2_TG)))
    a("s_lshl_b32 %s, %s, 7" % (s(S_T1), s(S_T1)))
    a("s_add_u32 %s, %s, %d" % (s(S_T1), s(S_T1), WS_FD))
    a("buffer_store_dword %s, %s, %s, 0 offen sc1" % (v(V_TAG), v(T), s(SRD_WS, 4)))
    a("v_and_b32 %s, 15, v0" % v(T + 1))
    a("v_lshl_add_u32 %s, %s, 2, %s" % (v(V_PADDR), v(T + 1), s(S_T1)))
    if split:
        a("buffer_load_dword %s, %s, %s, 0 offen sc1" % (v(V_PRES), v(V_PADDR), s(SRD_WS, 4)))
    a.label(lab)
    if "w2late" in EXP or split:
        skip = None
        if split:
            skip = a.newlabel("ringskip")
            a("s_cmp_eq_u32 %s, 0" % s(S_M))
            a("s_cbranch_scc1 %s" % skip)
        for t_ in range(PRE2):
            for x in w2_load_group(t_):
                a(x)
        if skip:
            a.label(skip)
    if "touchBlate" in EXP:
        w2_touch(a, 1)
    lab2 = a.newlabel("ho_skip2")
    a("s_cmp_eq_u32 %s, 0" % s(S_W))
    a("s_cbranch_scc0 %s" % lab2)
    if not split:
        a("buffer_load_dword %s, %s, %s, 0 offen sc1" % (v(V_PRES), v(V_PADDR), s(SRD_WS, 4)))
    a("s_waitcnt vmcnt(0)")
    poll_check(a, ool, "done")
    a.label(lab2)
    a("s_waitcnt vmcnt(0)")
    a("s_barrier")
    return ool


P2_AVO = 2
P2_WL = 4
P2_XO = 3
P2_XR = 16
P2_T = 20
DA = int(os.environ.get("DA", "8"))
WF2 = lambda st, u: 48 + st * 16 + u * 4
ACT2 = lambda i: 80 + (i % DA) * 4
ACC_D = lambda u: 128 + u * 4
ACC_S = lambda u: 144 + u * 4
V_EPF = 212


def w2_schedule():
    sched = {}
    tiles = list(range(PRE2, 36))
    n = len(tiles)
    last = 27
    prev = 1
    for k, tau in enumerate(tiles):
        want = 2 + (k * (last - 2)) // max(n - 1, 1)
        earliest = 4 * ((tau - NTILE2 - 1 + 3) // 4) + 2 if tau - NTILE2 > 1 else 2
        V = max(0, -(-(tau - NTILE2 - 1) // 4))
        earliest = 4 * V + 2
        st = max(want, earliest, prev + 1)
        needV = -(-(tau - 7) // 4)
        assert st + 2 <= 4 * needV + 2, (tau, st)
        sched[st] = tau
        prev = st
    return sched


def p2_addresses(a):
    T = P2_T
    a("s_lshl_b32 %s, %s, 2" % (s(S_T0), s(S2_TG)))
    a("s_add_u32 %s, %s, %s" % (s(S_T0), s(S_T0), s(S_J)))
    a("s_mul_i32 %s, %s, %d" % (s(S_T0), s(S_T0), ACT_T))
    a("v_lshlrev_b32 %s, 4, v0" % v(T))
    a("v_add_u32 %s, %s, %s" % (v(P2_AVO), s(S_T0), v(T)))
    a("s_mul_i32 %s, %s, %d" % (s(S2_AOFF), s(S_M), 36 * 1024))
    a("v_lshrrev_b32 %s, 4, v0" % v(T + 1))
    a("v_bfe_u32 %s, v0, 2, 2" % v(T + 2))
    a("v_lshl_add_u32 %s, %s, 3, %s" % (v(T + 2), v(T + 1), v(T + 2)))
    a("v_lshlrev_b32 %s, 7, %s" % (v(T + 2), v(T + 2)))
    a("v_and_b32 %s, 3, v0" % v(T + 3))
    a("v_lshl_add_u32 %s, %s, 3, %s" % (v(T + 2), v(T + 3), v(T + 2)))
    a("s_lshl_b32 %s, %s, 12" % (s(S_T0), s(S_M)))
    a("v_add_u32 %s, %s, %s" % (v(T + 2), s(S_T0), v(T + 2)))
    a("v_bfe_u32 %s, v0, 3, 2" % v(T + 3))
    for u in range(4):
        a("v_xor_b32 %s, %d, %s" % (v(T + 4), u, v(T + 3)))
        a("v_lshl_add_u32 %s, %s, 5, %s" % (v(P2_WL + u), v(T + 4), v(T + 2)))
        a("v_add_u32 %s, 0x10000, %s" % (v(P2_WL + 4 + u), v(P2_WL + u)))
        a("v_add_u32 %s, 0x20000, %s" % (v(P2_WL + 8 + u), v(P2_WL + u)))
    a("s_lshl_b32 %s, %s, 6" % (s(S_T0), s(S2_TG)))
    a("s_lshl_b32 %s, %s, 4" % (s(S_T1), s(S_J)))
    a("s_add_u32 %s, %s, %s" % (s(S_T0), s(S_T0), s(S_T1)))
    a("v_and_b32 %s, 15, v0" % v(T + 4))
    a("v_add_u32 %s, %s, %s" % (v(T + 4), s(S_T0), v(T + 4)))
    a("v_lshlrev_b32 %s, 10, %s" % (v(T + 4), v(T + 4)))
    a("v_and_b32 %s, 1, %s" % (v(T + 5), v(T + 1)))
    a("v_lshl_add_u32 %s, %s, 5, %s" % (v(T + 4), v(T + 5), v(T + 4)))
    a("v_lshrrev_b32 %s, 1, %s" % (v(T + 5), v(T + 1)))
    a("v_lshl_add_u32 %s, %s, 4, %s" % (v(T + 4), v(T + 5), v(T + 4)))
    a("s_lshl_b32 %s, %s, 7" % (s(S_T0), s(S2_CG2)))
    a("s_lshl_b32 %s, %s, 6" % (s(S_T1), s(S_M)))
    a("s_add_u32 %s, %s, %s" % (s(S_T0), s(S_T0), s(S_T1)))
    a("v_add_u32 %s, %s, %s" % (v(P2_XO), s(S_T0), v(T + 4)))
    for r in range(16):
        a("v_mov_b32 %s, 0" % v(ACC_D(0) + r))
    srd(a, R_OUT, S_OUT, 2048 * 1024)


class VmSim:
    def __init__(self):
        self.ops = []

    def issue(self, tag):
        self.ops.append(tag)

    def need(self, tag):
        if tag not in self.ops:
            return None
        return len(self.ops) - 1 - self.ops.index(tag)


def p2_reads(tile, u):
    st = tile & 1
    slot = tile % NTILE2
    base = P2_WL + 4 * (slot // 8) + u
    off = (slot % 8) * TILE2
    return ["ds_read_b64_tr_b16 %s, %s offset:%d" % (v(WF2(st, u), 2), v(base), off),
            "ds_read_b64_tr_b16 %s, %s offset:%d" % (v(WF2(st, u) + 2, 2), v(base), off + 512)]


def p2_act(i):
    return "buffer_load_dwordx4 %s, %s, %s, %s offen offset:%d %s" % (
        v(ACT2(i), 4), v(P2_AVO), s(SRD_WS, 4), s(S2_AOFF), (i % 4) * 1024, Cfg.sc if Cfg.merged else "")


def emit_phase2_main(a):
    sim = VmSim()
    stamp(a, 3, "st_p2")
    a("buffer_load_dwordx4 %s, %s, %s, 0 offen" % (v(P2_XR, 4), v(P2_XO), s(SRD_X, 4)))
    sim.issue("xr")
    if Cfg.merged:
        lab = a.newlabel("noepl")
        a("s_cmp_eq_u32 s2, 0")
        a("s_cbranch_scc0 %s" % lab)
        a("s_cmp_eq_u32 %s, 0" % s(S_W))
        a("s_cbranch_scc0 %s" % lab)
        a("v_lshrrev_b32 %s, 2, v0" % v(P2_T))
        a("v_lshlrev_b32 %s, 7, %s" % (v(P2_T), v(P2_T)))
        a("v_and_b32 %s, 3, v0" % v(P2_T + 1))
        a("v_lshl_add_u32 %s, %s, 4, %s" % (v(P2_T), v(P2_T + 1), v(P2_T)))
        a("v_add_u32 %s, %d, %s" % (v(V_PADDR), WS_FA, v(P2_T)))
        a("buffer_load_dwordx4 %s, %s, %s, 0 offen sc1" % (v(V_EPF, 4), v(V_PADDR), s(SRD_WS, 4)))
        a.label(lab)
    if Cfg.merged and "acttouch" in EXP:
        lab = a.newlabel("noat")
        T = P2_T
        a("s_lshl_b32 %s, %s, 3" % (s(S_T0), s(S_W)))
        a("s_add_u32 %s, %s, %s" % (s(S_T0), s(S_T0), s(S2_CG2)))
        a("s_add_u32 %s, %s, %d" % (s(S_T0), s(S_T0), DA))
        a("s_cmp_lt_u32 %s, 36" % s(S_T0))
        a("s_cbranch_scc0 %s" % lab)
        a("s_lshl_b32 %s, %s, 10" % (s(S_T0), s(S_T0)))
        a("s_lshl_b32 %s, %s, 2" % (s(S_T1), s(S2_TG)))
        a("s_mul_i32 %s, %s, %d" % (s(S_T1), s(S_T1), ACT_T))
        a("s_add_u32 %s, %s, %s" % (s(S_T0), s(S_T0), s(S_T1)))
        a("v_bfe_u32 %s, v0, 3, 2" % v(T))
        a("v_mul_u32_u24 %s, %d, %s" % (v(T), ACT_T, v(T)))
        a("v_lshrrev_b32 %s, 5, v0" % v(T + 1))
        a("v_mul_u32_u24 %s, %d, %s" % (v(T + 1), 36 * 1024, v(T + 1)))
        a("v_and_b32 %s, 7, v0" % v(T + 2))
        a("v_lshl_add_u32 %s, %s, 7, %s" % (v(T), v(T + 2), v(T)))
        a("v_add3_u32 %s, %s, %s, %s" % (v(T), v(T), v(T + 1), s(S_T0)))
        a("buffer_load_dword %s, %s, %s, 0 offen sc1" % (v(V_DUMMY), v(T), s(SRD_WS, 4)))
        a.label(lab)
    A0 = min(DA, int(os.environ.get("A0", "5")))
    state = {"next": 0}

    def act_upto(n):
        while state["next"] < min(n, 36):
            i = state["next"]
            a(p2_act(i))
            sim.issue(("a", i))
            if i % 4 == 3:
                a("s_add_u32 %s, %s, 4096" % (s(S2_AOFF), s(S2_AOFF)))
            state["next"] += 1
    act_upto(A0)
    for u in range(4):
        for t in p2_reads(0, u):
            a(t)
    a("s_waitcnt lgkmcnt(0)")
    for u in range(4):
        for t in p2_reads(1, u):
            a(t)
    wsched = w2_schedule()
    for sg in range(36):
        if sg in (0, 2, 6, 12, 18, 26, 34):
            stamp(a, {0: 4, 2: 5, 6: 6, 12: 7, 18: 8, 26: 9, 34: 11}[sg], "st_p2")
        if sg % 4 == 2 and sg <= 30:
            V = (sg - 2) // 4
            last_tile = 4 * V + 7
            n = sim.need(("w", last_tile))
            if n is not None:
                a("s_waitcnt vmcnt(%d)" % n)
            a("s_barrier")
        if sg == 16:
            lab = a.newlabel("noacc")
            a("s_cmp_eq_u32 %s, 0" % s(S_M))
            a("s_cbranch_scc0 %s" % lab)
            a("s_nop 7")
            for r in range(16):
                a("v_mov_b32 %s, %s" % (v(ACC_S(0) + r), v(ACC_D(0) + r)))
            for r in range(16):
                a("v_mov_b32 %s, 0" % v(ACC_D(0) + r))
            a("s_nop 1")
            a.label(lab)
        n = sim.need(("a", sg))
        st = sg & 1
        a("s_waitcnt vmcnt(%d) lgkmcnt(%d)" % (n, 7 if sg < 35 else 0))
        for u in range(4):
            d = v(ACC_D(u), 4)
            a("v_mfma_f32_16x16x32_bf16 %s, %s, %s, %s" % (d, v(WF2(st, u), 4), v(ACT2(sg), 4), d))
            if sg + 2 < 36:
                for t in p2_reads(sg + 2, u):
                    a(t)
            if u == 1 and sg in wsched:
                tile = wsched[sg]
                for t in w2_load_group(tile):
                    a(t)
                sim.issue(("w", tile))
        act_upto(min(sg + 1 + DA, state["next"] + 2))


def emit_phase2_epilogue(a):
    T = P2_T
    a("s_nop 7")
    a("s_barrier")
    a("s_mul_i32 %s, %s, 6144" % (s(S_T0), s(S_J)))
    a("v_lshlrev_b32 %s, 4, v0" % v(T))
    a("v_add_u32 %s, %s, %s" % (v(T), s(S_T0), v(T)))
    k1 = a.newlabel("k2_kh1")
    join = a.newlabel("k2_join")
    S, D, E = 56, 64, 72
    a("s_cmp_eq_u32 %s, 0" % s(S_M))
    a("s_cbranch_scc0 %s" % k1)
    a("ds_write_b128 %s, %s" % (v(T), v(ACC_S(2), 4)))
    a("ds_write_b128 %s, %s offset:1024" % (v(T), v(ACC_S(3), 4)))
    a("ds_write_b128 %s, %s offset:2048" % (v(T), v(ACC_D(2), 4)))
    a("ds_write_b128 %s, %s offset:3072" % (v(T), v(ACC_D(3), 4)))
    for r in range(8):
        a("v_mov_b32 %s, %s" % (v(S + r), v(ACC_S(0) + r)))
    a("s_waitcnt lgkmcnt(0)")
    a("s_barrier")
    a("ds_read_b128 %s, %s offset:4096" % (v(48, 4), v(T)))
    a("ds_read_b128 %s, %s offset:5120" % (v(52, 4), v(T)))
    a("s_waitcnt lgkmcnt(0)")
    for h in range(0, 8, 2):
        a(pk("add", D + h, [('p', ACC_D(0) + h), ('p', 48 + h)]))
    a("s_branch %s" % join)
    a.label(k1)
    a("ds_write_b128 %s, %s offset:4096" % (v(T), v(ACC_D(0), 4)))
    a("ds_write_b128 %s, %s offset:5120" % (v(T), v(ACC_D(1), 4)))
    a("s_waitcnt lgkmcnt(0)")
    a("s_barrier")
    a("ds_read_b128 %s, %s" % (v(S, 4), v(T)))
    a("ds_read_b128 %s, %s offset:1024" % (v(S + 4, 4), v(T)))
    a("ds_read_b128 %s, %s offset:2048" % (v(48, 4), v(T)))
    a("ds_read_b128 %s, %s offset:3072" % (v(52, 4), v(T)))
    a("s_waitcnt lgkmcnt(0)")
    for h in range(0, 8, 2):
        a(pk("add", D + h, [('p', ACC_D(2) + h), ('p', 48 + h)]))
    a.label(join)
    a("s_mov_b32 %s, %s" % (s(S_C0), hexf(-LOG2E)))
    for h in range(0, 8, 2):
        a(pk("mul", E + h, [('p', D + h), ('s', S_C0)]))
    for r in range(8):
        a("v_exp_f32 %s, %s" % (v(E + r), v(E + r)))
    for h in range(0, 8, 2):
        a(pk("mul", S + h, [('p', S + h), ('p', D + h)]))
    for h in range(0, 8, 2):
        a(pk("add", E + h, [('p', E + h), ('c', "1.0")]))
    for r in range(8):
        a("v_rcp_f32 %s, %s" % (v(E + r), v(E + r)))
    for i in range(4):
        a("v_lshlrev_b32 %s, 16, %s" % (v(D + 2 * i), v(P2_XR + i)))
        a("v_and_b32 %s, 0xffff0000, %s" % (v(D + 2 * i + 1), v(P2_XR + i)))
    for h in range(0, 8, 2):
        a(pk("mul", S + h, [('p', S + h), ('p', E + h)]))
    a("s_nop 1")
    for r in range(4):
        a("v_permlane16_swap_b32 %s, %s" % (v(S + r), v(S + 4 + r)))
    a("s_nop 1")
    for h in range(0, 8, 2):
        a(pk("add", S + h, [('p', S + h), ('p', D + h)]))
    for i in range(4):
        a("v_cvt_pk_bf16_f32 %s, %s, %s" % (v(E + i), v(S + 2 * i), v(S + 2 * i + 1)))
    a("buffer_store_dwordx4 %s, %s, %s, 0 offen" % (v(E, 4), v(P2_XO), s(R_OUT, 4)))


def emit_epoch_bump(a):
    lab = a.newlabel("nobump")
    loop = a.newlabel("bumploop")
    go = a.newlabel("bumpgo")
    a("s_cmp_eq_u32 s2, 0")
    a("s_cbranch_scc0 %s" % lab)
    a("s_cmp_eq_u32 %s, 0" % s(S_W))
    a("s_cbranch_scc0 %s" % lab)
    a("s_mov_b32 %s, 0" % s(S_SPIN))
    a.label(loop)
    a("v_xor_b32 %s, %s, %s" % (v(V_EPF), v(V_TAG), v(V_EPF)))
    a("v_xor_b32 %s, %s, %s" % (v(V_EPF + 1), v(V_TAG), v(V_EPF + 1)))
    a("v_xor_b32 %s, %s, %s" % (v(V_EPF + 2), v(V_TAG), v(V_EPF + 2)))
    a("v_xor_b32 %s, %s, %s" % (v(V_EPF + 3), v(V_TAG), v(V_EPF + 3)))
    a("v_or_b32 %s, %s, %s" % (v(V_EPF), v(V_EPF), v(V_EPF + 1)))
    a("v_or3_b32 %s, %s, %s, %s" % (v(V_EPF), v(V_EPF), v(V_EPF + 2), v(V_EPF + 3)))
    a("v_cmp_ne_u32 vcc, 0, %s" % v(V_EPF))
    a("s_nop 1")
    a("s_cmp_lg_u64 vcc, 0")
    a("s_cbranch_scc0 %s" % go)
    a("buffer_load_dwordx4 %s, %s, %s, 0 offen sc1" % (v(V_EPF, 4), v(V_PADDR), s(SRD_WS, 4)))
    a("s_add_u32 %s, %s, 1" % (s(S_SPIN), s(S_SPIN)))
    a("s_waitcnt vmcnt(0)")
    a("s_cmp_lt_u32 %s, %d" % (s(S_SPIN), SPIN_MAX))
    a("s_cbranch_scc1 %s" % loop)
    a.label(go)
    a("v_mov_b32 %s, 0x%x" % (v(P2_T), OOB))
    a("s_mov_b32 %s, %d" % (s(S_T0), WS_EPOCH))
    a("v_writelane_b32 %s, %s, 0" % (v(P2_T), s(S_T0)))
    a("s_nop 1")
    a("buffer_store_dword %s, %s, %s, 0 offen sc1" % (v(V_TAG), v(P2_T), s(SRD_WS, 4)))
    a.label(lab)


def emit_merged(a, end_label):
    emit_phase1(a, "P1_done")
    a.label("P1_done")
    p2_addresses(a)
    ool = emit_handoff(a)
    stamp(a, 9)
    emit_phase2_main(a)
    stamp(a, 11)
    emit_phase2_epilogue(a)
    emit_epoch_bump(a)
    if STAMPS["on"]:
        a("s_waitcnt vmcnt(0)")
        stamp(a, 10)
        stamp_real(a, 2)
    stamp_flush(a, S_W, S_WS, 0)
    a("s_branch %s" % end_label)
    for t in ool:
        a.raw(t)


def emit_phase2_standalone(a):
    a("s_load_dwordx2 %s, s[0:1], 0" % s(S_X, 2))
    a("s_load_dwordx2 %s, s[0:1], 72" % s(S_WS, 2))
    a("s_load_dwordx2 %s, s[0:1], 16" % s(S_WO, 2))
    a("s_load_dwordx2 %s, s[0:1], 48" % s(S_WD, 2))
    a("s_load_dwordx2 %s, s[0:1], 56" % s(S_OUT, 2))
    a("v_lshrrev_b32 v1, 6, v0")
    a("v_and_b32 v0, 63, v0")
    a("v_readfirstlane_b32 %s, v1" % s(S_W))
    a("s_and_b32 %s, s2, 7" % s(S_T0))
    a("s_lshr_b32 %s, s2, 3" % s(S_T1))
    a("s_lshr_b32 %s, %s, 3" % (s(S_T3), s(S_T1)))
    a("s_lshl_b32 %s, %s, 2" % (s(S2_TG), s(S_T0)))
    a("s_add_u32 %s, %s, %s" % (s(S2_TG), s(S2_TG), s(S_T3)))
    a("s_and_b32 %s, %s, 7" % (s(S2_CG2), s(S_T1)))
    a("s_and_b32 %s, %s, 3" % (s(S_J), s(S_W)))
    a("s_lshr_b32 %s, %s, 2" % (s(S_M), s(S_W)))
    a("s_waitcnt lgkmcnt(0)")
    srd(a, SRD_X, S_X, 2048 * 1024)
    srd(a, SRD_WS, S_WS, WS_USED)
    for t in k2_setup_fillers():
        a(t)
    for t in range(PRE2):
        for x in w2_load_group(t):
            a(x)
    p2_addresses(a)
    a("s_waitcnt vmcnt(0)")
    a("s_barrier")
    emit_phase2_main(a)
    emit_phase2_epilogue(a)
```

```python
import os
from asmlib import *
from layout import *

S_X, S_Q, S_G, S_U, S_WS, S_OUT = 4, 6, 8, 10, 12, 14
SRD_X, SRD_Q, SRD_G, SRD_U, SRD_WS, SRD_MIX = 16, 20, 24, 28, 32, 36
R_W, R_OUT = 20, 24
S_RB, S_CGI, S_UU, S_W, S_J, S_M, S_R0B = 40, 41, 42, 43, 44, 45, 46
S_KOFF = 47
S_M0X = 48
S_COL0, S_COL1, S_COL2 = 49, 50, 51
S_XO, S_XM0, S_XSLOTR, S_HK = 52, 53, 54, 55
S_IT, S_EV0, S_EV1 = 56, 57, 59
S_M0W = 58
S_T0, S_T1, S_T2, S_T3 = 60, 61, 62, 63
S_EX = 64
S2_WROW, S2_AOFF, S2_M0B, S2_TG = 66, 67, 68, 69
S_WO, S_WD = 70, 72
S2_CG2 = 74
S_XM0END = 75
S_SPIN = 3

V_WVO = 1
V_XVO = 4
V_XL = 6
V_HL = 8
V_WL, V_WL3, V_WM, V_WM3 = 10, 11, 12, 13
V_XA, V_HA = 14, 15
V_ONES = 16
V_T = 20
V_TAG, V_W2VO, V_CSST, V_PADDR, V_PRES, V_DUMMY = 40, 41, 42, 43, 44, 45
V_TVO = 47
WF = lambda st, t: 48 + st * 20 + t * 4
XF = lambda st, t: 88 + st * 20 + t * 4
ACC = lambda tau, t: 128 + (tau * 4 + t) * 4
V_AH = 208
V_CSP = 212
V_STAT = 224
V_CSTMP = 226
BP, BC, BP0 = 232, 236, 240

OOB = 0x7FFFFF00
SPIN_MAX = 1 << 18
N15 = int(os.environ.get("N15", "9"))
TOUCH_AT = int(os.environ.get("TOUCH_AT", "15"))

C0 = -2.0 * 0.7978845608028654 * 1.4426950408889634
C1 = C0 * 0.044715
LOG2E = 1.4426950408889634


class Cfg:
    merged = True
    sc = "sc1"


_stamp0 = stamp


def stamp(a, idx, mode="main"):
    active = "main"
    for m in ("st_pro", "st_loop", "st_p2", "st_epi"):
        if m in EXP:
            active = m
    if idx in (1, 10) and mode == "main":
        _stamp0(a, idx)
    elif mode == active:
        _stamp0(a, idx)


def srd(a, base, ptr, nbytes):
    a("s_mov_b32 %s, %s" % (s(base), s(ptr)))
    a("s_and_b32 %s, %s, 0xffff" % (s(base + 1), s(ptr + 1)))
    a("s_mov_b32 %s, 0x%x" % (s(base + 2), nbytes))
    a("s_mov_b32 %s, 0x20000" % s(base + 3))


def allreduce16(a, regs, op="v_add_f32"):
    for ror in (8, 4, 2, 1):
        for r in regs:
            a("%s_dpp %s, %s, %s row_ror:%d row_mask:0xf bank_mask:0xf" % (op, v(r), v(r), v(r), ror))
        pad = 2 - (len(regs) - 1)
        if pad > 0:
            a("s_nop %d" % (pad - 1))


def allreduce_rows(a, r, tmp, op="v_add_f32"):
    for swap in ("v_permlane16_swap_b32", "v_permlane32_swap_b32"):
        a("v_mov_b32 %s, %s" % (v(tmp), v(r)))
        a("s_nop 1")
        a("%s %s, %s" % (swap, v(r), v(tmp)))
        a("s_nop 1")
        a("%s %s, %s, %s" % (op, v(r), v(r), v(tmp)))
        a("s_nop 0")


class Variant:
    def __init__(self, typ, m):
        self.typ = typ
        self.m = m
        if typ == 'X' and m == 0:
            self.loads = [(SRD_Q, V_WVO, 0), (SRD_Q, V_WVO + 1, 1), (SRD_Q, V_WVO + 2, 2)]
            self.pitch = 3072
        elif typ == 'X':
            self.loads = [(SRD_G, V_WVO, 3), (SRD_U, V_WVO, 4)]
            self.pitch = 3584
        elif m == 0:
            self.loads = [(SRD_G, V_WVO, 0), (SRD_U, V_WVO, 1), (SRD_G, V_WVO + 1, 2)]
            self.pitch = 3584
        else:
            self.loads = [(SRD_U, V_WVO + 1, 3), (SRD_MIX, V_WVO + 2, 4)]
            self.pitch = 3584
        self.L = len(self.loads) + 1
        self.name = "%s%d" % (typ, m)
        self.nm = 21 if typ == 'X' else 20


def w_load(var, i, slot):
    srdr, vo, q = var.loads[i]
    return (["s_add_u32 m0, %s, %d" % (s(S_M0W), slot * WSLOT + q * 4096)],
            ["buffer_load_dwordx4 %s, %s, %s offen lds" % (v(vo), s(srdr, 4), s(S_KOFF))])


def koff_adv(var):
    st = 32 * var.pitch
    return ["s_add_u32 %s, %s, %d" % (s(S_KOFF), s(S_KOFF), st),
            "s_cmp_eq_u32 %s, %d" % (s(S_KOFF), 16 * st),
            "s_cselect_b32 %s, 0, %s" % (s(S_KOFF), s(S_KOFF))]


def x_load(h):
    return (["s_add_u32 m0, %s, %d" % (s(S_XM0), h * 8192)],
            ["buffer_load_dwordx4 %s, %s, %s offen lds" % (v(V_XVO + h), s(SRD_X, 4), s(S_XO))])


def x_adv():
    return [["s_add_u32 %s, %s, 128" % (s(S_T0), s(S_XO)),
             "s_and_b32 %s, %s, 0x380" % (s(S_T0), s(S_T0)),
             "s_or_b32 %s, %s, %s" % (s(S_XO), s(S_T0), s(S_R0B))],
            ["s_add_u32 %s, %s, 0x4000" % (s(S_XM0), s(S_XM0)),
             "s_cmp_eq_u32 %s, %s" % (s(S_XM0), s(S_XM0END)),
             "s_cselect_b32 %s, %s, %s" % (s(S_XM0), s(S_M0X), s(S_XM0))]]


def issue_plain(a, var, slot, h):
    if slot is not None:
        for i in range(len(var.loads)):
            pre, ld = w_load(var, i, slot)
            for t in pre:
                a(t)
            a("s_nop 0")
            for t in ld:
                a(t)
        for t in koff_adv(var):
            a(t)
    pre, ld = x_load(h)
    for t in pre:
        a(t)
    a("s_nop 0")
    for t in ld:
        a(t)
    if h:
        for g in x_adv():
            for t in g:
                a(t)


def frag_reads(var, st, slot):
    wl = V_WL3 if slot == 3 else V_WL
    wm = V_WM3 if slot == 3 else V_WM
    so = 0 if slot == 3 else slot * WSLOT
    W = []
    for tau in range(5):
        if var.typ == 'Y' and tau == 4:
            W.append(["ds_read_b64_tr_b16 %s, %s offset:%d" % (v(WF(st, tau), 2), v(wm), so),
                      "ds_read_b64_tr_b16 %s, %s offset:%d" % (v(WF(st, tau) + 2, 2), v(wm), so + 256)])
        else:
            W.append(["ds_read_b64_tr_b16 %s, %s offset:%d" % (v(WF(st, tau), 2), v(wl), so + tau * 4096),
                      "ds_read_b64_tr_b16 %s, %s offset:%d" % (v(WF(st, tau) + 2, 2), v(wl), so + tau * 4096 + 512)])
    X = ["ds_read_b128 %s, %s offset:%d" % (v(XF(st, t), 4), v(V_XA), t * 2048) for t in range(4)]
    r = W[0] + W[1] + [X[0]] + W[2] + [X[1]] + W[3] + [X[2]] + W[4] + [X[3]]
    if var.typ == 'X':
        r.append("ds_read_b128 %s, %s" % (v(XF(st, 4), 4), v(V_HA)))
    return r


def frag_addr(var, kk, advance):
    g = []
    if advance:
        g.append(["s_add_u32 %s, %s, 0x4000" % (s(S_XSLOTR), s(S_XSLOTR)),
                  "s_cmp_eq_u32 %s, 0xc000" % s(S_XSLOTR),
                  "s_cselect_b32 %s, 0, %s" % (s(S_XSLOTR), s(S_XSLOTR))])
    g.append(["v_add_u32 %s, %s, %s" % (v(V_XA), s(S_XSLOTR), v(V_XL + kk))])
    if var.typ == 'X':
        h = []
        if advance:
            h += ["s_add_u32 %s, %s, 0x800" % (s(S_HK), s(S_HK)),
                  "s_and_b32 %s, %s, 0x3fff" % (s(S_HK), s(S_HK))]
        h.append("v_add_u32 %s, %s, %s" % (v(V_HA), s(S_HK), v(V_HL + kk)))
        g.append(h)
    return g


def mfmas(var, st):
    out = []
    for t in range(4):
        for tau in range(5):
            d = v(ACC(tau, t), 4)
            if var.typ == 'X' and tau == 2:
                out.append("v_mfma_f32_16x16x32_bf16 %s, %s, %s, %s" % (d, v(XF(st, t), 4), v(WF(st, tau), 4), d))
            else:
                out.append("v_mfma_f32_16x16x32_bf16 %s, %s, %s, %s" % (d, v(WF(st, tau), 4), v(XF(st, t), 4), d))
    if var.typ == 'X':
        d = v(V_AH, 4)
        if var.m == 0:
            out.append("v_mfma_f32_16x16x32_bf16 %s, %s, %s, %s" % (d, v(WF(st, 1), 4), v(XF(st, 4), 4), d))
        else:
            out.append("v_mfma_f32_16x16x32_bf16 %s, %s, %s, %s" % (d, v(XF(st, 4), 4), v(WF(st, 2), 4), d))
    return out


def spread(items, p0, p1):
    n = len(items)
    if n == 0:
        return []
    return [(p0 + (i * (p1 - p0 + 1)) // n, t) for i, t in enumerate(items)]


def emit_step(a, var, s4, vm, dma=True, prefetch=True, extra=None, post=None, top=None):
    par = s4 & 1
    a("s_waitcnt vmcnt(%d) lgkmcnt(0)" % vm)
    if top:
        top(a)
    if "nobar" not in EXP:
        a("s_barrier")
    M = mfmas(var, par)
    F = []
    if prefetch:
        ga = frag_addr(var, kk=1 - par, advance=(par == 1))
        for i, g in enumerate(ga):
            for t in g:
                F.append((i, t))
        rd = frag_reads(var, 1 - par, (s4 + 1) & 3)
        if "noreads" in EXP:
            rd = []
        for i, t in enumerate(rd):
            F.append((i if i < 4 else i + 0, t))
    if dma and "nodma" not in EXP:
        nl = len(var.loads)
        poss = [3, 8, 13, 18] if var.m == 0 else [5, 10, 15]
        for i in range(nl):
            pre, ld = w_load(var, i, s4)
            F += [(poss[i] - 1, t) for t in pre] + [(poss[i], t) for t in ld]
        F += [(poss[nl - 1] + 1, t) for t in koff_adv(var)]
        h = 1 - par
        pre, ld = x_load(h)
        px = poss[nl]
        F += [(px - 1, t) for t in pre] + [(px, t) for t in ld]
        if h:
            g = x_adv()
            F += [(px + 1, t) for t in g[0]] + [(min(px + 2, len(M) - 1), t) for t in g[1]]
    if extra:
        F += extra
    F.sort(key=lambda x: x[0])
    for t in interleave(M, F):
        a(t)
    if post:
        post(a)


def w2_touch(b, part):
    if "notouch" in EXP or not Cfg.merged:
        return
    T = V_T
    lab = b.newlabel("tch")
    if part == 0:
        b("s_cmp_lt_u32 %s, 5" % s(S_W))
        b("s_cbranch_scc0 %s" % lab)
        b("s_mov_b32 %s, %s" % (s(S_T1), s(S_W)))
    else:
        b("s_cmp_ge_u32 %s, 3" % s(S_W))
        b("s_cbranch_scc0 %s" % lab)
        b("s_sub_u32 %s, %s, 3" % (s(S_T1), s(S_W)))
    b("s_lshr_b32 %s, s2, 3" % s(S_T0))
    b("s_mul_i32 %s, %s, 5" % (s(S_T0), s(S_T0)))
    b("s_add_u32 %s, %s, %s" % (s(S_T0), s(S_T0), s(S_T1)))
    b("s_min_u32 %s, %s, 143" % (s(S_T0), s(S_T0)))
    if part == 0:
        b("s_sub_u32 %s, %s, 64" % (s(S_T1), s(S_T0)))
        b("s_add_u32 %s, %s, 8" % (s(S_T2), s(S_T0)))
        b("s_cmp_lt_u32 %s, 72" % s(S_T0))
        b("s_cselect_b32 %s, %s, %s" % (s(S_T1), s(S_T1), s(S_T2)))
        b("s_cmp_lt_u32 %s, 64" % s(S_T0))
        b("s_cselect_b32 %s, %s, %s" % (s(S_T0), s(S_T0), s(S_T1)))
        b("s_cselect_b32 %s, %s, %s" % (s(S_EX), s(S_WO), s(S_WD)))
        b("s_cselect_b32 %s, %s, %s" % (s(S_EX + 1), s(S_WO + 1), s(S_WD + 1)))
        base = S_EX
    else:
        b("s_add_u32 %s, %s, 8" % (s(S_T1), s(S_T0)))
        b("s_add_u32 %s, %s, 80" % (s(S_T2), s(S_T0)))
        b("s_cmp_lt_u32 %s, 72" % s(S_T0))
        b("s_cselect_b32 %s, %s, %s" % (s(S_T0), s(S_T1), s(S_T2)))
        base = S_WD
    b("s_lshl_b32 %s, %s, 13" % (s(S_T0), s(S_T0)))
    b("v_lshlrev_b32 %s, 7, v0" % v(T + 3))
    b("v_add_u32 %s, %s, %s" % (v(T + 3), s(S_T0), v(T + 3)))
    b("global_load_dword %s, %s, %s" % (v(V_DUMMY + part), v(T + 3), s(base, 2)))
    b.label(lab)


def colsum_block(b, par):
    for tau in range(5):
        b("v_mfma_f32_16x16x32_bf16 %s, %s, %s, 0" % (v(V_CSTMP + 4 * tau, 4), v(WF(par, tau), 4), v(V_ONES, 4)))
    b("s_nop 7")
    b("s_nop 1")
    for tau in range(5):
        b("buffer_store_dwordx4 %s, %s, %s, 0 offen offset:%d sc1" % (v(V_CSTMP + 4 * tau, 4), v(V_CSST), s(SRD_WS, 4), tau * 256))


def publish_block(b):
    T = V_T
    b("v_add_u32 %s, 1, %s" % (v(V_TAG), v(V_TAG)))
    b("s_lshl_b32 %s, %s, 7" % (s(S_T0), s(S_RB)))
    b("s_lshl_b32 %s, %s, 2" % (s(S_T1), s(S_CGI)))
    b("s_add_u32 %s, %s, %s" % (s(S_T0), s(S_T0), s(S_T1)))
    b("s_add_u32 %s, %s, %d" % (s(S_T0), s(S_T0), WS_FA))
    b("s_lshl_b32 %s, %s, 7" % (s(S_T1), s(S_CGI)))
    b("s_lshl_b32 %s, %s, 2" % (s(S_T2), s(S_RB)))
    b("s_add_u32 %s, %s, %s" % (s(S_T1), s(S_T1), s(S_T2)))
    b("s_add_u32 %s, %s, %d" % (s(S_T1), s(S_T1), WS_FB))
    b("v_mov_b32 %s, 0x%x" % (v(T), OOB))
    b("v_writelane_b32 %s, %s, 0" % (v(T), s(S_T0)))
    b("v_writelane_b32 %s, %s, 1" % (v(T), s(S_T1)))
    b("s_nop 1")
    b("buffer_store_dword %s, %s, %s, 0 offen sc1" % (v(V_TAG), v(T), s(SRD_WS, 4)))


def poll_block(b):
    T = V_T
    b("v_and_b32 %s, 15, v0" % v(T))
    b("s_lshl_b32 %s, %s, 7" % (s(S_T0), s(S_RB)))
    b("s_add_u32 %s, %s, %d" % (s(S_T0), s(S_T0), WS_FA))
    b("v_lshl_add_u32 %s, %s, 2, %s" % (v(V_PADDR), v(T), s(S_T0)))
    b("s_lshl_b32 %s, %s, 7" % (s(S_T1), s(S_CGI)))
    b("s_add_u32 %s, %s, %d" % (s(S_T1), s(S_T1), WS_FB))
    b("v_lshl_add_u32 %s, %s, 2, %s" % (v(T + 1), v(T), s(S_T1)))
    b("v_lshrrev_b32 %s, 4, v0" % v(T + 2))
    b("v_cmp_eq_u32 vcc, 2, %s" % v(T + 2))
    b("s_nop 1")
    b("v_cndmask_b32 %s, %s, %s, vcc" % (v(V_PADDR), v(V_PADDR), v(T + 1)))
    b("s_cmp_eq_u32 %s, 0" % s(S_RB))
    b("s_cselect_b32 %s, 0, 128" % s(S_T1))
    b("s_sub_u32 %s, %s, %s" % (s(S_T0), s(S_T0), s(S_T1)))
    b("s_add_u32 %s, %s, 56" % (s(S_T0), s(S_T0)))
    b("s_add_u32 %s, %s, 4" % (s(S_T1), s(S_T0)))
    b("v_writelane_b32 %s, %s, 16" % (v(V_PADDR), s(S_T0)))
    b("v_writelane_b32 %s, %s, 17" % (v(V_PADDR), s(S_T1)))
    b("s_nop 1")
    b("buffer_load_dword %s, %s, %s, 0 offen sc1" % (v(V_PRES), v(V_PADDR), s(SRD_WS, 4)))


def event_site(a, var, s4, ool):
    if var.m == 1 or s4 > 1:
        return
    lab = a.newlabel("ev")
    back = a.newlabel("evback")
    a("s_bitcmp1_b32 %s, %d" % (s(S_EV0), s4))
    a("s_cbranch_scc1 %s" % lab)
    a.label(back)
    b = Asm()
    b.uid = a.uid + 1000
    b.label(lab)
    if s4 == 0 and Cfg.merged:
        other = b.newlabel("evo")
        b("s_cmp_eq_u32 %s, 0" % s(S_IT))
        b("s_cbranch_scc0 %s" % other)
        colsum_block(b, s4)
        b("s_branch %s" % back)
        b.label(other)
        pl = b.newlabel("evp")
        b("s_cmp_eq_u32 %s, 1" % s(S_IT))
        b("s_cbranch_scc0 %s" % pl)
        publish_block(b)
        b("s_branch %s" % back)
        b.label(pl)
        poll_block(b)
    else:
        colsum_block(b, s4)
    b("s_branch %s" % back)
    ool.append(b.text())
    a.uid = b.uid + 1


def poll_check(a, ool, name):
    slow = a.newlabel(name + "_slow")
    back = a.newlabel(name + "_ok")
    a("v_cmp_ne_u32 vcc, %s, %s" % (v(V_TAG), v(V_PRES)))
    a("s_nop 1")
    a("s_cmp_lg_u64 vcc, 0")
    a("s_cbranch_scc1 %s" % slow)
    a.label(back)
    b = Asm()
    b.label(slow)
    b("s_mov_b32 %s, 0" % s(S_SPIN))
    loop = slow + "_loop"
    b.label(loop)
    b("buffer_load_dword %s, %s, %s, 0 offen sc1" % (v(V_PRES), v(V_PADDR), s(SRD_WS, 4)))
    b("s_add_u32 %s, %s, 1" % (s(S_SPIN), s(S_SPIN)))
    b("s_waitcnt vmcnt(0)")
    b("v_cmp_ne_u32 vcc, %s, %s" % (v(V_TAG), v(V_PRES)))
    b("s_nop 1")
    b("s_cmp_lg_u64 vcc, 0")
    b("s_cbranch_scc0 %s" % back)
    b("s_cmp_lt_u32 %s, %d" % (s(S_SPIN), SPIN_MAX))
    b("s_cbranch_scc1 %s" % loop)
    b("s_branch %s" % back)
    ool.append(b.text())


def prologue_common(a):
    a.comment("---- prologue ----")
    stamp_real(a, 0)
    stamp(a, 1)
    a("s_load_dwordx4 %s, s[0:1], 0" % s(S_X, 4))
    a("s_load_dwordx4 %s, s[0:1], 32" % s(S_G, 4))
    a("s_load_dwordx2 %s, s[0:1], 72" % s(S_WS, 2))
    a("v_lshrrev_b32 v1, 6, v0")
    a("v_and_b32 v0, 63, v0")
    a("v_readfirstlane_b32 %s, v1" % s(S_W))
    a("s_and_b32 %s, s2, 7" % s(S_T0))
    a("s_lshr_b32 %s, s2, 3" % s(S_T1))
    if "map8x4" in EXP:
        a("s_lshr_b32 %s, %s, 2" % (s(S_T2), s(S_T0)))
        a("s_lshl_b32 %s, %s, 3" % (s(S_T2), s(S_T2)))
        a("s_and_b32 %s, %s, 7" % (s(S_T3), s(S_T1)))
        a("s_or_b32 %s, %s, %s" % (s(S_RB), s(S_T2), s(S_T3)))
        a("s_and_b32 %s, %s, 3" % (s(S_T2), s(S_T0)))
        a("s_lshl_b32 %s, %s, 2" % (s(S_T2), s(S_T2)))
        a("s_lshr_b32 %s, %s, 3" % (s(S_CGI), s(S_T1)))
        a("s_or_b32 %s, %s, %s" % (s(S_CGI), s(S_T2), s(S_CGI)))
    else:
        a("s_and_b32 %s, %s, 15" % (s(S_RB), s(S_T1)))
        a("s_and_b32 %s, %s, 7" % (s(S_T3), s(S_T1)))
        a("s_lshl_b32 %s, %s, 1" % (s(S_T2), s(S_T0)))
        a("s_lshr_b32 %s, %s, 4" % (s(S_CGI), s(S_T1)))
        a("s_or_b32 %s, %s, %s" % (s(S_CGI), s(S_T2), s(S_CGI)))
    a("s_lshl_b32 %s, %s, 17" % (s(S_R0B), s(S_RB)))
    a("s_lshl_b32 %s, %s, 7" % (s(S_XO), s(S_T3)))
    a("s_or_b32 %s, %s, %s" % (s(S_XO), s(S_XO), s(S_R0B)))
    a("s_lshl_b32 %s, %s, 11" % (s(S_HK), s(S_T3)))
    a("s_lshl_b32 %s, %s, 1" % (s(S_KOFF), s(S_T3)))
    a("s_lshl_b32 %s, %s, 10" % (s(S_M0X), s(S_W)))
    a("s_add_u32 %s, %s, %d" % (s(S_M0X), s(S_M0X), XRING))
    a("s_mov_b32 %s, %s" % (s(S_XM0), s(S_M0X)))
    a("s_add_u32 %s, %s, 0xc000" % (s(S_XM0END), s(S_M0X)))
    T = V_T
    a("v_lshrrev_b32 %s, 3, v0" % v(T))
    a("s_lshl_b32 %s, %s, 3" % (s(S_T0), s(S_W)))
    a("v_add_u32 %s, %s, %s" % (v(T + 2), s(S_T0), v(T)))
    a("v_bfe_u32 %s, %s, 1, 3" % (v(T + 3), v(T + 2)))
    a("v_and_b32 %s, 7, v0" % v(T + 4))
    a("v_xor_b32 %s, %s, %s" % (v(T + 4), v(T + 4), v(T + 3)))
    a("v_lshlrev_b32 %s, 4, %s" % (v(T + 4), v(T + 4)))
    a("v_lshl_add_u32 %s, %s, 10, %s" % (v(V_XVO), v(T + 2), v(T + 4)))
    a("v_add_u32 %s, 0x10000, %s" % (v(V_XVO + 1), v(V_XVO)))
    a("v_lshlrev_b32 %s, 4, v0" % v(T + 12))
    a("s_lshl_b32 %s, %s, 3" % (s(S_T2), s(S_CGI)))
    a("s_add_u32 %s, %s, %s" % (s(S_T2), s(S_T2), s(S_W)))
    a("s_lshl_b32 %s, %s, 10" % (s(S_T2), s(S_T2)))
    a("s_add_u32 %s, %s, %s" % (s(S_T2), s(S_T2), s(S_R0B)))
    a("s_and_b32 %s, %s, 3" % (s(S_J), s(S_W)))
    a("s_lshr_b32 %s, %s, 2" % (s(S_M), s(S_W)))
    a("s_lshr_b32 %s, %s, 1" % (s(S_UU), s(S_CGI)))
    a("s_lshl_b32 %s, %s, 10" % (s(S_M0W), s(S_J)))
    stamp(a, 4, "st_pro")
    a("s_waitcnt lgkmcnt(0)")
    stamp(a, 5, "st_pro")
    srd(a, SRD_X, S_X, 2048 * 1024)
    a("buffer_load_dwordx4 %s, %s, %s, %s offen" % (v(V_CSP, 4), v(T + 12), s(SRD_X, 4), s(S_T2)))
    for h in range(2):
        pre, ld = x_load(h)
        for t_ in pre:
            a(t_)
        a("s_nop 0")
        for t_ in ld:
            a(t_)
    for g_ in x_adv():
        for t_ in g_:
            a(t_)


def prologue_late(a):
    a("s_load_dwordx2 %s, s[0:1], 16" % s(S_WO, 2))
    a("s_load_dwordx2 %s, s[0:1], 48" % s(S_WD, 2))
    a("s_load_dwordx2 %s, s[0:1], 56" % s(S_OUT, 2))
    a("s_and_b32 %s, s2, 7" % s(S_T0))
    a("s_lshr_b32 %s, s2, 3" % s(S_T1))
    a("s_lshr_b32 %s, %s, 3" % (s(S_T3), s(S_T1)))
    a("s_lshl_b32 %s, %s, 2" % (s(S2_TG), s(S_T0)))
    a("s_add_u32 %s, %s, %s" % (s(S2_TG), s(S2_TG), s(S_T3)))
    a("s_and_b32 %s, %s, 7" % (s(S2_CG2), s(S_T1)))
    a("s_mov_b32 %s, 0" % s(S_XSLOTR))
    a("s_mov_b32 %s, 0" % s(S_IT))
    a("s_lshr_b32 %s, %s, 3" % (s(S_T0), s(S_RB)))
    a("s_lshl_b32 %s, 1, %s" % (s(S_T0), s(S_T0)))
    a("s_cmp_eq_u32 %s, 0" % s(S_M))
    a("s_cselect_b32 %s, %s, 0" % (s(S_EV0), s(S_T0)))
    a("s_mov_b32 %s, 99" % s(S_EV1))
    if Cfg.merged:
        a("s_cmp_eq_u32 %s, 0" % s(S_W))
        a("s_cselect_b32 %s, 0x110, 0" % s(S_T0))
        a("s_cselect_b32 %s, 2, 99" % s(S_EV1))
        a("s_or_b32 %s, %s, %s" % (s(S_EV0), s(S_EV0), s(S_T0)))
    a("v_mov_b32 %s, %d" % (v(V_PADDR), WS_FA))
    a("v_mov_b32 %s, 0" % v(V_TAG))


def w_voffset_full(a, pitch, out):
    T = V_T
    a("v_lshrrev_b32 %s, 3, v0" % v(T))
    a("s_lshl_b32 %s, %s, 3" % (s(S_T0), s(S_J)))
    a("v_add_u32 %s, %s, %s" % (v(T), s(S_T0), v(T)))
    a("v_mul_u32_u24 %s, %d, %s" % (v(T), pitch, v(T)))
    a("v_bfe_u32 %s, v0, 4, 1" % v(T + 1))
    a("s_and_b32 %s, %s, 1" % (s(S_T0), s(S_J)))
    a("s_lshl_b32 %s, %s, 1" % (s(S_T0), s(S_T0)))
    a("v_or_b32 %s, %s, %s" % (v(T + 1), s(S_T0), v(T + 1)))
    a("v_bfe_u32 %s, v0, 1, 2" % v(T + 2))
    a("v_xor_b32 %s, %s, %s" % (v(T + 1), v(T + 1), v(T + 2)))
    a("v_lshl_add_u32 %s, %s, 5, %s" % (v(T), v(T + 1), v(T)))
    a("v_and_b32 %s, 1, v0" % v(T + 2))
    a("v_lshl_add_u32 %s, %s, 4, %s" % (v(out), v(T + 2), v(T)))


def w_voffset_g4(a, out):
    T = V_T
    a("v_lshrrev_b32 %s, 2, v0" % v(T))
    a("s_and_b32 %s, %s, 1" % (s(S_T0), s(S_J)))
    a("s_lshl_b32 %s, %s, 4" % (s(S_T0), s(S_T0)))
    a("v_add_u32 %s, %s, %s" % (v(T), s(S_T0), v(T)))
    a("v_mul_u32_u24 %s, 3584, %s" % (v(T), v(T)))
    a("v_lshrrev_b32 %s, 5, v0" % v(T + 1))
    a("s_and_b32 %s, %s, 2" % (s(S_T0), s(S_J)))
    a("v_or_b32 %s, %s, %s" % (v(T + 1), s(S_T0), v(T + 1)))
    a("v_and_b32 %s, 3, v0" % v(T + 2))
    a("v_xor_b32 %s, %s, %s" % (v(T + 1), v(T + 1), v(T + 2)))
    a("v_lshl_add_u32 %s, %s, 4, %s" % (v(out), v(T + 1), v(T)))


def y_cols(a):
    a("s_mul_i32 %s, %s, 320" % (s(S_T0), s(S_UU)))
    a("s_add_u32 %s, %s, 1024" % (s(S_T0), s(S_T0)))
    a("s_and_b32 %s, %s, 1" % (s(S_T1), s(S_UU)))
    a("s_lshl_b32 %s, %s, 6" % (s(S_T1), s(S_T1)))
    a("s_add_u32 %s, %s, %s" % (s(S_COL0), s(S_T0), s(S_T1)))
    a("s_add_u32 %s, %s, 128" % (s(S_COL1), s(S_COL0)))
    a("s_cmp_eq_u32 %s, 0" % s(S_T1))
    a("s_cselect_b32 %s, 256, 0" % s(S_T1))
    a("s_add_u32 %s, %s, %s" % (s(S_COL2), s(S_T0), s(S_T1)))


def variant_addresses(a, var):
    T = V_T
    if var.typ == 'X':
        w_voffset_full(a, var.pitch, V_WVO)
        a("s_lshl_b32 %s, %s, 7" % (s(S_COL0), s(S_UU)))
        a("v_add_u32 %s, %s, %s" % (v(V_WVO), s(S_COL0), v(V_WVO)))
        if var.m == 0:
            a("v_add_u32 %s, 1024, %s" % (v(V_WVO + 1), v(V_WVO)))
            a("v_add_u32 %s, 2048, %s" % (v(V_WVO + 2), v(V_WVO)))
    else:
        y_cols(a)
        w_voffset_full(a, var.pitch, V_WVO)
        a("v_add_u32 %s, %s, %s" % (v(V_WVO + 1), s(S_COL1), v(V_WVO)))
        a("v_add_u32 %s, %s, %s" % (v(V_WVO), s(S_COL0), v(V_WVO)))
        if var.m == 1:
            w_voffset_g4(a, V_WVO + 2)
            a("v_add_u32 %s, %s, %s" % (v(V_WVO + 2), s(S_COL2), v(V_WVO + 2)))
    a("s_mul_i32 %s, %s, %d" % (s(S_KOFF), s(S_KOFF), 32 * var.pitch))


def halo_addresses(a):
    T = V_T
    if True:
        for hh in range(2):
            a("v_lshrrev_b32 %s, 3, v0" % v(T))
            if hh:
                a("v_add_u32 %s, 8, %s" % (v(T), v(T)))
            a("v_lshrrev_b32 %s, 1, %s" % (v(T + 1), v(T)))
            a("v_and_b32 %s, 7, v0" % v(T + 2))
            a("v_xor_b32 %s, %s, %s" % (v(T + 1), v(T + 1), v(T + 2)))
            a("s_lshl_b32 %s, %s, 7" % (s(S_T0), s(S_RB)))
            a("s_sub_u32 %s, %s, 16" % (s(S_T0), s(S_T0)))
            a("v_add_u32 %s, %s, %s" % (v(T), s(S_T0), v(T)))
            a("v_max_i32 %s, 0, %s" % (v(T), v(T)))
            a("v_lshlrev_b32 %s, 10, %s" % (v(T), v(T)))
            a("v_lshl_add_u32 %s, %s, 4, %s" % (v(T + 13 + hh), v(T + 1), v(T)))


def halo_issue(a):
    T = V_T
    a("s_lshr_b32 %s, %s, 11" % (s(S_T0), s(S_HK)))
    a("s_add_u32 %s, %s, %s" % (s(S_T0), s(S_T0), s(S_W)))
    a("s_and_b32 %s, %s, 7" % (s(S_T0), s(S_T0)))
    for hh in range(2):
        a("s_lshl_b32 %s, %s, 11" % (s(S_T1), s(S_T0)))
        a("s_add_u32 m0, %s, %d" % (s(S_T1), HALO + hh * 1024))
        a("s_lshl_b32 %s, %s, 7" % (s(S_T1), s(S_T0)))
        a("buffer_load_dwordx4 %s, %s, %s offen lds" % (v(T + 13 + hh), s(SRD_X, 4), s(S_T1)))


def frag_lane_addresses(a, var):
    T = V_T
    a("v_lshrrev_b32 %s, 3, v0" % v(T))
    a("v_lshrrev_b32 %s, 4, v0" % v(T + 1))
    a("v_and_b32 %s, 15, v0" % v(T + 5))
    a("v_lshrrev_b32 %s, 1, %s" % (v(T + 6), v(T + 5)))
    a("v_xor_b32 %s, %s, %s" % (v(T + 6), v(T + 6), v(T + 1)))
    a("v_lshlrev_b32 %s, 4, %s" % (v(T + 6), v(T + 6)))
    a("v_lshl_add_u32 %s, %s, 7, %s" % (v(T + 6), v(T + 5), v(T + 6)))
    if var.typ == 'X':
        a("v_add_u32 %s, %d, %s" % (v(V_HL), HALO, v(T + 6)))
        a("v_xor_b32 %s, 64, %s" % (v(V_HL + 1), v(V_HL)))
    a("v_add_u32 %s, %d, %s" % (v(V_XL), XRING + var.m * 8192, v(T + 6)))
    a("v_xor_b32 %s, 64, %s" % (v(V_XL + 1), v(V_XL)))
    a("v_bfe_u32 %s, v0, 2, 2" % v(T + 7))
    a("v_lshl_add_u32 %s, %s, 3, %s" % (v(T + 7), v(T + 1), v(T + 7)))
    a("v_and_b32 %s, 3, %s" % (v(T + 8), v(T)))
    a("v_xor_b32 %s, %s, %s" % (v(T + 8), s(S_J), v(T + 8)))
    a("v_lshlrev_b32 %s, 5, %s" % (v(T + 8), v(T + 8)))
    a("v_lshl_add_u32 %s, %s, 7, %s" % (v(T + 8), v(T + 7), v(T + 8)))
    a("v_and_b32 %s, 3, v0" % v(T + 9))
    a("v_lshl_add_u32 %s, %s, 3, %s" % (v(V_WL), v(T + 9), v(T + 8)))
    a("v_add_u32 %s, %d, %s" % (v(V_WL3), 3 * WSLOT, v(V_WL)))
    if var.typ == 'Y':
        a("v_and_b32 %s, 1, %s" % (v(T + 10), v(T + 1)))
        a("v_and_b32 %s, 2, %s" % (v(T + 11), v(T + 9)))
        a("v_or_b32 %s, %s, %s" % (v(T + 10), v(T + 10), v(T + 11)))
        a("v_xor_b32 %s, %s, %s" % (v(T + 10), s(S_J), v(T + 10)))
        a("v_lshlrev_b32 %s, 4, %s" % (v(T + 10), v(T + 10)))
        a("v_lshl_add_u32 %s, %s, 6, %s" % (v(T + 10), v(T + 7), v(T + 10)))
        a("v_lshl_add_u32 %s, %s, 10, %s" % (v(T + 10), v(T + 11), v(T + 10)))
        a("v_and_b32 %s, 1, %s" % (v(T + 11), v(T + 9)))
        a("v_lshl_add_u32 %s, %s, 3, %s" % (v(T + 10), v(T + 11), v(T + 10)))
        a("v_add_u32 %s, 16384, %s" % (v(V_WM), v(T + 10)))
        a("v_add_u32 %s, %d, %s" % (v(V_WM3), 3 * WSLOT, v(V_WM)))
    for i in range(4):
        a("v_mov_b32 %s, 0x3f803f80" % v(V_ONES + i))
    if var.m == 0:
        a("s_mul_i32 %s, %s, 20480" % (s(S_T0), s(S_CGI)))
        a("s_mul_i32 %s, %s, 1280" % (s(S_T1), s(S_RB)))
        a("s_add_u32 %s, %s, %s" % (s(S_T0), s(S_T0), s(S_T1)))
        a("s_lshl_b32 %s, %s, 6" % (s(S_T1), s(S_J)))
        a("s_add_u32 %s, %s, %s" % (s(S_T0), s(S_T0), s(S_T1)))
        a("s_add_u32 %s, %s, %d" % (s(S_T0), s(S_T0), WS_CSP))
        a("v_lshlrev_b32 %s, 4, %s" % (v(V_CSST), v(T + 1)))
        a("v_add_u32 %s, %s, %s" % (v(V_CSST), s(S_T0), v(V_CSST)))
        a("v_cmp_eq_u32 vcc, 0, %s" % v(T + 5))
        a("v_mov_b32 %s, 0x%x" % (v(T + 11), OOB))
        a("s_nop 0")
        a("v_cndmask_b32 %s, %s, %s, vcc" % (v(V_CSST), v(T + 11), v(V_CSST)))


def stats_compute(a):
    T = V_T
    A = T
    for i in range(4):
        a("v_lshlrev_b32 %s, 16, %s" % (v(A + 2 * i), v(V_CSP + i)))
        a("v_and_b32 %s, 0xffff0000, %s" % (v(A + 2 * i + 1), v(V_CSP + i)))
    R = T + 8
    a("v_add_f32 %s, %s, %s" % (v(R), v(A), v(A + 1)))
    a("v_add_f32 %s, %s, %s" % (v(R + 1), v(A + 2), v(A + 3)))
    a("v_add_f32 %s, %s, %s" % (v(R + 2), v(A + 4), v(A + 5)))
    a("v_add_f32 %s, %s, %s" % (v(R + 3), v(A + 6), v(A + 7)))
    a("v_add_f32 %s, %s, %s" % (v(R), v(R), v(R + 1)))
    a("v_add_f32 %s, %s, %s" % (v(R + 2), v(R + 2), v(R + 3)))
    a("v_add_f32 %s, %s, %s" % (v(R), v(R), v(R + 2)))
    a("s_nop 1")
    allreduce16(a, [R])
    allreduce_rows(a, R, R + 1)
    a("v_mul_f32 %s, %s, %s" % (v(R), hexf(1.0 / 512), v(R)))
    for i in range(8):
        a("v_sub_f32 %s, %s, %s" % (v(A + i), v(A + i), v(R)))
    a("v_mul_f32 %s, %s, %s" % (v(R + 1), v(A), v(A)))
    a("v_mul_f32 %s, %s, %s" % (v(R + 2), v(A + 1), v(A + 1)))
    for i in range(2, 8, 2):
        a("v_fmac_f32 %s, %s, %s" % (v(R + 1), v(A + i), v(A + i)))
        a("v_fmac_f32 %s, %s, %s" % (v(R + 2), v(A + i + 1), v(A + i + 1)))
    a("v_add_f32 %s, %s, %s" % (v(R + 1), v(R + 1), v(R + 2)))
    a("s_nop 1")
    allreduce16(a, [R + 1])
    allreduce_rows(a, R + 1, R + 2)
    a("v_mov_b32 %s, %s" % (v(R + 2), hexf(1e-5)))
    a("v_fmac_f32 %s, %s, %s" % (v(R + 2), hexf(1.0 / 512), v(R + 1)))
    a("v_rsq_f32 %s, %s" % (v(R + 1), v(R + 2)))
    a("s_lshl_b32 %s, %s, 3" % (s(S_T0), s(S_CGI)))
    a("s_add_u32 %s, %s, %s" % (s(S_T0), s(S_T0), s(S_W)))
    a("s_lshl_b32 %s, %s, 7" % (s(S_T1), s(S_RB)))
    a("s_add_u32 %s, %s, %s" % (s(S_T0), s(S_T0), s(S_T1)))
    a("s_lshl_b32 %s, %s, 3" % (s(S_T0), s(S_T0)))
    a("s_add_u32 %s, %s, %d" % (s(S_T0), s(S_T0), WS_STATS))
    a("v_mov_b32 %s, 0x%x" % (v(R + 2), OOB))
    a("v_writelane_b32 %s, %s, 0" % (v(R + 2), s(S_T0)))
    a("s_nop 1")
    a("buffer_store_dwordx2 %s, %s, %s, 0 offen sc1" % (v(R, 2), v(R + 2), s(SRD_WS, 4)))


def tail_loads():
    T = V_T
    g = []
    g.append("s_mul_i32 %s, %s, 20480" % (s(S_T0), s(S_CGI)))
    g.append("s_lshl_b32 %s, %s, 6" % (s(S_T1), s(S_W)))
    g.append("s_add_u32 %s, %s, %s" % (s(S_T0), s(S_T0), s(S_T1)))
    g.append("s_add_u32 %s, %s, %d" % (s(S_T0), s(S_T0), WS_CSP))
    g.append("v_and_b32 %s, 15, v0" % v(T))
    g.append("v_mul_u32_u24 %s, 1280, %s" % (v(T), v(T)))
    g.append("v_lshrrev_b32 %s, 4, v0" % v(T + 1))
    g.append("v_lshl_add_u32 %s, %s, 4, %s" % (v(T), v(T + 1), v(T)))
    g.append("v_add_u32 %s, %s, %s" % (v(T), s(S_T0), v(T)))
    g.append("buffer_load_dwordx4 %s, %s, %s, 0 offen sc1" % (v(V_CSP, 4), v(T), s(SRD_WS, 4)))
    g.append("buffer_load_dwordx4 %s, %s, %s, 0 offen offset:512 sc1" % (v(V_CSP + 4, 4), v(T), s(SRD_WS, 4)))
    g.append("buffer_load_dwordx4 %s, %s, %s, 0 offen offset:1024 sc1" % (v(V_CSP + 8, 4), v(T), s(SRD_WS, 4)))
    g.append("s_lshl_b32 %s, %s, 6" % (s(S_T0), s(S_W)))
    g.append("s_lshl_b32 %s, %s, 7" % (s(S_T1), s(S_RB)))
    g.append("s_add_u32 %s, %s, %s" % (s(S_T0), s(S_T0), s(S_T1)))
    g.append("s_sub_u32 %s, %s, 16" % (s(S_T0), s(S_T0)))
    g.append("v_add_u32 %s, %s, v0" % (v(T + 2), s(S_T0)))
    g.append("v_max_i32 %s, 0, %s" % (v(T + 2), v(T + 2)))
    g.append("v_min_i32 %s, 2047, %s" % (v(T + 2), v(T + 2)))
    g.append("v_lshlrev_b32 %s, 3, %s" % (v(T + 2), v(T + 2)))
    g.append("v_add_u32 %s, %d, %s" % (v(T + 2), WS_STATS, v(T + 2)))
    g.append("buffer_load_dwordx2 %s, %s, %s, 0 offen sc1" % (v(V_STAT, 2), v(T + 2), s(SRD_WS, 4)))
    return g


def k2_setup_fillers():
    T = V_T + 4
    g = []
    g.append("s_mov_b32 %s, 0x%x" % (s(S_T0), 512 * 1024))
    g.append("s_mov_b32 %s, 0x%x" % (s(S_T1), 1792 * 1024))
    g.append("\n".join([
        "s_cmp_eq_u32 %s, 0" % s(S_M),
        "s_cselect_b32 %s, %s, %s" % (s(R_W), s(S_WO), s(S_WD)),
        "s_cselect_b32 %s, %s, %s" % (s(R_W + 1), s(S_WO + 1), s(S_WD + 1)),
        "s_cselect_b32 %s, 0, %d" % (s(S2_WROW), 20 * 32768),
        "s_cselect_b32 %s, %s, %s" % (s(R_W + 2), s(S_T0), s(S_T1))]))
    g.append("s_and_b32 %s, %s, 0xffff" % (s(R_W + 1), s(R_W + 1)))
    g.append("s_mov_b32 %s, 0x20000" % s(R_W + 3))
    g.append("s_lshl_b32 %s, %s, 12" % (s(S2_M0B), s(S_M)))
    g.append("s_lshl_b32 %s, %s, 10" % (s(S_T0), s(S_J)))
    g.append("s_add_u32 %s, %s, %s" % (s(S2_M0B), s(S2_M0B), s(S_T0)))
    g.append("v_lshrrev_b32 %s, 3, v0" % v(T))
    g.append("s_lshl_b32 %s, %s, 3" % (s(S_T0), s(S_J)))
    g.append("v_add_u32 %s, %s, %s" % (v(T), s(S_T0), v(T)))
    g.append("v_lshlrev_b32 %s, 10, %s" % (v(T), v(T)))
    g.append("v_bfe_u32 %s, v0, 4, 1" % v(T + 1))
    g.append("s_and_b32 %s, %s, 1" % (s(S_T0), s(S_J)))
    g.append("s_lshl_b32 %s, %s, 1" % (s(S_T0), s(S_T0)))
    g.append("v_or_b32 %s, %s, %s" % (v(T + 1), s(S_T0), v(T + 1)))
    g.append("v_bfe_u32 %s, v0, 1, 2" % v(T + 2))
    g.append("v_xor_b32 %s, %s, %s" % (v(T + 1), v(T + 1), v(T + 2)))
    g.append("v_lshl_add_u32 %s, %s, 5, %s" % (v(T), v(T + 1), v(T)))
    g.append("v_and_b32 %s, 1, v0" % v(T + 2))
    g.append("v_lshl_add_u32 %s, %s, 4, %s" % (v(T), v(T + 2), v(T)))
    g.append("s_lshl_b32 %s, %s, 7" % (s(S_T0), s(S2_CG2)))
    g.append("v_add_u32 %s, %s, %s" % (v(V_W2VO), s(S_T0), v(T)))
    return g


def touch_fillers():
    T = V_T + 8
    g = []
    g.append("s_and_b32 %s, %s, 3" % (s(S_T0), s(S2_TG)))
    g.append("s_lshl_b32 %s, %s, 2" % (s(S_T0), s(S_T0)))
    g.append("s_add_u32 %s, %s, %s" % (s(S_T0), s(S_T0), s(S_J)))
    g.append("s_mul_i32 %s, %s, 44" % (s(S_T0), s(S_T0)))
    g.append("s_mul_i32 %s, %s, 1088" % (s(S_T1), s(S_M)))
    g.append("s_add_u32 %s, %s, %s" % (s(S_T0), s(S_T0), s(S_T1)))
    g.append("v_min_u32 %s, 43, v0" % v(T))
    g.append("v_add_u32 %s, %s, %s" % (v(T), s(S_T0), v(T)))
    g.append("v_lshlrev_b32 %s, 10, %s" % (v(T), v(T)))
    g.append("s_lshl_b32 %s, %s, 7" % (s(S_T0), s(S2_CG2)))
    g.append("v_add_u32 %s, %s, %s" % (v(T), s(S_T0), v(T)))
    g.append("s_mov_b32 %s, %s" % (s(SRD_U), s(S_WD)))
    g.append("s_and_b32 %s, %s, 0xffff" % (s(SRD_U + 1), s(S_WD + 1)))
    g.append("s_mov_b32 %s, 0x%x" % (s(SRD_U + 2), 1792 * 1024))
    g.append("s_mov_b32 %s, 0x20000" % s(SRD_U + 3))
    g.append("buffer_load_dword %s, %s, %s, 0 offen" % (v(V_DUMMY), v(T), s(SRD_U, 4)))
    return g


def bias_fillers(var):
    T = V_T + 12
    g = []
    g.append("v_and_b32 %s, 15, v0" % v(T))
    g.append("v_lshrrev_b32 %s, 4, v0" % v(T + 1))
    g.append("v_lshlrev_b32 %s, 2, %s" % (v(T + 1), v(T + 1)))
    g.append("v_sub_u32 %s, %s, %s" % (v(T + 2), v(T), v(T + 1)))
    g.append("v_mov_b32 %s, %s" % (v(T + 3), hexf(-1e30)))
    for r in range(4):
        g.append("v_subrev_u32 %s, %d, %s" % (v(T + 4), r, v(T + 2)))
        g.append("v_and_b32 %s, 0x80000001, %s" % (v(T + 5), v(T + 4)))
        g.append("v_sub_u32 %s, -2, %s" % (v(T + 4), v(T + 4)))
        g.append("v_cmp_eq_u32 vcc, 0, %s" % v(T + 5))
        g.append("v_and_b32 %s, 0x80000001, %s" % (v(T + 4), v(T + 4)))
        g.append("s_nop 0")
        g.append("v_cndmask_b32_e64 %s, %s, 0, vcc" % (v(BC + r), v(T + 3)))
        g.append("v_cmp_eq_u32 vcc, 0, %s" % v(T + 4))
        g.append("s_nop 1")
        g.append("v_cndmask_b32_e64 %s, %s, 0, vcc" % (v(BP + r), v(T + 3)))
    if var.m == 0:
        g.append("s_cmp_eq_u32 %s, 0" % s(S_RB))
        g.append("s_cselect_b64 vcc, -1, 0")
        g.append("s_nop 0")
        for r in range(4):
            g.append("v_cndmask_b32 %s, %s, %s, vcc" % (v(BP0 + r), v(BP + r), v(T + 3)))
    else:
        for r in range(4):
            g.append("v_mov_b32 %s, %s" % (v(BP0 + r), v(BP + r)))
    return g


def tail_reduce():
    g = []
    regs = [V_CSP + i for i in range(12)]
    for ror in (8, 4, 2, 1):
        for r in regs:
            g.append("v_add_f32_dpp %s, %s, %s row_ror:%d row_mask:0xf bank_mask:0xf" % (v(r), v(r), v(r), ror))
    return g


V_CSW, V_CSW3, V_STW = 32, 33, 34


def publish_addr():
    T = V_T + 4
    g = []
    g.append("v_lshlrev_b32 %s, 4, v0" % v(T))
    g.append("v_add_u32 %s, %d, %s" % (v(T), LB + O_XBUF, v(T)))
    g.append("v_and_b32 %s, 48, v0" % v(T + 1))
    g.append("s_lshl_b32 %s, %s, 6" % (s(S_T0), s(S_W)))
    g.append("s_add_u32 %s, %s, %d" % (s(S_T0), s(S_T0), LB + O_CS))
    g.append("v_add_u32 %s, %s, %s" % (v(T + 1), s(S_T0), v(T + 1)))
    g.append("v_and_b32 %s, 15, v0" % v(T + 2))
    g.append("v_cmp_eq_u32 vcc, 0, %s" % v(T + 2))
    g.append("s_lshl_b32 %s, %s, 6" % (s(S_T1), s(S_W)))
    g.append("v_add_u32 %s, %s, v0" % (v(T + 3), s(S_T1)))
    g.append("v_cndmask_b32 %s, %s, %s, vcc" % (v(V_CSW), v(T), v(T + 1)))
    g.append("s_cmp_lt_u32 %s, 4\ns_cselect_b64 %s, vcc, 0" % (s(S_W), s(S_EX, 2)))
    g.append("v_add_u32 %s, 1024, %s" % (v(T + 1), v(T + 1)))
    g.append("v_cndmask_b32 %s, %s, %s, %s" % (v(V_CSW3), v(T), v(T + 1), s(S_EX, 2)))
    g.append("v_cmp_gt_u32 vcc, 144, %s" % v(T + 3))
    g.append("v_lshlrev_b32 %s, 2, %s" % (v(T + 3), v(T + 3)))
    g.append("v_add_u32 %s, %d, %s" % (v(T + 3), LB, v(T + 3)))
    g.append("s_nop 0")
    g.append("v_cndmask_b32 %s, %s, %s, vcc" % (v(V_STW), v(T), v(T + 3)))
    return g


def publish_writes():
    return ["ds_write_b128 %s, %s" % (v(V_CSW), v(V_CSP, 4)),
            "ds_write_b128 %s, %s offset:512" % (v(V_CSW), v(V_CSP + 4, 4)),
            "ds_write_b128 %s, %s" % (v(V_CSW3), v(V_CSP + 8, 4)),
            "ds_write_b32 %s, %s offset:%d" % (v(V_STW), v(V_STAT), O_MEAN),
            "ds_write_b32 %s, %s offset:%d" % (v(V_STW), v(V_STAT + 1), O_RSTD)]


class BG:
    def __init__(self, a, groups):
        self.a = a
        self.groups = list(groups)

    def tick(self, n=1):
        for _ in range(n):
            if self.groups:
                for t in self.groups.pop(0):
                    self.a(t)

    def flush(self):
        self.tick(len(self.groups))


def w2_load_group(tile):
    adv = ["s_add_u32 %s, %s, 32768" % (s(S2_WROW), s(S2_WROW))]
    pre = "s_add_u32 m0, %s, %d" % (s(S2_M0B), (tile % NTILE2) * TILE2)
    ld = "buffer_load_dwordx4 %s, %s, %s offen lds" % (v(V_W2VO), s(R_W, 4), s(S2_WROW))
    if tile == 15:
        adv = "\n".join([
            "s_add_u32 %s, %s, 32768" % (s(S2_WROW), s(S2_WROW)),
            "s_cmp_eq_u32 %s, 0" % s(S_M),
            "s_cselect_b32 %s, 0, %s" % (s(S2_WROW), s(S2_WROW)),
            "s_mov_b32 %s, %s" % (s(R_W), s(S_WD)),
            "s_and_b32 %s, %s, 0xffff" % (s(R_W + 1), s(S_WD + 1)),
            "s_mov_b32 %s, 0x%x" % (s(R_W + 2), 1792 * 1024),
            "s_mov_b32 %s, 0x20000" % s(R_W + 3)])
        return [pre, "s_nop 0", ld, adv]
    return [pre, "s_nop 0", ld, adv[0]]


S_C0 = 64


def gelu_tile(a, G, U, mt, rt, csg, csu, tmp, out, vc1):
    H = (0, 2)
    for h in H:
        a(pk("fma", G + h, [('b', mt), ('p', csg + h), ('p', G + h)], neg=[1, 0, 0]))
    for h in H:
        a(pk("fma", U + h, [('b', mt), ('p', csu + h), ('p', U + h)], neg=[1, 0, 0]))
    for h in H:
        a(pk("mul", G + h, [('b', rt), ('p', G + h)]))
    for h in H:
        a(pk("mul", U + h, [('b', rt), ('p', U + h)]))
    for h in H:
        a(pk("mul", tmp + h, [('p', G + h), ('p', G + h)]))
    for h in H:
        a(pk("fma", tmp + h, [('p', tmp + h), ('b', vc1), ('s', S_C0)]))
    for h in H:
        a(pk("mul", tmp + h, [('p', tmp + h), ('p', G + h)]))
    for r in range(4):
        a("v_exp_f32 %s, %s" % (v(tmp + r), v(tmp + r)))
    for h in H:
        a(pk("mul", U + h, [('p', G + h), ('p', U + h)]))
    for h in H:
        a(pk("add", tmp + h, [('p', tmp + h), ('c', "1.0")]))
    for r in range(4):
        a("v_rcp_f32 %s, %s" % (v(tmp + r), v(tmp + r)))
    a("s_nop 0")
    for h in H:
        a(pk("mul", U + h, [('p', tmp + h), ('p', U + h)]))
    a("v_cvt_pk_bf16_f32 %s, %s, %s" % (v(out), v(U), v(U + 1)))
    a("v_cvt_pk_bf16_f32 %s, %s, %s" % (v(out + 1), v(U + 2), v(U + 3)))


def gelu_tiles2(a, tiles, tmp, vc1):
    H = (0, 2)
    T = [tmp, tmp + 4]
    for (G, U, mt, rt, csg, csu, out) in tiles:
        for h in H:
            a(pk("fma", G + h, [('b', mt), ('p', csg + h), ('p', G + h)], neg=[1, 0, 0]))
    for (G, U, mt, rt, csg, csu, out) in tiles:
        for h in H:
            a(pk("mul", G + h, [('b', rt), ('p', G + h)]))
    for i, (G, U, mt, rt, csg, csu, out) in enumerate(tiles):
        for h in H:
            a(pk("mul", T[i] + h, [('p', G + h), ('p', G + h)]))
    for (G, U, mt, rt, csg, csu, out) in tiles:
        for h in H:
            a(pk("fma", U + h, [('b', mt), ('p', csu + h), ('p', U + h)], neg=[1, 0, 0]))
    for i, (G, U, mt, rt, csg, csu, out) in enumerate(tiles):
        for h in H:
            a(pk("fma", T[i] + h, [('p', T[i] + h), ('b', vc1), ('s', S_C0)]))
    for (G, U, mt, rt, csg, csu, out) in tiles:
        for h in H:
            a(pk("mul", U + h, [('b', rt), ('p', U + h)]))
    for i, (G, U, mt, rt, csg, csu, out) in enumerate(tiles):
        for h in H:
            a(pk("mul", T[i] + h, [('p', T[i] + h), ('p', G + h)]))
    for i in range(len(tiles)):
        for r in range(4):
            a("v_exp_f32 %s, %s" % (v(T[i] + r), v(T[i] + r)))
    for (G, U, mt, rt, csg, csu, out) in tiles:
        for h in H:
            a(pk("mul", U + h, [('p', G + h), ('p', U + h)]))
    for i in range(len(tiles)):
        for h in H:
            a(pk("add", T[i] + h, [('p', T[i] + h), ('c', "1.0")]))
    for i in range(len(tiles)):
        for r in range(4):
            a("v_rcp_f32 %s, %s" % (v(T[i] + r), v(T[i] + r)))
    a("s_nop 0")
    for i, (G, U, mt, rt, csg, csu, out) in enumerate(tiles):
        for h in H:
            a(pk("mul", U + h, [('p', T[i] + h), ('p', U + h)]))
    for (G, U, mt, rt, csg, csu, out) in tiles:
        a("v_cvt_pk_bf16_f32 %s, %s, %s" % (v(out), v(U), v(U + 1)))
        a("v_cvt_pk_bf16_f32 %s, %s, %s" % (v(out + 1), v(U + 2), v(U + 3)))


def norm_ct(a, A, mt, rt, cs, out):
    for h in (0, 2):
        a(pk("fma", A + h, [('b', mt), ('p', cs + h), ('p', A + h)], neg=[1, 0, 0]))
    for h in (0, 2):
        a(pk("mul", A + h, [('b', rt), ('p', A + h)]))
    a("v_cvt_pk_bf16_f32 %s, %s, %s" % (v(out), v(A), v(A + 1)))
    a("v_cvt_pk_bf16_f32 %s, %s, %s" % (v(out + 1), v(A + 2), v(A + 3)))


def norm_ct4(a, As, mts, rts, cs, outs):
    for A, mt in zip(As, mts):
        for h in (0, 2):
            a(pk("fma", A + h, [('b', mt), ('p', cs + h), ('p', A + h)], neg=[1, 0, 0]))
    for A, rt in zip(As, rts):
        for h in (0, 2):
            a(pk("mul", A + h, [('b', rt), ('p', A + h)]))
    for A, out in zip(As, outs):
        a("v_cvt_pk_bf16_f32 %s, %s, %s" % (v(out), v(A), v(A + 1)))
        a("v_cvt_pk_bf16_f32 %s, %s, %s" % (v(out + 1), v(A + 2), v(A + 3)))


def norm_v(a, A, mv, rv, csv, out):
    for h in (0, 2):
        a(pk("fma", A + h, [('p', mv + h), ('b', csv), ('p', A + h)], neg=[1, 0, 0]))
    for h in (0, 2):
        a(pk("mul", A + h, [('p', rv + h), ('p', A + h)]))
    a("v_cvt_pk_bf16_f32 %s, %s, %s" % (v(out), v(A), v(A + 1)))
    a("v_cvt_pk_bf16_f32 %s, %s, %s" % (v(out + 1), v(A + 2), v(A + 3)))


def act_store_pairs(a, P, vaddr):
    a("s_nop 1")
    a("v_permlane16_swap_b32 %s, %s" % (v(P), v(P + 2)))
    a("v_permlane16_swap_b32 %s, %s" % (v(P + 1), v(P + 3)))
    a("v_permlane16_swap_b32 %s, %s" % (v(P + 4), v(P + 6)))
    a("v_permlane16_swap_b32 %s, %s" % (v(P + 5), v(P + 7)))
    a("s_mov_b32 %s, %d" % (s(S_T3), 2 * ACT_T))
    a("buffer_store_dwordx4 %s, %s, %s, 0 offen %s" % (v(P, 4), v(vaddr), s(SRD_WS, 4), Cfg.sc))
    a("buffer_store_dwordx4 %s, %s, %s, %s offen %s" % (v(P + 4, 4), v(vaddr), s(SRD_WS, 4), s(S_T3), Cfg.sc))


def act_addr_base(a, vout, T, m):
    a("v_bfe_u32 %s, v0, 4, 1" % v(T + 1))
    a("s_lshl_b32 %s, %s, 3" % (s(S_T0), s(S_RB)))
    a("s_add_u32 %s, %s, %d" % (s(S_T0), s(S_T0), 4 * m))
    a("v_add_u32 %s, %s, %s" % (v(T + 1), s(S_T0), v(T + 1)))
    a("v_mul_u32_u24 %s, %d, %s" % (v(T + 1), ACT_T, v(T + 1)))
    a("v_lshrrev_b32 %s, 5, v0" % v(T))
    a("v_lshl_add_u32 %s, %s, 8, %s" % (v(T + 1), v(T), v(T + 1)))
    a("v_and_b32 %s, 15, v0" % v(T))
    a("v_lshl_add_u32 %s, %s, 4, %s" % (v(vout), v(T), v(T + 1)))


def lane_mask(fn):
    m = 0
    for l in range(64):
        if fn(l & 15, l >> 4):
            m |= 1 << l
    return m


def smov64(a, reg, val):
    a("s_mov_b32 %s, 0x%x" % (s(reg), val & 0xffffffff))
    a("s_mov_b32 %s, 0x%x" % (s(reg + 1), val >> 32))


M_PAR, M_CA, M_CB, M_FA, M_FB = 28, 30, 36, 38, 52


def epilogue_x(a, var, bg):
    m = var.m
    MT, RT = 48, 52
    MH, RH = 56, 57
    CSQ, CSK, CSG, CSU = 60, 64, 68, 72
    CSV = 58
    MV, RV = 76, 92
    MVH, RVH = 108, 112
    KP = 116
    VP = 212
    QP = 222
    MK = 232
    HP = 244
    RQ = 252
    TMP = 20
    A_I16, A_G16 = 10, 11
    V_C1 = 12
    V_AO, V_AHH = 13, 14
    a.comment("---- X epilogue m=%d ----" % m)
    stamp(a, 3, "st_epi")
    a("v_and_b32 %s, 15, v0" % v(TMP))
    a("v_lshlrev_b32 %s, 2, %s" % (v(A_I16), v(TMP)))
    a("v_add_u32 %s, %d, %s" % (v(A_I16), LB, v(A_I16)))
    a("v_and_b32 %s, 48, v0" % v(A_G16))
    a("v_add_u32 %s, %d, %s" % (v(A_G16), LB, v(A_G16)))
    base = (16 + 64 * m) * 4
    a("s_lshl_b32 %s, %s, 6" % (s(S_T0), s(S_J)))
    a("v_add_u32 %s, %s, %s" % (v(TMP + 2), s(S_T0), v(A_G16)))
    a("v_add_u32 %s, %s, %s" % (v(TMP + 3), s(S_T0), v(A_I16)))
    a("ds_read_b128 %s, %s offset:%d" % (v(CSK, 4), v(TMP + 2), O_CS + 256))
    for t in range(4):
        a("ds_read_b32 %s, %s offset:%d" % (v(MT + t), v(A_I16), O_MEAN + base + t * 64))
        a("ds_read_b32 %s, %s offset:%d" % (v(RT + t), v(A_I16), O_RSTD + base + t * 64))
    a("ds_read_b32 %s, %s offset:%d" % (v(CSV), v(TMP + 3), O_CS + 512))
    a("ds_read_b128 %s, %s offset:%d" % (v(MV + 12, 4), v(A_G16), O_MEAN + base + 3 * 64))
    a("ds_read_b128 %s, %s offset:%d" % (v(RV + 12, 4), v(A_G16), O_RSTD + base + 3 * 64))
    if m == 0:
        a("ds_read_b32 %s, %s offset:%d" % (v(MH), v(A_I16), O_MEAN))
        a("ds_read_b32 %s, %s offset:%d" % (v(RH), v(A_I16), O_RSTD))
    else:
        a("ds_read_b128 %s, %s offset:%d" % (v(MVH, 4), v(A_G16), O_MEAN))
        a("ds_read_b128 %s, %s offset:%d" % (v(RVH, 4), v(A_G16), O_RSTD))
    a("v_mov_b32 %s, %s" % (v(V_C1), hexf(C1)))
    a("s_mov_b32 %s, %s" % (s(S_C0), hexf(C0)))
    par = lane_mask(lambda i, g: i & 1)
    ca = lane_mask(lambda i, g: 4 * g + (i & 1) <= i)
    cb = lane_mask(lambda i, g: 4 * g + (i & 1) + 2 <= i)
    smov64(a, M_PAR, par)
    smov64(a, M_CA, ca)
    smov64(a, M_CB, cb)
    if m == 0:
        a("s_cmp_eq_u32 %s, 0" % s(S_RB))
        a("s_cselect_b32 %s, -1, 0" % s(S_T0))
        a("s_andn2_b32 %s, %s, %s" % (s(M_FA), s(S_T0), s(M_CA)))
        a("s_andn2_b32 %s, %s, %s" % (s(M_FA + 1), s(S_T0), s(M_CA + 1)))
        a("s_andn2_b32 %s, %s, %s" % (s(M_FB), s(S_T0), s(M_CB)))
        a("s_andn2_b32 %s, %s, %s" % (s(M_FB + 1), s(S_T0), s(M_CB + 1)))
    a("v_mov_b32 %s, 0xffff" % v(TMP + 5))
    a("v_mov_b32 %s, 0xffff0000" % v(TMP + 6))
    a("v_cndmask_b32 %s, %s, %s, %s" % (v(TMP + 5), v(TMP + 5), v(TMP + 6), s(M_PAR, 2)))
    a("v_cndmask_b32 %s, %s, 0, %s" % (v(MK), v(TMP + 5), s(M_CA, 2)))
    a("v_cndmask_b32 %s, %s, 0, %s" % (v(MK + 1), v(TMP + 5), s(M_CB, 2)))
    a("v_cndmask_b32 %s, 0, %s, %s" % (v(MK + 2), v(TMP + 5), s(M_CA, 2)))
    a("v_cndmask_b32 %s, 0, %s, %s" % (v(MK + 3), v(TMP + 5), s(M_CB, 2)))
    a("s_mul_i32 %s, %s, 1536" % (s(S_T0), s(S_J)))
    a("s_add_u32 %s, %s, %d" % (s(S_T0), s(S_T0), LB))
    a("v_lshlrev_b32 %s, 3, v0" % v(TMP + 4))
    a("v_add_u32 %s, %s, %s" % (v(TMP + 4), s(S_T0), v(TMP + 4)))
    bg.tick()
    a("s_waitcnt lgkmcnt(0)")
    stamp(a, 4, "st_epi")
    for t in range(3):
        a("ds_read_b128 %s, %s offset:%d" % (v(MV + 4 * t, 4), v(A_G16), O_MEAN + base + t * 64))
        a("ds_read_b128 %s, %s offset:%d" % (v(RV + 4 * t, 4), v(A_G16), O_RSTD + base + t * 64))
    a("ds_read_b128 %s, %s offset:%d" % (v(CSG, 4), v(TMP + 2), O_CS + 768))
    a("ds_read_b128 %s, %s offset:%d" % (v(CSU, 4), v(TMP + 2), O_CS + 1024))
    a("ds_read_b128 %s, %s offset:%d" % (v(CSQ, 4), v(TMP + 2), O_CS))
    if m == 0:
        norm_ct(a, ACC(1, 3), MT + 3, RT + 3, CSK, KP + 8)
        norm_v(a, ACC(2, 3), MV + 12, RV + 12, CSV, VP + 8)
        a("ds_write_b64 %s, %s offset:%d" % (v(TMP + 4), v(KP + 8, 2), O_XBUF))
        a("ds_write_b64 %s, %s offset:%d" % (v(TMP + 4), v(VP + 8, 2), O_XBUF + 512))
        norm_ct4(a, [ACC(1, t) for t in range(3)] + [V_AH], [MT + t for t in range(3)] + [MH],
                 [RT + t for t in range(3)] + [RH], CSK, [KP + 2 + 2 * t for t in range(3)] + [KP])
    else:
        norm_v(a, V_AH, MVH, RVH, CSV, VP)
        a("ds_write_b64 %s, %s offset:%d" % (v(TMP + 4), v(VP, 2), O_XBUF + 1024))
        norm_ct4(a, [ACC(1, t) for t in range(4)], [MT + t for t in range(4)], [RT + t for t in range(4)], CSK,
                 [KP + 2 + 2 * t for t in range(4)])
        norm_v(a, ACC(2, 3), MV + 12, RV + 12, CSV, VP + 8)
    bg.tick()
    a("s_waitcnt lgkmcnt(0)")
    stamp(a, 5, "st_epi")
    for t0 in (0, 2):
        gelu_tiles2(a, [(ACC(3, t), ACC(4, t), MT + t, RT + t, CSG, CSU, HP + 2 * t) for t in (t0, t0 + 1)], TMP + 8, V_C1)
        bg.tick(2)
    act_addr_base(a, V_AO, TMP + 6, m)
    a("s_lshl_b32 %s, %s, 11" % (s(S_T0), s(S_UU)))
    a("s_lshl_b32 %s, %s, 9" % (s(S_T1), s(S_J)))
    a("s_add_u32 %s, %s, %s" % (s(S_T0), s(S_T0), s(S_T1)))
    a("v_add_u32 %s, %s, %s" % (v(V_AO), s(S_T0), v(V_AO)))
    a("v_add_u32 %s, %d, %s" % (v(V_AHH), 16 * 1024, v(V_AO)))
    act_store_pairs(a, HP, V_AHH)
    stamp(a, 6, "st_epi")
    a("s_barrier")
    stamp(a, 7, "st_epi")
    if m == 0:
        a("ds_read_b64 %s, %s offset:%d" % (v(VP, 2), v(TMP + 4), O_XBUF + 1024))
    else:
        a("ds_read_b64 %s, %s offset:%d" % (v(KP, 2), v(TMP + 4), O_XBUF))
        a("ds_read_b64 %s, %s offset:%d" % (v(VP, 2), v(TMP + 4), O_XBUF + 512))
    for t in range(3):
        norm_v(a, ACC(2, t), MV + 4 * t, RV + 4 * t, CSV, VP + 2 + 2 * t)
    for t in range(4):
        a("v_mul_f32 %s, %s, %s" % (v(RQ + t), hexf(0.25 * LOG2E), v(RT + t)))
    norm_ct4(a, [ACC(0, t) for t in range(4)], [MT + t for t in range(4)], [RQ + t for t in range(4)], CSQ,
             [QP + 2 * t for t in range(4)])
    bg.tick(2)
    S0 = lambda t: ACC(0, t)
    S1 = lambda t: ACC(1, t)
    PP = lambda t: ACC(2, t)
    a("s_waitcnt lgkmcnt(0)")
    for t in range(4):
        a("v_mfma_f32_16x16x16_bf16 %s, %s, %s, 0" % (v(S1(t), 4), v(KP + 2 + 2 * t, 2), v(QP + 2 * t, 2)))
        a("v_mfma_f32_16x16x16_bf16 %s, %s, %s, 0" % (v(S0(t), 4), v(KP + 2 * t, 2), v(QP + 2 * t, 2)))
    bg.tick(2)
    a("v_mov_b32 %s, %s" % (v(TMP + 8), hexf(-1e30)))
    a("s_nop 4")
    stamp(a, 8, "st_epi")
    AB = lambda t: ACC(3, t)
    for t in range(4):
        a("v_cndmask_b32 %s, %s, %s, %s" % (v(AB(t)), v(S1(t)), v(S1(t) + 1), s(M_PAR, 2)))
        a("v_cndmask_b32 %s, %s, %s, %s" % (v(AB(t) + 1), v(S1(t) + 2), v(S1(t) + 3), s(M_PAR, 2)))
    for t in range(4):
        a("v_cndmask_b32 %s, %s, %s, %s" % (v(AB(t) + 2), v(S0(t)), v(S0(t) + 1), s(M_PAR, 2)))
        a("v_cndmask_b32 %s, %s, %s, %s" % (v(AB(t) + 3), v(S0(t) + 2), v(S0(t) + 3), s(M_PAR, 2)))
    for t in range(4):
        a("v_cndmask_b32 %s, %s, %s, %s" % (v(AB(t)), v(AB(t) + 2), v(AB(t)), s(M_CA, 2)))
        a("v_cndmask_b32 %s, %s, %s, %s" % (v(AB(t) + 1), v(AB(t) + 3), v(AB(t) + 1), s(M_CB, 2)))
    if m == 0:
        a("v_cndmask_b32 %s, %s, %s, %s" % (v(AB(0)), v(AB(0)), v(TMP + 8), s(M_FA, 2)))
        a("v_cndmask_b32 %s, %s, %s, %s" % (v(AB(0) + 1), v(AB(0) + 1), v(TMP + 8), s(M_FB, 2)))
    MX = TMP
    TT = TMP + 4
    for t in range(4):
        a("v_max_f32 %s, %s, %s" % (v(MX + t), v(AB(t)), v(AB(t) + 1)))
    for swap in ("v_permlane16_swap_b32", "v_permlane32_swap_b32"):
        for t in range(4):
            a("v_mov_b32 %s, %s" % (v(TT + t), v(MX + t)))
        for t in range(4):
            a("%s %s, %s" % (swap, v(MX + t), v(TT + t)))
        for t in range(4):
            a("v_max_f32 %s, %s, %s" % (v(MX + t), v(MX + t), v(TT + t)))
    for t in range(4):
        a("v_sub_f32 %s, %s, %s" % (v(AB(t)), v(AB(t)), v(MX + t)))
        a("v_sub_f32 %s, %s, %s" % (v(AB(t) + 1), v(AB(t) + 1), v(MX + t)))
    for t in range(4):
        a("v_exp_f32 %s, %s" % (v(AB(t)), v(AB(t))))
        a("v_exp_f32 %s, %s" % (v(AB(t) + 1), v(AB(t) + 1)))
    bg.tick(2)
    for t in range(4):
        a("v_cvt_pk_bf16_f32 %s, %s, %s" % (v(AB(t) + 2), v(AB(t)), v(AB(t))))
        a("v_cvt_pk_bf16_f32 %s, %s, %s" % (v(AB(t) + 3), v(AB(t) + 1), v(AB(t) + 1)))
    for t in range(4):
        a("v_and_b32 %s, %s, %s" % (v(PP(t)), v(AB(t) + 2), v(MK)))
        a("v_and_b32 %s, %s, %s" % (v(PP(t) + 1), v(AB(t) + 3), v(MK + 1)))
        a("v_and_b32 %s, %s, %s" % (v(PP(t) + 2), v(AB(t) + 2), v(MK + 2)))
        a("v_and_b32 %s, %s, %s" % (v(PP(t) + 3), v(AB(t) + 3), v(MK + 3)))
    stamp(a, 9, "st_epi")
    a("s_nop 1")
    for t in range(4):
        a("v_mfma_f32_16x16x32_bf16 %s, %s, %s, 0" % (v(S1(t), 4), v(V_ONES, 4), v(PP(t), 4)))
    for t in range(4):
        a("v_mfma_f32_16x16x32_bf16 %s, %s, %s, 0" % (v(S0(t), 4), v(VP + 2 * t, 4), v(PP(t), 4)))
    bg.flush()
    a("s_nop 3")
    for t in range(4):
        a("v_rcp_f32 %s, %s" % (v(MX + t), v(S1(t))))
    a("s_nop 1")
    for t in range(4):
        for r in range(4):
            a("v_mul_f32 %s, %s, %s" % (v(S0(t) + r), v(MX + t), v(S0(t) + r)))
    OP = 116
    for t in range(4):
        a("v_cvt_pk_bf16_f32 %s, %s, %s" % (v(OP + 2 * t), v(S0(t)), v(S0(t) + 1)))
        a("v_cvt_pk_bf16_f32 %s, %s, %s" % (v(OP + 2 * t + 1), v(S0(t) + 2), v(S0(t) + 3)))
    act_store_pairs(a, OP, V_AO)
    stamp(a, 11, "st_epi")


def epilogue_y(a, var, bg):
    m = var.m
    MT, RT = 48, 52
    MTM, RTM = 56, 58
    CS = 60
    CSG4, CSU4 = 76, 80
    HPA, HPB, HM = 84, 92, 100
    TMP = 20
    A_I16, A_G16 = 10, 11
    V_C1 = 12
    V_A, V_B, V_M = 13, 14, 15
    a.comment("---- Y epilogue m=%d ----" % m)
    a("v_and_b32 %s, 15, v0" % v(TMP))
    a("v_lshlrev_b32 %s, 2, %s" % (v(A_I16), v(TMP)))
    a("v_add_u32 %s, %d, %s" % (v(A_I16), LB, v(A_I16)))
    a("v_and_b32 %s, 48, v0" % v(A_G16))
    a("v_add_u32 %s, %d, %s" % (v(A_G16), LB, v(A_G16)))
    base = (16 + 64 * m) * 4
    a("s_lshl_b32 %s, %s, 6" % (s(S_T0), s(S_J)))
    a("v_add_u32 %s, %s, %s" % (v(TMP + 2), s(S_T0), v(A_G16)))
    for tau in range(2):
        a("ds_read_b128 %s, %s offset:%d" % (v(CS + 4 * tau, 4), v(TMP + 2), O_CS + 256 * tau))
    for t in range(4):
        a("ds_read_b32 %s, %s offset:%d" % (v(MT + t), v(A_I16), O_MEAN + base + t * 64))
        a("ds_read_b32 %s, %s offset:%d" % (v(RT + t), v(A_I16), O_RSTD + base + t * 64))
    for tau in range(2, 4):
        a("ds_read_b128 %s, %s offset:%d" % (v(CS + 4 * tau, 4), v(TMP + 2), O_CS + 256 * tau))
    a("v_lshrrev_b32 %s, 5, v0" % v(TMP + 3))
    a("v_lshl_add_u32 %s, %s, 6, %s" % (v(TMP + 3), v(TMP + 3), v(A_I16)))
    a("v_and_b32 %s, 16, v0" % v(TMP + 4))
    a("v_add_u32 %s, %s, %s" % (v(TMP + 4), s(S_T0), v(TMP + 4)))
    a("v_add_u32 %s, %d, %s" % (v(TMP + 4), LB, v(TMP + 4)))
    a("v_mov_b32 %s, %s" % (v(V_C1), hexf(C1)))
    a("s_mov_b32 %s, %s" % (s(S_C0), hexf(C0)))
    bg.tick()
    a("s_waitcnt lgkmcnt(0)")
    for p in range(2):
        a("ds_read_b32 %s, %s offset:%d" % (v(MTM + p), v(TMP + 3), O_MEAN + base + p * 128))
        a("ds_read_b32 %s, %s offset:%d" % (v(RTM + p), v(TMP + 3), O_RSTD + base + p * 128))
    a("ds_read_b128 %s, %s offset:%d" % (v(CSG4, 4), v(TMP + 4), O_CS + 1024))
    a("ds_read_b128 %s, %s offset:%d" % (v(CSU4, 4), v(TMP + 4), O_CS + 1024 + 32))
    act_addr_base(a, TMP + 5, TMP, m)
    a("s_lshl_b32 %s, %s, 4" % (s(S_T0), s(S_COL0)))
    a("s_lshl_b32 %s, %s, 9" % (s(S_T1), s(S_J)))
    a("s_add_u32 %s, %s, %s" % (s(S_T0), s(S_T0), s(S_T1)))
    a("s_add_u32 %s, %s, 16384" % (s(S_T0), s(S_T0)))
    a("v_add_u32 %s, %s, %s" % (v(V_A), s(S_T0), v(TMP + 5)))
    a("v_add_u32 %s, %d, %s" % (v(V_B), 64 * 32, v(V_A)))
    for t0 in (0, 2):
        gelu_tiles2(a, [(ACC(0, t), ACC(1, t), MT + t, RT + t, CS, CS + 4, HPA + 2 * t) for t in (t0, t0 + 1)], TMP + 8, V_C1)
        bg.tick(4)
    act_store_pairs(a, HPA, V_A)
    for t0 in (0, 2):
        gelu_tiles2(a, [(ACC(2, t), ACC(3, t), MT + t, RT + t, CS + 8, CS + 12, HPB + 2 * t) for t in (t0, t0 + 1)], TMP + 8, V_C1)
        bg.tick(4)
    bg.flush()
    act_store_pairs(a, HPB, V_B)
    a("s_waitcnt lgkmcnt(0)")
    for p in range(2):
        for r in range(4):
            a("v_permlane32_swap_b32 %s, %s" % (v(ACC(4, 2 * p) + r), v(ACC(4, 2 * p + 1) + r)))
    a("v_bfe_u32 %s, v0, 4, 1" % v(TMP + 1))
    a("v_lshlrev_b32 %s, 1, %s" % (v(TMP + 1), v(TMP + 1)))
    a("v_lshrrev_b32 %s, 5, v0" % v(TMP))
    a("v_add_u32 %s, %s, %s" % (v(TMP), v(TMP), v(TMP + 1)))
    a("s_lshl_b32 %s, %s, 3" % (s(S_T0), s(S_RB)))
    a("s_add_u32 %s, %s, %d" % (s(S_T0), s(S_T0), 4 * m))
    a("v_add_u32 %s, %s, %s" % (v(TMP), s(S_T0), v(TMP)))
    a("v_mul_u32_u24 %s, %d, %s" % (v(TMP), ACT_T, v(TMP)))
    a("v_and_b32 %s, 15, v0" % v(TMP + 1))
    a("v_lshl_add_u32 %s, %s, 4, %s" % (v(TMP), v(TMP + 1), v(TMP)))
    a("s_lshl_b32 %s, %s, 4" % (s(S_T0), s(S_COL2)))
    a("s_lshl_b32 %s, %s, 8" % (s(S_T1), s(S_J)))
    a("s_add_u32 %s, %s, %s" % (s(S_T0), s(S_T0), s(S_T1)))
    a("s_add_u32 %s, %s, 16384" % (s(S_T0), s(S_T0)))
    a("v_add_u32 %s, %s, %s" % (v(V_M), s(S_T0), v(TMP)))
    gelu_tiles2(a, [(ACC(4, 2 * p), ACC(4, 2 * p + 1), MTM + p, RTM + p, CSG4, CSU4, HM + 2 * p) for p in range(2)], TMP + 8, V_C1)
    a("s_nop 1")
    a("v_permlane16_swap_b32 %s, %s" % (v(HM), v(HM + 2)))
    a("v_permlane16_swap_b32 %s, %s" % (v(HM + 1), v(HM + 3)))
    a("buffer_store_dwordx4 %s, %s, %s, 0 offen %s" % (v(HM, 4), v(V_M), s(SRD_WS, 4), Cfg.sc))


def emit_variant(a, var, after_label):
    L = var.L
    ool = []
    a.label("P1_%s" % var.name)
    T = V_T
    variant_addresses(a, var)
    if var.typ == 'X' and var.m == 0:
        srd(a, SRD_Q, S_Q, 512 * 3072)
    else:
        srd(a, SRD_G, S_G, 512 * 3584)
        srd(a, SRD_U, S_U, 512 * 3584)
        if var.typ == 'Y' and var.m == 1:
            a("s_cmp_lt_u32 %s, 2" % s(S_J))
            a("s_cselect_b32 %s, %s, %s" % (s(SRD_MIX), s(SRD_G), s(SRD_U)))
            a("s_cselect_b32 %s, %s, %s" % (s(SRD_MIX + 1), s(SRD_G + 1), s(SRD_U + 1)))
            a("s_mov_b32 %s, 0x%x" % (s(SRD_MIX + 2), 512 * 3584))
            a("s_mov_b32 %s, 0x20000" % s(SRD_MIX + 3))
    for slot in range(2):
        for i in range(len(var.loads)):
            pre, ld = w_load(var, i, slot)
            for t_ in pre:
                a(t_)
            a("s_nop 0")
            for t_ in ld:
                a(t_)
        for t_ in koff_adv(var):
            a(t_)
    n_after_row = 2 + 2 * (L - 1)
    srd(a, SRD_WS, S_WS, WS_USED)
    prologue_late(a)
    if Cfg.merged and var.m == 0:
        lab = a.newlabel("noep")
        a("s_cmp_eq_u32 %s, 0" % s(S_W))
        a("s_cbranch_scc0 %s" % lab)
        a("v_mov_b32 %s, %d" % (v(T + 15), WS_EPOCH))
        a("buffer_load_dword %s, %s, %s, 0 offen sc1" % (v(V_TAG), v(T + 15), s(SRD_WS, 4)))
        a.label(lab)
    if var.typ == 'X':
        halo_addresses(a)
    frag_lane_addresses(a, var)
    for i in range(84 if var.typ == 'X' else 80):
        a("v_mov_b32 %s, 0" % v(128 + i))
    stamp(a, 6, "st_pro")
    if var.typ == 'X' and var.m == 0:
        lab = a.newlabel("halo0")
        a("s_cmp_eq_u32 %s, 0" % s(S_W))
        a("s_cbranch_scc0 %s" % lab)
        halo_issue(a)
        a.label(lab)
    for h in range(2):
        pre, ld = x_load(h)
        for t_ in pre:
            a(t_)
        a("s_nop 0")
        for t_ in ld:
            a(t_)
    for g_ in x_adv():
        for t_ in g_:
            a(t_)
    if var.typ == 'X' and var.m == 0:
        lab = a.newlabel("halo1")
        a("s_cmp_eq_u32 %s, 1" % s(S_W))
        a("s_cbranch_scc0 %s" % lab)
        halo_issue(a)
        a.label(lab)
    a("s_waitcnt vmcnt(%d)" % (n_after_row + 2))
    stamp(a, 7, "st_pro")
    stats_compute(a)
    stamp(a, 8, "st_pro")
    if var.typ == 'X' and var.m == 0:
        l0, l1 = a.newlabel("w0"), a.newlabel("w1")
        a("s_cmp_eq_u32 %s, 1" % s(S_W))
        a("s_cbranch_scc0 %s" % l0)
        a("s_waitcnt vmcnt(5)")
        a("s_branch %s" % l1)
        a.label(l0)
        a("s_waitcnt vmcnt(3)")
        a.label(l1)
    else:
        a("s_waitcnt vmcnt(3)")
    a("s_barrier")
    stamp(a, 3)
    stamp(a, 3, "st_pro")
    stamp(a, 3, "st_loop")
    for g in frag_addr(var, kk=0, advance=False):
        for t in g:
            a(t)
    for t in frag_reads(var, 0, 0):
        a(t)
    for i in range(len(var.loads)):
        pre, ld = w_load(var, i, 2)
        for t_ in pre:
            a(t_)
        a("s_nop 0")
        for t_ in ld:
            a(t_)
    for t_ in koff_adv(var):
        a(t_)
    if var.typ == 'X':
        if var.m == 0:
            lab = a.newlabel("halo2")
            a("s_cmp_lt_u32 %s, 2" % s(S_W))
            a("s_cbranch_scc1 %s" % lab)
            halo_issue(a)
            a.label(lab)
        else:
            halo_issue(a)
    issue_plain(a, var, 3, 0)
    loop = "P1_%s_loop" % var.name
    a.label(loop)
    def top11(aa):
        lab = aa.newlabel("chk")
        back = aa.newlabel("chkback")
        aa("s_cmp_eq_u32 %s, %s" % (s(S_IT), s(S_EV1)))
        aa("s_cbranch_scc1 %s" % lab)
        aa.label(back)
        b = Asm()
        b.uid = aa.uid + 1000
        b.label(lab)
        o2 = []
        poll_check(b, o2, "early")
        b("s_branch %s" % back)
        ool.append(b.text())
        ool.extend(o2)
        aa.uid = b.uid + 1
    for s4 in range(4):
        emit_step(a, var, s4, 2 * L, post=(lambda k: (lambda aa: event_site(aa, var, k, ool)))(s4),
                  top=top11 if (s4 == 3 and var.m == 0 and Cfg.merged) else None)
    a("s_lshr_b32 %s, %s, 4" % (s(S_EV0), s(S_EV0)))
    if STAMPS["on"] and "st_loop" in EXP:
        for it in range(3):
            lab = a.newlabel("stl")
            a("s_cmp_eq_u32 %s, %d" % (s(S_IT), it))
            a("s_cbranch_scc0 %s" % lab)
            stamp(a, 4 + it, "st_loop")
            a.label(lab)
    a("s_add_u32 %s, %s, 1" % (s(S_IT), s(S_IT)))
    a("s_cmp_lt_u32 %s, 3" % s(S_IT))
    a("s_cbranch_scc1 %s" % loop)
    stamp(a, 4)
    nm = var.nm
    nA = 1 if Cfg.merged and "notouch" not in EXP else 0
    emit_step(a, var, 0, 2 * L, dma=False, extra=spread(tail_loads() + publish_addr(), 1, nm - 2),
              post=lambda aa: (w2_touch(aa, 0), w2_touch(aa, 1) if "touchBlate" not in EXP else None))
    stamp(a, 7, "st_loop")
    emit_step(a, var, 1, L + 4, dma=False, extra=spread(k2_setup_fillers(), 3, nm - 1))
    stamp(a, 8, "st_loop")

    def top14(aa):
        pass
    if nA:
        both = "touchBlate" not in EXP
        if var.m == 0:
            if both:
                lab0, lab1 = a.newlabel("t14a"), a.newlabel("t14b")
                a("s_cmp_eq_u32 %s, 3" % s(S_W))
                a("s_cbranch_scc1 %s" % lab0)
                a("s_waitcnt vmcnt(1)")
                a("s_branch %s" % lab1)
                a.label(lab0)
                a("s_waitcnt vmcnt(2)")
                a.label(lab1)
            else:
                a("s_waitcnt vmcnt(1)")
        else:
            lab0, lab1 = a.newlabel("t14a"), a.newlabel("t14b")
            a("s_cmp_eq_u32 %s, 4" % s(S_W))
            a("s_cbranch_scc1 %s" % lab0)
            a("s_waitcnt vmcnt(%d)" % (1 if both else 0))
            a("s_branch %s" % lab1)
            a.label(lab0)
            a("s_waitcnt vmcnt(%d)" % (2 if both else 1))
            a.label(lab1)
    else:
        a("s_waitcnt vmcnt(0)")
    emit_step(a, var, 2, 63, dma=False, extra=spread(tail_reduce(), 1, nm - 2))
    stamp(a, 9, "st_loop")
    f15 = spread(publish_writes(), 0, 4)
    n15 = 0
    if Cfg.merged and "w2late" not in EXP and "w2split" not in EXP:
        n15 = N15
        for i in range(n15):
            g = w2_load_group(i)
            pos = 1 + (i * (nm - 2)) // n15
            f15 += [(pos - 1, g[0]), (pos, g[2]), (pos, g[3])]
    emit_step(a, var, 3, 63, dma=False, prefetch=False, extra=f15)
    stamp(a, 5)
    stamp(a, 11, "st_loop")
    a("s_waitcnt lgkmcnt(0)")
    a("s_barrier")
    stamp(a, 6)
    groups = [w2_load_group(t) for t in range(n15, PRE2)] if (Cfg.merged and "w2late" not in EXP and "w2split" not in EXP) else []
    bg = BG(a, groups)
    if "prio1" in EXP and var.m == 1:
        a("s_setprio 1")
    if "prio0" in EXP and var.m == 0:
        a("s_setprio 1")
    if var.typ == 'X':
        epilogue_x(a, var, bg)
    else:
        epilogue_y(a, var, bg)
    stamp(a, 7)
    if Cfg.merged and "w2split" in EXP and var.m == 0:
        for t_ in range(PRE2):
            for x_ in w2_load_group(t_):
                a(x_)
    if "prio1" in EXP or "prio0" in EXP:
        a("s_setprio 0")
    a("s_branch %s" % after_label)
    for t in ool:
        a.raw(t)


def emit_phase1(a, after_label):
    prologue_common(a)
    a("s_and_b32 %s, %s, 1" % (s(S_T0), s(S_CGI)))
    a("s_lshl_b32 %s, %s, 1" % (s(S_T0), s(S_T0)))
    a("s_or_b32 %s, %s, %s" % (s(S_T0), s(S_T0), s(S_M)))
    a("s_cmp_eq_u32 %s, 1" % s(S_T0))
    a("s_cbranch_scc1 P1_X1")
    a("s_cmp_eq_u32 %s, 2" % s(S_T0))
    a("s_cbranch_scc1 P1_Y0")
    a("s_cmp_eq_u32 %s, 3" % s(S_T0))
    a("s_cbranch_scc1 P1_Y1")
    for typ, m in (('X', 0), ('X', 1), ('Y', 0), ('Y', 1)):
        emit_variant(a, Variant(typ, m), after_label)


def emit_handoff(a):
    ool = []
    T = V_T
    split = "w2split" in EXP
    if split:
        l0, l1 = a.newlabel("hw0"), a.newlabel("hw1")
        a("s_cmp_eq_u32 %s, 0" % s(S_M))
        a("s_cbranch_scc1 %s" % l0)
        a("s_waitcnt vmcnt(0)")
        a("s_branch %s" % l1)
        a.label(l0)
        a("s_waitcnt vmcnt(%d)" % PRE2)
        a.label(l1)
    else:
        a("s_waitcnt vmcnt(0)")
    a("s_barrier")
    stamp(a, 8)
    lab = a.newlabel("ho_skip")
    a("s_cmp_eq_u32 %s, 0" % s(S_W))
    a("s_cbranch_scc0 %s" % lab)
    a("s_lshl_b32 %s, %s, 7" % (s(S_T0), s(S_RB)))
    a("s_lshl_b32 %s, %s, 2" % (s(S_T1), s(S_CGI)))
    a("s_add_u32 %s, %s, %s" % (s(S_T0), s(S_T0), s(S_T1)))
    a("s_add_u32 %s, %s, %d" % (s(S_T0), s(S_T0), WS_FD))
    a("v_mov_b32 %s, 0x%x" % (v(T), OOB))
    a("v_writelane_b32 %s, %s, 0" % (v(T), s(S_T0)))
    a("s_lshr_b32 %s, %s, 1" % (s(S_T1), s(S2_TG)))
    a("s_lshl_b32 %s, %s, 7" % (s(S_T1), s(S_T1)))
    a("s_add_u32 %s, %s, %d" % (s(S_T1), s(S_T1), WS_FD))
    a("buffer_store_dword %s, %s, %s, 0 offen sc1" % (v(V_TAG), v(T), s(SRD_WS, 4)))
    a("v_and_b32 %s, 15, v0" % v(T + 1))
    a("v_lshl_add_u32 %s, %s, 2, %s" % (v(V_PADDR), v(T + 1), s(S_T1)))
    if split:
        a("buffer_load_dword %s, %s, %s, 0 offen sc1" % (v(V_PRES), v(V_PADDR), s(SRD_WS, 4)))
    a.label(lab)
    if "w2late" in EXP or split:
        skip = None
        if split:
            skip = a.newlabel("ringskip")
            a("s_cmp_eq_u32 %s, 0" % s(S_M))
            a("s_cbranch_scc1 %s" % skip)
        for t_ in range(PRE2):
            for x in w2_load_group(t_):
                a(x)
        if skip:
            a.label(skip)
    if "touchBlate" in EXP:
        w2_touch(a, 1)
    lab2 = a.newlabel("ho_skip2")
    a("s_cmp_eq_u32 %s, 0" % s(S_W))
    a("s_cbranch_scc0 %s" % lab2)
    if not split:
        a("buffer_load_dword %s, %s, %s, 0 offen sc1" % (v(V_PRES), v(V_PADDR), s(SRD_WS, 4)))
    a("s_waitcnt vmcnt(0)")
    poll_check(a, ool, "done")
    a.label(lab2)
    a("s_waitcnt vmcnt(0)")
    a("s_barrier")
    return ool


P2_AVO = 2
P2_WL = 4
P2_XO = 3
P2_XR = 16
P2_T = 20
DA = int(os.environ.get("DA", "8"))
WF2 = lambda st, u: 48 + st * 16 + u * 4
ACT2 = lambda i: 80 + (i % DA) * 4
ACC_D = lambda u: 128 + u * 4
ACC_S = lambda u: 144 + u * 4
V_EPF = 212


def w2_schedule():
    sched = {}
    tiles = list(range(PRE2, 36))
    n = len(tiles)
    last = 27
    prev = 1
    for k, tau in enumerate(tiles):
        want = 2 + (k * (last - 2)) // max(n - 1, 1)
        earliest = 4 * ((tau - NTILE2 - 1 + 3) // 4) + 2 if tau - NTILE2 > 1 else 2
        V = max(0, -(-(tau - NTILE2 - 1) // 4))
        earliest = 4 * V + 2
        st = max(want, earliest, prev + 1)
        needV = -(-(tau - 7) // 4)
        assert st + 2 <= 4 * needV + 2, (tau, st)
        sched[st] = tau
        prev = st
    return sched


def p2_addresses(a):
    T = P2_T
    a("s_lshl_b32 %s, %s, 2" % (s(S_T0), s(S2_TG)))
    a("s_add_u32 %s, %s, %s" % (s(S_T0), s(S_T0), s(S_J)))
    a("s_mul_i32 %s, %s, %d" % (s(S_T0), s(S_T0), ACT_T))
    a("v_lshlrev_b32 %s, 4, v0" % v(T))
    a("v_add_u32 %s, %s, %s" % (v(P2_AVO), s(S_T0), v(T)))
    a("s_mul_i32 %s, %s, %d" % (s(S2_AOFF), s(S_M), 36 * 1024))
    a("v_lshrrev_b32 %s, 4, v0" % v(T + 1))
    a("v_bfe_u32 %s, v0, 2, 2" % v(T + 2))
    a("v_lshl_add_u32 %s, %s, 3, %s" % (v(T + 2), v(T + 1), v(T + 2)))
    a("v_lshlrev_b32 %s, 7, %s" % (v(T + 2), v(T + 2)))
    a("v_and_b32 %s, 3, v0" % v(T + 3))
    a("v_lshl_add_u32 %s, %s, 3, %s" % (v(T + 2), v(T + 3), v(T + 2)))
    a("s_lshl_b32 %s, %s, 12" % (s(S_T0), s(S_M)))
    a("v_add_u32 %s, %s, %s" % (v(T + 2), s(S_T0), v(T + 2)))
    a("v_bfe_u32 %s, v0, 3, 2" % v(T + 3))
    for u in range(4):
        a("v_xor_b32 %s, %d, %s" % (v(T + 4), u, v(T + 3)))
        a("v_lshl_add_u32 %s, %s, 5, %s" % (v(P2_WL + u), v(T + 4), v(T + 2)))
        a("v_add_u32 %s, 0x10000, %s" % (v(P2_WL + 4 + u), v(P2_WL + u)))
        a("v_add_u32 %s, 0x20000, %s" % (v(P2_WL + 8 + u), v(P2_WL + u)))
    a("s_lshl_b32 %s, %s, 6" % (s(S_T0), s(S2_TG)))
    a("s_lshl_b32 %s, %s, 4" % (s(S_T1), s(S_J)))
    a("s_add_u32 %s, %s, %s" % (s(S_T0), s(S_T0), s(S_T1)))
    a("v_and_b32 %s, 15, v0" % v(T + 4))
    a("v_add_u32 %s, %s, %s" % (v(T + 4), s(S_T0), v(T + 4)))
    a("v_lshlrev_b32 %s, 10, %s" % (v(T + 4), v(T + 4)))
    a("v_and_b32 %s, 1, %s" % (v(T + 5), v(T + 1)))
    a("v_lshl_add_u32 %s, %s, 5, %s" % (v(T + 4), v(T + 5), v(T + 4)))
    a("v_lshrrev_b32 %s, 1, %s" % (v(T + 5), v(T + 1)))
    a("v_lshl_add_u32 %s, %s, 4, %s" % (v(T + 4), v(T + 5), v(T + 4)))
    a("s_lshl_b32 %s, %s, 7" % (s(S_T0), s(S2_CG2)))
    a("s_lshl_b32 %s, %s, 6" % (s(S_T1), s(S_M)))
    a("s_add_u32 %s, %s, %s" % (s(S_T0), s(S_T0), s(S_T1)))
    a("v_add_u32 %s, %s, %s" % (v(P2_XO), s(S_T0), v(T + 4)))
    for r in range(16):
        a("v_mov_b32 %s, 0" % v(ACC_D(0) + r))
    srd(a, R_OUT, S_OUT, 2048 * 1024)


class VmSim:
    def __init__(self):
        self.ops = []

    def issue(self, tag):
        self.ops.append(tag)

    def need(self, tag):
        if tag not in self.ops:
            return None
        return len(self.ops) - 1 - self.ops.index(tag)


def p2_reads(tile, u):
    st = tile & 1
    slot = tile % NTILE2
    base = P2_WL + 4 * (slot // 8) + u
    off = (slot % 8) * TILE2
    return ["ds_read_b64_tr_b16 %s, %s offset:%d" % (v(WF2(st, u), 2), v(base), off),
            "ds_read_b64_tr_b16 %s, %s offset:%d" % (v(WF2(st, u) + 2, 2), v(base), off + 512)]


def p2_act(i):
    return "buffer_load_dwordx4 %s, %s, %s, %s offen offset:%d %s" % (
        v(ACT2(i), 4), v(P2_AVO), s(SRD_WS, 4), s(S2_AOFF), (i % 4) * 1024, Cfg.sc if Cfg.merged else "")


def emit_phase2_main(a):
    sim = VmSim()
    stamp(a, 3, "st_p2")
    a("buffer_load_dwordx4 %s, %s, %s, 0 offen" % (v(P2_XR, 4), v(P2_XO), s(SRD_X, 4)))
    sim.issue("xr")
    if Cfg.merged:
        lab = a.newlabel("noepl")
        a("s_cmp_eq_u32 s2, 0")
        a("s_cbranch_scc0 %s" % lab)
        a("s_cmp_eq_u32 %s, 0" % s(S_W))
        a("s_cbranch_scc0 %s" % lab)
        a("v_lshrrev_b32 %s, 2, v0" % v(P2_T))
        a("v_lshlrev_b32 %s, 7, %s" % (v(P2_T), v(P2_T)))
        a("v_and_b32 %s, 3, v0" % v(P2_T + 1))
        a("v_lshl_add_u32 %s, %s, 4, %s" % (v(P2_T), v(P2_T + 1), v(P2_T)))
        a("v_add_u32 %s, %d, %s" % (v(V_PADDR), WS_FA, v(P2_T)))
        a("buffer_load_dwordx4 %s, %s, %s, 0 offen sc1" % (v(V_EPF, 4), v(V_PADDR), s(SRD_WS, 4)))
        a.label(lab)
    if Cfg.merged and "acttouch" in EXP:
        lab = a.newlabel("noat")
        T = P2_T
        a("s_lshl_b32 %s, %s, 3" % (s(S_T0), s(S_W)))
        a("s_add_u32 %s, %s, %s" % (s(S_T0), s(S_T0), s(S2_CG2)))
        a("s_add_u32 %s, %s, %d" % (s(S_T0), s(S_T0), DA))
        a("s_cmp_lt_u32 %s, 36" % s(S_T0))
        a("s_cbranch_scc0 %s" % lab)
        a("s_lshl_b32 %s, %s, 10" % (s(S_T0), s(S_T0)))
        a("s_lshl_b32 %s, %s, 2" % (s(S_T1), s(S2_TG)))
        a("s_mul_i32 %s, %s, %d" % (s(S_T1), s(S_T1), ACT_T))
        a("s_add_u32 %s, %s, %s" % (s(S_T0), s(S_T0), s(S_T1)))
        a("v_bfe_u32 %s, v0, 3, 2" % v(T))
        a("v_mul_u32_u24 %s, %d, %s" % (v(T), ACT_T, v(T)))
        a("v_lshrrev_b32 %s, 5, v0" % v(T + 1))
        a("v_mul_u32_u24 %s, %d, %s" % (v(T + 1), 36 * 1024, v(T + 1)))
        a("v_and_b32 %s, 7, v0" % v(T + 2))
        a("v_lshl_add_u32 %s, %s, 7, %s" % (v(T), v(T + 2), v(T)))
        a("v_add3_u32 %s, %s, %s, %s" % (v(T), v(T), v(T + 1), s(S_T0)))
        a("buffer_load_dword %s, %s, %s, 0 offen sc1" % (v(V_DUMMY), v(T), s(SRD_WS, 4)))
        a.label(lab)
    A0 = min(DA, int(os.environ.get("A0", "5")))
    state = {"next": 0}

    def act_upto(n):
        while state["next"] < min(n, 36):
            i = state["next"]
            a(p2_act(i))
            sim.issue(("a", i))
            if i % 4 == 3:
                a("s_add_u32 %s, %s, 4096" % (s(S2_AOFF), s(S2_AOFF)))
            state["next"] += 1
    act_upto(A0)
    for u in range(4):
        for t in p2_reads(0, u):
            a(t)
    a("s_waitcnt lgkmcnt(0)")
    for u in range(4):
        for t in p2_reads(1, u):
            a(t)
    wsched = w2_schedule()
    for sg in range(36):
        if sg in (0, 2, 6, 12, 18, 26, 34):
            stamp(a, {0: 4, 2: 5, 6: 6, 12: 7, 18: 8, 26: 9, 34: 11}[sg], "st_p2")
        if sg % 4 == 2 and sg <= 30:
            V = (sg - 2) // 4
            last_tile = 4 * V + 7
            n = sim.need(("w", last_tile))
            if n is not None:
                a("s_waitcnt vmcnt(%d)" % n)
            a("s_barrier")
        if sg == 16:
            lab = a.newlabel("noacc")
            a("s_cmp_eq_u32 %s, 0" % s(S_M))
            a("s_cbranch_scc0 %s" % lab)
            a("s_nop 7")
            for r in range(16):
                a("v_mov_b32 %s, %s" % (v(ACC_S(0) + r), v(ACC_D(0) + r)))
            for r in range(16):
                a("v_mov_b32 %s, 0" % v(ACC_D(0) + r))
            a("s_nop 1")
            a.label(lab)
        n = sim.need(("a", sg))
        st = sg & 1
        a("s_waitcnt vmcnt(%d) lgkmcnt(%d)" % (n, 7 if sg < 35 else 0))
        for u in range(4):
            d = v(ACC_D(u), 4)
            a("v_mfma_f32_16x16x32_bf16 %s, %s, %s, %s" % (d, v(WF2(st, u), 4), v(ACT2(sg), 4), d))
            if sg + 2 < 36:
                for t in p2_reads(sg + 2, u):
                    a(t)
            if u == 1 and sg in wsched:
                tile = wsched[sg]
                for t in w2_load_group(tile):
                    a(t)
                sim.issue(("w", tile))
        act_upto(min(sg + 1 + DA, state["next"] + 2))


def emit_phase2_epilogue(a):
    T = P2_T
    a("s_nop 7")
    a("s_barrier")
    a("s_mul_i32 %s, %s, 6144" % (s(S_T0), s(S_J)))
    a("v_lshlrev_b32 %s, 4, v0" % v(T))
    a("v_add_u32 %s, %s, %s" % (v(T), s(S_T0), v(T)))
    k1 = a.newlabel("k2_kh1")
    join = a.newlabel("k2_join")
    S, D, E = 56, 64, 72
    a("s_cmp_eq_u32 %s, 0" % s(S_M))
    a("s_cbranch_scc0 %s" % k1)
    a("ds_write_b128 %s, %s" % (v(T), v(ACC_S(2), 4)))
    a("ds_write_b128 %s, %s offset:1024" % (v(T), v(ACC_S(3), 4)))
    a("ds_write_b128 %s, %s offset:2048" % (v(T), v(ACC_D(2), 4)))
    a("ds_write_b128 %s, %s offset:3072" % (v(T), v(ACC_D(3), 4)))
    for r in range(8):
        a("v_mov_b32 %s, %s" % (v(S + r), v(ACC_S(0) + r)))
    a("s_waitcnt lgkmcnt(0)")
    a("s_barrier")
    a("ds_read_b128 %s, %s offset:4096" % (v(48, 4), v(T)))
    a("ds_read_b128 %s, %s offset:5120" % (v(52, 4), v(T)))
    a("s_waitcnt lgkmcnt(0)")
    for h in range(0, 8, 2):
        a(pk("add", D + h, [('p', ACC_D(0) + h), ('p', 48 + h)]))
    a("s_branch %s" % join)
    a.label(k1)
    a("ds_write_b128 %s, %s offset:4096" % (v(T), v(ACC_D(0), 4)))
    a("ds_write_b128 %s, %s offset:5120" % (v(T), v(ACC_D(1), 4)))
    a("s_waitcnt lgkmcnt(0)")
    a("s_barrier")
    a("ds_read_b128 %s, %s" % (v(S, 4), v(T)))
    a("ds_read_b128 %s, %s offset:1024" % (v(S + 4, 4), v(T)))
    a("ds_read_b128 %s, %s offset:2048" % (v(48, 4), v(T)))
    a("ds_read_b128 %s, %s offset:3072" % (v(52, 4), v(T)))
    a("s_waitcnt lgkmcnt(0)")
    for h in range(0, 8, 2):
        a(pk("add", D + h, [('p', ACC_D(2) + h), ('p', 48 + h)]))
    a.label(join)
    a("s_mov_b32 %s, %s" % (s(S_C0), hexf(-LOG2E)))
    for h in range(0, 8, 2):
        a(pk("mul", E + h, [('p', D + h), ('s', S_C0)]))
    for r in range(8):
        a("v_exp_f32 %s, %s" % (v(E + r), v(E + r)))
    for h in range(0, 8, 2):
        a(pk("mul", S + h, [('p', S + h), ('p', D + h)]))
    for h in range(0, 8, 2):
        a(pk("add", E + h, [('p', E + h), ('c', "1.0")]))
    for r in range(8):
        a("v_rcp_f32 %s, %s" % (v(E + r), v(E + r)))
    for i in range(4):
        a("v_lshlrev_b32 %s, 16, %s" % (v(D + 2 * i), v(P2_XR + i)))
        a("v_and_b32 %s, 0xffff0000, %s" % (v(D + 2 * i + 1), v(P2_XR + i)))
    for h in range(0, 8, 2):
        a(pk("mul", S + h, [('p', S + h), ('p', E + h)]))
    a("s_nop 1")
    for r in range(4):
        a("v_permlane16_swap_b32 %s, %s" % (v(S + r), v(S + 4 + r)))
    a("s_nop 1")
    for h in range(0, 8, 2):
        a(pk("add", S + h, [('p', S + h), ('p', D + h)]))
    for i in range(4):
        a("v_cvt_pk_bf16_f32 %s, %s, %s" % (v(E + i), v(S + 2 * i), v(S + 2 * i + 1)))
    a("buffer_store_dwordx4 %s, %s, %s, 0 offen" % (v(E, 4), v(P2_XO), s(R_OUT, 4)))


def emit_epoch_bump(a):
    lab = a.newlabel("nobump")
    loop = a.newlabel("bumploop")
    go = a.newlabel("bumpgo")
    a("s_cmp_eq_u32 s2, 0")
    a("s_cbranch_scc0 %s" % lab)
    a("s_cmp_eq_u32 %s, 0" % s(S_W))
    a("s_cbranch_scc0 %s" % lab)
    a("s_mov_b32 %s, 0" % s(S_SPIN))
    a.label(loop)
    a("v_xor_b32 %s, %s, %s" % (v(V_EPF), v(V_TAG), v(V_EPF)))
    a("v_xor_b32 %s, %s, %s" % (v(V_EPF + 1), v(V_TAG), v(V_EPF + 1)))
    a("v_xor_b32 %s, %s, %s" % (v(V_EPF + 2), v(V_TAG), v(V_EPF + 2)))
    a("v_xor_b32 %s, %s, %s" % (v(V_EPF + 3), v(V_TAG), v(V_EPF + 3)))
    a("v_or_b32 %s, %s, %s" % (v(V_EPF), v(V_EPF), v(V_EPF + 1)))
    a("v_or3_b32 %s, %s, %s, %s" % (v(V_EPF), v(V_EPF), v(V_EPF + 2), v(V_EPF + 3)))
    a("v_cmp_ne_u32 vcc, 0, %s" % v(V_EPF))
    a("s_nop 1")
    a("s_cmp_lg_u64 vcc, 0")
    a("s_cbranch_scc0 %s" % go)
    a("buffer_load_dwordx4 %s, %s, %s, 0 offen sc1" % (v(V_EPF, 4), v(V_PADDR), s(SRD_WS, 4)))
    a("s_add_u32 %s, %s, 1" % (s(S_SPIN), s(S_SPIN)))
    a("s_waitcnt vmcnt(0)")
    a("s_cmp_lt_u32 %s, %d" % (s(S_SPIN), SPIN_MAX))
    a("s_cbranch_scc1 %s" % loop)
    a.label(go)
    a("v_mov_b32 %s, 0x%x" % (v(P2_T), OOB))
    a("s_mov_b32 %s, %d" % (s(S_T0), WS_EPOCH))
    a("v_writelane_b32 %s, %s, 0" % (v(P2_T), s(S_T0)))
    a("s_nop 1")
    a("buffer_store_dword %s, %s, %s, 0 offen sc1" % (v(V_TAG), v(P2_T), s(SRD_WS, 4)))
    a.label(lab)


def emit_merged(a, end_label):
    emit_phase1(a, "P1_done")
    a.label("P1_done")
    p2_addresses(a)
    ool = emit_handoff(a)
    stamp(a, 9)
    emit_phase2_main(a)
    stamp(a, 11)
    emit_phase2_epilogue(a)
    emit_epoch_bump(a)
    if STAMPS["on"]:
        a("s_waitcnt vmcnt(0)")
        stamp(a, 10)
        stamp_real(a, 2)
    stamp_flush(a, S_W, S_WS, 0)
    a("s_branch %s" % end_label)
    for t in ool:
        a.raw(t)


def emit_phase2_standalone(a):
    a("s_load_dwordx2 %s, s[0:1], 0" % s(S_X, 2))
    a("s_load_dwordx2 %s, s[0:1], 72" % s(S_WS, 2))
    a("s_load_dwordx2 %s, s[0:1], 16" % s(S_WO, 2))
    a("s_load_dwordx2 %s, s[0:1], 48" % s(S_WD, 2))
    a("s_load_dwordx2 %s, s[0:1], 56" % s(S_OUT, 2))
    a("v_lshrrev_b32 v1, 6, v0")
    a("v_and_b32 v0, 63, v0")
    a("v_readfirstlane_b32 %s, v1" % s(S_W))
    a("s_and_b32 %s, s2, 7" % s(S_T0))
    a("s_lshr_b32 %s, s2, 3" % s(S_T1))
    a("s_lshr_b32 %s, %s, 3" % (s(S_T3), s(S_T1)))
    a("s_lshl_b32 %s, %s, 2" % (s(S2_TG), s(S_T0)))
    a("s_add_u32 %s, %s, %s" % (s(S2_TG), s(S2_TG), s(S_T3)))
    a("s_and_b32 %s, %s, 7" % (s(S2_CG2), s(S_T1)))
    a("s_and_b32 %s, %s, 3" % (s(S_J), s(S_W)))
    a("s_lshr_b32 %s, %s, 2" % (s(S_M), s(S_W)))
    a("s_waitcnt lgkmcnt(0)")
    srd(a, SRD_X, S_X, 2048 * 1024)
    srd(a, SRD_WS, S_WS, WS_USED)
    for t in k2_setup_fillers():
        a(t)
    for t in range(PRE2):
        for x in w2_load_group(t):
            a(x)
    p2_addresses(a)
    a("s_waitcnt vmcnt(0)")
    a("s_barrier")
    emit_phase2_main(a)
    emit_phase2_epilogue(a)
```

```python
import os
from asmlib import *
from layout import *

S_X, S_Q, S_G, S_U, S_WS, S_OUT = 4, 6, 8, 10, 12, 14
SRD_X, SRD_Q, SRD_G, SRD_U, SRD_WS, SRD_MIX = 16, 20, 24, 28, 32, 36
R_W, R_OUT = 20, 24
S_RB, S_CGI, S_UU, S_W, S_J, S_M, S_R0B = 40, 41, 42, 43, 44, 45, 46
S_KOFF = 47
S_M0X = 48
S_COL0, S_COL1, S_COL2 = 49, 50, 51
S_XO, S_XM0, S_XSLOTR, S_HK = 52, 53, 54, 55
S_IT, S_EV0, S_EV1 = 56, 57, 59
S_M0W = 58
S_T0, S_T1, S_T2, S_T3 = 60, 61, 62, 63
S_EX = 64
S2_WROW, S2_AOFF, S2_M0B, S2_TG = 66, 67, 68, 69
S_WO, S_WD = 70, 72
S2_CG2 = 74
S_XM0END = 75
S_SPIN = 3

V_WVO = 1
V_XVO = 4
V_XL = 6
V_HL = 8
V_WL, V_WL3, V_WM, V_WM3 = 10, 11, 12, 13
V_XA, V_HA = 14, 15
V_ONES = 16
V_T = 20
V_TAG, V_W2VO, V_CSST, V_PADDR, V_PRES, V_DUMMY = 40, 41, 42, 43, 44, 45
V_TVO = 47
WF = lambda st, t: 48 + st * 20 + t * 4
XF = lambda st, t: 88 + st * 20 + t * 4
ACC = lambda tau, t: 128 + (tau * 4 + t) * 4
V_AH = 208
V_CSP = 212
V_STAT = 224
V_CSTMP = 226
BP, BC, BP0 = 232, 236, 240

OOB = 0x7FFFFF00
SPIN_MAX = 1 << 18
N15 = int(os.environ.get("N15", "9"))
CPF_LINES = 12
TB = os.environ.get("TB", "14")

C0 = -2.0 * 0.7978845608028654 * 1.4426950408889634
C1 = C0 * 0.044715
LOG2E = 1.4426950408889634


class Cfg:
    merged = True
    sc = "sc1"


_stamp0 = stamp


def stamp(a, idx, mode="main"):
    active = "main"
    for m in ("st_pro", "st_loop", "st_p2", "st_epi"):
        if m in EXP:
            active = m
    if idx in (1, 10) and mode == "main":
        _stamp0(a, idx)
    elif mode == active:
        _stamp0(a, idx)


def srd(a, base, ptr, nbytes):
    a("s_mov_b32 %s, %s" % (s(base), s(ptr)))
    a("s_and_b32 %s, %s, 0xffff" % (s(base + 1), s(ptr + 1)))
    a("s_mov_b32 %s, 0x%x" % (s(base + 2), nbytes))
    a("s_mov_b32 %s, 0x20000" % s(base + 3))


def allreduce16(a, regs, op="v_add_f32"):
    for ror in (8, 4, 2, 1):
        for r in regs:
            a("%s_dpp %s, %s, %s row_ror:%d row_mask:0xf bank_mask:0xf" % (op, v(r), v(r), v(r), ror))
        pad = 2 - (len(regs) - 1)
        if pad > 0:
            a("s_nop %d" % (pad - 1))


def allreduce_rows(a, r, tmp, op="v_add_f32"):
    for swap in ("v_permlane16_swap_b32", "v_permlane32_swap_b32"):
        a("v_mov_b32 %s, %s" % (v(tmp), v(r)))
        a("s_nop 1")
        a("%s %s, %s" % (swap, v(r), v(tmp)))
        a("s_nop 1")
        a("%s %s, %s, %s" % (op, v(r), v(r), v(tmp)))
        a("s_nop 0")


class Variant:
    def __init__(self, typ, m):
        self.typ = typ
        self.m = m
        if typ == 'X' and m == 0:
            self.loads = [(SRD_Q, V_WVO, 0), (SRD_Q, V_WVO + 1, 1), (SRD_Q, V_WVO + 2, 2)]
            self.pitch = 3072
        elif typ == 'X':
            self.loads = [(SRD_G, V_WVO, 3), (SRD_U, V_WVO, 4)]
            self.pitch = 3584
        elif m == 0:
            self.loads = [(SRD_G, V_WVO, 0), (SRD_U, V_WVO, 1), (SRD_G, V_WVO + 1, 2)]
            self.pitch = 3584
        else:
            self.loads = [(SRD_U, V_WVO + 1, 3), (SRD_MIX, V_WVO + 2, 4)]
            self.pitch = 3584
        self.L = len(self.loads) + 1
        self.name = "%s%d" % (typ, m)
        self.nm = 21 if typ == 'X' else 20


def w_load(var, i, slot):
    srdr, vo, q = var.loads[i]
    return (["s_add_u32 m0, %s, %d" % (s(S_M0W), slot * WSLOT + q * 4096)],
            ["buffer_load_dwordx4 %s, %s, %s offen lds" % (v(vo), s(srdr, 4), s(S_KOFF))])


def koff_adv(var):
    st = 32 * var.pitch
    return ["s_add_u32 %s, %s, %d" % (s(S_KOFF), s(S_KOFF), st),
            "s_cmp_eq_u32 %s, %d" % (s(S_KOFF), 16 * st),
            "s_cselect_b32 %s, 0, %s" % (s(S_KOFF), s(S_KOFF))]


def x_load(h):
    return (["s_add_u32 m0, %s, %d" % (s(S_XM0), h * 8192)],
            ["buffer_load_dwordx4 %s, %s, %s offen lds" % (v(V_XVO + h), s(SRD_X, 4), s(S_XO))])


def x_adv():
    return [["s_add_u32 %s, %s, 128" % (s(S_T0), s(S_XO)),
             "s_and_b32 %s, %s, 0x380" % (s(S_T0), s(S_T0)),
             "s_or_b32 %s, %s, %s" % (s(S_XO), s(S_T0), s(S_R0B))],
            ["s_add_u32 %s, %s, 0x4000" % (s(S_XM0), s(S_XM0)),
             "s_cmp_eq_u32 %s, %s" % (s(S_XM0), s(S_XM0END)),
             "s_cselect_b32 %s, %s, %s" % (s(S_XM0), s(S_M0X), s(S_XM0))]]


def issue_plain(a, var, slot, h):
    if slot is not None:
        for i in range(len(var.loads)):
            pre, ld = w_load(var, i, slot)
            for t in pre:
                a(t)
            a("s_nop 0")
            for t in ld:
                a(t)
        for t in koff_adv(var):
            a(t)
    pre, ld = x_load(h)
    for t in pre:
        a(t)
    a("s_nop 0")
    for t in ld:
        a(t)
    if h:
        for g in x_adv():
            for t in g:
                a(t)


def frag_reads(var, st, slot):
    wl = V_WL3 if slot == 3 else V_WL
    wm = V_WM3 if slot == 3 else V_WM
    so = 0 if slot == 3 else slot * WSLOT
    W = []
    for tau in range(5):
        if var.typ == 'Y' and tau == 4:
            W.append(["ds_read_b64_tr_b16 %s, %s offset:%d" % (v(WF(st, tau), 2), v(wm), so),
                      "ds_read_b64_tr_b16 %s, %s offset:%d" % (v(WF(st, tau) + 2, 2), v(wm), so + 256)])
        else:
            W.append(["ds_read_b64_tr_b16 %s, %s offset:%d" % (v(WF(st, tau), 2), v(wl), so + tau * 4096),
                      "ds_read_b64_tr_b16 %s, %s offset:%d" % (v(WF(st, tau) + 2, 2), v(wl), so + tau * 4096 + 512)])
    X = ["ds_read_b128 %s, %s offset:%d" % (v(XF(st, t), 4), v(V_XA), t * 2048) for t in range(4)]
    r = W[0] + W[1] + [X[0]] + W[2] + [X[1]] + W[3] + [X[2]] + W[4] + [X[3]]
    if var.typ == 'X':
        r.append("ds_read_b128 %s, %s" % (v(XF(st, 4), 4), v(V_HA)))
    return r


def frag_addr(var, kk, advance):
    g = []
    if advance:
        g.append(["s_add_u32 %s, %s, 0x4000" % (s(S_XSLOTR), s(S_XSLOTR)),
                  "s_cmp_eq_u32 %s, 0xc000" % s(S_XSLOTR),
                  "s_cselect_b32 %s, 0, %s" % (s(S_XSLOTR), s(S_XSLOTR))])
    g.append(["v_add_u32 %s, %s, %s" % (v(V_XA), s(S_XSLOTR), v(V_XL + kk))])
    if var.typ == 'X':
        h = []
        if advance:
            h += ["s_add_u32 %s, %s, 0x800" % (s(S_HK), s(S_HK)),
                  "s_and_b32 %s, %s, 0x3fff" % (s(S_HK), s(S_HK))]
        h.append("v_add_u32 %s, %s, %s" % (v(V_HA), s(S_HK), v(V_HL + kk)))
        g.append(h)
    return g


def mfmas(var, st):
    out = []
    for t in range(4):
        for tau in range(5):
            d = v(ACC(tau, t), 4)
            if var.typ == 'X' and tau == 2:
                out.append("v_mfma_f32_16x16x32_bf16 %s, %s, %s, %s" % (d, v(XF(st, t), 4), v(WF(st, tau), 4), d))
            else:
                out.append("v_mfma_f32_16x16x32_bf16 %s, %s, %s, %s" % (d, v(WF(st, tau), 4), v(XF(st, t), 4), d))
    if var.typ == 'X':
        d = v(V_AH, 4)
        if var.m == 0:
            out.append("v_mfma_f32_16x16x32_bf16 %s, %s, %s, %s" % (d, v(WF(st, 1), 4), v(XF(st, 4), 4), d))
        else:
            out.append("v_mfma_f32_16x16x32_bf16 %s, %s, %s, %s" % (d, v(XF(st, 4), 4), v(WF(st, 2), 4), d))
    return out


def spread(items, p0, p1):
    n = len(items)
    if n == 0:
        return []
    return [(p0 + (i * (p1 - p0 + 1)) // n, t) for i, t in enumerate(items)]


def emit_step(a, var, s4, vm, dma=True, prefetch=True, extra=None, post=None, top=None):
    par = s4 & 1
    a("s_waitcnt vmcnt(%d) lgkmcnt(0)" % vm)
    if top:
        top(a)
    if "nobar" not in EXP:
        a("s_barrier")
    M = mfmas(var, par)
    F = []
    if prefetch:
        ga = frag_addr(var, kk=1 - par, advance=(par == 1))
        for i, g in enumerate(ga):
            for t in g:
                F.append((i, t))
        rd = frag_reads(var, 1 - par, (s4 + 1) & 3)
        if "noreads" in EXP:
            rd = []
        for i, t in enumerate(rd):
            F.append((i if i < 4 else i + 0, t))
    if dma and "nodma" not in EXP:
        nl = len(var.loads)
        poss = [3, 8, 13, 18] if var.m == 0 else [5, 10, 15]
        for i in range(nl):
            pre, ld = w_load(var, i, s4)
            F += [(poss[i] - 1, t) for t in pre] + [(poss[i], t) for t in ld]
        F += [(poss[nl - 1] + 1, t) for t in koff_adv(var)]
        h = 1 - par
        pre, ld = x_load(h)
        px = poss[nl]
        F += [(px - 1, t) for t in pre] + [(px, t) for t in ld]
        if h:
            g = x_adv()
            F += [(px + 1, t) for t in g[0]] + [(min(px + 2, len(M) - 1), t) for t in g[1]]
    if extra:
        F += extra
    F.sort(key=lambda x: x[0])
    for t in interleave(M, F):
        a(t)
    if post:
        post(a)


def w2_touch(b, part):
    if "notouch" in EXP or not Cfg.merged:
        return
    T = V_T
    lab = b.newlabel("tch")
    if part == 0:
        b("s_cmp_lt_u32 %s, 5" % s(S_W))
        b("s_cbranch_scc0 %s" % lab)
        b("s_mov_b32 %s, %s" % (s(S_T1), s(S_W)))
    else:
        b("s_cmp_ge_u32 %s, 3" % s(S_W))
        b("s_cbranch_scc0 %s" % lab)
        b("s_sub_u32 %s, %s, 3" % (s(S_T1), s(S_W)))
    b("s_lshr_b32 %s, s2, 3" % s(S_T0))
    b("s_mul_i32 %s, %s, 5" % (s(S_T0), s(S_T0)))
    b("s_add_u32 %s, %s, %s" % (s(S_T0), s(S_T0), s(S_T1)))
    b("s_min_u32 %s, %s, 143" % (s(S_T0), s(S_T0)))
    if part == 0:
        b("s_sub_u32 %s, %s, 64" % (s(S_T1), s(S_T0)))
        b("s_add_u32 %s, %s, 8" % (s(S_T2), s(S_T0)))
        b("s_cmp_lt_u32 %s, 72" % s(S_T0))
        b("s_cselect_b32 %s, %s, %s" % (s(S_T1), s(S_T1), s(S_T2)))
        b("s_cmp_lt_u32 %s, 64" % s(S_T0))
        b("s_cselect_b32 %s, %s, %s" % (s(S_T0), s(S_T0), s(S_T1)))
        b("s_cselect_b32 %s, %s, %s" % (s(S_EX), s(S_WO), s(S_WD)))
        b("s_cselect_b32 %s, %s, %s" % (s(S_EX + 1), s(S_WO + 1), s(S_WD + 1)))
        base = S_EX
    else:
        b("s_add_u32 %s, %s, 8" % (s(S_T1), s(S_T0)))
        b("s_add_u32 %s, %s, 80" % (s(S_T2), s(S_T0)))
        b("s_cmp_lt_u32 %s, 72" % s(S_T0))
        b("s_cselect_b32 %s, %s, %s" % (s(S_T0), s(S_T1), s(S_T2)))
        base = S_WD
    b("s_lshl_b32 %s, %s, 13" % (s(S_T0), s(S_T0)))
    b("v_lshlrev_b32 %s, 7, v0" % v(T + 3))
    b("v_add_u32 %s, %s, %s" % (v(T + 3), s(S_T0), v(T + 3)))
    b("global_load_dword %s, %s, %s" % (v(V_DUMMY + part), v(T + 3), s(base, 2)))
    b.label(lab)


def colsum_block(b, par):
    for tau in range(5):
        b("v_mfma_f32_16x16x32_bf16 %s, %s, %s, 0" % (v(V_CSTMP + 4 * tau, 4), v(WF(par, tau), 4), v(V_ONES, 4)))
    b("s_nop 7")
    b("s_nop 1")
    for tau in range(5):
        b("buffer_store_dwordx4 %s, %s, %s, 0 offen offset:%d sc1" % (v(V_CSTMP + 4 * tau, 4), v(V_CSST), s(SRD_WS, 4), tau * 256))


def publish_block(b):
    T = V_T
    b("v_add_u32 %s, 1, %s" % (v(V_TAG), v(V_TAG)))
    b("s_lshl_b32 %s, %s, 7" % (s(S_T0), s(S_RB)))
    b("s_lshl_b32 %s, %s, 2" % (s(S_T1), s(S_CGI)))
    b("s_add_u32 %s, %s, %s" % (s(S_T0), s(S_T0), s(S_T1)))
    b("s_add_u32 %s, %s, %d" % (s(S_T0), s(S_T0), WS_FA))
    b("s_lshl_b32 %s, %s, 7" % (s(S_T1), s(S_CGI)))
    b("s_lshl_b32 %s, %s, 2" % (s(S_T2), s(S_RB)))
    b("s_add_u32 %s, %s, %s" % (s(S_T1), s(S_T1), s(S_T2)))
    b("s_add_u32 %s, %s, %d" % (s(S_T1), s(S_T1), WS_FB))
    b("v_mov_b32 %s, 0x%x" % (v(T), OOB))
    b("v_writelane_b32 %s, %s, 0" % (v(T), s(S_T0)))
    b("v_writelane_b32 %s, %s, 1" % (v(T), s(S_T1)))
    b("s_nop 1")
    b("buffer_store_dword %s, %s, %s, 0 offen sc1" % (v(V_TAG), v(T), s(SRD_WS, 4)))


def poll_block(b):
    T = V_T
    b("v_and_b32 %s, 15, v0" % v(T))
    b("s_lshl_b32 %s, %s, 7" % (s(S_T0), s(S_RB)))
    b("s_add_u32 %s, %s, %d" % (s(S_T0), s(S_T0), WS_FA))
    b("v_lshl_add_u32 %s, %s, 2, %s" % (v(V_PADDR), v(T), s(S_T0)))
    b("s_lshl_b32 %s, %s, 7" % (s(S_T1), s(S_CGI)))
    b("s_add_u32 %s, %s, %d" % (s(S_T1), s(S_T1), WS_FB))
    b("v_lshl_add_u32 %s, %s, 2, %s" % (v(T + 1), v(T), s(S_T1)))
    b("v_lshrrev_b32 %s, 4, v0" % v(T + 2))
    b("v_cmp_eq_u32 vcc, 2, %s" % v(T + 2))
    b("s_nop 1")
    b("v_cndmask_b32 %s, %s, %s, vcc" % (v(V_PADDR), v(V_PADDR), v(T + 1)))
    b("s_cmp_eq_u32 %s, 0" % s(S_RB))
    b("s_cselect_b32 %s, 0, 128" % s(S_T1))
    b("s_sub_u32 %s, %s, %s" % (s(S_T0), s(S_T0), s(S_T1)))
    b("s_add_u32 %s, %s, 56" % (s(S_T0), s(S_T0)))
    b("s_add_u32 %s, %s, 4" % (s(S_T1), s(S_T0)))
    b("v_writelane_b32 %s, %s, 16" % (v(V_PADDR), s(S_T0)))
    b("v_writelane_b32 %s, %s, 17" % (v(V_PADDR), s(S_T1)))
    b("s_nop 1")
    b("buffer_load_dword %s, %s, %s, 0 offen sc1" % (v(V_PRES), v(V_PADDR), s(SRD_WS, 4)))


def event_site(a, var, s4, ool):
    if s4 == 3 and "early11" in EXP:
        lab = a.newlabel("ev11")
        back = a.newlabel("ev11back")
        a("s_cmp_eq_u32 %s, 2" % s(S_IT))
        a("s_cbranch_scc1 %s" % lab)
        a.label(back)
        b = Asm()
        b.uid = a.uid + 1000
        b.label(lab)
        for t_ in tail_loads():
            b(t_)
        b("s_branch %s" % back)
        ool.append(b.text())
        a.uid = b.uid + 1
        return
    if var.m == 1 or s4 > 1:
        return
    lab = a.newlabel("ev")
    back = a.newlabel("evback")
    a("s_bitcmp1_b32 %s, %d" % (s(S_EV0), s4))
    a("s_cbranch_scc1 %s" % lab)
    a.label(back)
    b = Asm()
    b.uid = a.uid + 1000
    b.label(lab)
    if s4 == 0 and Cfg.merged:
        other = b.newlabel("evo")
        b("s_cmp_eq_u32 %s, 0" % s(S_IT))
        b("s_cbranch_scc0 %s" % other)
        colsum_block(b, s4)
        b("s_branch %s" % back)
        b.label(other)
        pl = b.newlabel("evp")
        b("s_cmp_eq_u32 %s, 1" % s(S_IT))
        b("s_cbranch_scc0 %s" % pl)
        publish_block(b)
        b("s_branch %s" % back)
        b.label(pl)
        poll_block(b)
    else:
        colsum_block(b, s4)
    b("s_branch %s" % back)
    ool.append(b.text())
    a.uid = b.uid + 1


def poll_check(a, ool, name):
    slow = a.newlabel(name + "_slow")
    back = a.newlabel(name + "_ok")
    a("v_cmp_ne_u32 vcc, %s, %s" % (v(V_TAG), v(V_PRES)))
    a("s_nop 1")
    a("s_cmp_lg_u64 vcc, 0")
    a("s_cbranch_scc1 %s" % slow)
    a.label(back)
    b = Asm()
    b.label(slow)
    b("s_mov_b32 %s, 0" % s(S_SPIN))
    loop = slow + "_loop"
    b.label(loop)
    b("buffer_load_dword %s, %s, %s, 0 offen sc1" % (v(V_PRES), v(V_PADDR), s(SRD_WS, 4)))
    b("s_add_u32 %s, %s, 1" % (s(S_SPIN), s(S_SPIN)))
    b("s_waitcnt vmcnt(0)")
    b("v_cmp_ne_u32 vcc, %s, %s" % (v(V_TAG), v(V_PRES)))
    b("s_nop 1")
    b("s_cmp_lg_u64 vcc, 0")
    b("s_cbranch_scc0 %s" % back)
    b("s_cmp_lt_u32 %s, %d" % (s(S_SPIN), SPIN_MAX))
    b("s_cbranch_scc1 %s" % loop)
    b("s_branch %s" % back)
    ool.append(b.text())


def prologue_common(a):
    a.comment("---- prologue ----")
    stamp_real(a, 0)
    stamp(a, 1)
    a("s_load_dwordx4 %s, s[0:1], 0" % s(S_X, 4))
    a("s_load_dwordx4 %s, s[0:1], 32" % s(S_G, 4))
    a("s_load_dwordx2 %s, s[0:1], 72" % s(S_WS, 2))
    a("v_lshrrev_b32 v1, 6, v0")
    a("v_and_b32 v0, 63, v0")
    a("v_readfirstlane_b32 %s, v1" % s(S_W))
    a("s_and_b32 %s, s2, 7" % s(S_T0))
    a("s_lshr_b32 %s, s2, 3" % s(S_T1))
    if "map8x4" in EXP:
        a("s_lshr_b32 %s, %s, 2" % (s(S_T2), s(S_T0)))
        a("s_lshl_b32 %s, %s, 3" % (s(S_T2), s(S_T2)))
        a("s_and_b32 %s, %s, 7" % (s(S_T3), s(S_T1)))
        a("s_or_b32 %s, %s, %s" % (s(S_RB), s(S_T2), s(S_T3)))
        a("s_and_b32 %s, %s, 3" % (s(S_T2), s(S_T0)))
        a("s_lshl_b32 %s, %s, 2" % (s(S_T2), s(S_T2)))
        a("s_lshr_b32 %s, %s, 3" % (s(S_CGI), s(S_T1)))
        a("s_or_b32 %s, %s, %s" % (s(S_CGI), s(S_T2), s(S_CGI)))
    else:
        a("s_and_b32 %s, %s, 15" % (s(S_RB), s(S_T1)))
        a("s_and_b32 %s, %s, 7" % (s(S_T3), s(S_T1)))
        a("s_lshl_b32 %s, %s, 1" % (s(S_T2), s(S_T0)))
        a("s_lshr_b32 %s, %s, 4" % (s(S_CGI), s(S_T1)))
        a("s_or_b32 %s, %s, %s" % (s(S_CGI), s(S_T2), s(S_CGI)))
    a("s_lshl_b32 %s, %s, 17" % (s(S_R0B), s(S_RB)))
    a("s_lshl_b32 %s, %s, 7" % (s(S_XO), s(S_T3)))
    a("s_or_b32 %s, %s, %s" % (s(S_XO), s(S_XO), s(S_R0B)))
    a("s_lshl_b32 %s, %s, 11" % (s(S_HK), s(S_T3)))
    a("s_lshl_b32 %s, %s, 1" % (s(S_KOFF), s(S_T3)))
    a("s_lshl_b32 %s, %s, 10" % (s(S_M0X), s(S_W)))
    a("s_add_u32 %s, %s, %d" % (s(S_M0X), s(S_M0X), XRING))
    a("s_mov_b32 %s, %s" % (s(S_XM0), s(S_M0X)))
    a("s_add_u32 %s, %s, 0xc000" % (s(S_XM0END), s(S_M0X)))
    T = V_T
    a("v_lshrrev_b32 %s, 3, v0" % v(T))
    a("s_lshl_b32 %s, %s, 3" % (s(S_T0), s(S_W)))
    a("v_add_u32 %s, %s, %s" % (v(T + 2), s(S_T0), v(T)))
    a("v_bfe_u32 %s, %s, 1, 3" % (v(T + 3), v(T + 2)))
    a("v_and_b32 %s, 7, v0" % v(T + 4))
    a("v_xor_b32 %s, %s, %s" % (v(T + 4), v(T + 4), v(T + 3)))
    a("v_lshlrev_b32 %s, 4, %s" % (v(T + 4), v(T + 4)))
    a("v_lshl_add_u32 %s, %s, 10, %s" % (v(V_XVO), v(T + 2), v(T + 4)))
    a("v_add_u32 %s, 0x10000, %s" % (v(V_XVO + 1), v(V_XVO)))
    a("v_lshlrev_b32 %s, 4, v0" % v(T + 12))
    a("s_lshl_b32 %s, %s, 3" % (s(S_T2), s(S_CGI)))
    a("s_add_u32 %s, %s, %s" % (s(S_T2), s(S_T2), s(S_W)))
    a("s_lshl_b32 %s, %s, 10" % (s(S_T2), s(S_T2)))
    a("s_add_u32 %s, %s, %s" % (s(S_T2), s(S_T2), s(S_R0B)))
    a("s_and_b32 %s, %s, 3" % (s(S_J), s(S_W)))
    a("s_lshr_b32 %s, %s, 2" % (s(S_M), s(S_W)))
    a("s_lshr_b32 %s, %s, 1" % (s(S_UU), s(S_CGI)))
    a("s_lshl_b32 %s, %s, 10" % (s(S_M0W), s(S_J)))
    if "codepf" in EXP:
        lab = a.newlabel("cpf")
        a("s_cmp_eq_u32 %s, 7" % s(S_W))
        a("s_cbranch_scc0 %s" % lab)
        a("s_getpc_b64 %s" % s(S_EX, 2))
        a.label("CPF_here")
        a("s_lshr_b32 %s, s2, 3" % s(S_T0))
        a("s_mul_i32 %s, %s, %d" % (s(S_T0), s(S_T0), CPF_LINES * 128))
        a("v_lshlrev_b32 %s, 7, v0" % v(T + 5))
        a("v_add_u32 %s, %s, %s" % (v(T + 5), s(S_T0), v(T + 5)))
        a("v_min_u32 %s, K_end-CPF_here-4, %s" % (v(T + 5), v(T + 5)))
        a("v_mov_b32 %s, %s" % (v(T + 7), s(S_EX + 1)))
        a("v_add_co_u32 %s, vcc, %s, %s" % (v(T + 6), s(S_EX), v(T + 5)))
        a("s_nop 1")
        a("v_addc_co_u32 %s, vcc, 0, %s, vcc" % (v(T + 7), v(T + 7)))
        a("s_mov_b64 %s, exec" % s(S_EX, 2))
        a("s_mov_b64 exec, 0x%x" % ((1 << CPF_LINES) - 1))
        a("global_load_dword %s, %s, off" % (v(V_DUMMY + 1), v(T + 6, 2)))
        a("s_mov_b64 exec, %s" % s(S_EX, 2))
        a.label(lab)
    stamp(a, 4, "st_pro")
    a("s_waitcnt lgkmcnt(0)")
    stamp(a, 5, "st_pro")
    srd(a, SRD_X, S_X, 2048 * 1024)
    a("buffer_load_dwordx4 %s, %s, %s, %s offen" % (v(V_CSP, 4), v(T + 12), s(SRD_X, 4), s(S_T2)))
    for h in range(2):
        pre, ld = x_load(h)
        for t_ in pre:
            a(t_)
        a("s_nop 0")
        for t_ in ld:
            a(t_)
    for g_ in x_adv():
        for t_ in g_:
            a(t_)


def prologue_late(a):
    a("s_load_dwordx2 %s, s[0:1], 16" % s(S_WO, 2))
    a("s_load_dwordx2 %s, s[0:1], 48" % s(S_WD, 2))
    a("s_load_dwordx2 %s, s[0:1], 56" % s(S_OUT, 2))
    a("s_and_b32 %s, s2, 7" % s(S_T0))
    a("s_lshr_b32 %s, s2, 3" % s(S_T1))
    a("s_lshr_b32 %s, %s, 3" % (s(S_T3), s(S_T1)))
    a("s_lshl_b32 %s, %s, 2" % (s(S2_TG), s(S_T0)))
    a("s_add_u32 %s, %s, %s" % (s(S2_TG), s(S2_TG), s(S_T3)))
    a("s_and_b32 %s, %s, 7" % (s(S2_CG2), s(S_T1)))
    a("s_mov_b32 %s, 0" % s(S_XSLOTR))
    a("s_mov_b32 %s, 0" % s(S_IT))
    a("s_lshr_b32 %s, %s, 3" % (s(S_T0), s(S_RB)))
    a("s_lshl_b32 %s, 1, %s" % (s(S_T0), s(S_T0)))
    a("s_cmp_eq_u32 %s, 0" % s(S_M))
    a("s_cselect_b32 %s, %s, 0" % (s(S_EV0), s(S_T0)))
    a("s_mov_b32 %s, 99" % s(S_EV1))
    if Cfg.merged:
        a("s_cmp_eq_u32 %s, 0" % s(S_W))
        a("s_cselect_b32 %s, 0x110, 0" % s(S_T0))
        a("s_cselect_b32 %s, 2, 99" % s(S_EV1))
        a("s_or_b32 %s, %s, %s" % (s(S_EV0), s(S_EV0), s(S_T0)))
    a("v_mov_b32 %s, %d" % (v(V_PADDR), WS_FA))
    a("v_mov_b32 %s, 0" % v(V_TAG))


def w_voffset_full(a, pitch, out):
    T = V_T
    a("v_lshrrev_b32 %s, 3, v0" % v(T))
    a("s_lshl_b32 %s, %s, 3" % (s(S_T0), s(S_J)))
    a("v_add_u32 %s, %s, %s" % (v(T), s(S_T0), v(T)))
    a("v_mul_u32_u24 %s, %d, %s" % (v(T), pitch, v(T)))
    a("v_bfe_u32 %s, v0, 4, 1" % v(T + 1))
    a("s_and_b32 %s, %s, 1" % (s(S_T0), s(S_J)))
    a("s_lshl_b32 %s, %s, 1" % (s(S_T0), s(S_T0)))
    a("v_or_b32 %s, %s, %s" % (v(T + 1), s(S_T0), v(T + 1)))
    a("v_bfe_u32 %s, v0, 1, 2" % v(T + 2))
    a("v_xor_b32 %s, %s, %s" % (v(T + 1), v(T + 1), v(T + 2)))
    a("v_lshl_add_u32 %s, %s, 5, %s" % (v(T), v(T + 1), v(T)))
    a("v_and_b32 %s, 1, v0" % v(T + 2))
    a("v_lshl_add_u32 %s, %s, 4, %s" % (v(out), v(T + 2), v(T)))


def w_voffset_g4(a, out):
    T = V_T
    a("v_lshrrev_b32 %s, 2, v0" % v(T))
    a("s_and_b32 %s, %s, 1" % (s(S_T0), s(S_J)))
    a("s_lshl_b32 %s, %s, 4" % (s(S_T0), s(S_T0)))
    a("v_add_u32 %s, %s, %s" % (v(T), s(S_T0), v(T)))
    a("v_mul_u32_u24 %s, 3584, %s" % (v(T), v(T)))
    a("v_lshrrev_b32 %s, 5, v0" % v(T + 1))
    a("s_and_b32 %s, %s, 2" % (s(S_T0), s(S_J)))
    a("v_or_b32 %s, %s, %s" % (v(T + 1), s(S_T0), v(T + 1)))
    a("v_and_b32 %s, 3, v0" % v(T + 2))
    a("v_xor_b32 %s, %s, %s" % (v(T + 1), v(T + 1), v(T + 2)))
    a("v_lshl_add_u32 %s, %s, 4, %s" % (v(out), v(T + 1), v(T)))


def y_cols(a):
    a("s_mul_i32 %s, %s, 320" % (s(S_T0), s(S_UU)))
    a("s_add_u32 %s, %s, 1024" % (s(S_T0), s(S_T0)))
    a("s_and_b32 %s, %s, 1" % (s(S_T1), s(S_UU)))
    a("s_lshl_b32 %s, %s, 6" % (s(S_T1), s(S_T1)))
    a("s_add_u32 %s, %s, %s" % (s(S_COL0), s(S_T0), s(S_T1)))
    a("s_add_u32 %s, %s, 128" % (s(S_COL1), s(S_COL0)))
    a("s_cmp_eq_u32 %s, 0" % s(S_T1))
    a("s_cselect_b32 %s, 256, 0" % s(S_T1))
    a("s_add_u32 %s, %s, %s" % (s(S_COL2), s(S_T0), s(S_T1)))


def variant_addresses(a, var):
    T = V_T
    if var.typ == 'X':
        w_voffset_full(a, var.pitch, V_WVO)
        a("s_lshl_b32 %s, %s, 7" % (s(S_COL0), s(S_UU)))
        a("v_add_u32 %s, %s, %s" % (v(V_WVO), s(S_COL0), v(V_WVO)))
        if var.m == 0:
            a("v_add_u32 %s, 1024, %s" % (v(V_WVO + 1), v(V_WVO)))
            a("v_add_u32 %s, 2048, %s" % (v(V_WVO + 2), v(V_WVO)))
    else:
        y_cols(a)
        w_voffset_full(a, var.pitch, V_WVO)
        a("v_add_u32 %s, %s, %s" % (v(V_WVO + 1), s(S_COL1), v(V_WVO)))
        a("v_add_u32 %s, %s, %s" % (v(V_WVO), s(S_COL0), v(V_WVO)))
        if var.m == 1:
            w_voffset_g4(a, V_WVO + 2)
            a("v_add_u32 %s, %s, %s" % (v(V_WVO + 2), s(S_COL2), v(V_WVO + 2)))
    a("s_mul_i32 %s, %s, %d" % (s(S_KOFF), s(S_KOFF), 32 * var.pitch))


def halo_addresses(a):
    T = V_T
    if True:
        for hh in range(2):
            a("v_lshrrev_b32 %s, 3, v0" % v(T))
            if hh:
                a("v_add_u32 %s, 8, %s" % (v(T), v(T)))
            a("v_lshrrev_b32 %s, 1, %s" % (v(T + 1), v(T)))
            a("v_and_b32 %s, 7, v0" % v(T + 2))
            a("v_xor_b32 %s, %s, %s" % (v(T + 1), v(T + 1), v(T + 2)))
            a("s_lshl_b32 %s, %s, 7" % (s(S_T0), s(S_RB)))
            a("s_sub_u32 %s, %s, 16" % (s(S_T0), s(S_T0)))
            a("v_add_u32 %s, %s, %s" % (v(T), s(S_T0), v(T)))
            a("v_max_i32 %s, 0, %s" % (v(T), v(T)))
            a("v_lshlrev_b32 %s, 10, %s" % (v(T), v(T)))
            a("v_lshl_add_u32 %s, %s, 4, %s" % (v(T + 13 + hh), v(T + 1), v(T)))


def halo_issue(a):
    T = V_T
    a("s_lshr_b32 %s, %s, 11" % (s(S_T0), s(S_HK)))
    a("s_add_u32 %s, %s, %s" % (s(S_T0), s(S_T0), s(S_W)))
    a("s_and_b32 %s, %s, 7" % (s(S_T0), s(S_T0)))
    for hh in range(2):
        a("s_lshl_b32 %s, %s, 11" % (s(S_T1), s(S_T0)))
        a("s_add_u32 m0, %s, %d" % (s(S_T1), HALO + hh * 1024))
        a("s_lshl_b32 %s, %s, 7" % (s(S_T1), s(S_T0)))
        a("buffer_load_dwordx4 %s, %s, %s offen lds" % (v(T + 13 + hh), s(SRD_X, 4), s(S_T1)))


def frag_lane_addresses(a, var):
    T = V_T
    a("v_lshrrev_b32 %s, 3, v0" % v(T))
    a("v_lshrrev_b32 %s, 4, v0" % v(T + 1))
    a("v_and_b32 %s, 15, v0" % v(T + 5))
    a("v_lshrrev_b32 %s, 1, %s" % (v(T + 6), v(T + 5)))
    a("v_xor_b32 %s, %s, %s" % (v(T + 6), v(T + 6), v(T + 1)))
    a("v_lshlrev_b32 %s, 4, %s" % (v(T + 6), v(T + 6)))
    a("v_lshl_add_u32 %s, %s, 7, %s" % (v(T + 6), v(T + 5), v(T + 6)))
    if var.typ == 'X':
        a("v_add_u32 %s, %d, %s" % (v(V_HL), HALO, v(T + 6)))
        a("v_xor_b32 %s, 64, %s" % (v(V_HL + 1), v(V_HL)))
    a("v_add_u32 %s, %d, %s" % (v(V_XL), XRING + var.m * 8192, v(T + 6)))
    a("v_xor_b32 %s, 64, %s" % (v(V_XL + 1), v(V_XL)))
    a("v_bfe_u32 %s, v0, 2, 2" % v(T + 7))
    a("v_lshl_add_u32 %s, %s, 3, %s" % (v(T + 7), v(T + 1), v(T + 7)))
    a("v_and_b32 %s, 3, %s" % (v(T + 8), v(T)))
    a("v_xor_b32 %s, %s, %s" % (v(T + 8), s(S_J), v(T + 8)))
    a("v_lshlrev_b32 %s, 5, %s" % (v(T + 8), v(T + 8)))
    a("v_lshl_add_u32 %s, %s, 7, %s" % (v(T + 8), v(T + 7), v(T + 8)))
    a("v_and_b32 %s, 3, v0" % v(T + 9))
    a("v_lshl_add_u32 %s, %s, 3, %s" % (v(V_WL), v(T + 9), v(T + 8)))
    a("v_add_u32 %s, %d, %s" % (v(V_WL3), 3 * WSLOT, v(V_WL)))
    if var.typ == 'Y':
        a("v_and_b32 %s, 1, %s" % (v(T + 10), v(T + 1)))
        a("v_and_b32 %s, 2, %s" % (v(T + 11), v(T + 9)))
        a("v_or_b32 %s, %s, %s" % (v(T + 10), v(T + 10), v(T + 11)))
        a("v_xor_b32 %s, %s, %s" % (v(T + 10), s(S_J), v(T + 10)))
        a("v_lshlrev_b32 %s, 4, %s" % (v(T + 10), v(T + 10)))
        a("v_lshl_add_u32 %s, %s, 6, %s" % (v(T + 10), v(T + 7), v(T + 10)))
        a("v_lshl_add_u32 %s, %s, 10, %s" % (v(T + 10), v(T + 11), v(T + 10)))
        a("v_and_b32 %s, 1, %s" % (v(T + 11), v(T + 9)))
        a("v_lshl_add_u32 %s, %s, 3, %s" % (v(T + 10), v(T + 11), v(T + 10)))
        a("v_add_u32 %s, 16384, %s" % (v(V_WM), v(T + 10)))
        a("v_add_u32 %s, %d, %s" % (v(V_WM3), 3 * WSLOT, v(V_WM)))
    for i in range(4):
        a("v_mov_b32 %s, 0x3f803f80" % v(V_ONES + i))
    if var.m == 0:
        a("s_mul_i32 %s, %s, 20480" % (s(S_T0), s(S_CGI)))
        a("s_mul_i32 %s, %s, 1280" % (s(S_T1), s(S_RB)))
        a("s_add_u32 %s, %s, %s" % (s(S_T0), s(S_T0), s(S_T1)))
        a("s_lshl_b32 %s, %s, 6" % (s(S_T1), s(S_J)))
        a("s_add_u32 %s, %s, %s" % (s(S_T0), s(S_T0), s(S_T1)))
        a("s_add_u32 %s, %s, %d" % (s(S_T0), s(S_T0), WS_CSP))
        a("v_lshlrev_b32 %s, 4, %s" % (v(V_CSST), v(T + 1)))
        a("v_add_u32 %s, %s, %s" % (v(V_CSST), s(S_T0), v(V_CSST)))
        a("v_cmp_eq_u32 vcc, 0, %s" % v(T + 5))
        a("v_mov_b32 %s, 0x%x" % (v(T + 11), OOB))
        a("s_nop 0")
        a("v_cndmask_b32 %s, %s, %s, vcc" % (v(V_CSST), v(T + 11), v(V_CSST)))


def stats_compute(a):
    T = V_T
    A = T
    for i in range(4):
        a("v_lshlrev_b32 %s, 16, %s" % (v(A + 2 * i), v(V_CSP + i)))
        a("v_and_b32 %s, 0xffff0000, %s" % (v(A + 2 * i + 1), v(V_CSP + i)))
    R = T + 8
    a("v_add_f32 %s, %s, %s" % (v(R), v(A), v(A + 1)))
    a("v_add_f32 %s, %s, %s" % (v(R + 1), v(A + 2), v(A + 3)))
    a("v_add_f32 %s, %s, %s" % (v(R + 2), v(A + 4), v(A + 5)))
    a("v_add_f32 %s, %s, %s" % (v(R + 3), v(A + 6), v(A + 7)))
    a("v_add_f32 %s, %s, %s" % (v(R), v(R), v(R + 1)))
    a("v_add_f32 %s, %s, %s" % (v(R + 2), v(R + 2), v(R + 3)))
    a("v_add_f32 %s, %s, %s" % (v(R), v(R), v(R + 2)))
    a("s_nop 1")
    allreduce16(a, [R])
    allreduce_rows(a, R, R + 1)
    a("v_mul_f32 %s, %s, %s" % (v(R), hexf(1.0 / 512), v(R)))
    for i in range(8):
        a("v_sub_f32 %s, %s, %s" % (v(A + i), v(A + i), v(R)))
    a("v_mul_f32 %s, %s, %s" % (v(R + 1), v(A), v(A)))
    a("v_mul_f32 %s, %s, %s" % (v(R + 2), v(A + 1), v(A + 1)))
    for i in range(2, 8, 2):
        a("v_fmac_f32 %s, %s, %s" % (v(R + 1), v(A + i), v(A + i)))
        a("v_fmac_f32 %s, %s, %s" % (v(R + 2), v(A + i + 1), v(A + i + 1)))
    a("v_add_f32 %s, %s, %s" % (v(R + 1), v(R + 1), v(R + 2)))
    a("s_nop 1")
    allreduce16(a, [R + 1])
    allreduce_rows(a, R + 1, R + 2)
    a("v_mov_b32 %s, %s" % (v(R + 2), hexf(1e-5)))
    a("v_fmac_f32 %s, %s, %s" % (v(R + 2), hexf(1.0 / 512), v(R + 1)))
    a("v_rsq_f32 %s, %s" % (v(R + 1), v(R + 2)))
    a("s_lshl_b32 %s, %s, 3" % (s(S_T0), s(S_CGI)))
    a("s_add_u32 %s, %s, %s" % (s(S_T0), s(S_T0), s(S_W)))
    a("s_lshl_b32 %s, %s, 7" % (s(S_T1), s(S_RB)))
    a("s_add_u32 %s, %s, %s" % (s(S_T0), s(S_T0), s(S_T1)))
    a("s_lshl_b32 %s, %s, 3" % (s(S_T0), s(S_T0)))
    a("s_add_u32 %s, %s, %d" % (s(S_T0), s(S_T0), WS_STATS))
    a("v_mov_b32 %s, 0x%x" % (v(R + 2), OOB))
    a("v_writelane_b32 %s, %s, 0" % (v(R + 2), s(S_T0)))
    a("s_nop 1")
    a("buffer_store_dwordx2 %s, %s, %s, 0 offen sc1" % (v(R, 2), v(R + 2), s(SRD_WS, 4)))


def tail_loads():
    T = V_T
    g = []
    g.append("s_mul_i32 %s, %s, 20480" % (s(S_T0), s(S_CGI)))
    g.append("s_lshl_b32 %s, %s, 6" % (s(S_T1), s(S_W)))
    g.append("s_add_u32 %s, %s, %s" % (s(S_T0), s(S_T0), s(S_T1)))
    g.append("s_add_u32 %s, %s, %d" % (s(S_T0), s(S_T0), WS_CSP))
    g.append("v_and_b32 %s, 15, v0" % v(T))
    g.append("v_mul_u32_u24 %s, 1280, %s" % (v(T), v(T)))
    g.append("v_lshrrev_b32 %s, 4, v0" % v(T + 1))
    g.append("v_lshl_add_u32 %s, %s, 4, %s" % (v(T), v(T + 1), v(T)))
    g.append("v_add_u32 %s, %s, %s" % (v(T), s(S_T0), v(T)))
    g.append("buffer_load_dwordx4 %s, %s, %s, 0 offen sc1" % (v(V_CSP, 4), v(T), s(SRD_WS, 4)))
    g.append("buffer_load_dwordx4 %s, %s, %s, 0 offen offset:512 sc1" % (v(V_CSP + 4, 4), v(T), s(SRD_WS, 4)))
    g.append("buffer_load_dwordx4 %s, %s, %s, 0 offen offset:1024 sc1" % (v(V_CSP + 8, 4), v(T), s(SRD_WS, 4)))
    g.append("s_lshl_b32 %s, %s, 6" % (s(S_T0), s(S_W)))
    g.append("s_lshl_b32 %s, %s, 7" % (s(S_T1), s(S_RB)))
    g.append("s_add_u32 %s, %s, %s" % (s(S_T0), s(S_T0), s(S_T1)))
    g.append("s_sub_u32 %s, %s, 16" % (s(S_T0), s(S_T0)))
    g.append("v_add_u32 %s, %s, v0" % (v(T + 2), s(S_T0)))
    g.append("v_max_i32 %s, 0, %s" % (v(T + 2), v(T + 2)))
    g.append("v_min_i32 %s, 2047, %s" % (v(T + 2), v(T + 2)))
    g.append("v_lshlrev_b32 %s, 3, %s" % (v(T + 2), v(T + 2)))
    g.append("v_add_u32 %s, %d, %s" % (v(T + 2), WS_STATS, v(T + 2)))
    g.append("buffer_load_dwordx2 %s, %s, %s, 0 offen sc1" % (v(V_STAT, 2), v(T + 2), s(SRD_WS, 4)))
    return g


def k2_setup_fillers():
    T = V_T + 4
    g = []
    g.append("s_mov_b32 %s, 0x%x" % (s(S_T0), 512 * 1024))
    g.append("s_mov_b32 %s, 0x%x" % (s(S_T1), 1792 * 1024))
    g.append("\n".join([
        "s_cmp_eq_u32 %s, 0" % s(S_M),
        "s_cselect_b32 %s, %s, %s" % (s(R_W), s(S_WO), s(S_WD)),
        "s_cselect_b32 %s, %s, %s" % (s(R_W + 1), s(S_WO + 1), s(S_WD + 1)),
        "s_cselect_b32 %s, 0, %d" % (s(S2_WROW), 20 * 32768),
        "s_cselect_b32 %s, %s, %s" % (s(R_W + 2), s(S_T0), s(S_T1))]))
    g.append("s_and_b32 %s, %s, 0xffff" % (s(R_W + 1), s(R_W + 1)))
    g.append("s_mov_b32 %s, 0x20000" % s(R_W + 3))
    g.append("s_lshl_b32 %s, %s, 12" % (s(S2_M0B), s(S_M)))
    g.append("s_lshl_b32 %s, %s, 10" % (s(S_T0), s(S_J)))
    g.append("s_add_u32 %s, %s, %s" % (s(S2_M0B), s(S2_M0B), s(S_T0)))
    g.append("v_lshrrev_b32 %s, 3, v0" % v(T))
    g.append("s_lshl_b32 %s, %s, 3" % (s(S_T0), s(S_J)))
    g.append("v_add_u32 %s, %s, %s" % (v(T), s(S_T0), v(T)))
    g.append("v_lshlrev_b32 %s, 10, %s" % (v(T), v(T)))
    g.append("v_bfe_u32 %s, v0, 4, 1" % v(T + 1))
    g.append("s_and_b32 %s, %s, 1" % (s(S_T0), s(S_J)))
    g.append("s_lshl_b32 %s, %s, 1" % (s(S_T0), s(S_T0)))
    g.append("v_or_b32 %s, %s, %s" % (v(T + 1), s(S_T0), v(T + 1)))
    g.append("v_bfe_u32 %s, v0, 1, 2" % v(T + 2))
    g.append("v_xor_b32 %s, %s, %s" % (v(T + 1), v(T + 1), v(T + 2)))
    g.append("v_lshl_add_u32 %s, %s, 5, %s" % (v(T), v(T + 1), v(T)))
    g.append("v_and_b32 %s, 1, v0" % v(T + 2))
    g.append("v_lshl_add_u32 %s, %s, 4, %s" % (v(T), v(T + 2), v(T)))
    g.append("s_lshl_b32 %s, %s, 7" % (s(S_T0), s(S2_CG2)))
    g.append("v_add_u32 %s, %s, %s" % (v(V_W2VO), s(S_T0), v(T)))
    return g


def touch_fillers():
    T = V_T + 8
    g = []
    g.append("s_and_b32 %s, %s, 3" % (s(S_T0), s(S2_TG)))
    g.append("s_lshl_b32 %s, %s, 2" % (s(S_T0), s(S_T0)))
    g.append("s_add_u32 %s, %s, %s" % (s(S_T0), s(S_T0), s(S_J)))
    g.append("s_mul_i32 %s, %s, 44" % (s(S_T0), s(S_T0)))
    g.append("s_mul_i32 %s, %s, 1088" % (s(S_T1), s(S_M)))
    g.append("s_add_u32 %s, %s, %s" % (s(S_T0), s(S_T0), s(S_T1)))
    g.append("v_min_u32 %s, 43, v0" % v(T))
    g.append("v_add_u32 %s, %s, %s" % (v(T), s(S_T0), v(T)))
    g.append("v_lshlrev_b32 %s, 10, %s" % (v(T), v(T)))
    g.append("s_lshl_b32 %s, %s, 7" % (s(S_T0), s(S2_CG2)))
    g.append("v_add_u32 %s, %s, %s" % (v(T), s(S_T0), v(T)))
    g.append("s_mov_b32 %s, %s" % (s(SRD_U), s(S_WD)))
    g.append("s_and_b32 %s, %s, 0xffff" % (s(SRD_U + 1), s(S_WD + 1)))
    g.append("s_mov_b32 %s, 0x%x" % (s(SRD_U + 2), 1792 * 1024))
    g.append("s_mov_b32 %s, 0x20000" % s(SRD_U + 3))
    g.append("buffer_load_dword %s, %s, %s, 0 offen" % (v(V_DUMMY), v(T), s(SRD_U, 4)))
    return g


def bias_fillers(var):
    T = V_T + 12
    g = []
    g.append("v_and_b32 %s, 15, v0" % v(T))
    g.append("v_lshrrev_b32 %s, 4, v0" % v(T + 1))
    g.append("v_lshlrev_b32 %s, 2, %s" % (v(T + 1), v(T + 1)))
    g.append("v_sub_u32 %s, %s, %s" % (v(T + 2), v(T), v(T + 1)))
    g.append("v_mov_b32 %s, %s" % (v(T + 3), hexf(-1e30)))
    for r in range(4):
        g.append("v_subrev_u32 %s, %d, %s" % (v(T + 4), r, v(T + 2)))
        g.append("v_and_b32 %s, 0x80000001, %s" % (v(T + 5), v(T + 4)))
        g.append("v_sub_u32 %s, -2, %s" % (v(T + 4), v(T + 4)))
        g.append("v_cmp_eq_u32 vcc, 0, %s" % v(T + 5))
        g.append("v_and_b32 %s, 0x80000001, %s" % (v(T + 4), v(T + 4)))
        g.append("s_nop 0")
        g.append("v_cndmask_b32_e64 %s, %s, 0, vcc" % (v(BC + r), v(T + 3)))
        g.append("v_cmp_eq_u32 vcc, 0, %s" % v(T + 4))
        g.append("s_nop 1")
        g.append("v_cndmask_b32_e64 %s, %s, 0, vcc" % (v(BP + r), v(T + 3)))
    if var.m == 0:
        g.append("s_cmp_eq_u32 %s, 0" % s(S_RB))
        g.append("s_cselect_b64 vcc, -1, 0")
        g.append("s_nop 0")
        for r in range(4):
            g.append("v_cndmask_b32 %s, %s, %s, vcc" % (v(BP0 + r), v(BP + r), v(T + 3)))
    else:
        for r in range(4):
            g.append("v_mov_b32 %s, %s" % (v(BP0 + r), v(BP + r)))
    return g


def tail_reduce():
    g = []
    regs = [V_CSP + i for i in range(12)]
    for ror in (8, 4, 2, 1):
        for r in regs:
            g.append("v_add_f32_dpp %s, %s, %s row_ror:%d row_mask:0xf bank_mask:0xf" % (v(r), v(r), v(r), ror))
    return g


V_CSW, V_CSW3, V_STW = 32, 33, 34


def publish_addr():
    T = V_T + 4
    g = []
    g.append("v_lshlrev_b32 %s, 4, v0" % v(T))
    g.append("v_add_u32 %s, %d, %s" % (v(T), LB + O_XBUF, v(T)))
    g.append("v_and_b32 %s, 48, v0" % v(T + 1))
    g.append("s_lshl_b32 %s, %s, 6" % (s(S_T0), s(S_W)))
    g.append("s_add_u32 %s, %s, %d" % (s(S_T0), s(S_T0), LB + O_CS))
    g.append("v_add_u32 %s, %s, %s" % (v(T + 1), s(S_T0), v(T + 1)))
    g.append("v_and_b32 %s, 15, v0" % v(T + 2))
    g.append("v_cmp_eq_u32 vcc, 0, %s" % v(T + 2))
    g.append("s_lshl_b32 %s, %s, 6" % (s(S_T1), s(S_W)))
    g.append("v_add_u32 %s, %s, v0" % (v(T + 3), s(S_T1)))
    g.append("v_cndmask_b32 %s, %s, %s, vcc" % (v(V_CSW), v(T), v(T + 1)))
    g.append("s_cmp_lt_u32 %s, 4\ns_cselect_b64 %s, vcc, 0" % (s(S_W), s(S_EX, 2)))
    g.append("v_add_u32 %s, 1024, %s" % (v(T + 1), v(T + 1)))
    g.append("v_cndmask_b32 %s, %s, %s, %s" % (v(V_CSW3), v(T), v(T + 1), s(S_EX, 2)))
    g.append("v_cmp_gt_u32 vcc, 144, %s" % v(T + 3))
    g.append("v_lshlrev_b32 %s, 2, %s" % (v(T + 3), v(T + 3)))
    g.append("v_add_u32 %s, %d, %s" % (v(T + 3), LB, v(T + 3)))
    g.append("s_nop 0")
    g.append("v_cndmask_b32 %s, %s, %s, vcc" % (v(V_STW), v(T), v(T + 3)))
    return g


def publish_writes():
    return ["ds_write_b128 %s, %s" % (v(V_CSW), v(V_CSP, 4)),
            "ds_write_b128 %s, %s offset:512" % (v(V_CSW), v(V_CSP + 4, 4)),
            "ds_write_b128 %s, %s" % (v(V_CSW3), v(V_CSP + 8, 4)),
            "ds_write_b32 %s, %s offset:%d" % (v(V_STW), v(V_STAT), O_MEAN),
            "ds_write_b32 %s, %s offset:%d" % (v(V_STW), v(V_STAT + 1), O_RSTD)]


class BG:
    def __init__(self, a, groups):
        self.a = a
        self.groups = list(groups)

    def tick(self, n=1):
        for _ in range(n):
            if self.groups:
                for t in self.groups.pop(0):
                    self.a(t)

    def flush(self):
        self.tick(len(self.groups))


def w2_load_group(tile):
    adv = ["s_add_u32 %s, %s, 32768" % (s(S2_WROW), s(S2_WROW))]
    pre = "s_add_u32 m0, %s, %d" % (s(S2_M0B), (tile % NTILE2) * TILE2)
    ld = "buffer_load_dwordx4 %s, %s, %s offen lds" % (v(V_W2VO), s(R_W, 4), s(S2_WROW))
    if tile == 15:
        adv = "\n".join([
            "s_add_u32 %s, %s, 32768" % (s(S2_WROW), s(S2_WROW)),
            "s_cmp_eq_u32 %s, 0" % s(S_M),
            "s_cselect_b32 %s, 0, %s" % (s(S2_WROW), s(S2_WROW)),
            "s_mov_b32 %s, %s" % (s(R_W), s(S_WD)),
            "s_and_b32 %s, %s, 0xffff" % (s(R_W + 1), s(S_WD + 1)),
            "s_mov_b32 %s, 0x%x" % (s(R_W + 2), 1792 * 1024),
            "s_mov_b32 %s, 0x20000" % s(R_W + 3)])
        return [pre, "s_nop 0", ld, adv]
    return [pre, "s_nop 0", ld, adv[0]]


S_C0 = 64


def gelu_tile(a, G, U, mt, rt, csg, csu, tmp, out, vc1):
    H = (0, 2)
    for h in H:
        a(pk("fma", G + h, [('b', mt), ('p', csg + h), ('p', G + h)], neg=[1, 0, 0]))
    for h in H:
        a(pk("fma", U + h, [('b', mt), ('p', csu + h), ('p', U + h)], neg=[1, 0, 0]))
    for h in H:
        a(pk("mul", G + h, [('b', rt), ('p', G + h)]))
    for h in H:
        a(pk("mul", U + h, [('b', rt), ('p', U + h)]))
    for h in H:
        a(pk("mul", tmp + h, [('p', G + h), ('p', G + h)]))
    for h in H:
        a(pk("fma", tmp + h, [('p', tmp + h), ('b', vc1), ('s', S_C0)]))
    for h in H:
        a(pk("mul", tmp + h, [('p', tmp + h), ('p', G + h)]))
    for r in range(4):
        a("v_exp_f32 %s, %s" % (v(tmp + r), v(tmp + r)))
    for h in H:
        a(pk("mul", U + h, [('p', G + h), ('p', U + h)]))
    for h in H:
        a(pk("add", tmp + h, [('p', tmp + h), ('c', "1.0")]))
    for r in range(4):
        a("v_rcp_f32 %s, %s" % (v(tmp + r), v(tmp + r)))
    a("s_nop 0")
    for h in H:
        a(pk("mul", U + h, [('p', tmp + h), ('p', U + h)]))
    a("v_cvt_pk_bf16_f32 %s, %s, %s" % (v(out), v(U), v(U + 1)))
    a("v_cvt_pk_bf16_f32 %s, %s, %s" % (v(out + 1), v(U + 2), v(U + 3)))


def gelu_tiles2(a, tiles, tmp, vc1):
    H = (0, 2)
    T = [tmp, tmp + 4]
    for (G, U, mt, rt, csg, csu, out) in tiles:
        for h in H:
            a(pk("fma", G + h, [('b', mt), ('p', csg + h), ('p', G + h)], neg=[1, 0, 0]))
    for (G, U, mt, rt, csg, csu, out) in tiles:
        for h in H:
            a(pk("mul", G + h, [('b', rt), ('p', G + h)]))
    for i, (G, U, mt, rt, csg, csu, out) in enumerate(tiles):
        for h in H:
            a(pk("mul", T[i] + h, [('p', G + h), ('p', G + h)]))
    for (G, U, mt, rt, csg, csu, out) in tiles:
        for h in H:
            a(pk("fma", U + h, [('b', mt), ('p', csu + h), ('p', U + h)], neg=[1, 0, 0]))
    for i, (G, U, mt, rt, csg, csu, out) in enumerate(tiles):
        for h in H:
            a(pk("fma", T[i] + h, [('p', T[i] + h), ('b', vc1), ('s', S_C0)]))
    for (G, U, mt, rt, csg, csu, out) in tiles:
        for h in H:
            a(pk("mul", U + h, [('b', rt), ('p', U + h)]))
    for i, (G, U, mt, rt, csg, csu, out) in enumerate(tiles):
        for h in H:
            a(pk("mul", T[i] + h, [('p', T[i] + h), ('p', G + h)]))
    for i in range(len(tiles)):
        for r in range(4):
            a("v_exp_f32 %s, %s" % (v(T[i] + r), v(T[i] + r)))
    for (G, U, mt, rt, csg, csu, out) in tiles:
        for h in H:
            a(pk("mul", U + h, [('p', G + h), ('p', U + h)]))
    for i in range(len(tiles)):
        for h in H:
            a(pk("add", T[i] + h, [('p', T[i] + h), ('c', "1.0")]))
    for i in range(len(tiles)):
        for r in range(4):
            a("v_rcp_f32 %s, %s" % (v(T[i] + r), v(T[i] + r)))
    a("s_nop 0")
    for i, (G, U, mt, rt, csg, csu, out) in enumerate(tiles):
        for h in H:
            a(pk("mul", U + h, [('p', T[i] + h), ('p', U + h)]))
    for (G, U, mt, rt, csg, csu, out) in tiles:
        a("v_cvt_pk_bf16_f32 %s, %s, %s" % (v(out), v(U), v(U + 1)))
        a("v_cvt_pk_bf16_f32 %s, %s, %s" % (v(out + 1), v(U + 2), v(U + 3)))


def norm_ct(a, A, mt, rt, cs, out):
    for h in (0, 2):
        a(pk("fma", A + h, [('b', mt), ('p', cs + h), ('p', A + h)], neg=[1, 0, 0]))
    for h in (0, 2):
        a(pk("mul", A + h, [('b', rt), ('p', A + h)]))
    a("v_cvt_pk_bf16_f32 %s, %s, %s" % (v(out), v(A), v(A + 1)))
    a("v_cvt_pk_bf16_f32 %s, %s, %s" % (v(out + 1), v(A + 2), v(A + 3)))


def norm_ct4(a, As, mts, rts, cs, outs):
    for A, mt in zip(As, mts):
        for h in (0, 2):
            a(pk("fma", A + h, [('b', mt), ('p', cs + h), ('p', A + h)], neg=[1, 0, 0]))
    for A, rt in zip(As, rts):
        for h in (0, 2):
            a(pk("mul", A + h, [('b', rt), ('p', A + h)]))
    for A, out in zip(As, outs):
        a("v_cvt_pk_bf16_f32 %s, %s, %s" % (v(out), v(A), v(A + 1)))
        a("v_cvt_pk_bf16_f32 %s, %s, %s" % (v(out + 1), v(A + 2), v(A + 3)))


def norm_v(a, A, mv, rv, csv, out):
    for h in (0, 2):
        a(pk("fma", A + h, [('p', mv + h), ('b', csv), ('p', A + h)], neg=[1, 0, 0]))
    for h in (0, 2):
        a(pk("mul", A + h, [('p', rv + h), ('p', A + h)]))
    a("v_cvt_pk_bf16_f32 %s, %s, %s" % (v(out), v(A), v(A + 1)))
    a("v_cvt_pk_bf16_f32 %s, %s, %s" % (v(out + 1), v(A + 2), v(A + 3)))


def act_store_pairs(a, P, vaddr):
    a("s_nop 1")
    a("v_permlane16_swap_b32 %s, %s" % (v(P), v(P + 2)))
    a("v_permlane16_swap_b32 %s, %s" % (v(P + 1), v(P + 3)))
    a("v_permlane16_swap_b32 %s, %s" % (v(P + 4), v(P + 6)))
    a("v_permlane16_swap_b32 %s, %s" % (v(P + 5), v(P + 7)))
    a("s_mov_b32 %s, %d" % (s(S_T3), 2 * ACT_T))
    a("buffer_store_dwordx4 %s, %s, %s, 0 offen %s" % (v(P, 4), v(vaddr), s(SRD_WS, 4), Cfg.sc))
    a("buffer_store_dwordx4 %s, %s, %s, %s offen %s" % (v(P + 4, 4), v(vaddr), s(SRD_WS, 4), s(S_T3), Cfg.sc))


def act_addr_base(a, vout, T, m):
    a("v_bfe_u32 %s, v0, 4, 1" % v(T + 1))
    a("s_lshl_b32 %s, %s, 3" % (s(S_T0), s(S_RB)))
    a("s_add_u32 %s, %s, %d" % (s(S_T0), s(S_T0), 4 * m))
    a("v_add_u32 %s, %s, %s" % (v(T + 1), s(S_T0), v(T + 1)))
    a("v_mul_u32_u24 %s, %d, %s" % (v(T + 1), ACT_T, v(T + 1)))
    a("v_lshrrev_b32 %s, 5, v0" % v(T))
    a("v_lshl_add_u32 %s, %s, 8, %s" % (v(T + 1), v(T), v(T + 1)))
    a("v_and_b32 %s, 15, v0" % v(T))
    a("v_lshl_add_u32 %s, %s, 4, %s" % (v(vout), v(T), v(T + 1)))


def lane_mask(fn):
    m = 0
    for l in range(64):
        if fn(l & 15, l >> 4):
            m |= 1 << l
    return m


def smov64(a, reg, val):
    a("s_mov_b32 %s, 0x%x" % (s(reg), val & 0xffffffff))
    a("s_mov_b32 %s, 0x%x" % (s(reg + 1), val >> 32))


M_PAR, M_CA, M_CB, M_FA, M_FB = 28, 30, 36, 38, 52


def epilogue_x(a, var, bg):
    m = var.m
    MT, RT = 48, 52
    MH, RH = 56, 57
    CSQ, CSK, CSG, CSU = 60, 64, 68, 72
    CSV = 58
    MV, RV = 76, 92
    MVH, RVH = 108, 112
    KP = 116
    VP = 212
    QP = 222
    MK = 232
    HP = 244
    RQ = 252
    TMP = 20
    A_I16, A_G16 = 10, 11
    V_C1 = 12
    V_AO, V_AHH = 13, 14
    a.comment("---- X epilogue m=%d ----" % m)
    stamp(a, 3, "st_epi")
    a("v_and_b32 %s, 15, v0" % v(TMP))
    a("v_lshlrev_b32 %s, 2, %s" % (v(A_I16), v(TMP)))
    a("v_add_u32 %s, %d, %s" % (v(A_I16), LB, v(A_I16)))
    a("v_and_b32 %s, 48, v0" % v(A_G16))
    a("v_add_u32 %s, %d, %s" % (v(A_G16), LB, v(A_G16)))
    base = (16 + 64 * m) * 4
    a("s_lshl_b32 %s, %s, 6" % (s(S_T0), s(S_J)))
    a("v_add_u32 %s, %s, %s" % (v(TMP + 2), s(S_T0), v(A_G16)))
    a("v_add_u32 %s, %s, %s" % (v(TMP + 3), s(S_T0), v(A_I16)))
    a("ds_read_b128 %s, %s offset:%d" % (v(CSK, 4), v(TMP + 2), O_CS + 256))
    for t in range(4):
        a("ds_read_b32 %s, %s offset:%d" % (v(MT + t), v(A_I16), O_MEAN + base + t * 64))
        a("ds_read_b32 %s, %s offset:%d" % (v(RT + t), v(A_I16), O_RSTD + base + t * 64))
    a("ds_read_b32 %s, %s offset:%d" % (v(CSV), v(TMP + 3), O_CS + 512))
    a("ds_read_b128 %s, %s offset:%d" % (v(MV + 12, 4), v(A_G16), O_MEAN + base + 3 * 64))
    a("ds_read_b128 %s, %s offset:%d" % (v(RV + 12, 4), v(A_G16), O_RSTD + base + 3 * 64))
    if m == 0:
        a("ds_read_b32 %s, %s offset:%d" % (v(MH), v(A_I16), O_MEAN))
        a("ds_read_b32 %s, %s offset:%d" % (v(RH), v(A_I16), O_RSTD))
    else:
        a("ds_read_b128 %s, %s offset:%d" % (v(MVH, 4), v(A_G16), O_MEAN))
        a("ds_read_b128 %s, %s offset:%d" % (v(RVH, 4), v(A_G16), O_RSTD))
    a("v_mov_b32 %s, %s" % (v(V_C1), hexf(C1)))
    a("s_mov_b32 %s, %s" % (s(S_C0), hexf(C0)))
    par = lane_mask(lambda i, g: i & 1)
    ca = lane_mask(lambda i, g: 4 * g + (i & 1) <= i)
    cb = lane_mask(lambda i, g: 4 * g + (i & 1) + 2 <= i)
    smov64(a, M_PAR, par)
    smov64(a, M_CA, ca)
    smov64(a, M_CB, cb)
    if m == 0:
        a("s_cmp_eq_u32 %s, 0" % s(S_RB))
        a("s_cselect_b32 %s, -1, 0" % s(S_T0))
        a("s_andn2_b32 %s, %s, %s" % (s(M_FA), s(S_T0), s(M_CA)))
        a("s_andn2_b32 %s, %s, %s" % (s(M_FA + 1), s(S_T0), s(M_CA + 1)))
        a("s_andn2_b32 %s, %s, %s" % (s(M_FB), s(S_T0), s(M_CB)))
        a("s_andn2_b32 %s, %s, %s" % (s(M_FB + 1), s(S_T0), s(M_CB + 1)))
    a("v_mov_b32 %s, 0xffff" % v(TMP + 5))
    a("v_mov_b32 %s, 0xffff0000" % v(TMP + 6))
    a("v_cndmask_b32 %s, %s, %s, %s" % (v(TMP + 5), v(TMP + 5), v(TMP + 6), s(M_PAR, 2)))
    a("v_cndmask_b32 %s, %s, 0, %s" % (v(MK), v(TMP + 5), s(M_CA, 2)))
    a("v_cndmask_b32 %s, %s, 0, %s" % (v(MK + 1), v(TMP + 5), s(M_CB, 2)))
    a("v_cndmask_b32 %s, 0, %s, %s" % (v(MK + 2), v(TMP + 5), s(M_CA, 2)))
    a("v_cndmask_b32 %s, 0, %s, %s" % (v(MK + 3), v(TMP + 5), s(M_CB, 2)))
    a("s_mul_i32 %s, %s, 1536" % (s(S_T0), s(S_J)))
    a("s_add_u32 %s, %s, %d" % (s(S_T0), s(S_T0), LB))
    a("v_lshlrev_b32 %s, 3, v0" % v(TMP + 4))
    a("v_add_u32 %s, %s, %s" % (v(TMP + 4), s(S_T0), v(TMP + 4)))
    bg.tick()
    a("s_waitcnt lgkmcnt(0)")
    stamp(a, 4, "st_epi")
    for t in range(3):
        a("ds_read_b128 %s, %s offset:%d" % (v(MV + 4 * t, 4), v(A_G16), O_MEAN + base + t * 64))
        a("ds_read_b128 %s, %s offset:%d" % (v(RV + 4 * t, 4), v(A_G16), O_RSTD + base + t * 64))
    a("ds_read_b128 %s, %s offset:%d" % (v(CSG, 4), v(TMP + 2), O_CS + 768))
    a("ds_read_b128 %s, %s offset:%d" % (v(CSU, 4), v(TMP + 2), O_CS + 1024))
    a("ds_read_b128 %s, %s offset:%d" % (v(CSQ, 4), v(TMP + 2), O_CS))
    if m == 0:
        norm_ct(a, ACC(1, 3), MT + 3, RT + 3, CSK, KP + 8)
        norm_v(a, ACC(2, 3), MV + 12, RV + 12, CSV, VP + 8)
        a("ds_write_b64 %s, %s offset:%d" % (v(TMP + 4), v(KP + 8, 2), O_XBUF))
        a("ds_write_b64 %s, %s offset:%d" % (v(TMP + 4), v(VP + 8, 2), O_XBUF + 512))
        norm_ct4(a, [ACC(1, t) for t in range(3)] + [V_AH], [MT + t for t in range(3)] + [MH],
                 [RT + t for t in range(3)] + [RH], CSK, [KP + 2 + 2 * t for t in range(3)] + [KP])
    else:
        norm_v(a, V_AH, MVH, RVH, CSV, VP)
        a("ds_write_b64 %s, %s offset:%d" % (v(TMP + 4), v(VP, 2), O_XBUF + 1024))
        norm_ct4(a, [ACC(1, t) for t in range(4)], [MT + t for t in range(4)], [RT + t for t in range(4)], CSK,
                 [KP + 2 + 2 * t for t in range(4)])
        norm_v(a, ACC(2, 3), MV + 12, RV + 12, CSV, VP + 8)
    bg.tick()
    a("s_waitcnt lgkmcnt(0)")
    stamp(a, 5, "st_epi")
    for t0 in (0, 2):
        gelu_tiles2(a, [(ACC(3, t), ACC(4, t), MT + t, RT + t, CSG, CSU, HP + 2 * t) for t in (t0, t0 + 1)], TMP + 8, V_C1)
        bg.tick(2)
    act_addr_base(a, V_AO, TMP + 6, m)
    a("s_lshl_b32 %s, %s, 11" % (s(S_T0), s(S_UU)))
    a("s_lshl_b32 %s, %s, 9" % (s(S_T1), s(S_J)))
    a("s_add_u32 %s, %s, %s" % (s(S_T0), s(S_T0), s(S_T1)))
    a("v_add_u32 %s, %s, %s" % (v(V_AO), s(S_T0), v(V_AO)))
    a("v_add_u32 %s, %d, %s" % (v(V_AHH), 16 * 1024, v(V_AO)))
    act_store_pairs(a, HP, V_AHH)
    stamp(a, 6, "st_epi")
    a("s_barrier")
    stamp(a, 7, "st_epi")
    if m == 0:
        a("ds_read_b64 %s, %s offset:%d" % (v(VP, 2), v(TMP + 4), O_XBUF + 1024))
    else:
        a("ds_read_b64 %s, %s offset:%d" % (v(KP, 2), v(TMP + 4), O_XBUF))
        a("ds_read_b64 %s, %s offset:%d" % (v(VP, 2), v(TMP + 4), O_XBUF + 512))
    for t in range(3):
        norm_v(a, ACC(2, t), MV + 4 * t, RV + 4 * t, CSV, VP + 2 + 2 * t)
    for t in range(4):
        a("v_mul_f32 %s, %s, %s" % (v(RQ + t), hexf(0.25 * LOG2E), v(RT + t)))
    norm_ct4(a, [ACC(0, t) for t in range(4)], [MT + t for t in range(4)], [RQ + t for t in range(4)], CSQ,
             [QP + 2 * t for t in range(4)])
    bg.tick(2)
    S0 = lambda t: ACC(0, t)
    S1 = lambda t: ACC(1, t)
    PP = lambda t: ACC(2, t)
    a("s_waitcnt lgkmcnt(0)")
    for t in range(4):
        a("v_mfma_f32_16x16x16_bf16 %s, %s, %s, 0" % (v(S1(t), 4), v(KP + 2 + 2 * t, 2), v(QP + 2 * t, 2)))
        a("v_mfma_f32_16x16x16_bf16 %s, %s, %s, 0" % (v(S0(t), 4), v(KP + 2 * t, 2), v(QP + 2 * t, 2)))
    bg.tick(2)
    a("v_mov_b32 %s, %s" % (v(TMP + 8), hexf(-1e30)))
    a("s_nop 4")
    stamp(a, 8, "st_epi")
    AB = lambda t: ACC(3, t)
    for t in range(4):
        a("v_cndmask_b32 %s, %s, %s, %s" % (v(AB(t)), v(S1(t)), v(S1(t) + 1), s(M_PAR, 2)))
        a("v_cndmask_b32 %s, %s, %s, %s" % (v(AB(t) + 1), v(S1(t) + 2), v(S1(t) + 3), s(M_PAR, 2)))
    for t in range(4):
        a("v_cndmask_b32 %s, %s, %s, %s" % (v(AB(t) + 2), v(S0(t)), v(S0(t) + 1), s(M_PAR, 2)))
        a("v_cndmask_b32 %s, %s, %s, %s" % (v(AB(t) + 3), v(S0(t) + 2), v(S0(t) + 3), s(M_PAR, 2)))
    for t in range(4):
        a("v_cndmask_b32 %s, %s, %s, %s" % (v(AB(t)), v(AB(t) + 2), v(AB(t)), s(M_CA, 2)))
        a("v_cndmask_b32 %s, %s, %s, %s" % (v(AB(t) + 1), v(AB(t) + 3), v(AB(t) + 1), s(M_CB, 2)))
    if m == 0:
        a("v_cndmask_b32 %s, %s, %s, %s" % (v(AB(0)), v(AB(0)), v(TMP + 8), s(M_FA, 2)))
        a("v_cndmask_b32 %s, %s, %s, %s" % (v(AB(0) + 1), v(AB(0) + 1), v(TMP + 8), s(M_FB, 2)))
    MX = TMP
    TT = TMP + 4
    for t in range(4):
        a("v_max_f32 %s, %s, %s" % (v(MX + t), v(AB(t)), v(AB(t) + 1)))
    for swap in ("v_permlane16_swap_b32", "v_permlane32_swap_b32"):
        for t in range(4):
            a("v_mov_b32 %s, %s" % (v(TT + t), v(MX + t)))
        for t in range(4):
            a("%s %s, %s" % (swap, v(MX + t), v(TT + t)))
        for t in range(4):
            a("v_max_f32 %s, %s, %s" % (v(MX + t), v(MX + t), v(TT + t)))
    for t in range(4):
        a("v_sub_f32 %s, %s, %s" % (v(AB(t)), v(AB(t)), v(MX + t)))
        a("v_sub_f32 %s, %s, %s" % (v(AB(t) + 1), v(AB(t) + 1), v(MX + t)))
    for t in range(4):
        a("v_exp_f32 %s, %s" % (v(AB(t)), v(AB(t))))
        a("v_exp_f32 %s, %s" % (v(AB(t) + 1), v(AB(t) + 1)))
    bg.tick(2)
    for t in range(4):
        a("v_cvt_pk_bf16_f32 %s, %s, %s" % (v(AB(t) + 2), v(AB(t)), v(AB(t))))
        a("v_cvt_pk_bf16_f32 %s, %s, %s" % (v(AB(t) + 3), v(AB(t) + 1), v(AB(t) + 1)))
    for t in range(4):
        a("v_and_b32 %s, %s, %s" % (v(PP(t)), v(AB(t) + 2), v(MK)))
        a("v_and_b32 %s, %s, %s" % (v(PP(t) + 1), v(AB(t) + 3), v(MK + 1)))
        a("v_and_b32 %s, %s, %s" % (v(PP(t) + 2), v(AB(t) + 2), v(MK + 2)))
        a("v_and_b32 %s, %s, %s" % (v(PP(t) + 3), v(AB(t) + 3), v(MK + 3)))
    stamp(a, 9, "st_epi")
    a("s_nop 1")
    for t in range(4):
        a("v_mfma_f32_16x16x32_bf16 %s, %s, %s, 0" % (v(S1(t), 4), v(V_ONES, 4), v(PP(t), 4)))
    for t in range(4):
        a("v_mfma_f32_16x16x32_bf16 %s, %s, %s, 0" % (v(S0(t), 4), v(VP + 2 * t, 4), v(PP(t), 4)))
    bg.flush()
    a("s_nop 3")
    for t in range(4):
        a("v_rcp_f32 %s, %s" % (v(MX + t), v(S1(t))))
    a("s_nop 1")
    for t in range(4):
        for r in range(4):
            a("v_mul_f32 %s, %s, %s" % (v(S0(t) + r), v(MX + t), v(S0(t) + r)))
    OP = 116
    for t in range(4):
        a("v_cvt_pk_bf16_f32 %s, %s, %s" % (v(OP + 2 * t), v(S0(t)), v(S0(t) + 1)))
        a("v_cvt_pk_bf16_f32 %s, %s, %s" % (v(OP + 2 * t + 1), v(S0(t) + 2), v(S0(t) + 3)))
    act_store_pairs(a, OP, V_AO)
    stamp(a, 11, "st_epi")


def epilogue_y(a, var, bg):
    m = var.m
    MT, RT = 48, 52
    MTM, RTM = 56, 58
    CS = 60
    CSG4, CSU4 = 76, 80
    HPA, HPB, HM = 84, 92, 100
    TMP = 20
    A_I16, A_G16 = 10, 11
    V_C1 = 12
    V_A, V_B, V_M = 13, 14, 15
    a.comment("---- Y epilogue m=%d ----" % m)
    a("v_and_b32 %s, 15, v0" % v(TMP))
    a("v_lshlrev_b32 %s, 2, %s" % (v(A_I16), v(TMP)))
    a("v_add_u32 %s, %d, %s" % (v(A_I16), LB, v(A_I16)))
    a("v_and_b32 %s, 48, v0" % v(A_G16))
    a("v_add_u32 %s, %d, %s" % (v(A_G16), LB, v(A_G16)))
    base = (16 + 64 * m) * 4
    a("s_lshl_b32 %s, %s, 6" % (s(S_T0), s(S_J)))
    a("v_add_u32 %s, %s, %s" % (v(TMP + 2), s(S_T0), v(A_G16)))
    for tau in range(2):
        a("ds_read_b128 %s, %s offset:%d" % (v(CS + 4 * tau, 4), v(TMP + 2), O_CS + 256 * tau))
    for t in range(4):
        a("ds_read_b32 %s, %s offset:%d" % (v(MT + t), v(A_I16), O_MEAN + base + t * 64))
        a("ds_read_b32 %s, %s offset:%d" % (v(RT + t), v(A_I16), O_RSTD + base + t * 64))
    for tau in range(2, 4):
        a("ds_read_b128 %s, %s offset:%d" % (v(CS + 4 * tau, 4), v(TMP + 2), O_CS + 256 * tau))
    a("v_lshrrev_b32 %s, 5, v0" % v(TMP + 3))
    a("v_lshl_add_u32 %s, %s, 6, %s" % (v(TMP + 3), v(TMP + 3), v(A_I16)))
    a("v_and_b32 %s, 16, v0" % v(TMP + 4))
    a("v_add_u32 %s, %s, %s" % (v(TMP + 4), s(S_T0), v(TMP + 4)))
    a("v_add_u32 %s, %d, %s" % (v(TMP + 4), LB, v(TMP + 4)))
    a("v_mov_b32 %s, %s" % (v(V_C1), hexf(C1)))
    a("s_mov_b32 %s, %s" % (s(S_C0), hexf(C0)))
    bg.tick()
    a("s_waitcnt lgkmcnt(0)")
    for p in range(2):
        a("ds_read_b32 %s, %s offset:%d" % (v(MTM + p), v(TMP + 3), O_MEAN + base + p * 128))
        a("ds_read_b32 %s, %s offset:%d" % (v(RTM + p), v(TMP + 3), O_RSTD + base + p * 128))
    a("ds_read_b128 %s, %s offset:%d" % (v(CSG4, 4), v(TMP + 4), O_CS + 1024))
    a("ds_read_b128 %s, %s offset:%d" % (v(CSU4, 4), v(TMP + 4), O_CS + 1024 + 32))
    act_addr_base(a, TMP + 5, TMP, m)
    a("s_lshl_b32 %s, %s, 4" % (s(S_T0), s(S_COL0)))
    a("s_lshl_b32 %s, %s, 9" % (s(S_T1), s(S_J)))
    a("s_add_u32 %s, %s, %s" % (s(S_T0), s(S_T0), s(S_T1)))
    a("s_add_u32 %s, %s, 16384" % (s(S_T0), s(S_T0)))
    a("v_add_u32 %s, %s, %s" % (v(V_A), s(S_T0), v(TMP + 5)))
    a("v_add_u32 %s, %d, %s" % (v(V_B), 64 * 32, v(V_A)))
    for t0 in (0, 2):
        gelu_tiles2(a, [(ACC(0, t), ACC(1, t), MT + t, RT + t, CS, CS + 4, HPA + 2 * t) for t in (t0, t0 + 1)], TMP + 8, V_C1)
        bg.tick(4)
    act_store_pairs(a, HPA, V_A)
    for t0 in (0, 2):
        gelu_tiles2(a, [(ACC(2, t), ACC(3, t), MT + t, RT + t, CS + 8, CS + 12, HPB + 2 * t) for t in (t0, t0 + 1)], TMP + 8, V_C1)
        bg.tick(4)
    bg.flush()
    act_store_pairs(a, HPB, V_B)
    a("s_waitcnt lgkmcnt(0)")
    for p in range(2):
        for r in range(4):
            a("v_permlane32_swap_b32 %s, %s" % (v(ACC(4, 2 * p) + r), v(ACC(4, 2 * p + 1) + r)))
    a("v_bfe_u32 %s, v0, 4, 1" % v(TMP + 1))
    a("v_lshlrev_b32 %s, 1, %s" % (v(TMP + 1), v(TMP + 1)))
    a("v_lshrrev_b32 %s, 5, v0" % v(TMP))
    a("v_add_u32 %s, %s, %s" % (v(TMP), v(TMP), v(TMP + 1)))
    a("s_lshl_b32 %s, %s, 3" % (s(S_T0), s(S_RB)))
    a("s_add_u32 %s, %s, %d" % (s(S_T0), s(S_T0), 4 * m))
    a("v_add_u32 %s, %s, %s" % (v(TMP), s(S_T0), v(TMP)))
    a("v_mul_u32_u24 %s, %d, %s" % (v(TMP), ACT_T, v(TMP)))
    a("v_and_b32 %s, 15, v0" % v(TMP + 1))
    a("v_lshl_add_u32 %s, %s, 4, %s" % (v(TMP), v(TMP + 1), v(TMP)))
    a("s_lshl_b32 %s, %s, 4" % (s(S_T0), s(S_COL2)))
    a("s_lshl_b32 %s, %s, 8" % (s(S_T1), s(S_J)))
    a("s_add_u32 %s, %s, %s" % (s(S_T0), s(S_T0), s(S_T1)))
    a("s_add_u32 %s, %s, 16384" % (s(S_T0), s(S_T0)))
    a("v_add_u32 %s, %s, %s" % (v(V_M), s(S_T0), v(TMP)))
    gelu_tiles2(a, [(ACC(4, 2 * p), ACC(4, 2 * p + 1), MTM + p, RTM + p, CSG4, CSU4, HM + 2 * p) for p in range(2)], TMP + 8, V_C1)
    a("s_nop 1")
    a("v_permlane16_swap_b32 %s, %s" % (v(HM), v(HM + 2)))
    a("v_permlane16_swap_b32 %s, %s" % (v(HM + 1), v(HM + 3)))
    a("buffer_store_dwordx4 %s, %s, %s, 0 offen %s" % (v(HM, 4), v(V_M), s(SRD_WS, 4), Cfg.sc))


def emit_variant(a, var, after_label):
    L = var.L
    ool = []
    a.label("P1_%s" % var.name)
    T = V_T
    variant_addresses(a, var)
    if var.typ == 'X' and var.m == 0:
        srd(a, SRD_Q, S_Q, 512 * 3072)
    else:
        srd(a, SRD_G, S_G, 512 * 3584)
        srd(a, SRD_U, S_U, 512 * 3584)
        if var.typ == 'Y' and var.m == 1:
            a("s_cmp_lt_u32 %s, 2" % s(S_J))
            a("s_cselect_b32 %s, %s, %s" % (s(SRD_MIX), s(SRD_G), s(SRD_U)))
            a("s_cselect_b32 %s, %s, %s" % (s(SRD_MIX + 1), s(SRD_G + 1), s(SRD_U + 1)))
            a("s_mov_b32 %s, 0x%x" % (s(SRD_MIX + 2), 512 * 3584))
            a("s_mov_b32 %s, 0x20000" % s(SRD_MIX + 3))
    for slot in range(2):
        for i in range(len(var.loads)):
            pre, ld = w_load(var, i, slot)
            for t_ in pre:
                a(t_)
            a("s_nop 0")
            for t_ in ld:
                a(t_)
        for t_ in koff_adv(var):
            a(t_)
    n_after_row = 2 + 2 * (L - 1)
    srd(a, SRD_WS, S_WS, WS_USED)
    prologue_late(a)
    if Cfg.merged and var.m == 0:
        lab = a.newlabel("noep")
        a("s_cmp_eq_u32 %s, 0" % s(S_W))
        a("s_cbranch_scc0 %s" % lab)
        a("v_mov_b32 %s, %d" % (v(T + 15), WS_EPOCH))
        a("buffer_load_dword %s, %s, %s, 0 offen sc1" % (v(V_TAG), v(T + 15), s(SRD_WS, 4)))
        a.label(lab)
    if var.typ == 'X':
        halo_addresses(a)
    frag_lane_addresses(a, var)
    for i in range(84 if var.typ == 'X' else 80):
        a("v_mov_b32 %s, 0" % v(128 + i))
    stamp(a, 6, "st_pro")
    if var.typ == 'X' and var.m == 0:
        lab = a.newlabel("halo0")
        a("s_cmp_eq_u32 %s, 0" % s(S_W))
        a("s_cbranch_scc0 %s" % lab)
        halo_issue(a)
        a.label(lab)
    for h in range(2):
        pre, ld = x_load(h)
        for t_ in pre:
            a(t_)
        a("s_nop 0")
        for t_ in ld:
            a(t_)
    for g_ in x_adv():
        for t_ in g_:
            a(t_)
    if var.typ == 'X' and var.m == 0:
        lab = a.newlabel("halo1")
        a("s_cmp_eq_u32 %s, 1" % s(S_W))
        a("s_cbranch_scc0 %s" % lab)
        halo_issue(a)
        a.label(lab)
    a("s_waitcnt vmcnt(%d)" % (n_after_row + 2))
    stamp(a, 7, "st_pro")
    stats_compute(a)
    stamp(a, 8, "st_pro")
    if var.typ == 'X' and var.m == 0:
        l0, l1 = a.newlabel("w0"), a.newlabel("w1")
        a("s_cmp_eq_u32 %s, 1" % s(S_W))
        a("s_cbranch_scc0 %s" % l0)
        a("s_waitcnt vmcnt(5)")
        a("s_branch %s" % l1)
        a.label(l0)
        a("s_waitcnt vmcnt(3)")
        a.label(l1)
    else:
        a("s_waitcnt vmcnt(3)")
    a("s_barrier")
    stamp(a, 3)
    stamp(a, 3, "st_pro")
    stamp(a, 3, "st_loop")
    for g in frag_addr(var, kk=0, advance=False):
        for t in g:
            a(t)
    for t in frag_reads(var, 0, 0):
        a(t)
    for i in range(len(var.loads)):
        pre, ld = w_load(var, i, 2)
        for t_ in pre:
            a(t_)
        a("s_nop 0")
        for t_ in ld:
            a(t_)
    for t_ in koff_adv(var):
        a(t_)
    if var.typ == 'X':
        if var.m == 0:
            lab = a.newlabel("halo2")
            a("s_cmp_lt_u32 %s, 2" % s(S_W))
            a("s_cbranch_scc1 %s" % lab)
            halo_issue(a)
            a.label(lab)
        else:
            halo_issue(a)
    issue_plain(a, var, 3, 0)
    if ("prioloop1" in EXP and var.m == 1) or ("prioloop0" in EXP and var.m == 0):
        a("s_setprio 1")
    loop = "P1_%s_loop" % var.name
    a.label(loop)
    def top11(aa):
        lab = aa.newlabel("chk")
        back = aa.newlabel("chkback")
        aa("s_cmp_eq_u32 %s, %s" % (s(S_IT), s(S_EV1)))
        aa("s_cbranch_scc1 %s" % lab)
        aa.label(back)
        b = Asm()
        b.uid = aa.uid + 1000
        b.label(lab)
        o2 = []
        poll_check(b, o2, "early")
        b("s_branch %s" % back)
        ool.append(b.text())
        ool.extend(o2)
        aa.uid = b.uid + 1
    for s4 in range(4):
        emit_step(a, var, s4, 2 * L, post=(lambda k: (lambda aa: event_site(aa, var, k, ool)))(s4),
                  top=top11 if (s4 == 3 and var.m == 0 and Cfg.merged) else None)
    a("s_lshr_b32 %s, %s, 4" % (s(S_EV0), s(S_EV0)))
    if STAMPS["on"] and "st_loop" in EXP:
        for it in range(3):
            lab = a.newlabel("stl")
            a("s_cmp_eq_u32 %s, %d" % (s(S_IT), it))
            a("s_cbranch_scc0 %s" % lab)
            stamp(a, 4 + it, "st_loop")
            a.label(lab)
    a("s_add_u32 %s, %s, 1" % (s(S_IT), s(S_IT)))
    a("s_cmp_lt_u32 %s, 3" % s(S_IT))
    a("s_cbranch_scc1 %s" % loop)
    stamp(a, 4)
    nm = var.nm
    nA = 1 if Cfg.merged and "notouch" not in EXP else 0
    emit_step(a, var, 0, 2 * L, dma=False, extra=spread(([] if "early11" in EXP else tail_loads()) + publish_addr(), 1, nm - 2),
              post=lambda aa: (w2_touch(aa, 0), w2_touch(aa, 1) if TB == "12" else None))
    stamp(a, 7, "st_loop")
    emit_step(a, var, 1, L + 4, dma=False, extra=spread(k2_setup_fillers(), 3, nm - 1))
    stamp(a, 8, "st_loop")

    def top14(aa):
        pass
    if nA:
        both = TB == "12"
        if var.m == 0:
            if both:
                lab0, lab1 = a.newlabel("t14a"), a.newlabel("t14b")
                a("s_cmp_eq_u32 %s, 3" % s(S_W))
                a("s_cbranch_scc1 %s" % lab0)
                a("s_waitcnt vmcnt(1)")
                a("s_branch %s" % lab1)
                a.label(lab0)
                a("s_waitcnt vmcnt(2)")
                a.label(lab1)
            else:
                a("s_waitcnt vmcnt(1)")
        else:
            lab0, lab1 = a.newlabel("t14a"), a.newlabel("t14b")
            a("s_cmp_eq_u32 %s, 4" % s(S_W))
            a("s_cbranch_scc1 %s" % lab0)
            a("s_waitcnt vmcnt(%d)" % (1 if both else 0))
            a("s_branch %s" % lab1)
            a.label(lab0)
            a("s_waitcnt vmcnt(%d)" % (2 if both else 1))
            a.label(lab1)
    else:
        a("s_waitcnt vmcnt(0)")
    emit_step(a, var, 2, 63, dma=False, extra=spread(tail_reduce(), 1, nm - 2),
              post=(lambda aa: w2_touch(aa, 1)) if TB == "14" else None)
    stamp(a, 9, "st_loop")
    f15 = spread(publish_writes(), 0, 4)
    emit_step(a, var, 3, 63, dma=False, prefetch=False, extra=f15,
              post=(lambda aa: w2_touch(aa, 1)) if TB == "15" else None)
    stamp(a, 5)
    stamp(a, 11, "st_loop")
    if "prioloop1" in EXP or "prioloop0" in EXP:
        a("s_setprio 0")
    a("s_waitcnt lgkmcnt(0)")
    a("s_barrier")
    stamp(a, 6)
    groups = [w2_load_group(t) for t in range(PRE2)] if (Cfg.merged and var.m == 0) else []
    bg = BG(a, groups)
    if "prio1" in EXP and var.m == 1:
        a("s_setprio 1")
    if "prio0" in EXP and var.m == 0:
        a("s_setprio 1")
    if var.typ == 'X':
        epilogue_x(a, var, bg)
    else:
        epilogue_y(a, var, bg)
    stamp(a, 7)
    if "prio1" in EXP or "prio0" in EXP:
        a("s_setprio 0")
    a("s_branch %s" % after_label)
    for t in ool:
        a.raw(t)


def emit_phase1(a, after_label):
    prologue_common(a)
    a("s_and_b32 %s, %s, 1" % (s(S_T0), s(S_CGI)))
    a("s_lshl_b32 %s, %s, 1" % (s(S_T0), s(S_T0)))
    a("s_or_b32 %s, %s, %s" % (s(S_T0), s(S_T0), s(S_M)))
    a("s_cmp_eq_u32 %s, 1" % s(S_T0))
    a("s_cbranch_scc1 P1_X1")
    a("s_cmp_eq_u32 %s, 2" % s(S_T0))
    a("s_cbranch_scc1 P1_Y0")
    a("s_cmp_eq_u32 %s, 3" % s(S_T0))
    a("s_cbranch_scc1 P1_Y1")
    for typ, m in (('X', 0), ('X', 1), ('Y', 0), ('Y', 1)):
        emit_variant(a, Variant(typ, m), after_label)


def emit_handoff(a):
    ool = []
    T = V_T
    V_P2 = V_DUMMY + 1
    a("s_lshl_b32 %s, %s, 7" % (s(S_T0), s(S_RB)))
    a("s_lshl_b32 %s, %s, 2" % (s(S_T1), s(S_CGI)))
    a("s_add_u32 %s, %s, %s" % (s(S_T0), s(S_T0), s(S_T1)))
    a("s_add_u32 %s, %s, %d" % (s(S_T0), s(S_T0), WS_FD))
    a("v_mov_b32 %s, 0x%x" % (v(T), OOB))
    a("v_writelane_b32 %s, %s, 0" % (v(T), s(S_T0)))
    a("s_lshr_b32 %s, %s, 1" % (s(S_T1), s(S2_TG)))
    a("s_lshl_b32 %s, %s, 7" % (s(S_T1), s(S_T1)))
    a("s_add_u32 %s, %s, %d" % (s(S_T1), s(S_T1), WS_FD))
    a("v_and_b32 %s, 15, v0" % v(T + 1))
    a("v_lshl_add_u32 %s, %s, 2, %s" % (v(V_PADDR), v(T + 1), s(S_T1)))
    a("s_waitcnt vmcnt(0)")
    a("s_barrier")
    stamp(a, 8)
    other = a.newlabel("ho_other")
    join = a.newlabel("ho_join")
    go = a.newlabel("ho_go")
    a("s_cmp_eq_u32 %s, 0" % s(S_W))
    a("s_cbranch_scc0 %s" % other)
    a("buffer_store_dword %s, %s, %s, 0 offen sc1" % (v(V_TAG), v(T), s(SRD_WS, 4)))
    a("buffer_load_dword %s, %s, %s, 0 offen sc1" % (v(V_PRES), v(V_PADDR), s(SRD_WS, 4)))
    a("s_mov_b32 %s, 0" % s(S_SPIN))
    loop = a.newlabel("ho_poll")
    a.label(loop)
    for cur, nxt in ((V_PRES, V_P2), (V_P2, V_PRES)):
        a("buffer_load_dword %s, %s, %s, 0 offen sc1" % (v(nxt), v(V_PADDR), s(SRD_WS, 4)))
        a("s_waitcnt vmcnt(1)")
        a("v_cmp_ne_u32 vcc, %s, %s" % (v(V_TAG), v(cur)))
        a("s_nop 1")
        a("s_cmp_lg_u64 vcc, 0")
        a("s_cbranch_scc0 %s" % go)
    a("s_add_u32 %s, %s, 1" % (s(S_SPIN), s(S_SPIN)))
    a("s_cmp_lt_u32 %s, %d" % (s(S_SPIN), SPIN_MAX))
    a("s_cbranch_scc1 %s" % loop)
    a("s_branch %s" % go)
    a.label(other)
    a("s_cmp_eq_u32 %s, 0" % s(S_M))
    a("s_cbranch_scc1 %s" % join)
    for t_ in range(PRE2):
        for x in w2_load_group(t_):
            a(x)
    a.label(join)
    a("s_waitcnt vmcnt(0)")
    a.label(go)
    a("s_barrier")
    return ool


P2_AVO = 2
P2_WL = 4
P2_XO = 3
P2_XR = 16
P2_T = 20
DA = int(os.environ.get("DA", "12"))
WF2 = lambda st, u: 48 + st * 16 + u * 4
ACT2 = lambda i: 80 + (i % DA) * 4
ACC_D = lambda u: 128 + u * 4
ACC_S = lambda u: 144 + u * 4
V_EPF = 212


def w2_schedule():
    sched = {}
    tiles = list(range(PRE2, 36))
    n = len(tiles)
    last = 27
    prev = 1
    for k, tau in enumerate(tiles):
        want = 2 + (k * (last - 2)) // max(n - 1, 1)
        earliest = 4 * ((tau - NTILE2 - 1 + 3) // 4) + 2 if tau - NTILE2 > 1 else 2
        V = max(0, -(-(tau - NTILE2 - 1) // 4))
        earliest = 4 * V + 2
        st = max(want, earliest, prev + 1)
        needV = -(-(tau - 7) // 4)
        assert st + 2 <= 4 * needV + 2, (tau, st)
        sched[st] = tau
        prev = st
    return sched


def p2_addresses(a):
    T = P2_T
    a("s_lshl_b32 %s, %s, 2" % (s(S_T0), s(S2_TG)))
    a("s_add_u32 %s, %s, %s" % (s(S_T0), s(S_T0), s(S_J)))
    a("s_mul_i32 %s, %s, %d" % (s(S_T0), s(S_T0), ACT_T))
    a("v_lshlrev_b32 %s, 4, v0" % v(T))
    a("v_add_u32 %s, %s, %s" % (v(P2_AVO), s(S_T0), v(T)))
    a("s_mul_i32 %s, %s, %d" % (s(S2_AOFF), s(S_M), 36 * 1024))
    a("v_lshrrev_b32 %s, 4, v0" % v(T + 1))
    a("v_bfe_u32 %s, v0, 2, 2" % v(T + 2))
    a("v_lshl_add_u32 %s, %s, 3, %s" % (v(T + 2), v(T + 1), v(T + 2)))
    a("v_lshlrev_b32 %s, 7, %s" % (v(T + 2), v(T + 2)))
    a("v_and_b32 %s, 3, v0" % v(T + 3))
    a("v_lshl_add_u32 %s, %s, 3, %s" % (v(T + 2), v(T + 3), v(T + 2)))
    a("s_lshl_b32 %s, %s, 12" % (s(S_T0), s(S_M)))
    a("v_add_u32 %s, %s, %s" % (v(T + 2), s(S_T0), v(T + 2)))
    a("v_bfe_u32 %s, v0, 3, 2" % v(T + 3))
    for u in range(4):
        a("v_xor_b32 %s, %d, %s" % (v(T + 4), u, v(T + 3)))
        a("v_lshl_add_u32 %s, %s, 5, %s" % (v(P2_WL + u), v(T + 4), v(T + 2)))
        a("v_add_u32 %s, 0x10000, %s" % (v(P2_WL + 4 + u), v(P2_WL + u)))
        a("v_add_u32 %s, 0x20000, %s" % (v(P2_WL + 8 + u), v(P2_WL + u)))
    a("s_lshl_b32 %s, %s, 6" % (s(S_T0), s(S2_TG)))
    a("s_lshl_b32 %s, %s, 4" % (s(S_T1), s(S_J)))
    a("s_add_u32 %s, %s, %s" % (s(S_T0), s(S_T0), s(S_T1)))
    a("v_and_b32 %s, 15, v0" % v(T + 4))
    a("v_add_u32 %s, %s, %s" % (v(T + 4), s(S_T0), v(T + 4)))
    a("v_lshlrev_b32 %s, 10, %s" % (v(T + 4), v(T + 4)))
    a("v_and_b32 %s, 1, %s" % (v(T + 5), v(T + 1)))
    a("v_lshl_add_u32 %s, %s, 5, %s" % (v(T + 4), v(T + 5), v(T + 4)))
    a("v_lshrrev_b32 %s, 1, %s" % (v(T + 5), v(T + 1)))
    a("v_lshl_add_u32 %s, %s, 4, %s" % (v(T + 4), v(T + 5), v(T + 4)))
    a("s_lshl_b32 %s, %s, 7" % (s(S_T0), s(S2_CG2)))
    a("s_lshl_b32 %s, %s, 6" % (s(S_T1), s(S_M)))
    a("s_add_u32 %s, %s, %s" % (s(S_T0), s(S_T0), s(S_T1)))
    a("v_add_u32 %s, %s, %s" % (v(P2_XO), s(S_T0), v(T + 4)))
    for r in range(16):
        a("v_mov_b32 %s, 0" % v(ACC_D(0) + r))
    srd(a, R_OUT, S_OUT, 2048 * 1024)


class VmSim:
    def __init__(self):
        self.ops = []

    def issue(self, tag):
        self.ops.append(tag)

    def need(self, tag):
        if tag not in self.ops:
            return None
        return len(self.ops) - 1 - self.ops.index(tag)


def p2_reads(tile, u):
    st = tile & 1
    slot = tile % NTILE2
    base = P2_WL + 4 * (slot // 8) + u
    off = (slot % 8) * TILE2
    return ["ds_read_b64_tr_b16 %s, %s offset:%d" % (v(WF2(st, u), 2), v(base), off),
            "ds_read_b64_tr_b16 %s, %s offset:%d" % (v(WF2(st, u) + 2, 2), v(base), off + 512)]


def p2_act(i):
    return "buffer_load_dwordx4 %s, %s, %s, %s offen offset:%d %s" % (
        v(ACT2(i), 4), v(P2_AVO), s(SRD_WS, 4), s(S2_AOFF), (i % 4) * 1024, Cfg.sc if Cfg.merged else "")


def emit_phase2_main(a):
    sim = VmSim()
    stamp(a, 3, "st_p2")
    XR_STEP = 22
    if Cfg.merged:
        lab = a.newlabel("noepl")
        a("s_cmp_eq_u32 s2, 0")
        a("s_cbranch_scc0 %s" % lab)
        a("s_cmp_eq_u32 %s, 0" % s(S_W))
        a("s_cbranch_scc0 %s" % lab)
        a("v_lshrrev_b32 %s, 2, v0" % v(P2_T))
        a("v_lshlrev_b32 %s, 7, %s" % (v(P2_T), v(P2_T)))
        a("v_and_b32 %s, 3, v0" % v(P2_T + 1))
        a("v_lshl_add_u32 %s, %s, 4, %s" % (v(P2_T), v(P2_T + 1), v(P2_T)))
        a("v_add_u32 %s, %d, %s" % (v(V_PADDR), WS_FA, v(P2_T)))
        a("buffer_load_dwordx4 %s, %s, %s, 0 offen sc1" % (v(V_EPF, 4), v(V_PADDR), s(SRD_WS, 4)))
        a.label(lab)
    if Cfg.merged and "acttouch" in EXP:
        lab = a.newlabel("noat")
        T = P2_T
        a("s_lshl_b32 %s, %s, 3" % (s(S_T0), s(S_W)))
        a("s_add_u32 %s, %s, %s" % (s(S_T0), s(S_T0), s(S2_CG2)))
        a("s_add_u32 %s, %s, %d" % (s(S_T0), s(S_T0), DA))
        a("s_cmp_lt_u32 %s, 36" % s(S_T0))
        a("s_cbranch_scc0 %s" % lab)
        a("s_lshl_b32 %s, %s, 10" % (s(S_T0), s(S_T0)))
        a("s_lshl_b32 %s, %s, 2" % (s(S_T1), s(S2_TG)))
        a("s_mul_i32 %s, %s, %d" % (s(S_T1), s(S_T1), ACT_T))
        a("s_add_u32 %s, %s, %s" % (s(S_T0), s(S_T0), s(S_T1)))
        a("v_bfe_u32 %s, v0, 3, 2" % v(T))
        a("v_mul_u32_u24 %s, %d, %s" % (v(T), ACT_T, v(T)))
        a("v_lshrrev_b32 %s, 5, v0" % v(T + 1))
        a("v_mul_u32_u24 %s, %d, %s" % (v(T + 1), 36 * 1024, v(T + 1)))
        a("v_and_b32 %s, 7, v0" % v(T + 2))
        a("v_lshl_add_u32 %s, %s, 7, %s" % (v(T), v(T + 2), v(T)))
        a("v_add3_u32 %s, %s, %s, %s" % (v(T), v(T), v(T + 1), s(S_T0)))
        a("buffer_load_dword %s, %s, %s, 0 offen sc1" % (v(V_DUMMY), v(T), s(SRD_WS, 4)))
        a.label(lab)
    A0 = min(DA, int(os.environ.get("A0", "8")))
    state = {"next": 0}

    def act_upto(n):
        while state["next"] < min(n, 36):
            i = state["next"]
            a(p2_act(i))
            sim.issue(("a", i))
            if i % 4 == 3:
                a("s_add_u32 %s, %s, 4096" % (s(S2_AOFF), s(S2_AOFF)))
            state["next"] += 1
    act_upto(A0)
    for u in range(4):
        for t in p2_reads(0, u):
            a(t)
    a("s_waitcnt lgkmcnt(0)")
    for u in range(4):
        for t in p2_reads(1, u):
            a(t)
    wsched = w2_schedule()
    for sg in range(36):
        if sg in (0, 2, 6, 12, 18, 26, 34):
            stamp(a, {0: 4, 2: 5, 6: 6, 12: 7, 18: 8, 26: 9, 34: 11}[sg], "st_p2")
        if sg % 4 == 2 and sg <= 30:
            V = (sg - 2) // 4
            last_tile = 4 * V + 7
            n = sim.need(("w", last_tile))
            if n is not None:
                a("s_waitcnt vmcnt(%d)" % n)
            a("s_barrier")
        if sg == 16:
            lab = a.newlabel("noacc")
            a("s_cmp_eq_u32 %s, 0" % s(S_M))
            a("s_cbranch_scc0 %s" % lab)
            a("s_nop 7")
            for r in range(16):
                a("v_mov_b32 %s, %s" % (v(ACC_S(0) + r), v(ACC_D(0) + r)))
            for r in range(16):
                a("v_mov_b32 %s, 0" % v(ACC_D(0) + r))
            a("s_nop 1")
            a.label(lab)
        n = sim.need(("a", sg))
        st = sg & 1
        a("s_waitcnt vmcnt(%d) lgkmcnt(%d)" % (n, 7 if sg < 35 else 0))
        for u in range(4):
            d = v(ACC_D(u), 4)
            a("v_mfma_f32_16x16x32_bf16 %s, %s, %s, %s" % (d, v(WF2(st, u), 4), v(ACT2(sg), 4), d))
            if sg + 2 < 36:
                for t in p2_reads(sg + 2, u):
                    a(t)
            if u == 1 and sg in wsched:
                tile = wsched[sg]
                for t in w2_load_group(tile):
                    a(t)
                sim.issue(("w", tile))
        act_upto(min(sg + 1 + DA, state["next"] + 2))
        if sg == XR_STEP:
            a("buffer_load_dwordx4 %s, %s, %s, 0 offen" % (v(P2_XR, 4), v(P2_XO), s(SRD_X, 4)))
            sim.issue("xr")


def emit_phase2_epilogue(a):
    T = P2_T
    a("s_nop 7")
    a("s_mul_i32 %s, %s, 6144" % (s(S_T0), s(S_J)))
    a("v_lshlrev_b32 %s, 4, v0" % v(T))
    a("v_add_u32 %s, %s, %s" % (v(T), s(S_T0), v(T)))
    k1 = a.newlabel("k2_kh1")
    join = a.newlabel("k2_join")
    S, D, E = 56, 64, 72
    a("s_cmp_eq_u32 %s, 0" % s(S_M))
    a("s_cbranch_scc0 %s" % k1)
    a("ds_write_b128 %s, %s" % (v(T), v(ACC_S(2), 4)))
    a("ds_write_b128 %s, %s offset:1024" % (v(T), v(ACC_S(3), 4)))
    a("ds_write_b128 %s, %s offset:2048" % (v(T), v(ACC_D(2), 4)))
    a("ds_write_b128 %s, %s offset:3072" % (v(T), v(ACC_D(3), 4)))
    for r in range(8):
        a("v_mov_b32 %s, %s" % (v(S + r), v(ACC_S(0) + r)))
    a("s_waitcnt lgkmcnt(0)")
    a("s_barrier")
    a("ds_read_b128 %s, %s offset:4096" % (v(48, 4), v(T)))
    a("ds_read_b128 %s, %s offset:5120" % (v(52, 4), v(T)))
    a("s_waitcnt lgkmcnt(0)")
    for h in range(0, 8, 2):
        a(pk("add", D + h, [('p', ACC_D(0) + h), ('p', 48 + h)]))
    a("s_branch %s" % join)
    a.label(k1)
    a("ds_write_b128 %s, %s offset:4096" % (v(T), v(ACC_D(0), 4)))
    a("ds_write_b128 %s, %s offset:5120" % (v(T), v(ACC_D(1), 4)))
    a("s_waitcnt lgkmcnt(0)")
    a("s_barrier")
    a("ds_read_b128 %s, %s" % (v(S, 4), v(T)))
    a("ds_read_b128 %s, %s offset:1024" % (v(S + 4, 4), v(T)))
    a("ds_read_b128 %s, %s offset:2048" % (v(48, 4), v(T)))
    a("ds_read_b128 %s, %s offset:3072" % (v(52, 4), v(T)))
    a("s_waitcnt lgkmcnt(0)")
    for h in range(0, 8, 2):
        a(pk("add", D + h, [('p', ACC_D(2) + h), ('p', 48 + h)]))
    a.label(join)
    a("s_mov_b32 %s, %s" % (s(S_C0), hexf(-LOG2E)))
    for h in range(0, 8, 2):
        a(pk("mul", E + h, [('p', D + h), ('s', S_C0)]))
    for r in range(8):
        a("v_exp_f32 %s, %s" % (v(E + r), v(E + r)))
    for h in range(0, 8, 2):
        a(pk("mul", S + h, [('p', S + h), ('p', D + h)]))
    for h in range(0, 8, 2):
        a(pk("add", E + h, [('p', E + h), ('c', "1.0")]))
    for r in range(8):
        a("v_rcp_f32 %s, %s" % (v(E + r), v(E + r)))
    for i in range(4):
        a("v_lshlrev_b32 %s, 16, %s" % (v(D + 2 * i), v(P2_XR + i)))
        a("v_and_b32 %s, 0xffff0000, %s" % (v(D + 2 * i + 1), v(P2_XR + i)))
    for h in range(0, 8, 2):
        a(pk("mul", S + h, [('p', S + h), ('p', E + h)]))
    a("s_nop 1")
    for r in range(4):
        a("v_permlane16_swap_b32 %s, %s" % (v(S + r), v(S + 4 + r)))
    a("s_nop 1")
    for h in range(0, 8, 2):
        a(pk("add", S + h, [('p', S + h), ('p', D + h)]))
    for i in range(4):
        a("v_cvt_pk_bf16_f32 %s, %s, %s" % (v(E + i), v(S + 2 * i), v(S + 2 * i + 1)))
    a("buffer_store_dwordx4 %s, %s, %s, 0 offen %s" % (v(E, 4), v(P2_XO), s(R_OUT, 4), os.environ.get("OUTSC", "")))


def emit_epoch_bump(a):
    lab = a.newlabel("nobump")
    loop = a.newlabel("bumploop")
    go = a.newlabel("bumpgo")
    a("s_cmp_eq_u32 s2, 0")
    a("s_cbranch_scc0 %s" % lab)
    a("s_cmp_eq_u32 %s, 0" % s(S_W))
    a("s_cbranch_scc0 %s" % lab)
    a("s_mov_b32 %s, 0" % s(S_SPIN))
    a.label(loop)
    a("v_xor_b32 %s, %s, %s" % (v(V_EPF), v(V_TAG), v(V_EPF)))
    a("v_xor_b32 %s, %s, %s" % (v(V_EPF + 1), v(V_TAG), v(V_EPF + 1)))
    a("v_xor_b32 %s, %s, %s" % (v(V_EPF + 2), v(V_TAG), v(V_EPF + 2)))
    a("v_xor_b32 %s, %s, %s" % (v(V_EPF + 3), v(V_TAG), v(V_EPF + 3)))
    a("v_or_b32 %s, %s, %s" % (v(V_EPF), v(V_EPF), v(V_EPF + 1)))
    a("v_or3_b32 %s, %s, %s, %s" % (v(V_EPF), v(V_EPF), v(V_EPF + 2), v(V_EPF + 3)))
    a("v_cmp_ne_u32 vcc, 0, %s" % v(V_EPF))
    a("s_nop 1")
    a("s_cmp_lg_u64 vcc, 0")
    a("s_cbranch_scc0 %s" % go)
    a("buffer_load_dwordx4 %s, %s, %s, 0 offen sc1" % (v(V_EPF, 4), v(V_PADDR), s(SRD_WS, 4)))
    a("s_add_u32 %s, %s, 1" % (s(S_SPIN), s(S_SPIN)))
    a("s_waitcnt vmcnt(0)")
    a("s_cmp_lt_u32 %s, %d" % (s(S_SPIN), SPIN_MAX))
    a("s_cbranch_scc1 %s" % loop)
    a.label(go)
    a("v_mov_b32 %s, 0x%x" % (v(P2_T), OOB))
    a("s_mov_b32 %s, %d" % (s(S_T0), WS_EPOCH))
    a("v_writelane_b32 %s, %s, 0" % (v(P2_T), s(S_T0)))
    a("s_nop 1")
    a("buffer_store_dword %s, %s, %s, 0 offen sc1" % (v(V_TAG), v(P2_T), s(SRD_WS, 4)))
    a.label(lab)


def emit_merged(a, end_label):
    emit_phase1(a, "P1_done")
    a.label("P1_done")
    p2_addresses(a)
    ool = emit_handoff(a)
    stamp(a, 9)
    emit_phase2_main(a)
    stamp(a, 11)
    emit_phase2_epilogue(a)
    emit_epoch_bump(a)
    if STAMPS["on"]:
        a("s_waitcnt vmcnt(0)")
        stamp(a, 10)
        stamp_real(a, 2)
    stamp_flush(a, S_W, S_WS, 0)
    a("s_branch %s" % end_label)
    for t in ool:
        a.raw(t)


def emit_phase2_standalone(a):
    a("s_load_dwordx2 %s, s[0:1], 0" % s(S_X, 2))
    a("s_load_dwordx2 %s, s[0:1], 72" % s(S_WS, 2))
    a("s_load_dwordx2 %s, s[0:1], 16" % s(S_WO, 2))
    a("s_load_dwordx2 %s, s[0:1], 48" % s(S_WD, 2))
    a("s_load_dwordx2 %s, s[0:1], 56" % s(S_OUT, 2))
    a("v_lshrrev_b32 v1, 6, v0")
    a("v_and_b32 v0, 63, v0")
    a("v_readfirstlane_b32 %s, v1" % s(S_W))
    a("s_and_b32 %s, s2, 7" % s(S_T0))
    a("s_lshr_b32 %s, s2, 3" % s(S_T1))
    a("s_lshr_b32 %s, %s, 3" % (s(S_T3), s(S_T1)))
    a("s_lshl_b32 %s, %s, 2" % (s(S2_TG), s(S_T0)))
    a("s_add_u32 %s, %s, %s" % (s(S2_TG), s(S2_TG), s(S_T3)))
    a("s_and_b32 %s, %s, 7" % (s(S2_CG2), s(S_T1)))
    a("s_and_b32 %s, %s, 3" % (s(S_J), s(S_W)))
    a("s_lshr_b32 %s, %s, 2" % (s(S_M), s(S_W)))
    a("s_waitcnt lgkmcnt(0)")
    srd(a, SRD_X, S_X, 2048 * 1024)
    srd(a, SRD_WS, S_WS, WS_USED)
    for t in k2_setup_fillers():
        a(t)
    for t in range(PRE2):
        for x in w2_load_group(t):
            a(x)
    p2_addresses(a)
    a("s_waitcnt vmcnt(0)")
    a("s_barrier")
    emit_phase2_main(a)
    emit_phase2_epilogue(a)
```

```python
import os
from asmlib import *
from layout import *

S_X, S_Q, S_G, S_U, S_WS, S_OUT = 4, 6, 8, 10, 12, 14
SRD_X, SRD_Q, SRD_G, SRD_U, SRD_WS, SRD_MIX = 16, 20, 24, 28, 32, 36
R_W, R_OUT = 20, 24
S_RB, S_CGI, S_UU, S_W, S_J, S_M, S_R0B = 40, 41, 42, 43, 44, 45, 46
S_KOFF = 47
S_M0X = 48
S_COL0, S_COL1, S_COL2 = 49, 50, 51
S_XO, S_XM0, S_XSLOTR, S_HK = 52, 53, 54, 55
S_IT, S_EV0, S_EV1 = 56, 57, 59
S_M0W = 58
S_T0, S_T1, S_T2, S_T3 = 60, 61, 62, 63
S_EX = 64
S2_WROW, S2_AOFF, S2_M0B, S2_TG = 66, 67, 68, 69
S_WO, S_WD = 70, 72
S2_CG2 = 74
S_XM0END = 75
S_SPIN = 3

V_WVO = 1
V_XVO = 4
V_XL = 6
V_HL = 8
V_WL, V_WL3, V_WM, V_WM3 = 10, 11, 12, 13
V_XA, V_HA = 14, 15
V_ONES = 16
V_T = 20
V_TAG, V_W2VO, V_CSST, V_PADDR, V_PRES, V_DUMMY = 40, 41, 42, 43, 44, 45
V_TVO = 47
WF = lambda st, t: 48 + st * 20 + t * 4
XF = lambda st, t: 88 + st * 20 + t * 4
ACC = lambda tau, t: 128 + (tau * 4 + t) * 4
V_AH = 208
V_CSP = 212
V_STAT = 224
V_CSTMP = 226
BP, BC, BP0 = 232, 236, 240

OOB = 0x7FFFFF00
SPIN_MAX = 1 << 18
N15 = int(os.environ.get("N15", "9"))
CPF_LINES = 12
TB = os.environ.get("TB", "14")

C0 = -2.0 * 0.7978845608028654 * 1.4426950408889634
C1 = C0 * 0.044715
LOG2E = 1.4426950408889634


class Cfg:
    merged = True
    sc = "sc1"


_stamp0 = stamp


def stamp(a, idx, mode="main"):
    active = "main"
    for m in ("st_pro", "st_loop", "st_p2", "st_epi"):
        if m in EXP:
            active = m
    if idx in (1, 10) and mode == "main":
        _stamp0(a, idx)
    elif mode == active:
        _stamp0(a, idx)


def srd(a, base, ptr, nbytes):
    a("s_mov_b32 %s, %s" % (s(base), s(ptr)))
    a("s_and_b32 %s, %s, 0xffff" % (s(base + 1), s(ptr + 1)))
    a("s_mov_b32 %s, 0x%x" % (s(base + 2), nbytes))
    a("s_mov_b32 %s, 0x20000" % s(base + 3))


def allreduce16(a, regs, op="v_add_f32"):
    for ror in (8, 4, 2, 1):
        for r in regs:
            a("%s_dpp %s, %s, %s row_ror:%d row_mask:0xf bank_mask:0xf" % (op, v(r), v(r), v(r), ror))
        pad = 2 - (len(regs) - 1)
        if pad > 0:
            a("s_nop %d" % (pad - 1))


def allreduce_rows(a, r, tmp, op="v_add_f32"):
    for swap in ("v_permlane16_swap_b32", "v_permlane32_swap_b32"):
        a("v_mov_b32 %s, %s" % (v(tmp), v(r)))
        a("s_nop 1")
        a("%s %s, %s" % (swap, v(r), v(tmp)))
        a("s_nop 1")
        a("%s %s, %s, %s" % (op, v(r), v(r), v(tmp)))
        a("s_nop 0")


class Variant:
    def __init__(self, typ, m):
        self.typ = typ
        self.m = m
        if typ == 'X' and m == 0:
            self.loads = [(SRD_Q, V_WVO, 0), (SRD_Q, V_WVO + 1, 1), (SRD_Q, V_WVO + 2, 2)]
            self.pitch = 3072
        elif typ == 'X':
            self.loads = [(SRD_G, V_WVO, 3), (SRD_U, V_WVO, 4)]
            self.pitch = 3584
        elif m == 0:
            self.loads = [(SRD_G, V_WVO, 0), (SRD_U, V_WVO, 1), (SRD_G, V_WVO + 1, 2)]
            self.pitch = 3584
        else:
            self.loads = [(SRD_U, V_WVO + 1, 3), (SRD_MIX, V_WVO + 2, 4)]
            self.pitch = 3584
        self.L = len(self.loads) + 1
        self.name = "%s%d" % (typ, m)
        self.nm = 21 if typ == 'X' else 20


def w_load(var, i, slot):
    srdr, vo, q = var.loads[i]
    return (["s_add_u32 m0, %s, %d" % (s(S_M0W), slot * WSLOT + q * 4096)],
            ["buffer_load_dwordx4 %s, %s, %s offen lds" % (v(vo), s(srdr, 4), s(S_KOFF))])


def koff_adv(var):
    st = 32 * var.pitch
    return ["s_add_u32 %s, %s, %d" % (s(S_KOFF), s(S_KOFF), st),
            "s_cmp_eq_u32 %s, %d" % (s(S_KOFF), 16 * st),
            "s_cselect_b32 %s, 0, %s" % (s(S_KOFF), s(S_KOFF))]


def x_load(h):
    return (["s_add_u32 m0, %s, %d" % (s(S_XM0), h * 8192)],
            ["buffer_load_dwordx4 %s, %s, %s offen lds" % (v(V_XVO + h), s(SRD_X, 4), s(S_XO))])


def x_adv():
    return [["s_add_u32 %s, %s, 128" % (s(S_T0), s(S_XO)),
             "s_and_b32 %s, %s, 0x380" % (s(S_T0), s(S_T0)),
             "s_or_b32 %s, %s, %s" % (s(S_XO), s(S_T0), s(S_R0B))],
            ["s_add_u32 %s, %s, 0x4000" % (s(S_XM0), s(S_XM0)),
             "s_cmp_eq_u32 %s, %s" % (s(S_XM0), s(S_XM0END)),
             "s_cselect_b32 %s, %s, %s" % (s(S_XM0), s(S_M0X), s(S_XM0))]]


def issue_plain(a, var, slot, h):
    if slot is not None:
        for i in range(len(var.loads)):
            pre, ld = w_load(var, i, slot)
            for t in pre:
                a(t)
            a("s_nop 0")
            for t in ld:
                a(t)
        for t in koff_adv(var):
            a(t)
    pre, ld = x_load(h)
    for t in pre:
        a(t)
    a("s_nop 0")
    for t in ld:
        a(t)
    if h:
        for g in x_adv():
            for t in g:
                a(t)


def frag_reads(var, st, slot):
    wl = V_WL3 if slot == 3 else V_WL
    wm = V_WM3 if slot == 3 else V_WM
    so = 0 if slot == 3 else slot * WSLOT
    W = []
    for tau in range(5):
        if var.typ == 'Y' and tau == 4:
            W.append(["ds_read_b64_tr_b16 %s, %s offset:%d" % (v(WF(st, tau), 2), v(wm), so),
                      "ds_read_b64_tr_b16 %s, %s offset:%d" % (v(WF(st, tau) + 2, 2), v(wm), so + 256)])
        else:
            W.append(["ds_read_b64_tr_b16 %s, %s offset:%d" % (v(WF(st, tau), 2), v(wl), so + tau * 4096),
                      "ds_read_b64_tr_b16 %s, %s offset:%d" % (v(WF(st, tau) + 2, 2), v(wl), so + tau * 4096 + 512)])
    X = ["ds_read_b128 %s, %s offset:%d" % (v(XF(st, t), 4), v(V_XA), t * 2048) for t in range(4)]
    r = W[0] + W[1] + [X[0]] + W[2] + [X[1]] + W[3] + [X[2]] + W[4] + [X[3]]
    if var.typ == 'X':
        r.append("ds_read_b128 %s, %s" % (v(XF(st, 4), 4), v(V_HA)))
    return r


def frag_addr(var, kk, advance):
    g = []
    if advance:
        g.append(["s_add_u32 %s, %s, 0x4000" % (s(S_XSLOTR), s(S_XSLOTR)),
                  "s_cmp_eq_u32 %s, 0xc000" % s(S_XSLOTR),
                  "s_cselect_b32 %s, 0, %s" % (s(S_XSLOTR), s(S_XSLOTR))])
    g.append(["v_add_u32 %s, %s, %s" % (v(V_XA), s(S_XSLOTR), v(V_XL + kk))])
    if var.typ == 'X':
        h = []
        if advance:
            h += ["s_add_u32 %s, %s, 0x800" % (s(S_HK), s(S_HK)),
                  "s_and_b32 %s, %s, 0x3fff" % (s(S_HK), s(S_HK))]
        h.append("v_add_u32 %s, %s, %s" % (v(V_HA), s(S_HK), v(V_HL + kk)))
        g.append(h)
    return g


def mfmas(var, st):
    out = []
    for t in range(4):
        for tau in range(5):
            d = v(ACC(tau, t), 4)
            if var.typ == 'X' and tau == 2:
                out.append("v_mfma_f32_16x16x32_bf16 %s, %s, %s, %s" % (d, v(XF(st, t), 4), v(WF(st, tau), 4), d))
            else:
                out.append("v_mfma_f32_16x16x32_bf16 %s, %s, %s, %s" % (d, v(WF(st, tau), 4), v(XF(st, t), 4), d))
    if var.typ == 'X':
        d = v(V_AH, 4)
        if var.m == 0:
            out.append("v_mfma_f32_16x16x32_bf16 %s, %s, %s, %s" % (d, v(WF(st, 1), 4), v(XF(st, 4), 4), d))
        else:
            out.append("v_mfma_f32_16x16x32_bf16 %s, %s, %s, %s" % (d, v(XF(st, 4), 4), v(WF(st, 2), 4), d))
    return out


def spread(items, p0, p1):
    n = len(items)
    if n == 0:
        return []
    return [(p0 + (i * (p1 - p0 + 1)) // n, t) for i, t in enumerate(items)]


def emit_step(a, var, s4, vm, dma=True, prefetch=True, extra=None, post=None, top=None):
    par = s4 & 1
    a("s_waitcnt vmcnt(%d) lgkmcnt(0)" % vm)
    if top:
        top(a)
    if "nobar" not in EXP:
        a("s_barrier")
    M = mfmas(var, par)
    F = []
    if prefetch:
        ga = frag_addr(var, kk=1 - par, advance=(par == 1))
        for i, g in enumerate(ga):
            for t in g:
                F.append((i, t))
        rd = frag_reads(var, 1 - par, (s4 + 1) & 3)
        if "noreads" in EXP:
            rd = []
        for i, t in enumerate(rd):
            F.append((i if i < 4 else i + 0, t))
    if dma and "nodma" not in EXP:
        nl = len(var.loads)
        poss = [3, 8, 13, 18] if var.m == 0 else [5, 10, 15]
        for i in range(nl):
            pre, ld = w_load(var, i, s4)
            F += [(poss[i] - 1, t) for t in pre] + [(poss[i], t) for t in ld]
        F += [(poss[nl - 1] + 1, t) for t in koff_adv(var)]
        h = 1 - par
        pre, ld = x_load(h)
        px = poss[nl]
        F += [(px - 1, t) for t in pre] + [(px, t) for t in ld]
        if h:
            g = x_adv()
            F += [(px + 1, t) for t in g[0]] + [(min(px + 2, len(M) - 1), t) for t in g[1]]
    if extra:
        F += extra
    F.sort(key=lambda x: x[0])
    for t in interleave(M, F):
        a(t)
    if post:
        post(a)


def w2_touch(b, part):
    if "notouch" in EXP or not Cfg.merged:
        return
    T = V_T
    lab = b.newlabel("tch")
    if part == 0:
        b("s_cmp_lt_u32 %s, 5" % s(S_W))
        b("s_cbranch_scc0 %s" % lab)
        b("s_mov_b32 %s, %s" % (s(S_T1), s(S_W)))
    else:
        b("s_cmp_ge_u32 %s, 3" % s(S_W))
        b("s_cbranch_scc0 %s" % lab)
        b("s_sub_u32 %s, %s, 3" % (s(S_T1), s(S_W)))
    b("s_lshr_b32 %s, s2, 3" % s(S_T0))
    b("s_mul_i32 %s, %s, 5" % (s(S_T0), s(S_T0)))
    b("s_add_u32 %s, %s, %s" % (s(S_T0), s(S_T0), s(S_T1)))
    b("s_min_u32 %s, %s, 143" % (s(S_T0), s(S_T0)))
    if part == 0:
        b("s_sub_u32 %s, %s, 64" % (s(S_T1), s(S_T0)))
        b("s_add_u32 %s, %s, 8" % (s(S_T2), s(S_T0)))
        b("s_cmp_lt_u32 %s, 72" % s(S_T0))
        b("s_cselect_b32 %s, %s, %s" % (s(S_T1), s(S_T1), s(S_T2)))
        b("s_cmp_lt_u32 %s, 64" % s(S_T0))
        b("s_cselect_b32 %s, %s, %s" % (s(S_T0), s(S_T0), s(S_T1)))
        b("s_cselect_b32 %s, %s, %s" % (s(S_EX), s(S_WO), s(S_WD)))
        b("s_cselect_b32 %s, %s, %s" % (s(S_EX + 1), s(S_WO + 1), s(S_WD + 1)))
        base = S_EX
    else:
        b("s_add_u32 %s, %s, 8" % (s(S_T1), s(S_T0)))
        b("s_add_u32 %s, %s, 80" % (s(S_T2), s(S_T0)))
        b("s_cmp_lt_u32 %s, 72" % s(S_T0))
        b("s_cselect_b32 %s, %s, %s" % (s(S_T0), s(S_T1), s(S_T2)))
        base = S_WD
    b("s_lshl_b32 %s, %s, 13" % (s(S_T0), s(S_T0)))
    b("v_lshlrev_b32 %s, 7, v0" % v(T + 3))
    b("v_add_u32 %s, %s, %s" % (v(T + 3), s(S_T0), v(T + 3)))
    b("global_load_dword %s, %s, %s" % (v(V_DUMMY + part), v(T + 3), s(base, 2)))
    b.label(lab)


def colsum_block(b, par):
    for tau in range(5):
        b("v_mfma_f32_16x16x32_bf16 %s, %s, %s, 0" % (v(V_CSTMP + 4 * tau, 4), v(WF(par, tau), 4), v(V_ONES, 4)))
    b("s_nop 7")
    b("s_nop 1")
    for tau in range(5):
        b("buffer_store_dwordx4 %s, %s, %s, 0 offen offset:%d sc1" % (v(V_CSTMP + 4 * tau, 4), v(V_CSST), s(SRD_WS, 4), tau * 256))


def publish_block(b):
    T = V_T
    b("v_add_u32 %s, 1, %s" % (v(V_TAG), v(V_TAG)))
    b("s_lshl_b32 %s, %s, 7" % (s(S_T0), s(S_RB)))
    b("s_lshl_b32 %s, %s, 2" % (s(S_T1), s(S_CGI)))
    b("s_add_u32 %s, %s, %s" % (s(S_T0), s(S_T0), s(S_T1)))
    b("s_add_u32 %s, %s, %d" % (s(S_T0), s(S_T0), WS_FA))
    b("s_lshl_b32 %s, %s, 7" % (s(S_T1), s(S_CGI)))
    b("s_lshl_b32 %s, %s, 2" % (s(S_T2), s(S_RB)))
    b("s_add_u32 %s, %s, %s" % (s(S_T1), s(S_T1), s(S_T2)))
    b("s_add_u32 %s, %s, %d" % (s(S_T1), s(S_T1), WS_FB))
    b("v_mov_b32 %s, 0x%x" % (v(T), OOB))
    b("v_writelane_b32 %s, %s, 0" % (v(T), s(S_T0)))
    b("v_writelane_b32 %s, %s, 1" % (v(T), s(S_T1)))
    b("s_nop 1")
    b("buffer_store_dword %s, %s, %s, 0 offen sc1" % (v(V_TAG), v(T), s(SRD_WS, 4)))


def poll_block(b):
    T = V_T
    b("v_and_b32 %s, 15, v0" % v(T))
    b("s_lshl_b32 %s, %s, 7" % (s(S_T0), s(S_RB)))
    b("s_add_u32 %s, %s, %d" % (s(S_T0), s(S_T0), WS_FA))
    b("v_lshl_add_u32 %s, %s, 2, %s" % (v(V_PADDR), v(T), s(S_T0)))
    b("s_lshl_b32 %s, %s, 7" % (s(S_T1), s(S_CGI)))
    b("s_add_u32 %s, %s, %d" % (s(S_T1), s(S_T1), WS_FB))
    b("v_lshl_add_u32 %s, %s, 2, %s" % (v(T + 1), v(T), s(S_T1)))
    b("v_lshrrev_b32 %s, 4, v0" % v(T + 2))
    b("v_cmp_eq_u32 vcc, 2, %s" % v(T + 2))
    b("s_nop 1")
    b("v_cndmask_b32 %s, %s, %s, vcc" % (v(V_PADDR), v(V_PADDR), v(T + 1)))
    b("s_cmp_eq_u32 %s, 0" % s(S_RB))
    b("s_cselect_b32 %s, 0, 128" % s(S_T1))
    b("s_sub_u32 %s, %s, %s" % (s(S_T0), s(S_T0), s(S_T1)))
    b("s_add_u32 %s, %s, 56" % (s(S_T0), s(S_T0)))
    b("s_add_u32 %s, %s, 4" % (s(S_T1), s(S_T0)))
    b("v_writelane_b32 %s, %s, 16" % (v(V_PADDR), s(S_T0)))
    b("v_writelane_b32 %s, %s, 17" % (v(V_PADDR), s(S_T1)))
    b("s_nop 1")
    b("buffer_load_dword %s, %s, %s, 0 offen sc1" % (v(V_PRES), v(V_PADDR), s(SRD_WS, 4)))


def event_site(a, var, s4, ool):
    if s4 == 3 and "early11" in EXP:
        lab = a.newlabel("ev11")
        back = a.newlabel("ev11back")
        a("s_cmp_eq_u32 %s, 2" % s(S_IT))
        a("s_cbranch_scc1 %s" % lab)
        a.label(back)
        b = Asm()
        b.uid = a.uid + 1000
        b.label(lab)
        for t_ in tail_loads():
            b(t_)
        b("s_branch %s" % back)
        ool.append(b.text())
        a.uid = b.uid + 1
        return
    if var.m == 1 or s4 > 1:
        return
    lab = a.newlabel("ev")
    back = a.newlabel("evback")
    a("s_bitcmp1_b32 %s, %d" % (s(S_EV0), s4))
    a("s_cbranch_scc1 %s" % lab)
    a.label(back)
    b = Asm()
    b.uid = a.uid + 1000
    b.label(lab)
    if s4 == 0 and Cfg.merged:
        other = b.newlabel("evo")
        b("s_cmp_eq_u32 %s, 0" % s(S_IT))
        b("s_cbranch_scc0 %s" % other)
        colsum_block(b, s4)
        b("s_branch %s" % back)
        b.label(other)
        pl = b.newlabel("evp")
        b("s_cmp_eq_u32 %s, 1" % s(S_IT))
        b("s_cbranch_scc0 %s" % pl)
        publish_block(b)
        b("s_branch %s" % back)
        b.label(pl)
        poll_block(b)
    else:
        colsum_block(b, s4)
    b("s_branch %s" % back)
    ool.append(b.text())
    a.uid = b.uid + 1


def poll_check(a, ool, name):
    slow = a.newlabel(name + "_slow")
    back = a.newlabel(name + "_ok")
    a("v_cmp_ne_u32 vcc, %s, %s" % (v(V_TAG), v(V_PRES)))
    a("s_nop 1")
    a("s_cmp_lg_u64 vcc, 0")
    a("s_cbranch_scc1 %s" % slow)
    a.label(back)
    b = Asm()
    b.label(slow)
    b("s_mov_b32 %s, 0" % s(S_SPIN))
    loop = slow + "_loop"
    b.label(loop)
    b("buffer_load_dword %s, %s, %s, 0 offen sc1" % (v(V_PRES), v(V_PADDR), s(SRD_WS, 4)))
    b("s_add_u32 %s, %s, 1" % (s(S_SPIN), s(S_SPIN)))
    b("s_waitcnt vmcnt(0)")
    b("v_cmp_ne_u32 vcc, %s, %s" % (v(V_TAG), v(V_PRES)))
    b("s_nop 1")
    b("s_cmp_lg_u64 vcc, 0")
    b("s_cbranch_scc0 %s" % back)
    b("s_cmp_lt_u32 %s, %d" % (s(S_SPIN), SPIN_MAX))
    b("s_cbranch_scc1 %s" % loop)
    b("s_branch %s" % back)
    ool.append(b.text())


def prologue_common(a):
    a.comment("---- prologue ----")
    stamp_real(a, 0)
    stamp(a, 1)
    a("s_load_dwordx4 %s, s[0:1], 0" % s(S_X, 4))
    a("s_load_dwordx4 %s, s[0:1], 32" % s(S_G, 4))
    a("s_load_dwordx2 %s, s[0:1], 72" % s(S_WS, 2))
    a("v_lshrrev_b32 v1, 6, v0")
    a("v_and_b32 v0, 63, v0")
    a("v_readfirstlane_b32 %s, v1" % s(S_W))
    a("s_and_b32 %s, s2, 7" % s(S_T0))
    a("s_lshr_b32 %s, s2, 3" % s(S_T1))
    if "map8x4" in EXP:
        a("s_lshr_b32 %s, %s, 2" % (s(S_T2), s(S_T0)))
        a("s_lshl_b32 %s, %s, 3" % (s(S_T2), s(S_T2)))
        a("s_and_b32 %s, %s, 7" % (s(S_T3), s(S_T1)))
        a("s_or_b32 %s, %s, %s" % (s(S_RB), s(S_T2), s(S_T3)))
        a("s_and_b32 %s, %s, 3" % (s(S_T2), s(S_T0)))
        a("s_lshl_b32 %s, %s, 2" % (s(S_T2), s(S_T2)))
        a("s_lshr_b32 %s, %s, 3" % (s(S_CGI), s(S_T1)))
        a("s_or_b32 %s, %s, %s" % (s(S_CGI), s(S_T2), s(S_CGI)))
    else:
        a("s_and_b32 %s, %s, 15" % (s(S_RB), s(S_T1)))
        a("s_and_b32 %s, %s, 7" % (s(S_T3), s(S_T1)))
        a("s_lshl_b32 %s, %s, 1" % (s(S_T2), s(S_T0)))
        a("s_lshr_b32 %s, %s, 4" % (s(S_CGI), s(S_T1)))
        a("s_or_b32 %s, %s, %s" % (s(S_CGI), s(S_T2), s(S_CGI)))
    a("s_lshl_b32 %s, %s, 17" % (s(S_R0B), s(S_RB)))
    a("s_lshl_b32 %s, %s, 7" % (s(S_XO), s(S_T3)))
    a("s_or_b32 %s, %s, %s" % (s(S_XO), s(S_XO), s(S_R0B)))
    a("s_lshl_b32 %s, %s, 11" % (s(S_HK), s(S_T3)))
    a("s_lshl_b32 %s, %s, 1" % (s(S_KOFF), s(S_T3)))
    a("s_lshl_b32 %s, %s, 10" % (s(S_M0X), s(S_W)))
    a("s_add_u32 %s, %s, %d" % (s(S_M0X), s(S_M0X), XRING))
    a("s_mov_b32 %s, %s" % (s(S_XM0), s(S_M0X)))
    a("s_add_u32 %s, %s, 0xc000" % (s(S_XM0END), s(S_M0X)))
    T = V_T
    a("v_lshrrev_b32 %s, 3, v0" % v(T))
    a("s_lshl_b32 %s, %s, 3" % (s(S_T0), s(S_W)))
    a("v_add_u32 %s, %s, %s" % (v(T + 2), s(S_T0), v(T)))
    a("v_bfe_u32 %s, %s, 1, 3" % (v(T + 3), v(T + 2)))
    a("v_and_b32 %s, 7, v0" % v(T + 4))
    a("v_xor_b32 %s, %s, %s" % (v(T + 4), v(T + 4), v(T + 3)))
    a("v_lshlrev_b32 %s, 4, %s" % (v(T + 4), v(T + 4)))
    a("v_lshl_add_u32 %s, %s, 10, %s" % (v(V_XVO), v(T + 2), v(T + 4)))
    a("v_add_u32 %s, 0x10000, %s" % (v(V_XVO + 1), v(V_XVO)))
    a("v_lshlrev_b32 %s, 4, v0" % v(T + 12))
    a("s_lshl_b32 %s, %s, 3" % (s(S_T2), s(S_CGI)))
    a("s_add_u32 %s, %s, %s" % (s(S_T2), s(S_T2), s(S_W)))
    a("s_lshl_b32 %s, %s, 10" % (s(S_T2), s(S_T2)))
    a("s_add_u32 %s, %s, %s" % (s(S_T2), s(S_T2), s(S_R0B)))
    a("s_and_b32 %s, %s, 3" % (s(S_J), s(S_W)))
    a("s_lshr_b32 %s, %s, 2" % (s(S_M), s(S_W)))
    a("s_lshr_b32 %s, %s, 1" % (s(S_UU), s(S_CGI)))
    a("s_lshl_b32 %s, %s, 10" % (s(S_M0W), s(S_J)))
    if "codepf" in EXP:
        lab = a.newlabel("cpf")
        a("s_cmp_eq_u32 %s, 7" % s(S_W))
        a("s_cbranch_scc0 %s" % lab)
        a("s_getpc_b64 %s" % s(S_EX, 2))
        a.label("CPF_here")
        a("s_lshr_b32 %s, s2, 3" % s(S_T0))
        a("s_mul_i32 %s, %s, %d" % (s(S_T0), s(S_T0), CPF_LINES * 128))
        a("v_lshlrev_b32 %s, 7, v0" % v(T + 5))
        a("v_add_u32 %s, %s, %s" % (v(T + 5), s(S_T0), v(T + 5)))
        a("v_min_u32 %s, K_end-CPF_here-4, %s" % (v(T + 5), v(T + 5)))
        a("v_mov_b32 %s, %s" % (v(T + 7), s(S_EX + 1)))
        a("v_add_co_u32 %s, vcc, %s, %s" % (v(T + 6), s(S_EX), v(T + 5)))
        a("s_nop 1")
        a("v_addc_co_u32 %s, vcc, 0, %s, vcc" % (v(T + 7), v(T + 7)))
        a("s_mov_b64 %s, exec" % s(S_EX, 2))
        a("s_mov_b64 exec, 0x%x" % ((1 << CPF_LINES) - 1))
        a("global_load_dword %s, %s, off" % (v(V_DUMMY + 1), v(T + 6, 2)))
        a("s_mov_b64 exec, %s" % s(S_EX, 2))
        a.label(lab)
    stamp(a, 4, "st_pro")
    a("s_waitcnt lgkmcnt(0)")
    stamp(a, 5, "st_pro")
    srd(a, SRD_X, S_X, 2048 * 1024)
    a("buffer_load_dwordx4 %s, %s, %s, %s offen" % (v(V_CSP, 4), v(T + 12), s(SRD_X, 4), s(S_T2)))
    for h in range(2):
        pre, ld = x_load(h)
        for t_ in pre:
            a(t_)
        a("s_nop 0")
        for t_ in ld:
            a(t_)
    for g_ in x_adv():
        for t_ in g_:
            a(t_)


def prologue_late(a):
    a("s_load_dwordx2 %s, s[0:1], 16" % s(S_WO, 2))
    a("s_load_dwordx2 %s, s[0:1], 48" % s(S_WD, 2))
    a("s_load_dwordx2 %s, s[0:1], 56" % s(S_OUT, 2))
    a("s_and_b32 %s, s2, 7" % s(S_T0))
    a("s_lshr_b32 %s, s2, 3" % s(S_T1))
    a("s_lshr_b32 %s, %s, 3" % (s(S_T3), s(S_T1)))
    a("s_lshl_b32 %s, %s, 2" % (s(S2_TG), s(S_T0)))
    a("s_add_u32 %s, %s, %s" % (s(S2_TG), s(S2_TG), s(S_T3)))
    a("s_and_b32 %s, %s, 7" % (s(S2_CG2), s(S_T1)))
    a("s_mov_b32 %s, 0" % s(S_XSLOTR))
    a("s_mov_b32 %s, 0" % s(S_IT))
    a("s_lshr_b32 %s, %s, 3" % (s(S_T0), s(S_RB)))
    a("s_lshl_b32 %s, 1, %s" % (s(S_T0), s(S_T0)))
    a("s_cmp_eq_u32 %s, 0" % s(S_M))
    a("s_cselect_b32 %s, %s, 0" % (s(S_EV0), s(S_T0)))
    a("s_mov_b32 %s, 99" % s(S_EV1))
    if Cfg.merged:
        a("s_cmp_eq_u32 %s, 0" % s(S_W))
        a("s_cselect_b32 %s, 0x110, 0" % s(S_T0))
        a("s_cselect_b32 %s, 2, 99" % s(S_EV1))
        a("s_or_b32 %s, %s, %s" % (s(S_EV0), s(S_EV0), s(S_T0)))
    a("v_mov_b32 %s, %d" % (v(V_PADDR), WS_FA))
    a("v_mov_b32 %s, 0" % v(V_TAG))


def w_voffset_full(a, pitch, out):
    T = V_T
    a("v_lshrrev_b32 %s, 3, v0" % v(T))
    a("s_lshl_b32 %s, %s, 3" % (s(S_T0), s(S_J)))
    a("v_add_u32 %s, %s, %s" % (v(T), s(S_T0), v(T)))
    a("v_mul_u32_u24 %s, %d, %s" % (v(T), pitch, v(T)))
    a("v_bfe_u32 %s, v0, 4, 1" % v(T + 1))
    a("s_and_b32 %s, %s, 1" % (s(S_T0), s(S_J)))
    a("s_lshl_b32 %s, %s, 1" % (s(S_T0), s(S_T0)))
    a("v_or_b32 %s, %s, %s" % (v(T + 1), s(S_T0), v(T + 1)))
    a("v_bfe_u32 %s, v0, 1, 2" % v(T + 2))
    a("v_xor_b32 %s, %s, %s" % (v(T + 1), v(T + 1), v(T + 2)))
    a("v_lshl_add_u32 %s, %s, 5, %s" % (v(T), v(T + 1), v(T)))
    a("v_and_b32 %s, 1, v0" % v(T + 2))
    a("v_lshl_add_u32 %s, %s, 4, %s" % (v(out), v(T + 2), v(T)))


def w_voffset_g4(a, out):
    T = V_T
    a("v_lshrrev_b32 %s, 2, v0" % v(T))
    a("s_and_b32 %s, %s, 1" % (s(S_T0), s(S_J)))
    a("s_lshl_b32 %s, %s, 4" % (s(S_T0), s(S_T0)))
    a("v_add_u32 %s, %s, %s" % (v(T), s(S_T0), v(T)))
    a("v_mul_u32_u24 %s, 3584, %s" % (v(T), v(T)))
    a("v_lshrrev_b32 %s, 5, v0" % v(T + 1))
    a("s_and_b32 %s, %s, 2" % (s(S_T0), s(S_J)))
    a("v_or_b32 %s, %s, %s" % (v(T + 1), s(S_T0), v(T + 1)))
    a("v_and_b32 %s, 3, v0" % v(T + 2))
    a("v_xor_b32 %s, %s, %s" % (v(T + 1), v(T + 1), v(T + 2)))
    a("v_lshl_add_u32 %s, %s, 4, %s" % (v(out), v(T + 1), v(T)))


def y_cols(a):
    a("s_mul_i32 %s, %s, 320" % (s(S_T0), s(S_UU)))
    a("s_add_u32 %s, %s, 1024" % (s(S_T0), s(S_T0)))
    a("s_and_b32 %s, %s, 1" % (s(S_T1), s(S_UU)))
    a("s_lshl_b32 %s, %s, 6" % (s(S_T1), s(S_T1)))
    a("s_add_u32 %s, %s, %s" % (s(S_COL0), s(S_T0), s(S_T1)))
    a("s_add_u32 %s, %s, 128" % (s(S_COL1), s(S_COL0)))
    a("s_cmp_eq_u32 %s, 0" % s(S_T1))
    a("s_cselect_b32 %s, 256, 0" % s(S_T1))
    a("s_add_u32 %s, %s, %s" % (s(S_COL2), s(S_T0), s(S_T1)))


def variant_addresses(a, var):
    T = V_T
    if var.typ == 'X':
        w_voffset_full(a, var.pitch, V_WVO)
        a("s_lshl_b32 %s, %s, 7" % (s(S_COL0), s(S_UU)))
        a("v_add_u32 %s, %s, %s" % (v(V_WVO), s(S_COL0), v(V_WVO)))
        if var.m == 0:
            a("v_add_u32 %s, 1024, %s" % (v(V_WVO + 1), v(V_WVO)))
            a("v_add_u32 %s, 2048, %s" % (v(V_WVO + 2), v(V_WVO)))
    else:
        y_cols(a)
        w_voffset_full(a, var.pitch, V_WVO)
        a("v_add_u32 %s, %s, %s" % (v(V_WVO + 1), s(S_COL1), v(V_WVO)))
        a("v_add_u32 %s, %s, %s" % (v(V_WVO), s(S_COL0), v(V_WVO)))
        if var.m == 1:
            w_voffset_g4(a, V_WVO + 2)
            a("v_add_u32 %s, %s, %s" % (v(V_WVO + 2), s(S_COL2), v(V_WVO + 2)))
    a("s_mul_i32 %s, %s, %d" % (s(S_KOFF), s(S_KOFF), 32 * var.pitch))


def halo_addresses(a):
    T = V_T
    if True:
        for hh in range(2):
            a("v_lshrrev_b32 %s, 3, v0" % v(T))
            if hh:
                a("v_add_u32 %s, 8, %s" % (v(T), v(T)))
            a("v_lshrrev_b32 %s, 1, %s" % (v(T + 1), v(T)))
            a("v_and_b32 %s, 7, v0" % v(T + 2))
            a("v_xor_b32 %s, %s, %s" % (v(T + 1), v(T + 1), v(T + 2)))
            a("s_lshl_b32 %s, %s, 7" % (s(S_T0), s(S_RB)))
            a("s_sub_u32 %s, %s, 16" % (s(S_T0), s(S_T0)))
            a("v_add_u32 %s, %s, %s" % (v(T), s(S_T0), v(T)))
            a("v_max_i32 %s, 0, %s" % (v(T), v(T)))
            a("v_lshlrev_b32 %s, 10, %s" % (v(T), v(T)))
            a("v_lshl_add_u32 %s, %s, 4, %s" % (v(T + 13 + hh), v(T + 1), v(T)))


def halo_issue(a):
    T = V_T
    a("s_lshr_b32 %s, %s, 11" % (s(S_T0), s(S_HK)))
    a("s_add_u32 %s, %s, %s" % (s(S_T0), s(S_T0), s(S_W)))
    a("s_and_b32 %s, %s, 7" % (s(S_T0), s(S_T0)))
    for hh in range(2):
        a("s_lshl_b32 %s, %s, 11" % (s(S_T1), s(S_T0)))
        a("s_add_u32 m0, %s, %d" % (s(S_T1), HALO + hh * 1024))
        a("s_lshl_b32 %s, %s, 7" % (s(S_T1), s(S_T0)))
        a("buffer_load_dwordx4 %s, %s, %s offen lds" % (v(T + 13 + hh), s(SRD_X, 4), s(S_T1)))


def frag_lane_addresses(a, var):
    T = V_T
    a("v_lshrrev_b32 %s, 3, v0" % v(T))
    a("v_lshrrev_b32 %s, 4, v0" % v(T + 1))
    a("v_and_b32 %s, 15, v0" % v(T + 5))
    a("v_lshrrev_b32 %s, 1, %s" % (v(T + 6), v(T + 5)))
    a("v_xor_b32 %s, %s, %s" % (v(T + 6), v(T + 6), v(T + 1)))
    a("v_lshlrev_b32 %s, 4, %s" % (v(T + 6), v(T + 6)))
    a("v_lshl_add_u32 %s, %s, 7, %s" % (v(T + 6), v(T + 5), v(T + 6)))
    if var.typ == 'X':
        a("v_add_u32 %s, %d, %s" % (v(V_HL), HALO, v(T + 6)))
        a("v_xor_b32 %s, 64, %s" % (v(V_HL + 1), v(V_HL)))
    a("v_add_u32 %s, %d, %s" % (v(V_XL), XRING + var.m * 8192, v(T + 6)))
    a("v_xor_b32 %s, 64, %s" % (v(V_XL + 1), v(V_XL)))
    a("v_bfe_u32 %s, v0, 2, 2" % v(T + 7))
    a("v_lshl_add_u32 %s, %s, 3, %s" % (v(T + 7), v(T + 1), v(T + 7)))
    a("v_and_b32 %s, 3, %s" % (v(T + 8), v(T)))
    a("v_xor_b32 %s, %s, %s" % (v(T + 8), s(S_J), v(T + 8)))
    a("v_lshlrev_b32 %s, 5, %s" % (v(T + 8), v(T + 8)))
    a("v_lshl_add_u32 %s, %s, 7, %s" % (v(T + 8), v(T + 7), v(T + 8)))
    a("v_and_b32 %s, 3, v0" % v(T + 9))
    a("v_lshl_add_u32 %s, %s, 3, %s" % (v(V_WL), v(T + 9), v(T + 8)))
    a("v_add_u32 %s, %d, %s" % (v(V_WL3), 3 * WSLOT, v(V_WL)))
    if var.typ == 'Y':
        a("v_and_b32 %s, 1, %s" % (v(T + 10), v(T + 1)))
        a("v_and_b32 %s, 2, %s" % (v(T + 11), v(T + 9)))
        a("v_or_b32 %s, %s, %s" % (v(T + 10), v(T + 10), v(T + 11)))
        a("v_xor_b32 %s, %s, %s" % (v(T + 10), s(S_J), v(T + 10)))
        a("v_lshlrev_b32 %s, 4, %s" % (v(T + 10), v(T + 10)))
        a("v_lshl_add_u32 %s, %s, 6, %s" % (v(T + 10), v(T + 7), v(T + 10)))
        a("v_lshl_add_u32 %s, %s, 10, %s" % (v(T + 10), v(T + 11), v(T + 10)))
        a("v_and_b32 %s, 1, %s" % (v(T + 11), v(T + 9)))
        a("v_lshl_add_u32 %s, %s, 3, %s" % (v(T + 10), v(T + 11), v(T + 10)))
        a("v_add_u32 %s, 16384, %s" % (v(V_WM), v(T + 10)))
        a("v_add_u32 %s, %d, %s" % (v(V_WM3), 3 * WSLOT, v(V_WM)))
    for i in range(4):
        a("v_mov_b32 %s, 0x3f803f80" % v(V_ONES + i))
    if var.m == 0:
        a("s_mul_i32 %s, %s, 20480" % (s(S_T0), s(S_CGI)))
        a("s_mul_i32 %s, %s, 1280" % (s(S_T1), s(S_RB)))
        a("s_add_u32 %s, %s, %s" % (s(S_T0), s(S_T0), s(S_T1)))
        a("s_lshl_b32 %s, %s, 6" % (s(S_T1), s(S_J)))
        a("s_add_u32 %s, %s, %s" % (s(S_T0), s(S_T0), s(S_T1)))
        a("s_add_u32 %s, %s, %d" % (s(S_T0), s(S_T0), WS_CSP))
        a("v_lshlrev_b32 %s, 4, %s" % (v(V_CSST), v(T + 1)))
        a("v_add_u32 %s, %s, %s" % (v(V_CSST), s(S_T0), v(V_CSST)))
        a("v_cmp_eq_u32 vcc, 0, %s" % v(T + 5))
        a("v_mov_b32 %s, 0x%x" % (v(T + 11), OOB))
        a("s_nop 0")
        a("v_cndmask_b32 %s, %s, %s, vcc" % (v(V_CSST), v(T + 11), v(V_CSST)))


def stats_compute(a):
    T = V_T
    A = T
    for i in range(4):
        a("v_lshlrev_b32 %s, 16, %s" % (v(A + 2 * i), v(V_CSP + i)))
        a("v_and_b32 %s, 0xffff0000, %s" % (v(A + 2 * i + 1), v(V_CSP + i)))
    R = T + 8
    a("v_add_f32 %s, %s, %s" % (v(R), v(A), v(A + 1)))
    a("v_add_f32 %s, %s, %s" % (v(R + 1), v(A + 2), v(A + 3)))
    a("v_add_f32 %s, %s, %s" % (v(R + 2), v(A + 4), v(A + 5)))
    a("v_add_f32 %s, %s, %s" % (v(R + 3), v(A + 6), v(A + 7)))
    a("v_add_f32 %s, %s, %s" % (v(R), v(R), v(R + 1)))
    a("v_add_f32 %s, %s, %s" % (v(R + 2), v(R + 2), v(R + 3)))
    a("v_add_f32 %s, %s, %s" % (v(R), v(R), v(R + 2)))
    a("s_nop 1")
    allreduce16(a, [R])
    allreduce_rows(a, R, R + 1)
    a("v_mul_f32 %s, %s, %s" % (v(R), hexf(1.0 / 512), v(R)))
    for i in range(8):
        a("v_sub_f32 %s, %s, %s" % (v(A + i), v(A + i), v(R)))
    a("v_mul_f32 %s, %s, %s" % (v(R + 1), v(A), v(A)))
    a("v_mul_f32 %s, %s, %s" % (v(R + 2), v(A + 1), v(A + 1)))
    for i in range(2, 8, 2):
        a("v_fmac_f32 %s, %s, %s" % (v(R + 1), v(A + i), v(A + i)))
        a("v_fmac_f32 %s, %s, %s" % (v(R + 2), v(A + i + 1), v(A + i + 1)))
    a("v_add_f32 %s, %s, %s" % (v(R + 1), v(R + 1), v(R + 2)))
    a("s_nop 1")
    allreduce16(a, [R + 1])
    allreduce_rows(a, R + 1, R + 2)
    a("v_mov_b32 %s, %s" % (v(R + 2), hexf(1e-5)))
    a("v_fmac_f32 %s, %s, %s" % (v(R + 2), hexf(1.0 / 512), v(R + 1)))
    a("v_rsq_f32 %s, %s" % (v(R + 1), v(R + 2)))
    a("s_lshl_b32 %s, %s, 3" % (s(S_T0), s(S_CGI)))
    a("s_add_u32 %s, %s, %s" % (s(S_T0), s(S_T0), s(S_W)))
    a("s_lshl_b32 %s, %s, 7" % (s(S_T1), s(S_RB)))
    a("s_add_u32 %s, %s, %s" % (s(S_T0), s(S_T0), s(S_T1)))
    a("s_lshl_b32 %s, %s, 3" % (s(S_T0), s(S_T0)))
    a("s_add_u32 %s, %s, %d" % (s(S_T0), s(S_T0), WS_STATS))
    a("v_mov_b32 %s, 0x%x" % (v(R + 2), OOB))
    a("v_writelane_b32 %s, %s, 0" % (v(R + 2), s(S_T0)))
    a("s_nop 1")
    a("buffer_store_dwordx2 %s, %s, %s, 0 offen sc1" % (v(R, 2), v(R + 2), s(SRD_WS, 4)))


def tail_loads():
    T = V_T
    g = []
    g.append("s_mul_i32 %s, %s, 20480" % (s(S_T0), s(S_CGI)))
    g.append("s_lshl_b32 %s, %s, 6" % (s(S_T1), s(S_W)))
    g.append("s_add_u32 %s, %s, %s" % (s(S_T0), s(S_T0), s(S_T1)))
    g.append("s_add_u32 %s, %s, %d" % (s(S_T0), s(S_T0), WS_CSP))
    g.append("v_and_b32 %s, 15, v0" % v(T))
    g.append("v_mul_u32_u24 %s, 1280, %s" % (v(T), v(T)))
    g.append("v_lshrrev_b32 %s, 4, v0" % v(T + 1))
    g.append("v_lshl_add_u32 %s, %s, 4, %s" % (v(T), v(T + 1), v(T)))
    g.append("v_add_u32 %s, %s, %s" % (v(T), s(S_T0), v(T)))
    g.append("buffer_load_dwordx4 %s, %s, %s, 0 offen sc1" % (v(V_CSP, 4), v(T), s(SRD_WS, 4)))
    g.append("buffer_load_dwordx4 %s, %s, %s, 0 offen offset:512 sc1" % (v(V_CSP + 4, 4), v(T), s(SRD_WS, 4)))
    g.append("buffer_load_dwordx4 %s, %s, %s, 0 offen offset:1024 sc1" % (v(V_CSP + 8, 4), v(T), s(SRD_WS, 4)))
    g.append("s_lshl_b32 %s, %s, 6" % (s(S_T0), s(S_W)))
    g.append("s_lshl_b32 %s, %s, 7" % (s(S_T1), s(S_RB)))
    g.append("s_add_u32 %s, %s, %s" % (s(S_T0), s(S_T0), s(S_T1)))
    g.append("s_sub_u32 %s, %s, 16" % (s(S_T0), s(S_T0)))
    g.append("v_add_u32 %s, %s, v0" % (v(T + 2), s(S_T0)))
    g.append("v_max_i32 %s, 0, %s" % (v(T + 2), v(T + 2)))
    g.append("v_min_i32 %s, 2047, %s" % (v(T + 2), v(T + 2)))
    g.append("v_lshlrev_b32 %s, 3, %s" % (v(T + 2), v(T + 2)))
    g.append("v_add_u32 %s, %d, %s" % (v(T + 2), WS_STATS, v(T + 2)))
    g.append("buffer_load_dwordx2 %s, %s, %s, 0 offen sc1" % (v(V_STAT, 2), v(T + 2), s(SRD_WS, 4)))
    return g


def k2_setup_fillers():
    T = V_T + 4
    g = []
    g.append("s_mov_b32 %s, 0x%x" % (s(S_T0), 512 * 1024))
    g.append("s_mov_b32 %s, 0x%x" % (s(S_T1), 1792 * 1024))
    g.append("\n".join([
        "s_cmp_eq_u32 %s, 0" % s(S_M),
        "s_cselect_b32 %s, %s, %s" % (s(R_W), s(S_WO), s(S_WD)),
        "s_cselect_b32 %s, %s, %s" % (s(R_W + 1), s(S_WO + 1), s(S_WD + 1)),
        "s_cselect_b32 %s, 0, %d" % (s(S2_WROW), 20 * 32768),
        "s_cselect_b32 %s, %s, %s" % (s(R_W + 2), s(S_T0), s(S_T1))]))
    g.append("s_and_b32 %s, %s, 0xffff" % (s(R_W + 1), s(R_W + 1)))
    g.append("s_mov_b32 %s, 0x20000" % s(R_W + 3))
    g.append("s_lshl_b32 %s, %s, 12" % (s(S2_M0B), s(S_M)))
    g.append("s_lshl_b32 %s, %s, 10" % (s(S_T0), s(S_J)))
    g.append("s_add_u32 %s, %s, %s" % (s(S2_M0B), s(S2_M0B), s(S_T0)))
    g.append("v_lshrrev_b32 %s, 3, v0" % v(T))
    g.append("s_lshl_b32 %s, %s, 3" % (s(S_T0), s(S_J)))
    g.append("v_add_u32 %s, %s, %s" % (v(T), s(S_T0), v(T)))
    g.append("v_lshlrev_b32 %s, 10, %s" % (v(T), v(T)))
    g.append("v_bfe_u32 %s, v0, 4, 1" % v(T + 1))
    g.append("s_and_b32 %s, %s, 1" % (s(S_T0), s(S_J)))
    g.append("s_lshl_b32 %s, %s, 1" % (s(S_T0), s(S_T0)))
    g.append("v_or_b32 %s, %s, %s" % (v(T + 1), s(S_T0), v(T + 1)))
    g.append("v_bfe_u32 %s, v0, 1, 2" % v(T + 2))
    g.append("v_xor_b32 %s, %s, %s" % (v(T + 1), v(T + 1), v(T + 2)))
    g.append("v_lshl_add_u32 %s, %s, 5, %s" % (v(T), v(T + 1), v(T)))
    g.append("v_and_b32 %s, 1, v0" % v(T + 2))
    g.append("v_lshl_add_u32 %s, %s, 4, %s" % (v(T), v(T + 2), v(T)))
    g.append("s_lshl_b32 %s, %s, 7" % (s(S_T0), s(S2_CG2)))
    g.append("v_add_u32 %s, %s, %s" % (v(V_W2VO), s(S_T0), v(T)))
    return g


def touch_fillers():
    T = V_T + 8
    g = []
    g.append("s_and_b32 %s, %s, 3" % (s(S_T0), s(S2_TG)))
    g.append("s_lshl_b32 %s, %s, 2" % (s(S_T0), s(S_T0)))
    g.append("s_add_u32 %s, %s, %s" % (s(S_T0), s(S_T0), s(S_J)))
    g.append("s_mul_i32 %s, %s, 44" % (s(S_T0), s(S_T0)))
    g.append("s_mul_i32 %s, %s, 1088" % (s(S_T1), s(S_M)))
    g.append("s_add_u32 %s, %s, %s" % (s(S_T0), s(S_T0), s(S_T1)))
    g.append("v_min_u32 %s, 43, v0" % v(T))
    g.append("v_add_u32 %s, %s, %s" % (v(T), s(S_T0), v(T)))
    g.append("v_lshlrev_b32 %s, 10, %s" % (v(T), v(T)))
    g.append("s_lshl_b32 %s, %s, 7" % (s(S_T0), s(S2_CG2)))
    g.append("v_add_u32 %s, %s, %s" % (v(T), s(S_T0), v(T)))
    g.append("s_mov_b32 %s, %s" % (s(SRD_U), s(S_WD)))
    g.append("s_and_b32 %s, %s, 0xffff" % (s(SRD_U + 1), s(S_WD + 1)))
    g.append("s_mov_b32 %s, 0x%x" % (s(SRD_U + 2), 1792 * 1024))
    g.append("s_mov_b32 %s, 0x20000" % s(SRD_U + 3))
    g.append("buffer_load_dword %s, %s, %s, 0 offen" % (v(V_DUMMY), v(T), s(SRD_U, 4)))
    return g


def bias_fillers(var):
    T = V_T + 12
    g = []
    g.append("v_and_b32 %s, 15, v0" % v(T))
    g.append("v_lshrrev_b32 %s, 4, v0" % v(T + 1))
    g.append("v_lshlrev_b32 %s, 2, %s" % (v(T + 1), v(T + 1)))
    g.append("v_sub_u32 %s, %s, %s" % (v(T + 2), v(T), v(T + 1)))
    g.append("v_mov_b32 %s, %s" % (v(T + 3), hexf(-1e30)))
    for r in range(4):
        g.append("v_subrev_u32 %s, %d, %s" % (v(T + 4), r, v(T + 2)))
        g.append("v_and_b32 %s, 0x80000001, %s" % (v(T + 5), v(T + 4)))
        g.append("v_sub_u32 %s, -2, %s" % (v(T + 4), v(T + 4)))
        g.append("v_cmp_eq_u32 vcc, 0, %s" % v(T + 5))
        g.append("v_and_b32 %s, 0x80000001, %s" % (v(T + 4), v(T + 4)))
        g.append("s_nop 0")
        g.append("v_cndmask_b32_e64 %s, %s, 0, vcc" % (v(BC + r), v(T + 3)))
        g.append("v_cmp_eq_u32 vcc, 0, %s" % v(T + 4))
        g.append("s_nop 1")
        g.append("v_cndmask_b32_e64 %s, %s, 0, vcc" % (v(BP + r), v(T + 3)))
    if var.m == 0:
        g.append("s_cmp_eq_u32 %s, 0" % s(S_RB))
        g.append("s_cselect_b64 vcc, -1, 0")
        g.append("s_nop 0")
        for r in range(4):
            g.append("v_cndmask_b32 %s, %s, %s, vcc" % (v(BP0 + r), v(BP + r), v(T + 3)))
    else:
        for r in range(4):
            g.append("v_mov_b32 %s, %s" % (v(BP0 + r), v(BP + r)))
    return g


def tail_reduce():
    g = []
    regs = [V_CSP + i for i in range(12)]
    for ror in (8, 4, 2, 1):
        for r in regs:
            g.append("v_add_f32_dpp %s, %s, %s row_ror:%d row_mask:0xf bank_mask:0xf" % (v(r), v(r), v(r), ror))
    return g


V_CSW, V_CSW3, V_STW = 32, 33, 34


def publish_addr():
    T = V_T + 4
    g = []
    g.append("v_lshlrev_b32 %s, 4, v0" % v(T))
    g.append("v_add_u32 %s, %d, %s" % (v(T), LB + O_XBUF, v(T)))
    g.append("v_and_b32 %s, 48, v0" % v(T + 1))
    g.append("s_lshl_b32 %s, %s, 6" % (s(S_T0), s(S_W)))
    g.append("s_add_u32 %s, %s, %d" % (s(S_T0), s(S_T0), LB + O_CS))
    g.append("v_add_u32 %s, %s, %s" % (v(T + 1), s(S_T0), v(T + 1)))
    g.append("v_and_b32 %s, 15, v0" % v(T + 2))
    g.append("v_cmp_eq_u32 vcc, 0, %s" % v(T + 2))
    g.append("s_lshl_b32 %s, %s, 6" % (s(S_T1), s(S_W)))
    g.append("v_add_u32 %s, %s, v0" % (v(T + 3), s(S_T1)))
    g.append("v_cndmask_b32 %s, %s, %s, vcc" % (v(V_CSW), v(T), v(T + 1)))
    g.append("s_cmp_lt_u32 %s, 4\ns_cselect_b64 %s, vcc, 0" % (s(S_W), s(S_EX, 2)))
    g.append("v_add_u32 %s, 1024, %s" % (v(T + 1), v(T + 1)))
    g.append("v_cndmask_b32 %s, %s, %s, %s" % (v(V_CSW3), v(T), v(T + 1), s(S_EX, 2)))
    g.append("v_cmp_gt_u32 vcc, 144, %s" % v(T + 3))
    g.append("v_lshlrev_b32 %s, 2, %s" % (v(T + 3), v(T + 3)))
    g.append("v_add_u32 %s, %d, %s" % (v(T + 3), LB, v(T + 3)))
    g.append("s_nop 0")
    g.append("v_cndmask_b32 %s, %s, %s, vcc" % (v(V_STW), v(T), v(T + 3)))
    return g


def publish_writes():
    return ["ds_write_b128 %s, %s" % (v(V_CSW), v(V_CSP, 4)),
            "ds_write_b128 %s, %s offset:512" % (v(V_CSW), v(V_CSP + 4, 4)),
            "ds_write_b128 %s, %s" % (v(V_CSW3), v(V_CSP + 8, 4)),
            "ds_write_b32 %s, %s offset:%d" % (v(V_STW), v(V_STAT), O_MEAN),
            "ds_write_b32 %s, %s offset:%d" % (v(V_STW), v(V_STAT + 1), O_RSTD)]


class BG:
    def __init__(self, a, groups):
        self.a = a
        self.groups = list(groups)

    def tick(self, n=1):
        for _ in range(n):
            if self.groups:
                for t in self.groups.pop(0):
                    self.a(t)

    def flush(self):
        self.tick(len(self.groups))


def w2_load_group(tile):
    adv = ["s_add_u32 %s, %s, 32768" % (s(S2_WROW), s(S2_WROW))]
    pre = "s_add_u32 m0, %s, %d" % (s(S2_M0B), (tile % NTILE2) * TILE2)
    ld = "buffer_load_dwordx4 %s, %s, %s offen lds" % (v(V_W2VO), s(R_W, 4), s(S2_WROW))
    if tile == 15:
        adv = "\n".join([
            "s_add_u32 %s, %s, 32768" % (s(S2_WROW), s(S2_WROW)),
            "s_cmp_eq_u32 %s, 0" % s(S_M),
            "s_cselect_b32 %s, 0, %s" % (s(S2_WROW), s(S2_WROW)),
            "s_mov_b32 %s, %s" % (s(R_W), s(S_WD)),
            "s_and_b32 %s, %s, 0xffff" % (s(R_W + 1), s(S_WD + 1)),
            "s_mov_b32 %s, 0x%x" % (s(R_W + 2), 1792 * 1024),
            "s_mov_b32 %s, 0x20000" % s(R_W + 3)])
        return [pre, "s_nop 0", ld, adv]
    return [pre, "s_nop 0", ld, adv[0]]


S_C0 = 64


def gelu_tile(a, G, U, mt, rt, csg, csu, tmp, out, vc1):
    H = (0, 2)
    for h in H:
        a(pk("fma", G + h, [('b', mt), ('p', csg + h), ('p', G + h)], neg=[1, 0, 0]))
    for h in H:
        a(pk("fma", U + h, [('b', mt), ('p', csu + h), ('p', U + h)], neg=[1, 0, 0]))
    for h in H:
        a(pk("mul", G + h, [('b', rt), ('p', G + h)]))
    for h in H:
        a(pk("mul", U + h, [('b', rt), ('p', U + h)]))
    for h in H:
        a(pk("mul", tmp + h, [('p', G + h), ('p', G + h)]))
    for h in H:
        a(pk("fma", tmp + h, [('p', tmp + h), ('b', vc1), ('s', S_C0)]))
    for h in H:
        a(pk("mul", tmp + h, [('p', tmp + h), ('p', G + h)]))
    for r in range(4):
        a("v_exp_f32 %s, %s" % (v(tmp + r), v(tmp + r)))
    for h in H:
        a(pk("mul", U + h, [('p', G + h), ('p', U + h)]))
    for h in H:
        a(pk("add", tmp + h, [('p', tmp + h), ('c', "1.0")]))
    for r in range(4):
        a("v_rcp_f32 %s, %s" % (v(tmp + r), v(tmp + r)))
    a("s_nop 0")
    for h in H:
        a(pk("mul", U + h, [('p', tmp + h), ('p', U + h)]))
    a("v_cvt_pk_bf16_f32 %s, %s, %s" % (v(out), v(U), v(U + 1)))
    a("v_cvt_pk_bf16_f32 %s, %s, %s" % (v(out + 1), v(U + 2), v(U + 3)))


def gelu_tiles2(a, tiles, tmp, vc1):
    H = (0, 2)
    T = [tmp, tmp + 4]
    for (G, U, mt, rt, csg, csu, out) in tiles:
        for h in H:
            a(pk("fma", G + h, [('b', mt), ('p', csg + h), ('p', G + h)], neg=[1, 0, 0]))
    for (G, U, mt, rt, csg, csu, out) in tiles:
        for h in H:
            a(pk("mul", G + h, [('b', rt), ('p', G + h)]))
    for i, (G, U, mt, rt, csg, csu, out) in enumerate(tiles):
        for h in H:
            a(pk("mul", T[i] + h, [('p', G + h), ('p', G + h)]))
    for (G, U, mt, rt, csg, csu, out) in tiles:
        for h in H:
            a(pk("fma", U + h, [('b', mt), ('p', csu + h), ('p', U + h)], neg=[1, 0, 0]))
    for i, (G, U, mt, rt, csg, csu, out) in enumerate(tiles):
        for h in H:
            a(pk("fma", T[i] + h, [('p', T[i] + h), ('b', vc1), ('s', S_C0)]))
    for (G, U, mt, rt, csg, csu, out) in tiles:
        for h in H:
            a(pk("mul", U + h, [('b', rt), ('p', U + h)]))
    for i, (G, U, mt, rt, csg, csu, out) in enumerate(tiles):
        for h in H:
            a(pk("mul", T[i] + h, [('p', T[i] + h), ('p', G + h)]))
    for i in range(len(tiles)):
        for r in range(4):
            a("v_exp_f32 %s, %s" % (v(T[i] + r), v(T[i] + r)))
    for (G, U, mt, rt, csg, csu, out) in tiles:
        for h in H:
            a(pk("mul", U + h, [('p', G + h), ('p', U + h)]))
    for i in range(len(tiles)):
        for h in H:
            a(pk("add", T[i] + h, [('p', T[i] + h), ('c', "1.0")]))
    for i in range(len(tiles)):
        for r in range(4):
            a("v_rcp_f32 %s, %s" % (v(T[i] + r), v(T[i] + r)))
    a("s_nop 0")
    for i, (G, U, mt, rt, csg, csu, out) in enumerate(tiles):
        for h in H:
            a(pk("mul", U + h, [('p', T[i] + h), ('p', U + h)]))
    for (G, U, mt, rt, csg, csu, out) in tiles:
        a("v_cvt_pk_bf16_f32 %s, %s, %s" % (v(out), v(U), v(U + 1)))
        a("v_cvt_pk_bf16_f32 %s, %s, %s" % (v(out + 1), v(U + 2), v(U + 3)))


def norm_ct(a, A, mt, rt, cs, out):
    for h in (0, 2):
        a(pk("fma", A + h, [('b', mt), ('p', cs + h), ('p', A + h)], neg=[1, 0, 0]))
    for h in (0, 2):
        a(pk("mul", A + h, [('b', rt), ('p', A + h)]))
    a("v_cvt_pk_bf16_f32 %s, %s, %s" % (v(out), v(A), v(A + 1)))
    a("v_cvt_pk_bf16_f32 %s, %s, %s" % (v(out + 1), v(A + 2), v(A + 3)))


def norm_ct4(a, As, mts, rts, cs, outs):
    for A, mt in zip(As, mts):
        for h in (0, 2):
            a(pk("fma", A + h, [('b', mt), ('p', cs + h), ('p', A + h)], neg=[1, 0, 0]))
    for A, rt in zip(As, rts):
        for h in (0, 2):
            a(pk("mul", A + h, [('b', rt), ('p', A + h)]))
    for A, out in zip(As, outs):
        a("v_cvt_pk_bf16_f32 %s, %s, %s" % (v(out), v(A), v(A + 1)))
        a("v_cvt_pk_bf16_f32 %s, %s, %s" % (v(out + 1), v(A + 2), v(A + 3)))


def norm_v(a, A, mv, rv, csv, out):
    for h in (0, 2):
        a(pk("fma", A + h, [('p', mv + h), ('b', csv), ('p', A + h)], neg=[1, 0, 0]))
    for h in (0, 2):
        a(pk("mul", A + h, [('p', rv + h), ('p', A + h)]))
    a("v_cvt_pk_bf16_f32 %s, %s, %s" % (v(out), v(A), v(A + 1)))
    a("v_cvt_pk_bf16_f32 %s, %s, %s" % (v(out + 1), v(A + 2), v(A + 3)))


def act_store_pairs(a, P, vaddr):
    a("s_nop 1")
    a("v_permlane16_swap_b32 %s, %s" % (v(P), v(P + 2)))
    a("v_permlane16_swap_b32 %s, %s" % (v(P + 1), v(P + 3)))
    a("v_permlane16_swap_b32 %s, %s" % (v(P + 4), v(P + 6)))
    a("v_permlane16_swap_b32 %s, %s" % (v(P + 5), v(P + 7)))
    a("s_mov_b32 %s, %d" % (s(S_T3), 2 * ACT_T))
    a("buffer_store_dwordx4 %s, %s, %s, 0 offen %s" % (v(P, 4), v(vaddr), s(SRD_WS, 4), Cfg.sc))
    a("buffer_store_dwordx4 %s, %s, %s, %s offen %s" % (v(P + 4, 4), v(vaddr), s(SRD_WS, 4), s(S_T3), Cfg.sc))


def act_addr_base(a, vout, T, m):
    a("v_bfe_u32 %s, v0, 4, 1" % v(T + 1))
    a("s_lshl_b32 %s, %s, 3" % (s(S_T0), s(S_RB)))
    a("s_add_u32 %s, %s, %d" % (s(S_T0), s(S_T0), 4 * m))
    a("v_add_u32 %s, %s, %s" % (v(T + 1), s(S_T0), v(T + 1)))
    a("v_mul_u32_u24 %s, %d, %s" % (v(T + 1), ACT_T, v(T + 1)))
    a("v_lshrrev_b32 %s, 5, v0" % v(T))
    a("v_lshl_add_u32 %s, %s, 8, %s" % (v(T + 1), v(T), v(T + 1)))
    a("v_and_b32 %s, 15, v0" % v(T))
    a("v_lshl_add_u32 %s, %s, 4, %s" % (v(vout), v(T), v(T + 1)))


def lane_mask(fn):
    m = 0
    for l in range(64):
        if fn(l & 15, l >> 4):
            m |= 1 << l
    return m


def smov64(a, reg, val):
    a("s_mov_b32 %s, 0x%x" % (s(reg), val & 0xffffffff))
    a("s_mov_b32 %s, 0x%x" % (s(reg + 1), val >> 32))


M_PAR, M_CA, M_CB, M_FA, M_FB = 28, 30, 36, 38, 52


def epilogue_x(a, var, bg):
    m = var.m
    MT, RT = 48, 52
    MH, RH = 56, 57
    CSQ, CSK, CSG, CSU = 60, 64, 68, 72
    CSV = 58
    MV, RV = 76, 92
    MVH, RVH = 108, 112
    KP = 116
    VP = 212
    QP = 222
    MK = 232
    HP = 244
    RQ = 252
    TMP = 20
    A_I16, A_G16 = 10, 11
    V_C1 = 12
    V_AO, V_AHH = 13, 14
    a.comment("---- X epilogue m=%d ----" % m)
    stamp(a, 3, "st_epi")
    a("v_and_b32 %s, 15, v0" % v(TMP))
    a("v_lshlrev_b32 %s, 2, %s" % (v(A_I16), v(TMP)))
    a("v_add_u32 %s, %d, %s" % (v(A_I16), LB, v(A_I16)))
    a("v_and_b32 %s, 48, v0" % v(A_G16))
    a("v_add_u32 %s, %d, %s" % (v(A_G16), LB, v(A_G16)))
    base = (16 + 64 * m) * 4
    a("s_lshl_b32 %s, %s, 6" % (s(S_T0), s(S_J)))
    a("v_add_u32 %s, %s, %s" % (v(TMP + 2), s(S_T0), v(A_G16)))
    a("v_add_u32 %s, %s, %s" % (v(TMP + 3), s(S_T0), v(A_I16)))
    a("ds_read_b128 %s, %s offset:%d" % (v(CSK, 4), v(TMP + 2), O_CS + 256))
    for t in range(4):
        a("ds_read_b32 %s, %s offset:%d" % (v(MT + t), v(A_I16), O_MEAN + base + t * 64))
        a("ds_read_b32 %s, %s offset:%d" % (v(RT + t), v(A_I16), O_RSTD + base + t * 64))
    a("ds_read_b32 %s, %s offset:%d" % (v(CSV), v(TMP + 3), O_CS + 512))
    a("ds_read_b128 %s, %s offset:%d" % (v(MV + 12, 4), v(A_G16), O_MEAN + base + 3 * 64))
    a("ds_read_b128 %s, %s offset:%d" % (v(RV + 12, 4), v(A_G16), O_RSTD + base + 3 * 64))
    if m == 0:
        a("ds_read_b32 %s, %s offset:%d" % (v(MH), v(A_I16), O_MEAN))
        a("ds_read_b32 %s, %s offset:%d" % (v(RH), v(A_I16), O_RSTD))
    else:
        a("ds_read_b128 %s, %s offset:%d" % (v(MVH, 4), v(A_G16), O_MEAN))
        a("ds_read_b128 %s, %s offset:%d" % (v(RVH, 4), v(A_G16), O_RSTD))
    a("v_mov_b32 %s, %s" % (v(V_C1), hexf(C1)))
    a("s_mov_b32 %s, %s" % (s(S_C0), hexf(C0)))
    par = lane_mask(lambda i, g: i & 1)
    ca = lane_mask(lambda i, g: 4 * g + (i & 1) <= i)
    cb = lane_mask(lambda i, g: 4 * g + (i & 1) + 2 <= i)
    smov64(a, M_PAR, par)
    smov64(a, M_CA, ca)
    smov64(a, M_CB, cb)
    if m == 0:
        a("s_cmp_eq_u32 %s, 0" % s(S_RB))
        a("s_cselect_b32 %s, -1, 0" % s(S_T0))
        a("s_andn2_b32 %s, %s, %s" % (s(M_FA), s(S_T0), s(M_CA)))
        a("s_andn2_b32 %s, %s, %s" % (s(M_FA + 1), s(S_T0), s(M_CA + 1)))
        a("s_andn2_b32 %s, %s, %s" % (s(M_FB), s(S_T0), s(M_CB)))
        a("s_andn2_b32 %s, %s, %s" % (s(M_FB + 1), s(S_T0), s(M_CB + 1)))
    a("v_mov_b32 %s, 0xffff" % v(TMP + 5))
    a("v_mov_b32 %s, 0xffff0000" % v(TMP + 6))
    a("v_cndmask_b32 %s, %s, %s, %s" % (v(TMP + 5), v(TMP + 5), v(TMP + 6), s(M_PAR, 2)))
    a("v_cndmask_b32 %s, %s, 0, %s" % (v(MK), v(TMP + 5), s(M_CA, 2)))
    a("v_cndmask_b32 %s, %s, 0, %s" % (v(MK + 1), v(TMP + 5), s(M_CB, 2)))
    a("v_cndmask_b32 %s, 0, %s, %s" % (v(MK + 2), v(TMP + 5), s(M_CA, 2)))
    a("v_cndmask_b32 %s, 0, %s, %s" % (v(MK + 3), v(TMP + 5), s(M_CB, 2)))
    a("s_mul_i32 %s, %s, 1536" % (s(S_T0), s(S_J)))
    a("s_add_u32 %s, %s, %d" % (s(S_T0), s(S_T0), LB))
    a("v_lshlrev_b32 %s, 3, v0" % v(TMP + 4))
    a("v_add_u32 %s, %s, %s" % (v(TMP + 4), s(S_T0), v(TMP + 4)))
    bg.tick()
    a("s_waitcnt lgkmcnt(0)")
    stamp(a, 4, "st_epi")
    for t in range(3):
        a("ds_read_b128 %s, %s offset:%d" % (v(MV + 4 * t, 4), v(A_G16), O_MEAN + base + t * 64))
        a("ds_read_b128 %s, %s offset:%d" % (v(RV + 4 * t, 4), v(A_G16), O_RSTD + base + t * 64))
    a("ds_read_b128 %s, %s offset:%d" % (v(CSG, 4), v(TMP + 2), O_CS + 768))
    a("ds_read_b128 %s, %s offset:%d" % (v(CSU, 4), v(TMP + 2), O_CS + 1024))
    a("ds_read_b128 %s, %s offset:%d" % (v(CSQ, 4), v(TMP + 2), O_CS))
    if m == 0:
        norm_ct(a, ACC(1, 3), MT + 3, RT + 3, CSK, KP + 8)
        norm_v(a, ACC(2, 3), MV + 12, RV + 12, CSV, VP + 8)
        a("ds_write_b64 %s, %s offset:%d" % (v(TMP + 4), v(KP + 8, 2), O_XBUF))
        a("ds_write_b64 %s, %s offset:%d" % (v(TMP + 4), v(VP + 8, 2), O_XBUF + 512))
    else:
        norm_v(a, V_AH, MVH, RVH, CSV, VP)
        a("ds_write_b64 %s, %s offset:%d" % (v(TMP + 4), v(VP, 2), O_XBUF + 1024))
    a("s_waitcnt lgkmcnt(0)")
    stamp(a, 5, "st_epi")
    a("s_barrier")
    stamp(a, 6, "st_epi")
    if m == 0:
        a("ds_read_b64 %s, %s offset:%d" % (v(VP, 2), v(TMP + 4), O_XBUF + 1024))
        norm_ct4(a, [ACC(1, t) for t in range(3)] + [V_AH], [MT + t for t in range(3)] + [MH],
                 [RT + t for t in range(3)] + [RH], CSK, [KP + 2 + 2 * t for t in range(3)] + [KP])
    else:
        a("ds_read_b64 %s, %s offset:%d" % (v(KP, 2), v(TMP + 4), O_XBUF))
        a("ds_read_b64 %s, %s offset:%d" % (v(VP, 2), v(TMP + 4), O_XBUF + 512))
        norm_ct4(a, [ACC(1, t) for t in range(4)], [MT + t for t in range(4)], [RT + t for t in range(4)], CSK,
                 [KP + 2 + 2 * t for t in range(4)])
        norm_v(a, ACC(2, 3), MV + 12, RV + 12, CSV, VP + 8)
    bg.tick(2)
    for t in range(4):
        a("v_mul_f32 %s, %s, %s" % (v(RQ + t), hexf(0.25 * LOG2E), v(RT + t)))
    for t in range(3):
        norm_v(a, ACC(2, t), MV + 4 * t, RV + 4 * t, CSV, VP + 2 + 2 * t)
    norm_ct4(a, [ACC(0, t) for t in range(4)], [MT + t for t in range(4)], [RQ + t for t in range(4)], CSQ,
             [QP + 2 * t for t in range(4)])
    bg.tick(2)
    act_addr_base(a, V_AO, TMP + 6, m)
    a("s_lshl_b32 %s, %s, 11" % (s(S_T0), s(S_UU)))
    a("s_lshl_b32 %s, %s, 9" % (s(S_T1), s(S_J)))
    a("s_add_u32 %s, %s, %s" % (s(S_T0), s(S_T0), s(S_T1)))
    a("v_add_u32 %s, %s, %s" % (v(V_AO), s(S_T0), v(V_AO)))
    a("v_add_u32 %s, %d, %s" % (v(V_AHH), 16 * 1024, v(V_AO)))
    stamp(a, 7, "st_epi")
    S0 = lambda t: ACC(0, t)
    S1 = lambda t: ACC(1, t)
    PP = lambda t: ACC(2, t)
    a("s_waitcnt lgkmcnt(0)")
    for t in range(4):
        a("v_mfma_f32_16x16x16_bf16 %s, %s, %s, 0" % (v(S1(t), 4), v(KP + 2 + 2 * t, 2), v(QP + 2 * t, 2)))
        a("v_mfma_f32_16x16x16_bf16 %s, %s, %s, 0" % (v(S0(t), 4), v(KP + 2 * t, 2), v(QP + 2 * t, 2)))
    gelu_tiles2(a, [(ACC(3, t), ACC(4, t), MT + t, RT + t, CSG, CSU, HP + 2 * t) for t in (0, 1)], TMP + 8, V_C1)
    bg.tick(2)
    a("v_mov_b32 %s, %s" % (v(TMP + 8), hexf(-1e30)))
    stamp(a, 8, "st_epi")
    AB = lambda t: 76 + 4 * t
    for t in range(4):
        a("v_cndmask_b32 %s, %s, %s, %s" % (v(AB(t)), v(S1(t)), v(S1(t) + 1), s(M_PAR, 2)))
        a("v_cndmask_b32 %s, %s, %s, %s" % (v(AB(t) + 1), v(S1(t) + 2), v(S1(t) + 3), s(M_PAR, 2)))
    for t in range(4):
        a("v_cndmask_b32 %s, %s, %s, %s" % (v(AB(t) + 2), v(S0(t)), v(S0(t) + 1), s(M_PAR, 2)))
        a("v_cndmask_b32 %s, %s, %s, %s" % (v(AB(t) + 3), v(S0(t) + 2), v(S0(t) + 3), s(M_PAR, 2)))
    for t in range(4):
        a("v_cndmask_b32 %s, %s, %s, %s" % (v(AB(t)), v(AB(t) + 2), v(AB(t)), s(M_CA, 2)))
        a("v_cndmask_b32 %s, %s, %s, %s" % (v(AB(t) + 1), v(AB(t) + 3), v(AB(t) + 1), s(M_CB, 2)))
    if m == 0:
        a("v_cndmask_b32 %s, %s, %s, %s" % (v(AB(0)), v(AB(0)), v(TMP + 8), s(M_FA, 2)))
        a("v_cndmask_b32 %s, %s, %s, %s" % (v(AB(0) + 1), v(AB(0) + 1), v(TMP + 8), s(M_FB, 2)))
    MX = TMP
    TT = TMP + 4
    for t in range(4):
        a("v_max_f32 %s, %s, %s" % (v(MX + t), v(AB(t)), v(AB(t) + 1)))
    for swap in ("v_permlane16_swap_b32", "v_permlane32_swap_b32"):
        for t in range(4):
            a("v_mov_b32 %s, %s" % (v(TT + t), v(MX + t)))
        for t in range(4):
            a("%s %s, %s" % (swap, v(MX + t), v(TT + t)))
        for t in range(4):
            a("v_max_f32 %s, %s, %s" % (v(MX + t), v(MX + t), v(TT + t)))
    for t in range(4):
        a("v_sub_f32 %s, %s, %s" % (v(AB(t)), v(AB(t)), v(MX + t)))
        a("v_sub_f32 %s, %s, %s" % (v(AB(t) + 1), v(AB(t) + 1), v(MX + t)))
    for t in range(4):
        a("v_exp_f32 %s, %s" % (v(AB(t)), v(AB(t))))
        a("v_exp_f32 %s, %s" % (v(AB(t) + 1), v(AB(t) + 1)))
    bg.tick(2)
    for t in range(4):
        a("v_cvt_pk_bf16_f32 %s, %s, %s" % (v(AB(t) + 2), v(AB(t)), v(AB(t))))
        a("v_cvt_pk_bf16_f32 %s, %s, %s" % (v(AB(t) + 3), v(AB(t) + 1), v(AB(t) + 1)))
    for t in range(4):
        a("v_and_b32 %s, %s, %s" % (v(PP(t)), v(AB(t) + 2), v(MK)))
        a("v_and_b32 %s, %s, %s" % (v(PP(t) + 1), v(AB(t) + 3), v(MK + 1)))
        a("v_and_b32 %s, %s, %s" % (v(PP(t) + 2), v(AB(t) + 2), v(MK + 2)))
        a("v_and_b32 %s, %s, %s" % (v(PP(t) + 3), v(AB(t) + 3), v(MK + 3)))
    stamp(a, 9, "st_epi")
    a("s_nop 1")
    for t in range(4):
        a("v_mfma_f32_16x16x32_bf16 %s, %s, %s, 0" % (v(S1(t), 4), v(V_ONES, 4), v(PP(t), 4)))
    for t in range(4):
        a("v_mfma_f32_16x16x32_bf16 %s, %s, %s, 0" % (v(S0(t), 4), v(VP + 2 * t, 4), v(PP(t), 4)))
    gelu_tiles2(a, [(ACC(3, t), ACC(4, t), MT + t, RT + t, CSG, CSU, HP + 2 * t) for t in (2, 3)], TMP + 8, V_C1)
    act_store_pairs(a, HP, V_AHH)
    for t in range(4):
        a("v_rcp_f32 %s, %s" % (v(MX + t), v(S1(t))))
    a("s_nop 1")
    for t in range(4):
        for r in range(4):
            a("v_mul_f32 %s, %s, %s" % (v(S0(t) + r), v(MX + t), v(S0(t) + r)))
    OP = 116
    for t in range(4):
        a("v_cvt_pk_bf16_f32 %s, %s, %s" % (v(OP + 2 * t), v(S0(t)), v(S0(t) + 1)))
        a("v_cvt_pk_bf16_f32 %s, %s, %s" % (v(OP + 2 * t + 1), v(S0(t) + 2), v(S0(t) + 3)))
    act_store_pairs(a, OP, V_AO)
    bg.flush()
    stamp(a, 11, "st_epi")


def epilogue_y(a, var, bg):
    m = var.m
    MT, RT = 48, 52
    MTM, RTM = 56, 58
    CS = 60
    CSG4, CSU4 = 76, 80
    HPA, HPB, HM = 84, 92, 100
    TMP = 20
    A_I16, A_G16 = 10, 11
    V_C1 = 12
    V_A, V_B, V_M = 13, 14, 15
    a.comment("---- Y epilogue m=%d ----" % m)
    a("v_and_b32 %s, 15, v0" % v(TMP))
    a("v_lshlrev_b32 %s, 2, %s" % (v(A_I16), v(TMP)))
    a("v_add_u32 %s, %d, %s" % (v(A_I16), LB, v(A_I16)))
    a("v_and_b32 %s, 48, v0" % v(A_G16))
    a("v_add_u32 %s, %d, %s" % (v(A_G16), LB, v(A_G16)))
    base = (16 + 64 * m) * 4
    a("s_lshl_b32 %s, %s, 6" % (s(S_T0), s(S_J)))
    a("v_add_u32 %s, %s, %s" % (v(TMP + 2), s(S_T0), v(A_G16)))
    for tau in range(2):
        a("ds_read_b128 %s, %s offset:%d" % (v(CS + 4 * tau, 4), v(TMP + 2), O_CS + 256 * tau))
    for t in range(4):
        a("ds_read_b32 %s, %s offset:%d" % (v(MT + t), v(A_I16), O_MEAN + base + t * 64))
        a("ds_read_b32 %s, %s offset:%d" % (v(RT + t), v(A_I16), O_RSTD + base + t * 64))
    for tau in range(2, 4):
        a("ds_read_b128 %s, %s offset:%d" % (v(CS + 4 * tau, 4), v(TMP + 2), O_CS + 256 * tau))
    a("v_lshrrev_b32 %s, 5, v0" % v(TMP + 3))
    a("v_lshl_add_u32 %s, %s, 6, %s" % (v(TMP + 3), v(TMP + 3), v(A_I16)))
    a("v_and_b32 %s, 16, v0" % v(TMP + 4))
    a("v_add_u32 %s, %s, %s" % (v(TMP + 4), s(S_T0), v(TMP + 4)))
    a("v_add_u32 %s, %d, %s" % (v(TMP + 4), LB, v(TMP + 4)))
    a("v_mov_b32 %s, %s" % (v(V_C1), hexf(C1)))
    a("s_mov_b32 %s, %s" % (s(S_C0), hexf(C0)))
    bg.tick()
    a("s_waitcnt lgkmcnt(0)")
    for p in range(2):
        a("ds_read_b32 %s, %s offset:%d" % (v(MTM + p), v(TMP + 3), O_MEAN + base + p * 128))
        a("ds_read_b32 %s, %s offset:%d" % (v(RTM + p), v(TMP + 3), O_RSTD + base + p * 128))
    a("ds_read_b128 %s, %s offset:%d" % (v(CSG4, 4), v(TMP + 4), O_CS + 1024))
    a("ds_read_b128 %s, %s offset:%d" % (v(CSU4, 4), v(TMP + 4), O_CS + 1024 + 32))
    act_addr_base(a, TMP + 5, TMP, m)
    a("s_lshl_b32 %s, %s, 4" % (s(S_T0), s(S_COL0)))
    a("s_lshl_b32 %s, %s, 9" % (s(S_T1), s(S_J)))
    a("s_add_u32 %s, %s, %s" % (s(S_T0), s(S_T0), s(S_T1)))
    a("s_add_u32 %s, %s, 16384" % (s(S_T0), s(S_T0)))
    a("v_add_u32 %s, %s, %s" % (v(V_A), s(S_T0), v(TMP + 5)))
    a("v_add_u32 %s, %d, %s" % (v(V_B), 64 * 32, v(V_A)))
    for t0 in (0, 2):
        gelu_tiles2(a, [(ACC(0, t), ACC(1, t), MT + t, RT + t, CS, CS + 4, HPA + 2 * t) for t in (t0, t0 + 1)], TMP + 8, V_C1)
        bg.tick(4)
    act_store_pairs(a, HPA, V_A)
    for t0 in (0, 2):
        gelu_tiles2(a, [(ACC(2, t), ACC(3, t), MT + t, RT + t, CS + 8, CS + 12, HPB + 2 * t) for t in (t0, t0 + 1)], TMP + 8, V_C1)
        bg.tick(4)
    bg.flush()
    act_store_pairs(a, HPB, V_B)
    a("s_waitcnt lgkmcnt(0)")
    for p in range(2):
        for r in range(4):
            a("v_permlane32_swap_b32 %s, %s" % (v(ACC(4, 2 * p) + r), v(ACC(4, 2 * p + 1) + r)))
    a("v_bfe_u32 %s, v0, 4, 1" % v(TMP + 1))
    a("v_lshlrev_b32 %s, 1, %s" % (v(TMP + 1), v(TMP + 1)))
    a("v_lshrrev_b32 %s, 5, v0" % v(TMP))
    a("v_add_u32 %s, %s, %s" % (v(TMP), v(TMP), v(TMP + 1)))
    a("s_lshl_b32 %s, %s, 3" % (s(S_T0), s(S_RB)))
    a("s_add_u32 %s, %s, %d" % (s(S_T0), s(S_T0), 4 * m))
    a("v_add_u32 %s, %s, %s" % (v(TMP), s(S_T0), v(TMP)))
    a("v_mul_u32_u24 %s, %d, %s" % (v(TMP), ACT_T, v(TMP)))
    a("v_and_b32 %s, 15, v0" % v(TMP + 1))
    a("v_lshl_add_u32 %s, %s, 4, %s" % (v(TMP), v(TMP + 1), v(TMP)))
    a("s_lshl_b32 %s, %s, 4" % (s(S_T0), s(S_COL2)))
    a("s_lshl_b32 %s, %s, 8" % (s(S_T1), s(S_J)))
    a("s_add_u32 %s, %s, %s" % (s(S_T0), s(S_T0), s(S_T1)))
    a("s_add_u32 %s, %s, 16384" % (s(S_T0), s(S_T0)))
    a("v_add_u32 %s, %s, %s" % (v(V_M), s(S_T0), v(TMP)))
    gelu_tiles2(a, [(ACC(4, 2 * p), ACC(4, 2 * p + 1), MTM + p, RTM + p, CSG4, CSU4, HM + 2 * p) for p in range(2)], TMP + 8, V_C1)
    a("s_nop 1")
    a("v_permlane16_swap_b32 %s, %s" % (v(HM), v(HM + 2)))
    a("v_permlane16_swap_b32 %s, %s" % (v(HM + 1), v(HM + 3)))
    a("buffer_store_dwordx4 %s, %s, %s, 0 offen %s" % (v(HM, 4), v(V_M), s(SRD_WS, 4), Cfg.sc))


def emit_variant(a, var, after_label):
    L = var.L
    ool = []
    a.label("P1_%s" % var.name)
    T = V_T
    variant_addresses(a, var)
    if var.typ == 'X' and var.m == 0:
        srd(a, SRD_Q, S_Q, 512 * 3072)
    else:
        srd(a, SRD_G, S_G, 512 * 3584)
        srd(a, SRD_U, S_U, 512 * 3584)
        if var.typ == 'Y' and var.m == 1:
            a("s_cmp_lt_u32 %s, 2" % s(S_J))
            a("s_cselect_b32 %s, %s, %s" % (s(SRD_MIX), s(SRD_G), s(SRD_U)))
            a("s_cselect_b32 %s, %s, %s" % (s(SRD_MIX + 1), s(SRD_G + 1), s(SRD_U + 1)))
            a("s_mov_b32 %s, 0x%x" % (s(SRD_MIX + 2), 512 * 3584))
            a("s_mov_b32 %s, 0x20000" % s(SRD_MIX + 3))
    for slot in range(2):
        for i in range(len(var.loads)):
            pre, ld = w_load(var, i, slot)
            for t_ in pre:
                a(t_)
            a("s_nop 0")
            for t_ in ld:
                a(t_)
        for t_ in koff_adv(var):
            a(t_)
    n_after_row = 2 + 2 * (L - 1)
    srd(a, SRD_WS, S_WS, WS_USED)
    prologue_late(a)
    if Cfg.merged and var.m == 0:
        lab = a.newlabel("noep")
        a("s_cmp_eq_u32 %s, 0" % s(S_W))
        a("s_cbranch_scc0 %s" % lab)
        a("v_mov_b32 %s, %d" % (v(T + 15), WS_EPOCH))
        a("buffer_load_dword %s, %s, %s, 0 offen sc1" % (v(V_TAG), v(T + 15), s(SRD_WS, 4)))
        a.label(lab)
    if var.typ == 'X':
        halo_addresses(a)
    frag_lane_addresses(a, var)
    for i in range(84 if var.typ == 'X' else 80):
        a("v_mov_b32 %s, 0" % v(128 + i))
    stamp(a, 6, "st_pro")
    if var.typ == 'X' and var.m == 0:
        lab = a.newlabel("halo0")
        a("s_cmp_eq_u32 %s, 0" % s(S_W))
        a("s_cbranch_scc0 %s" % lab)
        halo_issue(a)
        a.label(lab)
    for h in range(2):
        pre, ld = x_load(h)
        for t_ in pre:
            a(t_)
        a("s_nop 0")
        for t_ in ld:
            a(t_)
    for g_ in x_adv():
        for t_ in g_:
            a(t_)
    if var.typ == 'X' and var.m == 0:
        lab = a.newlabel("halo1")
        a("s_cmp_eq_u32 %s, 1" % s(S_W))
        a("s_cbranch_scc0 %s" % lab)
        halo_issue(a)
        a.label(lab)
    a("s_waitcnt vmcnt(%d)" % (n_after_row + 2))
    stamp(a, 7, "st_pro")
    stats_compute(a)
    stamp(a, 8, "st_pro")
    if var.typ == 'X' and var.m == 0:
        l0, l1 = a.newlabel("w0"), a.newlabel("w1")
        a("s_cmp_eq_u32 %s, 1" % s(S_W))
        a("s_cbranch_scc0 %s" % l0)
        a("s_waitcnt vmcnt(5)")
        a("s_branch %s" % l1)
        a.label(l0)
        a("s_waitcnt vmcnt(3)")
        a.label(l1)
    else:
        a("s_waitcnt vmcnt(3)")
    a("s_barrier")
    stamp(a, 3)
    stamp(a, 3, "st_pro")
    stamp(a, 3, "st_loop")
    for g in frag_addr(var, kk=0, advance=False):
        for t in g:
            a(t)
    for t in frag_reads(var, 0, 0):
        a(t)
    for i in range(len(var.loads)):
        pre, ld = w_load(var, i, 2)
        for t_ in pre:
            a(t_)
        a("s_nop 0")
        for t_ in ld:
            a(t_)
    for t_ in koff_adv(var):
        a(t_)
    if var.typ == 'X':
        if var.m == 0:
            lab = a.newlabel("halo2")
            a("s_cmp_lt_u32 %s, 2" % s(S_W))
            a("s_cbranch_scc1 %s" % lab)
            halo_issue(a)
            a.label(lab)
        else:
            halo_issue(a)
    issue_plain(a, var, 3, 0)
    if ("prioloop1" in EXP and var.m == 1) or ("prioloop0" in EXP and var.m == 0):
        a("s_setprio 1")
    loop = "P1_%s_loop" % var.name
    a.label(loop)
    def top11(aa):
        lab = aa.newlabel("chk")
        back = aa.newlabel("chkback")
        aa("s_cmp_eq_u32 %s, %s" % (s(S_IT), s(S_EV1)))
        aa("s_cbranch_scc1 %s" % lab)
        aa.label(back)
        b = Asm()
        b.uid = aa.uid + 1000
        b.label(lab)
        o2 = []
        poll_check(b, o2, "early")
        b("s_branch %s" % back)
        ool.append(b.text())
        ool.extend(o2)
        aa.uid = b.uid + 1
    for s4 in range(4):
        emit_step(a, var, s4, 2 * L, post=(lambda k: (lambda aa: event_site(aa, var, k, ool)))(s4),
                  top=top11 if (s4 == 3 and var.m == 0 and Cfg.merged) else None)
    a("s_lshr_b32 %s, %s, 4" % (s(S_EV0), s(S_EV0)))
    if STAMPS["on"] and "st_loop" in EXP:
        for it in range(3):
            lab = a.newlabel("stl")
            a("s_cmp_eq_u32 %s, %d" % (s(S_IT), it))
            a("s_cbranch_scc0 %s" % lab)
            stamp(a, 4 + it, "st_loop")
            a.label(lab)
    a("s_add_u32 %s, %s, 1" % (s(S_IT), s(S_IT)))
    a("s_cmp_lt_u32 %s, 3" % s(S_IT))
    a("s_cbranch_scc1 %s" % loop)
    stamp(a, 4)
    nm = var.nm
    touch = Cfg.merged and "notouch" not in EXP

    def wait_by_wave(cases):
        default, exc = cases
        exc = [(w_, n_) for (w_, n_) in exc if (w_ >> 2) == var.m and n_ != default]
        if not exc:
            a("s_waitcnt vmcnt(%d)" % default)
            return
        done = a.newlabel("wbw")
        for w_, n_ in exc:
            nxt = a.newlabel("wbn")
            a("s_cmp_eq_u32 %s, %d" % (s(S_W), w_))
            a("s_cbranch_scc0 %s" % nxt)
            a("s_waitcnt vmcnt(%d)" % n_)
            a("s_branch %s" % done)
            a.label(nxt)
        a("s_waitcnt vmcnt(%d)" % default)
        a.label(done)
    f12 = spread(publish_addr(), 1, nm - 2) if "early11" in EXP else \
        spread(tail_loads(), 0, 8) + spread(publish_addr(), 9, nm - 1)
    emit_step(a, var, 0, 2 * L, dma=False, extra=f12, post=lambda aa: w2_touch(aa, 0))
    stamp(a, 7, "st_loop")
    emit_step(a, var, 1, L + 4, dma=False, extra=spread(k2_setup_fillers(), 3, nm - 1))
    stamp(a, 8, "st_loop")
    nA = lambda w_: 1 if (touch and w_ < 5) else 0
    nB = lambda w_: 1 if (touch and w_ >= 3) else 0
    d14 = 4 + nA(4 * var.m + 1)
    wait_by_wave((d14, [(w_, 4 + nA(w_)) for w_ in range(8)]))
    emit_step(a, var, 2, 63, dma=False, post=lambda aa: w2_touch(aa, 1))
    stamp(a, 9, "st_loop")
    d15 = nA(4 * var.m + 1) + nB(4 * var.m + 1)
    wait_by_wave((d15, [(w_, nA(w_) + nB(w_)) for w_ in range(8)]))
    emit_step(a, var, 3, 63, dma=False, prefetch=False, extra=spread(tail_reduce(), 0, nm - 3))
    for t_ in publish_writes():
        a(t_)
    stamp(a, 5)
    stamp(a, 11, "st_loop")
    a("s_waitcnt lgkmcnt(0)")
    a("s_barrier")
    stamp(a, 6)
    groups = [w2_load_group(t) for t in range(PRE2)] if (Cfg.merged and var.m == 0) else []
    bg = BG(a, groups)
    if "prio1" in EXP and var.m == 1:
        a("s_setprio 1")
    if "prio0" in EXP and var.m == 0:
        a("s_setprio 1")
    if var.typ == 'X':
        epilogue_x(a, var, bg)
    else:
        epilogue_y(a, var, bg)
    stamp(a, 7)
    if "prio1" in EXP or "prio0" in EXP:
        a("s_setprio 0")
    a("s_branch %s" % after_label)
    for t in ool:
        a.raw(t)


def emit_phase1(a, after_label):
    prologue_common(a)
    a("s_and_b32 %s, %s, 1" % (s(S_T0), s(S_CGI)))
    a("s_lshl_b32 %s, %s, 1" % (s(S_T0), s(S_T0)))
    a("s_or_b32 %s, %s, %s" % (s(S_T0), s(S_T0), s(S_M)))
    a("s_cmp_eq_u32 %s, 1" % s(S_T0))
    a("s_cbranch_scc1 P1_X1")
    a("s_cmp_eq_u32 %s, 2" % s(S_T0))
    a("s_cbranch_scc1 P1_Y0")
    a("s_cmp_eq_u32 %s, 3" % s(S_T0))
    a("s_cbranch_scc1 P1_Y1")
    for typ, m in (('X', 0), ('X', 1), ('Y', 0), ('Y', 1)):
        emit_variant(a, Variant(typ, m), after_label)


def emit_handoff(a):
    ool = []
    T = V_T
    V_P2 = V_DUMMY + 1
    a("s_lshl_b32 %s, %s, 7" % (s(S_T0), s(S_RB)))
    a("s_lshl_b32 %s, %s, 2" % (s(S_T1), s(S_CGI)))
    a("s_add_u32 %s, %s, %s" % (s(S_T0), s(S_T0), s(S_T1)))
    a("s_add_u32 %s, %s, %d" % (s(S_T0), s(S_T0), WS_FD))
    a("v_mov_b32 %s, 0x%x" % (v(T), OOB))
    a("v_writelane_b32 %s, %s, 0" % (v(T), s(S_T0)))
    a("s_lshr_b32 %s, %s, 1" % (s(S_T1), s(S2_TG)))
    a("s_lshl_b32 %s, %s, 7" % (s(S_T1), s(S_T1)))
    a("s_add_u32 %s, %s, %d" % (s(S_T1), s(S_T1), WS_FD))
    a("v_and_b32 %s, 15, v0" % v(T + 1))
    a("v_lshl_add_u32 %s, %s, 2, %s" % (v(V_PADDR), v(T + 1), s(S_T1)))
    a("s_waitcnt vmcnt(0)")
    a("s_barrier")
    stamp(a, 8)
    other = a.newlabel("ho_other")
    join = a.newlabel("ho_join")
    go = a.newlabel("ho_go")
    a("s_cmp_eq_u32 %s, 0" % s(S_W))
    a("s_cbranch_scc0 %s" % other)
    a("buffer_store_dword %s, %s, %s, 0 offen sc1" % (v(V_TAG), v(T), s(SRD_WS, 4)))
    a("buffer_load_dword %s, %s, %s, 0 offen sc1" % (v(V_PRES), v(V_PADDR), s(SRD_WS, 4)))
    a("s_mov_b32 %s, 0" % s(S_SPIN))
    loop = a.newlabel("ho_poll")
    a.label(loop)
    for cur, nxt in ((V_PRES, V_P2), (V_P2, V_PRES)):
        a("buffer_load_dword %s, %s, %s, 0 offen sc1" % (v(nxt), v(V_PADDR), s(SRD_WS, 4)))
        a("s_waitcnt vmcnt(1)")
        a("v_cmp_ne_u32 vcc, %s, %s" % (v(V_TAG), v(cur)))
        a("s_nop 1")
        a("s_cmp_lg_u64 vcc, 0")
        a("s_cbranch_scc0 %s" % go)
    a("s_add_u32 %s, %s, 1" % (s(S_SPIN), s(S_SPIN)))
    a("s_cmp_lt_u32 %s, %d" % (s(S_SPIN), SPIN_MAX))
    a("s_cbranch_scc1 %s" % loop)
    a("s_branch %s" % go)
    a.label(other)
    a("s_cmp_eq_u32 %s, 0" % s(S_M))
    a("s_cbranch_scc1 %s" % join)
    for t_ in range(PRE2):
        for x in w2_load_group(t_):
            a(x)
    a.label(join)
    a("s_waitcnt vmcnt(0)")
    a.label(go)
    a("s_barrier")
    return ool


P2_AVO = 2
P2_WL = 4
P2_XO = 3
P2_XR = 16
P2_T = 20
DA = int(os.environ.get("DA", "12"))
WF2 = lambda st, u: 48 + st * 16 + u * 4
ACT2 = lambda i: 80 + (i % DA) * 4
ACC_D = lambda u: 128 + u * 4
ACC_S = lambda u: 144 + u * 4
V_EPF = 212


def w2_schedule():
    sched = {}
    tiles = list(range(PRE2, 36))
    n = len(tiles)
    last = 27
    prev = 1
    for k, tau in enumerate(tiles):
        want = 2 + (k * (last - 2)) // max(n - 1, 1)
        earliest = 4 * ((tau - NTILE2 - 1 + 3) // 4) + 2 if tau - NTILE2 > 1 else 2
        V = max(0, -(-(tau - NTILE2 - 1) // 4))
        earliest = 4 * V + 2
        st = max(want, earliest, prev + 1)
        needV = -(-(tau - 7) // 4)
        assert st + 2 <= 4 * needV + 2, (tau, st)
        sched[st] = tau
        prev = st
    return sched


def p2_addresses(a):
    T = P2_T
    a("s_lshl_b32 %s, %s, 2" % (s(S_T0), s(S2_TG)))
    a("s_add_u32 %s, %s, %s" % (s(S_T0), s(S_T0), s(S_J)))
    a("s_mul_i32 %s, %s, %d" % (s(S_T0), s(S_T0), ACT_T))
    a("v_lshlrev_b32 %s, 4, v0" % v(T))
    a("v_add_u32 %s, %s, %s" % (v(P2_AVO), s(S_T0), v(T)))
    a("s_mul_i32 %s, %s, %d" % (s(S2_AOFF), s(S_M), 36 * 1024))
    a("v_lshrrev_b32 %s, 4, v0" % v(T + 1))
    a("v_bfe_u32 %s, v0, 2, 2" % v(T + 2))
    a("v_lshl_add_u32 %s, %s, 3, %s" % (v(T + 2), v(T + 1), v(T + 2)))
    a("v_lshlrev_b32 %s, 7, %s" % (v(T + 2), v(T + 2)))
    a("v_and_b32 %s, 3, v0" % v(T + 3))
    a("v_lshl_add_u32 %s, %s, 3, %s" % (v(T + 2), v(T + 3), v(T + 2)))
    a("s_lshl_b32 %s, %s, 12" % (s(S_T0), s(S_M)))
    a("v_add_u32 %s, %s, %s" % (v(T + 2), s(S_T0), v(T + 2)))
    a("v_bfe_u32 %s, v0, 3, 2" % v(T + 3))
    for u in range(4):
        a("v_xor_b32 %s, %d, %s" % (v(T + 4), u, v(T + 3)))
        a("v_lshl_add_u32 %s, %s, 5, %s" % (v(P2_WL + u), v(T + 4), v(T + 2)))
        a("v_add_u32 %s, 0x10000, %s" % (v(P2_WL + 4 + u), v(P2_WL + u)))
        a("v_add_u32 %s, 0x20000, %s" % (v(P2_WL + 8 + u), v(P2_WL + u)))
    a("s_lshl_b32 %s, %s, 6" % (s(S_T0), s(S2_TG)))
    a("s_lshl_b32 %s, %s, 4" % (s(S_T1), s(S_J)))
    a("s_add_u32 %s, %s, %s" % (s(S_T0), s(S_T0), s(S_T1)))
    a("v_and_b32 %s, 15, v0" % v(T + 4))
    a("v_add_u32 %s, %s, %s" % (v(T + 4), s(S_T0), v(T + 4)))
    a("v_lshlrev_b32 %s, 10, %s" % (v(T + 4), v(T + 4)))
    a("v_and_b32 %s, 1, %s" % (v(T + 5), v(T + 1)))
    a("v_lshl_add_u32 %s, %s, 5, %s" % (v(T + 4), v(T + 5), v(T + 4)))
    a("v_lshrrev_b32 %s, 1, %s" % (v(T + 5), v(T + 1)))
    a("v_lshl_add_u32 %s, %s, 4, %s" % (v(T + 4), v(T + 5), v(T + 4)))
    a("s_lshl_b32 %s, %s, 7" % (s(S_T0), s(S2_CG2)))
    a("s_lshl_b32 %s, %s, 6" % (s(S_T1), s(S_M)))
    a("s_add_u32 %s, %s, %s" % (s(S_T0), s(S_T0), s(S_T1)))
    a("v_add_u32 %s, %s, %s" % (v(P2_XO), s(S_T0), v(T + 4)))
    for r in range(16):
        a("v_mov_b32 %s, 0" % v(ACC_D(0) + r))
    srd(a, R_OUT, S_OUT, 2048 * 1024)


class VmSim:
    def __init__(self):
        self.ops = []

    def issue(self, tag):
        self.ops.append(tag)

    def need(self, tag):
        if tag not in self.ops:
            return None
        return len(self.ops) - 1 - self.ops.index(tag)


def p2_reads(tile, u):
    st = tile & 1
    slot = tile % NTILE2
    base = P2_WL + 4 * (slot // 8) + u
    off = (slot % 8) * TILE2
    return ["ds_read_b64_tr_b16 %s, %s offset:%d" % (v(WF2(st, u), 2), v(base), off),
            "ds_read_b64_tr_b16 %s, %s offset:%d" % (v(WF2(st, u) + 2, 2), v(base), off + 512)]


def p2_act(i):
    return "buffer_load_dwordx4 %s, %s, %s, %s offen offset:%d %s" % (
        v(ACT2(i), 4), v(P2_AVO), s(SRD_WS, 4), s(S2_AOFF), (i % 4) * 1024, Cfg.sc if Cfg.merged else "")


def emit_phase2_main(a):
    sim = VmSim()
    stamp(a, 3, "st_p2")
    XR_STEP = 22
    if Cfg.merged:
        lab = a.newlabel("noepl")
        a("s_cmp_eq_u32 s2, 0")
        a("s_cbranch_scc0 %s" % lab)
        a("s_cmp_eq_u32 %s, 0" % s(S_W))
        a("s_cbranch_scc0 %s" % lab)
        a("v_lshrrev_b32 %s, 2, v0" % v(P2_T))
        a("v_lshlrev_b32 %s, 7, %s" % (v(P2_T), v(P2_T)))
        a("v_and_b32 %s, 3, v0" % v(P2_T + 1))
        a("v_lshl_add_u32 %s, %s, 4, %s" % (v(P2_T), v(P2_T + 1), v(P2_T)))
        a("v_add_u32 %s, %d, %s" % (v(V_PADDR), WS_FA, v(P2_T)))
        a("buffer_load_dwordx4 %s, %s, %s, 0 offen sc1" % (v(V_EPF, 4), v(V_PADDR), s(SRD_WS, 4)))
        a.label(lab)
    if Cfg.merged and "acttouch" in EXP:
        lab = a.newlabel("noat")
        T = P2_T
        a("s_lshl_b32 %s, %s, 3" % (s(S_T0), s(S_W)))
        a("s_add_u32 %s, %s, %s" % (s(S_T0), s(S_T0), s(S2_CG2)))
        a("s_add_u32 %s, %s, %d" % (s(S_T0), s(S_T0), DA))
        a("s_cmp_lt_u32 %s, 36" % s(S_T0))
        a("s_cbranch_scc0 %s" % lab)
        a("s_lshl_b32 %s, %s, 10" % (s(S_T0), s(S_T0)))
        a("s_lshl_b32 %s, %s, 2" % (s(S_T1), s(S2_TG)))
        a("s_mul_i32 %s, %s, %d" % (s(S_T1), s(S_T1), ACT_T))
        a("s_add_u32 %s, %s, %s" % (s(S_T0), s(S_T0), s(S_T1)))
        a("v_bfe_u32 %s, v0, 3, 2" % v(T))
        a("v_mul_u32_u24 %s, %d, %s" % (v(T), ACT_T, v(T)))
        a("v_lshrrev_b32 %s, 5, v0" % v(T + 1))
        a("v_mul_u32_u24 %s, %d, %s" % (v(T + 1), 36 * 1024, v(T + 1)))
        a("v_and_b32 %s, 7, v0" % v(T + 2))
        a("v_lshl_add_u32 %s, %s, 7, %s" % (v(T), v(T + 2), v(T)))
        a("v_add3_u32 %s, %s, %s, %s" % (v(T), v(T), v(T + 1), s(S_T0)))
        a("buffer_load_dword %s, %s, %s, 0 offen sc1" % (v(V_DUMMY), v(T), s(SRD_WS, 4)))
        a.label(lab)
    A0 = min(DA, int(os.environ.get("A0", "8")))
    state = {"next": 0}

    def act_upto(n):
        while state["next"] < min(n, 36):
            i = state["next"]
            a(p2_act(i))
            sim.issue(("a", i))
            if i % 4 == 3:
                a("s_add_u32 %s, %s, 4096" % (s(S2_AOFF), s(S2_AOFF)))
            state["next"] += 1
    act_upto(A0)
    for u in range(4):
        for t in p2_reads(0, u):
            a(t)
    a("s_waitcnt lgkmcnt(0)")
    for u in range(4):
        for t in p2_reads(1, u):
            a(t)
    wsched = w2_schedule()
    for sg in range(36):
        if sg in (0, 2, 6, 12, 18, 26, 34):
            stamp(a, {0: 4, 2: 5, 6: 6, 12: 7, 18: 8, 26: 9, 34: 11}[sg], "st_p2")
        if sg % 4 == 2 and sg <= 30:
            V = (sg - 2) // 4
            last_tile = 4 * V + 7
            n = sim.need(("w", last_tile))
            if n is not None:
                a("s_waitcnt vmcnt(%d)" % n)
            a("s_barrier")
        if sg == 16:
            lab = a.newlabel("noacc")
            a("s_cmp_eq_u32 %s, 0" % s(S_M))
            a("s_cbranch_scc0 %s" % lab)
            a("s_nop 7")
            for r in range(16):
                a("v_mov_b32 %s, %s" % (v(ACC_S(0) + r), v(ACC_D(0) + r)))
            for r in range(16):
                a("v_mov_b32 %s, 0" % v(ACC_D(0) + r))
            a("s_nop 1")
            a.label(lab)
        n = sim.need(("a", sg))
        st = sg & 1
        a("s_waitcnt vmcnt(%d) lgkmcnt(%d)" % (n, 7 if sg < 35 else 0))
        for u in range(4):
            d = v(ACC_D(u), 4)
            a("v_mfma_f32_16x16x32_bf16 %s, %s, %s, %s" % (d, v(WF2(st, u), 4), v(ACT2(sg), 4), d))
            if sg + 2 < 36:
                for t in p2_reads(sg + 2, u):
                    a(t)
            if u == 1 and sg in wsched:
                tile = wsched[sg]
                for t in w2_load_group(tile):
                    a(t)
                sim.issue(("w", tile))
        act_upto(min(sg + 1 + DA, state["next"] + 2))
        if sg == XR_STEP:
            a("buffer_load_dwordx4 %s, %s, %s, 0 offen" % (v(P2_XR, 4), v(P2_XO), s(SRD_X, 4)))
            sim.issue("xr")


def emit_phase2_epilogue(a):
    T = P2_T
    a("s_nop 7")
    a("s_mul_i32 %s, %s, 6144" % (s(S_T0), s(S_J)))
    a("v_lshlrev_b32 %s, 4, v0" % v(T))
    a("v_add_u32 %s, %s, %s" % (v(T), s(S_T0), v(T)))
    k1 = a.newlabel("k2_kh1")
    join = a.newlabel("k2_join")
    S, D, E = 56, 64, 72
    a("s_cmp_eq_u32 %s, 0" % s(S_M))
    a("s_cbranch_scc0 %s" % k1)
    a("ds_write_b128 %s, %s" % (v(T), v(ACC_S(2), 4)))
    a("ds_write_b128 %s, %s offset:1024" % (v(T), v(ACC_S(3), 4)))
    a("ds_write_b128 %s, %s offset:2048" % (v(T), v(ACC_D(2), 4)))
    a("ds_write_b128 %s, %s offset:3072" % (v(T), v(ACC_D(3), 4)))
    for r in range(8):
        a("v_mov_b32 %s, %s" % (v(S + r), v(ACC_S(0) + r)))
    a("s_waitcnt lgkmcnt(0)")
    a("s_barrier")
    a("ds_read_b128 %s, %s offset:4096" % (v(48, 4), v(T)))
    a("ds_read_b128 %s, %s offset:5120" % (v(52, 4), v(T)))
    a("s_waitcnt lgkmcnt(0)")
    for h in range(0, 8, 2):
        a(pk("add", D + h, [('p', ACC_D(0) + h), ('p', 48 + h)]))
    a("s_branch %s" % join)
    a.label(k1)
    a("ds_write_b128 %s, %s offset:4096" % (v(T), v(ACC_D(0), 4)))
    a("ds_write_b128 %s, %s offset:5120" % (v(T), v(ACC_D(1), 4)))
    a("s_waitcnt lgkmcnt(0)")
    a("s_barrier")
    a("ds_read_b128 %s, %s" % (v(S, 4), v(T)))
    a("ds_read_b128 %s, %s offset:1024" % (v(S + 4, 4), v(T)))
    a("ds_read_b128 %s, %s offset:2048" % (v(48, 4), v(T)))
    a("ds_read_b128 %s, %s offset:3072" % (v(52, 4), v(T)))
    a("s_waitcnt lgkmcnt(0)")
    for h in range(0, 8, 2):
        a(pk("add", D + h, [('p', ACC_D(2) + h), ('p', 48 + h)]))
    a.label(join)
    a("s_mov_b32 %s, %s" % (s(S_C0), hexf(-LOG2E)))
    for h in range(0, 8, 2):
        a(pk("mul", E + h, [('p', D + h), ('s', S_C0)]))
    for r in range(8):
        a("v_exp_f32 %s, %s" % (v(E + r), v(E + r)))
    for h in range(0, 8, 2):
        a(pk("mul", S + h, [('p', S + h), ('p', D + h)]))
    for h in range(0, 8, 2):
        a(pk("add", E + h, [('p', E + h), ('c', "1.0")]))
    for r in range(8):
        a("v_rcp_f32 %s, %s" % (v(E + r), v(E + r)))
    for i in range(4):
        a("v_lshlrev_b32 %s, 16, %s" % (v(D + 2 * i), v(P2_XR + i)))
        a("v_and_b32 %s, 0xffff0000, %s" % (v(D + 2 * i + 1), v(P2_XR + i)))
    for h in range(0, 8, 2):
        a(pk("mul", S + h, [('p', S + h), ('p', E + h)]))
    a("s_nop 1")
    for r in range(4):
        a("v_permlane16_swap_b32 %s, %s" % (v(S + r), v(S + 4 + r)))
    a("s_nop 1")
    for h in range(0, 8, 2):
        a(pk("add", S + h, [('p', S + h), ('p', D + h)]))
    for i in range(4):
        a("v_cvt_pk_bf16_f32 %s, %s, %s" % (v(E + i), v(S + 2 * i), v(S + 2 * i + 1)))
    a("buffer_store_dwordx4 %s, %s, %s, 0 offen %s" % (v(E, 4), v(P2_XO), s(R_OUT, 4), os.environ.get("OUTSC", "")))


def emit_epoch_bump(a):
    lab = a.newlabel("nobump")
    loop = a.newlabel("bumploop")
    go = a.newlabel("bumpgo")
    a("s_cmp_eq_u32 s2, 0")
    a("s_cbranch_scc0 %s" % lab)
    a("s_cmp_eq_u32 %s, 0" % s(S_W))
    a("s_cbranch_scc0 %s" % lab)
    a("s_mov_b32 %s, 0" % s(S_SPIN))
    a.label(loop)
    a("v_xor_b32 %s, %s, %s" % (v(V_EPF), v(V_TAG), v(V_EPF)))
    a("v_xor_b32 %s, %s, %s" % (v(V_EPF + 1), v(V_TAG), v(V_EPF + 1)))
    a("v_xor_b32 %s, %s, %s" % (v(V_EPF + 2), v(V_TAG), v(V_EPF + 2)))
    a("v_xor_b32 %s, %s, %s" % (v(V_EPF + 3), v(V_TAG), v(V_EPF + 3)))
    a("v_or_b32 %s, %s, %s" % (v(V_EPF), v(V_EPF), v(V_EPF + 1)))
    a("v_or3_b32 %s, %s, %s, %s" % (v(V_EPF), v(V_EPF), v(V_EPF + 2), v(V_EPF + 3)))
    a("v_cmp_ne_u32 vcc, 0, %s" % v(V_EPF))
    a("s_nop 1")
    a("s_cmp_lg_u64 vcc, 0")
    a("s_cbranch_scc0 %s" % go)
    a("buffer_load_dwordx4 %s, %s, %s, 0 offen sc1" % (v(V_EPF, 4), v(V_PADDR), s(SRD_WS, 4)))
    a("s_add_u32 %s, %s, 1" % (s(S_SPIN), s(S_SPIN)))
    a("s_waitcnt vmcnt(0)")
    a("s_cmp_lt_u32 %s, %d" % (s(S_SPIN), SPIN_MAX))
    a("s_cbranch_scc1 %s" % loop)
    a.label(go)
    a("v_mov_b32 %s, 0x%x" % (v(P2_T), OOB))
    a("s_mov_b32 %s, %d" % (s(S_T0), WS_EPOCH))
    a("v_writelane_b32 %s, %s, 0" % (v(P2_T), s(S_T0)))
    a("s_nop 1")
    a("buffer_store_dword %s, %s, %s, 0 offen sc1" % (v(V_TAG), v(P2_T), s(SRD_WS, 4)))
    a.label(lab)


def emit_merged(a, end_label):
    emit_phase1(a, "P1_done")
    a.label("P1_done")
    p2_addresses(a)
    ool = emit_handoff(a)
    stamp(a, 9)
    emit_phase2_main(a)
    stamp(a, 11)
    emit_phase2_epilogue(a)
    emit_epoch_bump(a)
    if STAMPS["on"]:
        a("s_waitcnt vmcnt(0)")
        stamp(a, 10)
        stamp_real(a, 2)
    stamp_flush(a, S_W, S_WS, 0)
    a("s_branch %s" % end_label)
    for t in ool:
        a.raw(t)


def emit_phase2_standalone(a):
    a("s_load_dwordx2 %s, s[0:1], 0" % s(S_X, 2))
    a("s_load_dwordx2 %s, s[0:1], 72" % s(S_WS, 2))
    a("s_load_dwordx2 %s, s[0:1], 16" % s(S_WO, 2))
    a("s_load_dwordx2 %s, s[0:1], 48" % s(S_WD, 2))
    a("s_load_dwordx2 %s, s[0:1], 56" % s(S_OUT, 2))
    a("v_lshrrev_b32 v1, 6, v0")
    a("v_and_b32 v0, 63, v0")
    a("v_readfirstlane_b32 %s, v1" % s(S_W))
    a("s_and_b32 %s, s2, 7" % s(S_T0))
    a("s_lshr_b32 %s, s2, 3" % s(S_T1))
    a("s_lshr_b32 %s, %s, 3" % (s(S_T3), s(S_T1)))
    a("s_lshl_b32 %s, %s, 2" % (s(S2_TG), s(S_T0)))
    a("s_add_u32 %s, %s, %s" % (s(S2_TG), s(S2_TG), s(S_T3)))
    a("s_and_b32 %s, %s, 7" % (s(S2_CG2), s(S_T1)))
    a("s_and_b32 %s, %s, 3" % (s(S_J), s(S_W)))
    a("s_lshr_b32 %s, %s, 2" % (s(S_M), s(S_W)))
    a("s_waitcnt lgkmcnt(0)")
    srd(a, SRD_X, S_X, 2048 * 1024)
    srd(a, SRD_WS, S_WS, WS_USED)
    for t in k2_setup_fillers():
        a(t)
    for t in range(PRE2):
        for x in w2_load_group(t):
            a(x)
    p2_addresses(a)
    a("s_waitcnt vmcnt(0)")
    a("s_barrier")
    emit_phase2_main(a)
    emit_phase2_epilogue(a)
```

```python
import os
from asmlib import *
from layout import *

S_X, S_Q, S_G, S_U, S_WS, S_OUT = 4, 6, 8, 10, 12, 14
SRD_X, SRD_Q, SRD_G, SRD_U, SRD_WS, SRD_MIX = 16, 20, 24, 28, 32, 36
R_W, R_OUT = 20, 24
S_RB, S_CGI, S_UU, S_W, S_J, S_M, S_R0B = 40, 41, 42, 43, 44, 45, 46
S_KOFF = 47
S_M0X = 48
S_COL0, S_COL1, S_COL2 = 49, 50, 51
S_XO, S_XM0, S_XSLOTR, S_HK = 52, 53, 54, 55
S_IT, S_EV0, S_EV1 = 56, 57, 59
S_M0W = 58
S_T0, S_T1, S_T2, S_T3 = 60, 61, 62, 63
S_EX = 64
S2_WROW, S2_AOFF, S2_M0B, S2_TG = 66, 67, 68, 69
S_WO, S_WD = 70, 72
S2_CG2 = 74
S_XM0END = 75
S_SPIN = 3

V_WVO = 1
V_XVO = 4
V_XL = 6
V_HL = 8
V_WL, V_WL3, V_WM, V_WM3 = 10, 11, 12, 13
V_XA, V_HA = 14, 15
V_ONES = 16
V_T = 20
V_TAG, V_W2VO, V_CSST, V_PADDR, V_PRES, V_DUMMY = 40, 41, 42, 43, 44, 45
V_TVO = 47
WF = lambda st, t: 48 + st * 20 + t * 4
XF = lambda st, t: 88 + st * 20 + t * 4
ACC = lambda tau, t: 128 + (tau * 4 + t) * 4
V_AH = 208
V_CSP = 212
V_STAT = 224
V_CSTMP = 226
BP, BC, BP0 = 232, 236, 240

OOB = 0x7FFFFF00
SPIN_MAX = 1 << 18
N15 = int(os.environ.get("N15", "9"))
CPF_LINES = 12
TB = os.environ.get("TB", "14")

C0 = -2.0 * 0.7978845608028654 * 1.4426950408889634
C1 = C0 * 0.044715
LOG2E = 1.4426950408889634


class Cfg:
    merged = True
    sc = "sc1"


_stamp0 = stamp


def stamp(a, idx, mode="main"):
    active = "main"
    for m in ("st_pro", "st_loop", "st_p2", "st_epi"):
        if m in EXP:
            active = m
    if idx in (1, 10) and mode == "main":
        _stamp0(a, idx)
    elif mode == active:
        _stamp0(a, idx)


def srd(a, base, ptr, nbytes):
    a("s_mov_b32 %s, %s" % (s(base), s(ptr)))
    a("s_and_b32 %s, %s, 0xffff" % (s(base + 1), s(ptr + 1)))
    a("s_mov_b32 %s, 0x%x" % (s(base + 2), nbytes))
    a("s_mov_b32 %s, 0x20000" % s(base + 3))


def allreduce16(a, regs, op="v_add_f32"):
    for ror in (8, 4, 2, 1):
        for r in regs:
            a("%s_dpp %s, %s, %s row_ror:%d row_mask:0xf bank_mask:0xf" % (op, v(r), v(r), v(r), ror))
        pad = 2 - (len(regs) - 1)
        if pad > 0:
            a("s_nop %d" % (pad - 1))


def allreduce_rows(a, r, tmp, op="v_add_f32"):
    for swap in ("v_permlane16_swap_b32", "v_permlane32_swap_b32"):
        a("v_mov_b32 %s, %s" % (v(tmp), v(r)))
        a("s_nop 1")
        a("%s %s, %s" % (swap, v(r), v(tmp)))
        a("s_nop 1")
        a("%s %s, %s, %s" % (op, v(r), v(r), v(tmp)))
        a("s_nop 0")


class Variant:
    def __init__(self, typ, m):
        self.typ = typ
        self.m = m
        if typ == 'X' and m == 0:
            self.loads = [(SRD_Q, V_WVO, 0), (SRD_Q, V_WVO + 1, 1), (SRD_Q, V_WVO + 2, 2)]
            self.pitch = 3072
        elif typ == 'X':
            self.loads = [(SRD_G, V_WVO, 3), (SRD_U, V_WVO, 4)]
            self.pitch = 3584
        elif m == 0:
            self.loads = [(SRD_G, V_WVO, 0), (SRD_U, V_WVO, 1), (SRD_G, V_WVO + 1, 2)]
            self.pitch = 3584
        else:
            self.loads = [(SRD_U, V_WVO + 1, 3), (SRD_MIX, V_WVO + 2, 4)]
            self.pitch = 3584
        self.L = len(self.loads) + 1
        self.name = "%s%d" % (typ, m)
        self.nm = 21 if typ == 'X' else 20


def w_load(var, i, slot):
    srdr, vo, q = var.loads[i]
    return (["s_add_u32 m0, %s, %d" % (s(S_M0W), slot * WSLOT + q * 4096)],
            ["buffer_load_dwordx4 %s, %s, %s offen lds" % (v(vo), s(srdr, 4), s(S_KOFF))])


def koff_adv(var):
    st = 32 * var.pitch
    return ["s_add_u32 %s, %s, %d" % (s(S_KOFF), s(S_KOFF), st),
            "s_cmp_eq_u32 %s, %d" % (s(S_KOFF), 16 * st),
            "s_cselect_b32 %s, 0, %s" % (s(S_KOFF), s(S_KOFF))]


def x_load(h):
    return (["s_add_u32 m0, %s, %d" % (s(S_XM0), h * 8192)],
            ["buffer_load_dwordx4 %s, %s, %s offen lds" % (v(V_XVO + h), s(SRD_X, 4), s(S_XO))])


def x_adv():
    return [["s_add_u32 %s, %s, 128" % (s(S_T0), s(S_XO)),
             "s_and_b32 %s, %s, 0x380" % (s(S_T0), s(S_T0)),
             "s_or_b32 %s, %s, %s" % (s(S_XO), s(S_T0), s(S_R0B))],
            ["s_add_u32 %s, %s, 0x4000" % (s(S_XM0), s(S_XM0)),
             "s_cmp_eq_u32 %s, %s" % (s(S_XM0), s(S_XM0END)),
             "s_cselect_b32 %s, %s, %s" % (s(S_XM0), s(S_M0X), s(S_XM0))]]


def issue_plain(a, var, slot, h):
    if slot is not None:
        for i in range(len(var.loads)):
            pre, ld = w_load(var, i, slot)
            for t in pre:
                a(t)
            a("s_nop 0")
            for t in ld:
                a(t)
        for t in koff_adv(var):
            a(t)
    pre, ld = x_load(h)
    for t in pre:
        a(t)
    a("s_nop 0")
    for t in ld:
        a(t)
    if h:
        for g in x_adv():
            for t in g:
                a(t)


def frag_reads(var, st, slot):
    wl = V_WL3 if slot == 3 else V_WL
    wm = V_WM3 if slot == 3 else V_WM
    so = 0 if slot == 3 else slot * WSLOT
    W = []
    for tau in range(5):
        if var.typ == 'Y' and tau == 4:
            W.append(["ds_read_b64_tr_b16 %s, %s offset:%d" % (v(WF(st, tau), 2), v(wm), so),
                      "ds_read_b64_tr_b16 %s, %s offset:%d" % (v(WF(st, tau) + 2, 2), v(wm), so + 256)])
        else:
            W.append(["ds_read_b64_tr_b16 %s, %s offset:%d" % (v(WF(st, tau), 2), v(wl), so + tau * 4096),
                      "ds_read_b64_tr_b16 %s, %s offset:%d" % (v(WF(st, tau) + 2, 2), v(wl), so + tau * 4096 + 512)])
    X = ["ds_read_b128 %s, %s offset:%d" % (v(XF(st, t), 4), v(V_XA), t * 2048) for t in range(4)]
    r = W[0] + W[1] + [X[0]] + W[2] + [X[1]] + W[3] + [X[2]] + W[4] + [X[3]]
    if var.typ == 'X':
        r.append("ds_read_b128 %s, %s" % (v(XF(st, 4), 4), v(V_HA)))
    return r


def frag_addr(var, kk, advance):
    g = []
    if advance:
        g.append(["s_add_u32 %s, %s, 0x4000" % (s(S_XSLOTR), s(S_XSLOTR)),
                  "s_cmp_eq_u32 %s, 0xc000" % s(S_XSLOTR),
                  "s_cselect_b32 %s, 0, %s" % (s(S_XSLOTR), s(S_XSLOTR))])
    g.append(["v_add_u32 %s, %s, %s" % (v(V_XA), s(S_XSLOTR), v(V_XL + kk))])
    if var.typ == 'X':
        h = []
        if advance:
            h += ["s_add_u32 %s, %s, 0x800" % (s(S_HK), s(S_HK)),
                  "s_and_b32 %s, %s, 0x3fff" % (s(S_HK), s(S_HK))]
        h.append("v_add_u32 %s, %s, %s" % (v(V_HA), s(S_HK), v(V_HL + kk)))
        g.append(h)
    return g


def mfmas(var, st):
    out = []
    for t in range(4):
        for tau in range(5):
            d = v(ACC(tau, t), 4)
            if var.typ == 'X' and tau == 2:
                out.append("v_mfma_f32_16x16x32_bf16 %s, %s, %s, %s" % (d, v(XF(st, t), 4), v(WF(st, tau), 4), d))
            else:
                out.append("v_mfma_f32_16x16x32_bf16 %s, %s, %s, %s" % (d, v(WF(st, tau), 4), v(XF(st, t), 4), d))
    if var.typ == 'X':
        d = v(V_AH, 4)
        if var.m == 0:
            out.append("v_mfma_f32_16x16x32_bf16 %s, %s, %s, %s" % (d, v(WF(st, 1), 4), v(XF(st, 4), 4), d))
        else:
            out.append("v_mfma_f32_16x16x32_bf16 %s, %s, %s, %s" % (d, v(XF(st, 4), 4), v(WF(st, 2), 4), d))
    return out


def spread(items, p0, p1):
    n = len(items)
    if n == 0:
        return []
    return [(p0 + (i * (p1 - p0 + 1)) // n, t) for i, t in enumerate(items)]


def emit_step(a, var, s4, vm, dma=True, prefetch=True, extra=None, post=None, top=None):
    par = s4 & 1
    a("s_waitcnt vmcnt(%d) lgkmcnt(0)" % vm)
    if top:
        top(a)
    if "nobar" not in EXP:
        a("s_barrier")
    M = mfmas(var, par)
    F = []
    if prefetch:
        ga = frag_addr(var, kk=1 - par, advance=(par == 1))
        for i, g in enumerate(ga):
            for t in g:
                F.append((i, t))
        rd = frag_reads(var, 1 - par, (s4 + 1) & 3)
        if "noreads" in EXP:
            rd = []
        for i, t in enumerate(rd):
            F.append((i if i < 4 else i + 0, t))
    if dma and "nodma" not in EXP:
        nl = len(var.loads)
        poss = [3, 8, 13, 18] if var.m == 0 else [5, 10, 15]
        for i in range(nl):
            pre, ld = w_load(var, i, s4)
            F += [(poss[i] - 1, t) for t in pre] + [(poss[i], t) for t in ld]
        F += [(poss[nl - 1] + 1, t) for t in koff_adv(var)]
        h = 1 - par
        pre, ld = x_load(h)
        px = poss[nl]
        F += [(px - 1, t) for t in pre] + [(px, t) for t in ld]
        if h:
            g = x_adv()
            F += [(px + 1, t) for t in g[0]] + [(min(px + 2, len(M) - 1), t) for t in g[1]]
    if extra:
        F += extra
    F.sort(key=lambda x: x[0])
    for t in interleave(M, F):
        a(t)
    if post:
        post(a)


def w2_touch(b, part):
    if "notouch" in EXP or not Cfg.merged:
        return
    T = V_T
    lab = b.newlabel("tch")
    if part == 0:
        b("s_cmp_lt_u32 %s, 5" % s(S_W))
        b("s_cbranch_scc0 %s" % lab)
        b("s_mov_b32 %s, %s" % (s(S_T1), s(S_W)))
    else:
        b("s_cmp_ge_u32 %s, 3" % s(S_W))
        b("s_cbranch_scc0 %s" % lab)
        b("s_sub_u32 %s, %s, 3" % (s(S_T1), s(S_W)))
    b("s_lshr_b32 %s, s2, 3" % s(S_T0))
    b("s_mul_i32 %s, %s, 5" % (s(S_T0), s(S_T0)))
    b("s_add_u32 %s, %s, %s" % (s(S_T0), s(S_T0), s(S_T1)))
    b("s_min_u32 %s, %s, 143" % (s(S_T0), s(S_T0)))
    if part == 0:
        b("s_add_u32 %s, %s, 64" % (s(S_T1), s(S_T0)))
        b("s_add_u32 %s, %s, 72" % (s(S_T2), s(S_T0)))
        b("s_cmp_lt_u32 %s, 72" % s(S_T0))
        b("s_cselect_b32 %s, %s, %s" % (s(S_T0), s(S_T1), s(S_T2)))
        base = S_WD
    else:
        b("s_add_u32 %s, %s, 136" % (s(S_T1), s(S_T0)))
        b("s_add_u32 %s, %s, 208" % (s(S_T2), s(S_T0)))
        b("s_cmp_lt_u32 %s, 8" % s(S_T0))
        b("s_cselect_b32 %s, %s, %s" % (s(S_T1), s(S_T1), s(S_T2)))
        b("s_sub_u32 %s, %s, 16" % (s(S_T2), s(S_T0)))
        b("s_cmp_lt_u32 %s, 16" % s(S_T0))
        b("s_cselect_b32 %s, %s, %s" % (s(S_T1), s(S_T1), s(S_T2)))
        b("s_sub_u32 %s, %s, 80" % (s(S_T2), s(S_T0)))
        b("s_cmp_lt_u32 %s, 80" % s(S_T0))
        b("s_cselect_b32 %s, %s, %s" % (s(S_T1), s(S_T1), s(S_T2)))
        b("s_sub_u32 %s, %s, 16" % (s(S_T2), s(S_T0)))
        b("s_cmp_lt_u32 %s, 64" % s(S_T2))
        b("s_cselect_b32 %s, %s, %s" % (s(S_EX), s(S_WO), s(S_WD)))
        b("s_cselect_b32 %s, %s, %s" % (s(S_EX + 1), s(S_WO + 1), s(S_WD + 1)))
        b("s_mov_b32 %s, %s" % (s(S_T0), s(S_T1)))
        base = S_EX
    b("s_lshl_b32 %s, %s, 13" % (s(S_T0), s(S_T0)))
    b("v_lshlrev_b32 %s, 7, v0" % v(T + 3))
    b("v_add_u32 %s, %s, %s" % (v(T + 3), s(S_T0), v(T + 3)))
    b("global_load_dword %s, %s, %s" % (v(V_DUMMY + part), v(T + 3), s(base, 2)))
    b.label(lab)


def colsum_block(b, par):
    for tau in range(5):
        b("v_mfma_f32_16x16x32_bf16 %s, %s, %s, 0" % (v(V_CSTMP + 4 * tau, 4), v(WF(par, tau), 4), v(V_ONES, 4)))
    b("s_nop 7")
    b("s_nop 1")
    for tau in range(5):
        b("buffer_store_dwordx4 %s, %s, %s, 0 offen offset:%d sc1" % (v(V_CSTMP + 4 * tau, 4), v(V_CSST), s(SRD_WS, 4), tau * 256))


def publish_block(b):
    T = V_T
    b("v_add_u32 %s, 1, %s" % (v(V_TAG), v(V_TAG)))
    b("s_lshl_b32 %s, %s, 7" % (s(S_T0), s(S_RB)))
    b("s_lshl_b32 %s, %s, 2" % (s(S_T1), s(S_CGI)))
    b("s_add_u32 %s, %s, %s" % (s(S_T0), s(S_T0), s(S_T1)))
    b("s_add_u32 %s, %s, %d" % (s(S_T0), s(S_T0), WS_FA))
    b("s_lshl_b32 %s, %s, 7" % (s(S_T1), s(S_CGI)))
    b("s_lshl_b32 %s, %s, 2" % (s(S_T2), s(S_RB)))
    b("s_add_u32 %s, %s, %s" % (s(S_T1), s(S_T1), s(S_T2)))
    b("s_add_u32 %s, %s, %d" % (s(S_T1), s(S_T1), WS_FB))
    b("v_mov_b32 %s, 0x%x" % (v(T), OOB))
    b("v_writelane_b32 %s, %s, 0" % (v(T), s(S_T0)))
    b("v_writelane_b32 %s, %s, 1" % (v(T), s(S_T1)))
    b("s_nop 1")
    b("buffer_store_dword %s, %s, %s, 0 offen sc1" % (v(V_TAG), v(T), s(SRD_WS, 4)))


def poll_block(b):
    T = V_T
    b("v_and_b32 %s, 15, v0" % v(T))
    b("s_lshl_b32 %s, %s, 7" % (s(S_T0), s(S_RB)))
    b("s_add_u32 %s, %s, %d" % (s(S_T0), s(S_T0), WS_FA))
    b("v_lshl_add_u32 %s, %s, 2, %s" % (v(V_PADDR), v(T), s(S_T0)))
    b("s_lshl_b32 %s, %s, 7" % (s(S_T1), s(S_CGI)))
    b("s_add_u32 %s, %s, %d" % (s(S_T1), s(S_T1), WS_FB))
    b("v_lshl_add_u32 %s, %s, 2, %s" % (v(T + 1), v(T), s(S_T1)))
    b("v_lshrrev_b32 %s, 4, v0" % v(T + 2))
    b("v_cmp_eq_u32 vcc, 2, %s" % v(T + 2))
    b("s_nop 1")
    b("v_cndmask_b32 %s, %s, %s, vcc" % (v(V_PADDR), v(V_PADDR), v(T + 1)))
    b("s_cmp_eq_u32 %s, 0" % s(S_RB))
    b("s_cselect_b32 %s, 0, 128" % s(S_T1))
    b("s_sub_u32 %s, %s, %s" % (s(S_T0), s(S_T0), s(S_T1)))
    b("s_add_u32 %s, %s, 56" % (s(S_T0), s(S_T0)))
    b("s_add_u32 %s, %s, 4" % (s(S_T1), s(S_T0)))
    b("v_writelane_b32 %s, %s, 16" % (v(V_PADDR), s(S_T0)))
    b("v_writelane_b32 %s, %s, 17" % (v(V_PADDR), s(S_T1)))
    b("s_nop 1")
    b("buffer_load_dword %s, %s, %s, 0 offen sc1" % (v(V_PRES), v(V_PADDR), s(SRD_WS, 4)))


def event_site(a, var, s4, ool):
    if s4 == 3 and "early11" in EXP:
        lab = a.newlabel("ev11")
        back = a.newlabel("ev11back")
        a("s_cmp_eq_u32 %s, 2" % s(S_IT))
        a("s_cbranch_scc1 %s" % lab)
        a.label(back)
        b = Asm()
        b.uid = a.uid + 1000
        b.label(lab)
        for t_ in tail_loads():
            b(t_)
        b("s_branch %s" % back)
        ool.append(b.text())
        a.uid = b.uid + 1
        return
    if var.m == 1 or s4 > 1:
        return
    lab = a.newlabel("ev")
    back = a.newlabel("evback")
    a("s_bitcmp1_b32 %s, %d" % (s(S_EV0), s4))
    a("s_cbranch_scc1 %s" % lab)
    a.label(back)
    b = Asm()
    b.uid = a.uid + 1000
    b.label(lab)
    if s4 == 0 and Cfg.merged:
        other = b.newlabel("evo")
        b("s_cmp_eq_u32 %s, 0" % s(S_IT))
        b("s_cbranch_scc0 %s" % other)
        colsum_block(b, s4)
        b("s_branch %s" % back)
        b.label(other)
        pl = b.newlabel("evp")
        b("s_cmp_eq_u32 %s, 1" % s(S_IT))
        b("s_cbranch_scc0 %s" % pl)
        publish_block(b)
        b("s_branch %s" % back)
        b.label(pl)
        poll_block(b)
    else:
        colsum_block(b, s4)
    b("s_branch %s" % back)
    ool.append(b.text())
    a.uid = b.uid + 1


def poll_check(a, ool, name):
    slow = a.newlabel(name + "_slow")
    back = a.newlabel(name + "_ok")
    a("v_cmp_ne_u32 vcc, %s, %s" % (v(V_TAG), v(V_PRES)))
    a("s_nop 1")
    a("s_cmp_lg_u64 vcc, 0")
    a("s_cbranch_scc1 %s" % slow)
    a.label(back)
    b = Asm()
    b.label(slow)
    b("s_mov_b32 %s, 0" % s(S_SPIN))
    loop = slow + "_loop"
    b.label(loop)
    b("buffer_load_dword %s, %s, %s, 0 offen sc1" % (v(V_PRES), v(V_PADDR), s(SRD_WS, 4)))
    b("s_add_u32 %s, %s, 1" % (s(S_SPIN), s(S_SPIN)))
    b("s_waitcnt vmcnt(0)")
    b("v_cmp_ne_u32 vcc, %s, %s" % (v(V_TAG), v(V_PRES)))
    b("s_nop 1")
    b("s_cmp_lg_u64 vcc, 0")
    b("s_cbranch_scc0 %s" % back)
    b("s_cmp_lt_u32 %s, %d" % (s(S_SPIN), SPIN_MAX))
    b("s_cbranch_scc1 %s" % loop)
    b("s_branch %s" % back)
    ool.append(b.text())


def prologue_common(a):
    a.comment("---- prologue ----")
    stamp_real(a, 0)
    stamp(a, 1)
    a("s_load_dwordx4 %s, s[0:1], 0" % s(S_X, 4))
    a("s_load_dwordx4 %s, s[0:1], 32" % s(S_G, 4))
    a("s_load_dwordx2 %s, s[0:1], 72" % s(S_WS, 2))
    a("v_lshrrev_b32 v1, 6, v0")
    a("v_and_b32 v0, 63, v0")
    a("v_readfirstlane_b32 %s, v1" % s(S_W))
    a("s_and_b32 %s, s2, 7" % s(S_T0))
    a("s_lshr_b32 %s, s2, 3" % s(S_T1))
    if "map8x4" in EXP:
        a("s_lshr_b32 %s, %s, 2" % (s(S_T2), s(S_T0)))
        a("s_lshl_b32 %s, %s, 3" % (s(S_T2), s(S_T2)))
        a("s_and_b32 %s, %s, 7" % (s(S_T3), s(S_T1)))
        a("s_or_b32 %s, %s, %s" % (s(S_RB), s(S_T2), s(S_T3)))
        a("s_and_b32 %s, %s, 3" % (s(S_T2), s(S_T0)))
        a("s_lshl_b32 %s, %s, 2" % (s(S_T2), s(S_T2)))
        a("s_lshr_b32 %s, %s, 3" % (s(S_CGI), s(S_T1)))
        a("s_or_b32 %s, %s, %s" % (s(S_CGI), s(S_T2), s(S_CGI)))
    else:
        a("s_and_b32 %s, %s, 15" % (s(S_RB), s(S_T1)))
        a("s_and_b32 %s, %s, 7" % (s(S_T3), s(S_T1)))
        a("s_lshl_b32 %s, %s, 1" % (s(S_T2), s(S_T0)))
        a("s_lshr_b32 %s, %s, 4" % (s(S_CGI), s(S_T1)))
        a("s_or_b32 %s, %s, %s" % (s(S_CGI), s(S_T2), s(S_CGI)))
    a("s_lshl_b32 %s, %s, 17" % (s(S_R0B), s(S_RB)))
    a("s_lshl_b32 %s, %s, 7" % (s(S_XO), s(S_T3)))
    a("s_or_b32 %s, %s, %s" % (s(S_XO), s(S_XO), s(S_R0B)))
    a("s_lshl_b32 %s, %s, 11" % (s(S_HK), s(S_T3)))
    a("s_lshl_b32 %s, %s, 1" % (s(S_KOFF), s(S_T3)))
    a("s_lshl_b32 %s, %s, 10" % (s(S_M0X), s(S_W)))
    a("s_add_u32 %s, %s, %d" % (s(S_M0X), s(S_M0X), XRING))
    a("s_mov_b32 %s, %s" % (s(S_XM0), s(S_M0X)))
    a("s_add_u32 %s, %s, 0xc000" % (s(S_XM0END), s(S_M0X)))
    T = V_T
    a("v_lshrrev_b32 %s, 3, v0" % v(T))
    a("s_lshl_b32 %s, %s, 3" % (s(S_T0), s(S_W)))
    a("v_add_u32 %s, %s, %s" % (v(T + 2), s(S_T0), v(T)))
    a("v_bfe_u32 %s, %s, 1, 3" % (v(T + 3), v(T + 2)))
    a("v_and_b32 %s, 7, v0" % v(T + 4))
    a("v_xor_b32 %s, %s, %s" % (v(T + 4), v(T + 4), v(T + 3)))
    a("v_lshlrev_b32 %s, 4, %s" % (v(T + 4), v(T + 4)))
    a("v_lshl_add_u32 %s, %s, 10, %s" % (v(V_XVO), v(T + 2), v(T + 4)))
    a("v_add_u32 %s, 0x10000, %s" % (v(V_XVO + 1), v(V_XVO)))
    a("v_lshlrev_b32 %s, 4, v0" % v(T + 12))
    a("s_lshl_b32 %s, %s, 3" % (s(S_T2), s(S_CGI)))
    a("s_add_u32 %s, %s, %s" % (s(S_T2), s(S_T2), s(S_W)))
    a("s_lshl_b32 %s, %s, 10" % (s(S_T2), s(S_T2)))
    a("s_add_u32 %s, %s, %s" % (s(S_T2), s(S_T2), s(S_R0B)))
    a("s_and_b32 %s, %s, 3" % (s(S_J), s(S_W)))
    a("s_lshr_b32 %s, %s, 2" % (s(S_M), s(S_W)))
    a("s_lshr_b32 %s, %s, 1" % (s(S_UU), s(S_CGI)))
    a("s_lshl_b32 %s, %s, 10" % (s(S_M0W), s(S_J)))
    if "codepf" in EXP:
        lab = a.newlabel("cpf")
        a("s_cmp_eq_u32 %s, 7" % s(S_W))
        a("s_cbranch_scc0 %s" % lab)
        a("s_getpc_b64 %s" % s(S_EX, 2))
        a.label("CPF_here")
        a("s_lshr_b32 %s, s2, 3" % s(S_T0))
        a("s_mul_i32 %s, %s, %d" % (s(S_T0), s(S_T0), CPF_LINES * 128))
        a("v_lshlrev_b32 %s, 7, v0" % v(T + 5))
        a("v_add_u32 %s, %s, %s" % (v(T + 5), s(S_T0), v(T + 5)))
        a("v_min_u32 %s, K_end-CPF_here-4, %s" % (v(T + 5), v(T + 5)))
        a("v_mov_b32 %s, %s" % (v(T + 7), s(S_EX + 1)))
        a("v_add_co_u32 %s, vcc, %s, %s" % (v(T + 6), s(S_EX), v(T + 5)))
        a("s_nop 1")
        a("v_addc_co_u32 %s, vcc, 0, %s, vcc" % (v(T + 7), v(T + 7)))
        a("s_mov_b64 %s, exec" % s(S_EX, 2))
        a("s_mov_b64 exec, 0x%x" % ((1 << CPF_LINES) - 1))
        a("global_load_dword %s, %s, off" % (v(V_DUMMY + 1), v(T + 6, 2)))
        a("s_mov_b64 exec, %s" % s(S_EX, 2))
        a.label(lab)
    stamp(a, 4, "st_pro")
    a("s_waitcnt lgkmcnt(0)")
    stamp(a, 5, "st_pro")
    srd(a, SRD_X, S_X, 2048 * 1024)
    a("buffer_load_dwordx4 %s, %s, %s, %s offen" % (v(V_CSP, 4), v(T + 12), s(SRD_X, 4), s(S_T2)))
    for h in range(2):
        pre, ld = x_load(h)
        for t_ in pre:
            a(t_)
        a("s_nop 0")
        for t_ in ld:
            a(t_)
    for g_ in x_adv():
        for t_ in g_:
            a(t_)


def prologue_late(a):
    a("s_load_dwordx2 %s, s[0:1], 16" % s(S_WO, 2))
    a("s_load_dwordx2 %s, s[0:1], 48" % s(S_WD, 2))
    a("s_load_dwordx2 %s, s[0:1], 56" % s(S_OUT, 2))
    a("s_and_b32 %s, s2, 7" % s(S_T0))
    a("s_lshr_b32 %s, s2, 3" % s(S_T1))
    a("s_lshr_b32 %s, %s, 3" % (s(S_T3), s(S_T1)))
    a("s_lshl_b32 %s, %s, 2" % (s(S2_TG), s(S_T0)))
    a("s_add_u32 %s, %s, %s" % (s(S2_TG), s(S2_TG), s(S_T3)))
    a("s_and_b32 %s, %s, 7" % (s(S2_CG2), s(S_T1)))
    a("s_mov_b32 %s, 0" % s(S_XSLOTR))
    a("s_mov_b32 %s, 0" % s(S_IT))
    a("s_lshr_b32 %s, %s, 3" % (s(S_T0), s(S_RB)))
    a("s_lshl_b32 %s, 1, %s" % (s(S_T0), s(S_T0)))
    a("s_cmp_eq_u32 %s, 0" % s(S_M))
    a("s_cselect_b32 %s, %s, 0" % (s(S_EV0), s(S_T0)))
    a("s_mov_b32 %s, 99" % s(S_EV1))
    if Cfg.merged:
        a("s_cmp_eq_u32 %s, 0" % s(S_W))
        a("s_cselect_b32 %s, 0x110, 0" % s(S_T0))
        a("s_cselect_b32 %s, 2, 99" % s(S_EV1))
        a("s_or_b32 %s, %s, %s" % (s(S_EV0), s(S_EV0), s(S_T0)))
    a("v_mov_b32 %s, %d" % (v(V_PADDR), WS_FA))
    a("v_mov_b32 v47, %d" % WS_FA)
    a("v_mov_b32 %s, 0" % v(V_TAG))


def w_voffset_full(a, pitch, out):
    T = V_T
    a("v_lshrrev_b32 %s, 3, v0" % v(T))
    a("s_lshl_b32 %s, %s, 3" % (s(S_T0), s(S_J)))
    a("v_add_u32 %s, %s, %s" % (v(T), s(S_T0), v(T)))
    a("v_mul_u32_u24 %s, %d, %s" % (v(T), pitch, v(T)))
    a("v_bfe_u32 %s, v0, 4, 1" % v(T + 1))
    a("s_and_b32 %s, %s, 1" % (s(S_T0), s(S_J)))
    a("s_lshl_b32 %s, %s, 1" % (s(S_T0), s(S_T0)))
    a("v_or_b32 %s, %s, %s" % (v(T + 1), s(S_T0), v(T + 1)))
    a("v_bfe_u32 %s, v0, 1, 2" % v(T + 2))
    a("v_xor_b32 %s, %s, %s" % (v(T + 1), v(T + 1), v(T + 2)))
    a("v_lshl_add_u32 %s, %s, 5, %s" % (v(T), v(T + 1), v(T)))
    a("v_and_b32 %s, 1, v0" % v(T + 2))
    a("v_lshl_add_u32 %s, %s, 4, %s" % (v(out), v(T + 2), v(T)))


def w_voffset_g4(a, out):
    T = V_T
    a("v_lshrrev_b32 %s, 2, v0" % v(T))
    a("s_and_b32 %s, %s, 1" % (s(S_T0), s(S_J)))
    a("s_lshl_b32 %s, %s, 4" % (s(S_T0), s(S_T0)))
    a("v_add_u32 %s, %s, %s" % (v(T), s(S_T0), v(T)))
    a("v_mul_u32_u24 %s, 3584, %s" % (v(T), v(T)))
    a("v_lshrrev_b32 %s, 5, v0" % v(T + 1))
    a("s_and_b32 %s, %s, 2" % (s(S_T0), s(S_J)))
    a("v_or_b32 %s, %s, %s" % (v(T + 1), s(S_T0), v(T + 1)))
    a("v_and_b32 %s, 3, v0" % v(T + 2))
    a("v_xor_b32 %s, %s, %s" % (v(T + 1), v(T + 1), v(T + 2)))
    a("v_lshl_add_u32 %s, %s, 4, %s" % (v(out), v(T + 1), v(T)))


def y_cols(a):
    a("s_mul_i32 %s, %s, 320" % (s(S_T0), s(S_UU)))
    a("s_add_u32 %s, %s, 1024" % (s(S_T0), s(S_T0)))
    a("s_and_b32 %s, %s, 1" % (s(S_T1), s(S_UU)))
    a("s_lshl_b32 %s, %s, 6" % (s(S_T1), s(S_T1)))
    a("s_add_u32 %s, %s, %s" % (s(S_COL0), s(S_T0), s(S_T1)))
    a("s_add_u32 %s, %s, 128" % (s(S_COL1), s(S_COL0)))
    a("s_cmp_eq_u32 %s, 0" % s(S_T1))
    a("s_cselect_b32 %s, 256, 0" % s(S_T1))
    a("s_add_u32 %s, %s, %s" % (s(S_COL2), s(S_T0), s(S_T1)))


def variant_addresses(a, var):
    T = V_T
    if var.typ == 'X':
        w_voffset_full(a, var.pitch, V_WVO)
        a("s_lshl_b32 %s, %s, 7" % (s(S_COL0), s(S_UU)))
        a("v_add_u32 %s, %s, %s" % (v(V_WVO), s(S_COL0), v(V_WVO)))
        if var.m == 0:
            a("v_add_u32 %s, 1024, %s" % (v(V_WVO + 1), v(V_WVO)))
            a("v_add_u32 %s, 2048, %s" % (v(V_WVO + 2), v(V_WVO)))
    else:
        y_cols(a)
        w_voffset_full(a, var.pitch, V_WVO)
        a("v_add_u32 %s, %s, %s" % (v(V_WVO + 1), s(S_COL1), v(V_WVO)))
        a("v_add_u32 %s, %s, %s" % (v(V_WVO), s(S_COL0), v(V_WVO)))
        if var.m == 1:
            w_voffset_g4(a, V_WVO + 2)
            a("v_add_u32 %s, %s, %s" % (v(V_WVO + 2), s(S_COL2), v(V_WVO + 2)))
    a("s_mul_i32 %s, %s, %d" % (s(S_KOFF), s(S_KOFF), 32 * var.pitch))


def halo_addresses(a):
    T = V_T
    if True:
        for hh in range(2):
            a("v_lshrrev_b32 %s, 3, v0" % v(T))
            if hh:
                a("v_add_u32 %s, 8, %s" % (v(T), v(T)))
            a("v_lshrrev_b32 %s, 1, %s" % (v(T + 1), v(T)))
            a("v_and_b32 %s, 7, v0" % v(T + 2))
            a("v_xor_b32 %s, %s, %s" % (v(T + 1), v(T + 1), v(T + 2)))
            a("s_lshl_b32 %s, %s, 7" % (s(S_T0), s(S_RB)))
            a("s_sub_u32 %s, %s, 16" % (s(S_T0), s(S_T0)))
            a("v_add_u32 %s, %s, %s" % (v(T), s(S_T0), v(T)))
            a("v_max_i32 %s, 0, %s" % (v(T), v(T)))
            a("v_lshlrev_b32 %s, 10, %s" % (v(T), v(T)))
            a("v_lshl_add_u32 %s, %s, 4, %s" % (v(T + 13 + hh), v(T + 1), v(T)))


def halo_issue(a):
    T = V_T
    a("s_lshr_b32 %s, %s, 11" % (s(S_T0), s(S_HK)))
    a("s_add_u32 %s, %s, %s" % (s(S_T0), s(S_T0), s(S_W)))
    a("s_and_b32 %s, %s, 7" % (s(S_T0), s(S_T0)))
    for hh in range(2):
        a("s_lshl_b32 %s, %s, 11" % (s(S_T1), s(S_T0)))
        a("s_add_u32 m0, %s, %d" % (s(S_T1), HALO + hh * 1024))
        a("s_lshl_b32 %s, %s, 7" % (s(S_T1), s(S_T0)))
        a("buffer_load_dwordx4 %s, %s, %s offen lds" % (v(T + 13 + hh), s(SRD_X, 4), s(S_T1)))


def frag_lane_addresses(a, var):
    T = V_T
    a("v_lshrrev_b32 %s, 3, v0" % v(T))
    a("v_lshrrev_b32 %s, 4, v0" % v(T + 1))
    a("v_and_b32 %s, 15, v0" % v(T + 5))
    a("v_lshrrev_b32 %s, 1, %s" % (v(T + 6), v(T + 5)))
    a("v_xor_b32 %s, %s, %s" % (v(T + 6), v(T + 6), v(T + 1)))
    a("v_lshlrev_b32 %s, 4, %s" % (v(T + 6), v(T + 6)))
    a("v_lshl_add_u32 %s, %s, 7, %s" % (v(T + 6), v(T + 5), v(T + 6)))
    if var.typ == 'X':
        a("v_add_u32 %s, %d, %s" % (v(V_HL), HALO, v(T + 6)))
        a("v_xor_b32 %s, 64, %s" % (v(V_HL + 1), v(V_HL)))
    a("v_add_u32 %s, %d, %s" % (v(V_XL), XRING + var.m * 8192, v(T + 6)))
    a("v_xor_b32 %s, 64, %s" % (v(V_XL + 1), v(V_XL)))
    a("v_bfe_u32 %s, v0, 2, 2" % v(T + 7))
    a("v_lshl_add_u32 %s, %s, 3, %s" % (v(T + 7), v(T + 1), v(T + 7)))
    a("v_and_b32 %s, 3, %s" % (v(T + 8), v(T)))
    a("v_xor_b32 %s, %s, %s" % (v(T + 8), s(S_J), v(T + 8)))
    a("v_lshlrev_b32 %s, 5, %s" % (v(T + 8), v(T + 8)))
    a("v_lshl_add_u32 %s, %s, 7, %s" % (v(T + 8), v(T + 7), v(T + 8)))
    a("v_and_b32 %s, 3, v0" % v(T + 9))
    a("v_lshl_add_u32 %s, %s, 3, %s" % (v(V_WL), v(T + 9), v(T + 8)))
    a("v_add_u32 %s, %d, %s" % (v(V_WL3), 3 * WSLOT, v(V_WL)))
    if var.typ == 'Y':
        a("v_and_b32 %s, 1, %s" % (v(T + 10), v(T + 1)))
        a("v_and_b32 %s, 2, %s" % (v(T + 11), v(T + 9)))
        a("v_or_b32 %s, %s, %s" % (v(T + 10), v(T + 10), v(T + 11)))
        a("v_xor_b32 %s, %s, %s" % (v(T + 10), s(S_J), v(T + 10)))
        a("v_lshlrev_b32 %s, 4, %s" % (v(T + 10), v(T + 10)))
        a("v_lshl_add_u32 %s, %s, 6, %s" % (v(T + 10), v(T + 7), v(T + 10)))
        a("v_lshl_add_u32 %s, %s, 10, %s" % (v(T + 10), v(T + 11), v(T + 10)))
        a("v_and_b32 %s, 1, %s" % (v(T + 11), v(T + 9)))
        a("v_lshl_add_u32 %s, %s, 3, %s" % (v(T + 10), v(T + 11), v(T + 10)))
        a("v_add_u32 %s, 16384, %s" % (v(V_WM), v(T + 10)))
        a("v_add_u32 %s, %d, %s" % (v(V_WM3), 3 * WSLOT, v(V_WM)))
    for i in range(4):
        a("v_mov_b32 %s, 0x3f803f80" % v(V_ONES + i))
    if var.m == 0:
        a("s_mul_i32 %s, %s, 20480" % (s(S_T0), s(S_CGI)))
        a("s_mul_i32 %s, %s, 1280" % (s(S_T1), s(S_RB)))
        a("s_add_u32 %s, %s, %s" % (s(S_T0), s(S_T0), s(S_T1)))
        a("s_lshl_b32 %s, %s, 6" % (s(S_T1), s(S_J)))
        a("s_add_u32 %s, %s, %s" % (s(S_T0), s(S_T0), s(S_T1)))
        a("s_add_u32 %s, %s, %d" % (s(S_T0), s(S_T0), WS_CSP))
        a("v_lshlrev_b32 %s, 4, %s" % (v(V_CSST), v(T + 1)))
        a("v_add_u32 %s, %s, %s" % (v(V_CSST), s(S_T0), v(V_CSST)))
        a("v_cmp_eq_u32 vcc, 0, %s" % v(T + 5))
        a("v_mov_b32 %s, 0x%x" % (v(T + 11), OOB))
        a("s_nop 0")
        a("v_cndmask_b32 %s, %s, %s, vcc" % (v(V_CSST), v(T + 11), v(V_CSST)))


def stats_compute(a):
    T = V_T
    A = T
    for i in range(4):
        a("v_lshlrev_b32 %s, 16, %s" % (v(A + 2 * i), v(V_CSP + i)))
        a("v_and_b32 %s, 0xffff0000, %s" % (v(A + 2 * i + 1), v(V_CSP + i)))
    R = T + 8
    a("v_add_f32 %s, %s, %s" % (v(R), v(A), v(A + 1)))
    a("v_add_f32 %s, %s, %s" % (v(R + 1), v(A + 2), v(A + 3)))
    a("v_add_f32 %s, %s, %s" % (v(R + 2), v(A + 4), v(A + 5)))
    a("v_add_f32 %s, %s, %s" % (v(R + 3), v(A + 6), v(A + 7)))
    a("v_add_f32 %s, %s, %s" % (v(R), v(R), v(R + 1)))
    a("v_add_f32 %s, %s, %s" % (v(R + 2), v(R + 2), v(R + 3)))
    a("v_add_f32 %s, %s, %s" % (v(R), v(R), v(R + 2)))
    a("s_nop 1")
    allreduce16(a, [R])
    allreduce_rows(a, R, R + 1)
    a("v_mul_f32 %s, %s, %s" % (v(R), hexf(1.0 / 512), v(R)))
    for i in range(8):
        a("v_sub_f32 %s, %s, %s" % (v(A + i), v(A + i), v(R)))
    a("v_mul_f32 %s, %s, %s" % (v(R + 1), v(A), v(A)))
    a("v_mul_f32 %s, %s, %s" % (v(R + 2), v(A + 1), v(A + 1)))
    for i in range(2, 8, 2):
        a("v_fmac_f32 %s, %s, %s" % (v(R + 1), v(A + i), v(A + i)))
        a("v_fmac_f32 %s, %s, %s" % (v(R + 2), v(A + i + 1), v(A + i + 1)))
    a("v_add_f32 %s, %s, %s" % (v(R + 1), v(R + 1), v(R + 2)))
    a("s_nop 1")
    allreduce16(a, [R + 1])
    allreduce_rows(a, R + 1, R + 2)
    a("v_mov_b32 %s, %s" % (v(R + 2), hexf(1e-5)))
    a("v_fmac_f32 %s, %s, %s" % (v(R + 2), hexf(1.0 / 512), v(R + 1)))
    a("v_rsq_f32 %s, %s" % (v(R + 1), v(R + 2)))
    a("s_lshl_b32 %s, %s, 3" % (s(S_T0), s(S_CGI)))
    a("s_add_u32 %s, %s, %s" % (s(S_T0), s(S_T0), s(S_W)))
    a("s_lshl_b32 %s, %s, 7" % (s(S_T1), s(S_RB)))
    a("s_add_u32 %s, %s, %s" % (s(S_T0), s(S_T0), s(S_T1)))
    a("s_lshl_b32 %s, %s, 3" % (s(S_T0), s(S_T0)))
    a("s_add_u32 %s, %s, %d" % (s(S_T0), s(S_T0), WS_STATS))
    a("v_mov_b32 %s, 0x%x" % (v(R + 2), OOB))
    a("v_writelane_b32 %s, %s, 0" % (v(R + 2), s(S_T0)))
    a("s_nop 1")
    a("buffer_store_dwordx2 %s, %s, %s, 0 offen sc1" % (v(R, 2), v(R + 2), s(SRD_WS, 4)))


def tail_loads():
    T = V_T
    g = []
    g.append("s_mul_i32 %s, %s, 20480" % (s(S_T0), s(S_CGI)))
    g.append("s_lshl_b32 %s, %s, 6" % (s(S_T1), s(S_W)))
    g.append("s_add_u32 %s, %s, %s" % (s(S_T0), s(S_T0), s(S_T1)))
    g.append("s_add_u32 %s, %s, %d" % (s(S_T0), s(S_T0), WS_CSP))
    g.append("v_and_b32 %s, 15, v0" % v(T))
    g.append("v_mul_u32_u24 %s, 1280, %s" % (v(T), v(T)))
    g.append("v_lshrrev_b32 %s, 4, v0" % v(T + 1))
    g.append("v_lshl_add_u32 %s, %s, 4, %s" % (v(T), v(T + 1), v(T)))
    g.append("v_add_u32 %s, %s, %s" % (v(T), s(S_T0), v(T)))
    g.append("buffer_load_dwordx4 %s, %s, %s, 0 offen sc1" % (v(V_CSP, 4), v(T), s(SRD_WS, 4)))
    g.append("buffer_load_dwordx4 %s, %s, %s, 0 offen offset:512 sc1" % (v(V_CSP + 4, 4), v(T), s(SRD_WS, 4)))
    g.append("buffer_load_dwordx4 %s, %s, %s, 0 offen offset:1024 sc1" % (v(V_CSP + 8, 4), v(T), s(SRD_WS, 4)))
    g.append("s_lshl_b32 %s, %s, 6" % (s(S_T0), s(S_W)))
    g.append("s_lshl_b32 %s, %s, 7" % (s(S_T1), s(S_RB)))
    g.append("s_add_u32 %s, %s, %s" % (s(S_T0), s(S_T0), s(S_T1)))
    g.append("s_sub_u32 %s, %s, 16" % (s(S_T0), s(S_T0)))
    g.append("v_add_u32 %s, %s, v0" % (v(T + 2), s(S_T0)))
    g.append("v_max_i32 %s, 0, %s" % (v(T + 2), v(T + 2)))
    g.append("v_min_i32 %s, 2047, %s" % (v(T + 2), v(T + 2)))
    g.append("v_lshlrev_b32 %s, 3, %s" % (v(T + 2), v(T + 2)))
    g.append("v_add_u32 %s, %d, %s" % (v(T + 2), WS_STATS, v(T + 2)))
    g.append("buffer_load_dwordx2 %s, %s, %s, 0 offen sc1" % (v(V_STAT, 2), v(T + 2), s(SRD_WS, 4)))
    return g


def k2_setup_fillers():
    T = V_T + 4
    g = []
    g.append("s_mov_b32 %s, %s" % (s(R_W), s(S_WD)))
    g.append("s_and_b32 %s, %s, 0xffff" % (s(R_W + 1), s(S_WD + 1)))
    g.append("s_mov_b32 %s, 0x%x" % (s(R_W + 2), 1792 * 1024))
    g.append("s_mov_b32 %s, 0x20000" % s(R_W + 3))
    g.append("s_mul_i32 %s, %s, %d" % (s(S2_WROW), s(S_M), 640 * 1024))
    g.append("s_add_u32 %s, %s, %d" % (s(S2_WROW), s(S2_WROW), 512 * 1024))
    g.append("s_lshl_b32 %s, %s, 12" % (s(S2_M0B), s(S_M)))
    g.append("s_lshl_b32 %s, %s, 10" % (s(S_T0), s(S_J)))
    g.append("s_add_u32 %s, %s, %s" % (s(S2_M0B), s(S2_M0B), s(S_T0)))
    g.append("v_lshrrev_b32 %s, 3, v0" % v(T))
    g.append("s_lshl_b32 %s, %s, 3" % (s(S_T0), s(S_J)))
    g.append("v_add_u32 %s, %s, %s" % (v(T), s(S_T0), v(T)))
    g.append("v_lshlrev_b32 %s, 10, %s" % (v(T), v(T)))
    g.append("v_bfe_u32 %s, v0, 4, 1" % v(T + 1))
    g.append("s_and_b32 %s, %s, 1" % (s(S_T0), s(S_J)))
    g.append("s_lshl_b32 %s, %s, 1" % (s(S_T0), s(S_T0)))
    g.append("v_or_b32 %s, %s, %s" % (v(T + 1), s(S_T0), v(T + 1)))
    g.append("v_bfe_u32 %s, v0, 1, 2" % v(T + 2))
    g.append("v_xor_b32 %s, %s, %s" % (v(T + 1), v(T + 1), v(T + 2)))
    g.append("v_lshl_add_u32 %s, %s, 5, %s" % (v(T), v(T + 1), v(T)))
    g.append("v_and_b32 %s, 1, v0" % v(T + 2))
    g.append("v_lshl_add_u32 %s, %s, 4, %s" % (v(T), v(T + 2), v(T)))
    g.append("s_lshl_b32 %s, %s, 7" % (s(S_T0), s(S2_CG2)))
    g.append("v_add_u32 %s, %s, %s" % (v(V_W2VO), s(S_T0), v(T)))
    return g


def touch_fillers():
    T = V_T + 8
    g = []
    g.append("s_and_b32 %s, %s, 3" % (s(S_T0), s(S2_TG)))
    g.append("s_lshl_b32 %s, %s, 2" % (s(S_T0), s(S_T0)))
    g.append("s_add_u32 %s, %s, %s" % (s(S_T0), s(S_T0), s(S_J)))
    g.append("s_mul_i32 %s, %s, 44" % (s(S_T0), s(S_T0)))
    g.append("s_mul_i32 %s, %s, 1088" % (s(S_T1), s(S_M)))
    g.append("s_add_u32 %s, %s, %s" % (s(S_T0), s(S_T0), s(S_T1)))
    g.append("v_min_u32 %s, 43, v0" % v(T))
    g.append("v_add_u32 %s, %s, %s" % (v(T), s(S_T0), v(T)))
    g.append("v_lshlrev_b32 %s, 10, %s" % (v(T), v(T)))
    g.append("s_lshl_b32 %s, %s, 7" % (s(S_T0), s(S2_CG2)))
    g.append("v_add_u32 %s, %s, %s" % (v(T), s(S_T0), v(T)))
    g.append("s_mov_b32 %s, %s" % (s(SRD_U), s(S_WD)))
    g.append("s_and_b32 %s, %s, 0xffff" % (s(SRD_U + 1), s(S_WD + 1)))
    g.append("s_mov_b32 %s, 0x%x" % (s(SRD_U + 2), 1792 * 1024))
    g.append("s_mov_b32 %s, 0x20000" % s(SRD_U + 3))
    g.append("buffer_load_dword %s, %s, %s, 0 offen" % (v(V_DUMMY), v(T), s(SRD_U, 4)))
    return g


def bias_fillers(var):
    T = V_T + 12
    g = []
    g.append("v_and_b32 %s, 15, v0" % v(T))
    g.append("v_lshrrev_b32 %s, 4, v0" % v(T + 1))
    g.append("v_lshlrev_b32 %s, 2, %s" % (v(T + 1), v(T + 1)))
    g.append("v_sub_u32 %s, %s, %s" % (v(T + 2), v(T), v(T + 1)))
    g.append("v_mov_b32 %s, %s" % (v(T + 3), hexf(-1e30)))
    for r in range(4):
        g.append("v_subrev_u32 %s, %d, %s" % (v(T + 4), r, v(T + 2)))
        g.append("v_and_b32 %s, 0x80000001, %s" % (v(T + 5), v(T + 4)))
        g.append("v_sub_u32 %s, -2, %s" % (v(T + 4), v(T + 4)))
        g.append("v_cmp_eq_u32 vcc, 0, %s" % v(T + 5))
        g.append("v_and_b32 %s, 0x80000001, %s" % (v(T + 4), v(T + 4)))
        g.append("s_nop 0")
        g.append("v_cndmask_b32_e64 %s, %s, 0, vcc" % (v(BC + r), v(T + 3)))
        g.append("v_cmp_eq_u32 vcc, 0, %s" % v(T + 4))
        g.append("s_nop 1")
        g.append("v_cndmask_b32_e64 %s, %s, 0, vcc" % (v(BP + r), v(T + 3)))
    if var.m == 0:
        g.append("s_cmp_eq_u32 %s, 0" % s(S_RB))
        g.append("s_cselect_b64 vcc, -1, 0")
        g.append("s_nop 0")
        for r in range(4):
            g.append("v_cndmask_b32 %s, %s, %s, vcc" % (v(BP0 + r), v(BP + r), v(T + 3)))
    else:
        for r in range(4):
            g.append("v_mov_b32 %s, %s" % (v(BP0 + r), v(BP + r)))
    return g


def tail_reduce():
    g = []
    regs = [V_CSP + i for i in range(12)]
    for ror in (8, 4, 2, 1):
        for r in regs:
            g.append("v_add_f32_dpp %s, %s, %s row_ror:%d row_mask:0xf bank_mask:0xf" % (v(r), v(r), v(r), ror))
    return g


V_CSW, V_CSW3, V_STW = 32, 33, 34


def publish_addr():
    T = V_T + 4
    g = []
    g.append("v_lshlrev_b32 %s, 4, v0" % v(T))
    g.append("v_add_u32 %s, %d, %s" % (v(T), LB + O_XBUF, v(T)))
    g.append("v_and_b32 %s, 48, v0" % v(T + 1))
    g.append("s_lshl_b32 %s, %s, 6" % (s(S_T0), s(S_W)))
    g.append("s_add_u32 %s, %s, %d" % (s(S_T0), s(S_T0), LB + O_CS))
    g.append("v_add_u32 %s, %s, %s" % (v(T + 1), s(S_T0), v(T + 1)))
    g.append("v_and_b32 %s, 15, v0" % v(T + 2))
    g.append("v_cmp_eq_u32 vcc, 0, %s" % v(T + 2))
    g.append("s_lshl_b32 %s, %s, 6" % (s(S_T1), s(S_W)))
    g.append("v_add_u32 %s, %s, v0" % (v(T + 3), s(S_T1)))
    g.append("v_cndmask_b32 %s, %s, %s, vcc" % (v(V_CSW), v(T), v(T + 1)))
    g.append("s_cmp_lt_u32 %s, 4\ns_cselect_b64 %s, vcc, 0" % (s(S_W), s(S_EX, 2)))
    g.append("v_add_u32 %s, 1024, %s" % (v(T + 1), v(T + 1)))
    g.append("v_cndmask_b32 %s, %s, %s, %s" % (v(V_CSW3), v(T), v(T + 1), s(S_EX, 2)))
    g.append("v_cmp_gt_u32 vcc, 144, %s" % v(T + 3))
    g.append("v_lshlrev_b32 %s, 2, %s" % (v(T + 3), v(T + 3)))
    g.append("v_add_u32 %s, %d, %s" % (v(T + 3), LB, v(T + 3)))
    g.append("s_nop 0")
    g.append("v_cndmask_b32 %s, %s, %s, vcc" % (v(V_STW), v(T), v(T + 3)))
    return g


def publish_writes():
    return ["ds_write_b128 %s, %s" % (v(V_CSW), v(V_CSP, 4)),
            "ds_write_b128 %s, %s offset:512" % (v(V_CSW), v(V_CSP + 4, 4)),
            "ds_write_b128 %s, %s" % (v(V_CSW3), v(V_CSP + 8, 4)),
            "ds_write_b32 %s, %s offset:%d" % (v(V_STW), v(V_STAT), O_MEAN),
            "ds_write_b32 %s, %s offset:%d" % (v(V_STW), v(V_STAT + 1), O_RSTD)]


class BG:
    def __init__(self, a, groups):
        self.a = a
        self.groups = list(groups)
        self.burst = False

    def tick(self, n=1):
        if self.burst:
            return
        for _ in range(n):
            if self.groups:
                for t in self.groups.pop(0):
                    self.a(t)

    def start(self):
        if self.burst:
            self.flush()

    def flush(self):
        while self.groups:
            for t in self.groups.pop(0):
                self.a(t)


def w2_load_group(tile):
    adv = ["s_add_u32 %s, %s, 32768" % (s(S2_WROW), s(S2_WROW))]
    pre = "s_add_u32 m0, %s, %d" % (s(S2_M0B), (tile % NTILE2) * TILE2)
    ld = "buffer_load_dwordx4 %s, %s, %s offen lds" % (v(V_W2VO), s(R_W, 4), s(S2_WROW))
    if tile == 19:
        adv = "\n".join([
            "s_mov_b32 %s, 0" % s(S2_WROW),
            "s_mov_b32 %s, 0x%x" % (s(S_T0), 512 * 1024),
            "s_mov_b32 %s, 0x%x" % (s(S_T1), 1792 * 1024),
            "s_cmp_eq_u32 %s, 0" % s(S_M),
            "s_cselect_b32 %s, %s, %s" % (s(R_W), s(S_WO), s(S_WD)),
            "s_cselect_b32 %s, %s, %s" % (s(R_W + 1), s(S_WO + 1), s(S_WD + 1)),
            "s_cselect_b32 %s, %s, %s" % (s(R_W + 2), s(S_T0), s(S_T1)),
            "s_and_b32 %s, %s, 0xffff" % (s(R_W + 1), s(R_W + 1)),
            "s_mov_b32 %s, 0x20000" % s(R_W + 3)])
        return [pre, "s_nop 0", ld, adv]
    return [pre, "s_nop 0", ld, adv[0]]


S_C0 = 64


def gelu_tile(a, G, U, mt, rt, csg, csu, tmp, out, vc1):
    H = (0, 2)
    for h in H:
        a(pk("fma", G + h, [('b', mt), ('p', csg + h), ('p', G + h)], neg=[1, 0, 0]))
    for h in H:
        a(pk("fma", U + h, [('b', mt), ('p', csu + h), ('p', U + h)], neg=[1, 0, 0]))
    for h in H:
        a(pk("mul", G + h, [('b', rt), ('p', G + h)]))
    for h in H:
        a(pk("mul", U + h, [('b', rt), ('p', U + h)]))
    for h in H:
        a(pk("mul", tmp + h, [('p', G + h), ('p', G + h)]))
    for h in H:
        a(pk("fma", tmp + h, [('p', tmp + h), ('b', vc1), ('s', S_C0)]))
    for h in H:
        a(pk("mul", tmp + h, [('p', tmp + h), ('p', G + h)]))
    for r in range(4):
        a("v_exp_f32 %s, %s" % (v(tmp + r), v(tmp + r)))
    for h in H:
        a(pk("mul", U + h, [('p', G + h), ('p', U + h)]))
    for h in H:
        a(pk("add", tmp + h, [('p', tmp + h), ('c', "1.0")]))
    for r in range(4):
        a("v_rcp_f32 %s, %s" % (v(tmp + r), v(tmp + r)))
    a("s_nop 0")
    for h in H:
        a(pk("mul", U + h, [('p', tmp + h), ('p', U + h)]))
    a("v_cvt_pk_bf16_f32 %s, %s, %s" % (v(out), v(U), v(U + 1)))
    a("v_cvt_pk_bf16_f32 %s, %s, %s" % (v(out + 1), v(U + 2), v(U + 3)))


def gelu_tiles2(a, tiles, tmp, vc1):
    H = (0, 2)
    T = [tmp, tmp + 4]
    for (G, U, mt, rt, csg, csu, out) in tiles:
        for h in H:
            a(pk("fma", G + h, [('b', mt), ('p', csg + h), ('p', G + h)], neg=[1, 0, 0]))
    for (G, U, mt, rt, csg, csu, out) in tiles:
        for h in H:
            a(pk("mul", G + h, [('b', rt), ('p', G + h)]))
    for i, (G, U, mt, rt, csg, csu, out) in enumerate(tiles):
        for h in H:
            a(pk("mul", T[i] + h, [('p', G + h), ('p', G + h)]))
    for (G, U, mt, rt, csg, csu, out) in tiles:
        for h in H:
            a(pk("fma", U + h, [('b', mt), ('p', csu + h), ('p', U + h)], neg=[1, 0, 0]))
    for i, (G, U, mt, rt, csg, csu, out) in enumerate(tiles):
        for h in H:
            a(pk("fma", T[i] + h, [('p', T[i] + h), ('b', vc1), ('s', S_C0)]))
    for (G, U, mt, rt, csg, csu, out) in tiles:
        for h in H:
            a(pk("mul", U + h, [('b', rt), ('p', U + h)]))
    for i, (G, U, mt, rt, csg, csu, out) in enumerate(tiles):
        for h in H:
            a(pk("mul", T[i] + h, [('p', T[i] + h), ('p', G + h)]))
    for i in range(len(tiles)):
        for r in range(4):
            a("v_exp_f32 %s, %s" % (v(T[i] + r), v(T[i] + r)))
    for (G, U, mt, rt, csg, csu, out) in tiles:
        for h in H:
            a(pk("mul", U + h, [('p', G + h), ('p', U + h)]))
    for i in range(len(tiles)):
        for h in H:
            a(pk("add", T[i] + h, [('p', T[i] + h), ('c', "1.0")]))
    for i in range(len(tiles)):
        for r in range(4):
            a("v_rcp_f32 %s, %s" % (v(T[i] + r), v(T[i] + r)))
    a("s_nop 0")
    for i, (G, U, mt, rt, csg, csu, out) in enumerate(tiles):
        for h in H:
            a(pk("mul", U + h, [('p', T[i] + h), ('p', U + h)]))
    for (G, U, mt, rt, csg, csu, out) in tiles:
        a("v_cvt_pk_bf16_f32 %s, %s, %s" % (v(out), v(U), v(U + 1)))
        a("v_cvt_pk_bf16_f32 %s, %s, %s" % (v(out + 1), v(U + 2), v(U + 3)))


def norm_ct(a, A, mt, rt, cs, out):
    for h in (0, 2):
        a(pk("fma", A + h, [('b', mt), ('p', cs + h), ('p', A + h)], neg=[1, 0, 0]))
    for h in (0, 2):
        a(pk("mul", A + h, [('b', rt), ('p', A + h)]))
    a("v_cvt_pk_bf16_f32 %s, %s, %s" % (v(out), v(A), v(A + 1)))
    a("v_cvt_pk_bf16_f32 %s, %s, %s" % (v(out + 1), v(A + 2), v(A + 3)))


def norm_ct4(a, As, mts, rts, cs, outs):
    for A, mt in zip(As, mts):
        for h in (0, 2):
            a(pk("fma", A + h, [('b', mt), ('p', cs + h), ('p', A + h)], neg=[1, 0, 0]))
    for A, rt in zip(As, rts):
        for h in (0, 2):
            a(pk("mul", A + h, [('b', rt), ('p', A + h)]))
    for A, out in zip(As, outs):
        a("v_cvt_pk_bf16_f32 %s, %s, %s" % (v(out), v(A), v(A + 1)))
        a("v_cvt_pk_bf16_f32 %s, %s, %s" % (v(out + 1), v(A + 2), v(A + 3)))


def norm_v(a, A, mv, rv, csv, out):
    for h in (0, 2):
        a(pk("fma", A + h, [('p', mv + h), ('b', csv), ('p', A + h)], neg=[1, 0, 0]))
    for h in (0, 2):
        a(pk("mul", A + h, [('p', rv + h), ('p', A + h)]))
    a("v_cvt_pk_bf16_f32 %s, %s, %s" % (v(out), v(A), v(A + 1)))
    a("v_cvt_pk_bf16_f32 %s, %s, %s" % (v(out + 1), v(A + 2), v(A + 3)))


def act_store_pairs(a, P, vaddr):
    a("s_nop 1")
    a("v_permlane16_swap_b32 %s, %s" % (v(P), v(P + 2)))
    a("v_permlane16_swap_b32 %s, %s" % (v(P + 1), v(P + 3)))
    a("v_permlane16_swap_b32 %s, %s" % (v(P + 4), v(P + 6)))
    a("v_permlane16_swap_b32 %s, %s" % (v(P + 5), v(P + 7)))
    a("s_mov_b32 %s, %d" % (s(S_T3), 2 * ACT_T))
    a("buffer_store_dwordx4 %s, %s, %s, 0 offen %s" % (v(P, 4), v(vaddr), s(SRD_WS, 4), Cfg.sc))
    a("buffer_store_dwordx4 %s, %s, %s, %s offen %s" % (v(P + 4, 4), v(vaddr), s(SRD_WS, 4), s(S_T3), Cfg.sc))


def act_addr_base(a, vout, T, m):
    a("v_bfe_u32 %s, v0, 4, 1" % v(T + 1))
    a("s_lshl_b32 %s, %s, 3" % (s(S_T0), s(S_RB)))
    a("s_add_u32 %s, %s, %d" % (s(S_T0), s(S_T0), 4 * m))
    a("v_add_u32 %s, %s, %s" % (v(T + 1), s(S_T0), v(T + 1)))
    a("v_mul_u32_u24 %s, %d, %s" % (v(T + 1), ACT_T, v(T + 1)))
    a("v_lshrrev_b32 %s, 5, v0" % v(T))
    a("v_lshl_add_u32 %s, %s, 8, %s" % (v(T + 1), v(T), v(T + 1)))
    a("v_and_b32 %s, 15, v0" % v(T))
    a("v_lshl_add_u32 %s, %s, 4, %s" % (v(vout), v(T), v(T + 1)))


def lane_mask(fn):
    m = 0
    for l in range(64):
        if fn(l & 15, l >> 4):
            m |= 1 << l
    return m


def smov64(a, reg, val):
    a("s_mov_b32 %s, 0x%x" % (s(reg), val & 0xffffffff))
    a("s_mov_b32 %s, 0x%x" % (s(reg + 1), val >> 32))


M_PAR, M_CA, M_CB, M_FA, M_FB = 28, 30, 36, 38, 52


def epilogue_x(a, var, bg):
    m = var.m
    MT, RT = 48, 52
    MH, RH = 56, 57
    CSQ, CSK, CSG, CSU = 60, 64, 68, 72
    CSV = 58
    MV, RV = 76, 92
    MVH, RVH = 108, 112
    KP = 116
    VP = 212
    QP = 222
    MK = 232
    HP = 244
    RQ = 252
    TMP = 20
    A_I16, A_G16 = 10, 11
    V_C1 = 12
    V_AO, V_AHH = 13, 14
    a.comment("---- X epilogue m=%d ----" % m)
    stamp(a, 3, "st_epi")
    a("v_and_b32 %s, 15, v0" % v(TMP))
    a("v_lshlrev_b32 %s, 2, %s" % (v(A_I16), v(TMP)))
    a("v_add_u32 %s, %d, %s" % (v(A_I16), LB, v(A_I16)))
    a("v_and_b32 %s, 48, v0" % v(A_G16))
    a("v_add_u32 %s, %d, %s" % (v(A_G16), LB, v(A_G16)))
    base = (16 + 64 * m) * 4
    a("s_lshl_b32 %s, %s, 6" % (s(S_T0), s(S_J)))
    a("v_add_u32 %s, %s, %s" % (v(TMP + 2), s(S_T0), v(A_G16)))
    a("v_add_u32 %s, %s, %s" % (v(TMP + 3), s(S_T0), v(A_I16)))
    a("ds_read_b128 %s, %s offset:%d" % (v(CSK, 4), v(TMP + 2), O_CS + 256))
    for t in range(4):
        a("ds_read_b32 %s, %s offset:%d" % (v(MT + t), v(A_I16), O_MEAN + base + t * 64))
        a("ds_read_b32 %s, %s offset:%d" % (v(RT + t), v(A_I16), O_RSTD + base + t * 64))
    a("ds_read_b32 %s, %s offset:%d" % (v(CSV), v(TMP + 3), O_CS + 512))
    a("ds_read_b128 %s, %s offset:%d" % (v(MV + 12, 4), v(A_G16), O_MEAN + base + 3 * 64))
    a("ds_read_b128 %s, %s offset:%d" % (v(RV + 12, 4), v(A_G16), O_RSTD + base + 3 * 64))
    if m == 0:
        a("ds_read_b32 %s, %s offset:%d" % (v(MH), v(A_I16), O_MEAN))
        a("ds_read_b32 %s, %s offset:%d" % (v(RH), v(A_I16), O_RSTD))
    else:
        a("ds_read_b128 %s, %s offset:%d" % (v(MVH, 4), v(A_G16), O_MEAN))
        a("ds_read_b128 %s, %s offset:%d" % (v(RVH, 4), v(A_G16), O_RSTD))
    a("v_mov_b32 %s, %s" % (v(V_C1), hexf(C1)))
    a("s_mov_b32 %s, %s" % (s(S_C0), hexf(C0)))
    par = lane_mask(lambda i, g: i & 1)
    ca = lane_mask(lambda i, g: 4 * g + (i & 1) <= i)
    cb = lane_mask(lambda i, g: 4 * g + (i & 1) + 2 <= i)
    smov64(a, M_PAR, par)
    smov64(a, M_CA, ca)
    smov64(a, M_CB, cb)
    if m == 0:
        a("s_cmp_eq_u32 %s, 0" % s(S_RB))
        a("s_cselect_b32 %s, -1, 0" % s(S_T0))
        a("s_andn2_b32 %s, %s, %s" % (s(M_FA), s(S_T0), s(M_CA)))
        a("s_andn2_b32 %s, %s, %s" % (s(M_FA + 1), s(S_T0), s(M_CA + 1)))
        a("s_andn2_b32 %s, %s, %s" % (s(M_FB), s(S_T0), s(M_CB)))
        a("s_andn2_b32 %s, %s, %s" % (s(M_FB + 1), s(S_T0), s(M_CB + 1)))
    a("v_mov_b32 %s, 0xffff" % v(TMP + 5))
    a("v_mov_b32 %s, 0xffff0000" % v(TMP + 6))
    a("v_cndmask_b32 %s, %s, %s, %s" % (v(TMP + 5), v(TMP + 5), v(TMP + 6), s(M_PAR, 2)))
    a("v_cndmask_b32 %s, %s, 0, %s" % (v(MK), v(TMP + 5), s(M_CA, 2)))
    a("v_cndmask_b32 %s, %s, 0, %s" % (v(MK + 1), v(TMP + 5), s(M_CB, 2)))
    a("v_cndmask_b32 %s, 0, %s, %s" % (v(MK + 2), v(TMP + 5), s(M_CA, 2)))
    a("v_cndmask_b32 %s, 0, %s, %s" % (v(MK + 3), v(TMP + 5), s(M_CB, 2)))
    a("s_mul_i32 %s, %s, 1536" % (s(S_T0), s(S_J)))
    a("s_add_u32 %s, %s, %d" % (s(S_T0), s(S_T0), LB))
    a("v_lshlrev_b32 %s, 3, v0" % v(TMP + 4))
    a("v_add_u32 %s, %s, %s" % (v(TMP + 4), s(S_T0), v(TMP + 4)))
    bg.tick()
    a("s_waitcnt lgkmcnt(0)")
    stamp(a, 4, "st_epi")
    for t in range(3):
        a("ds_read_b128 %s, %s offset:%d" % (v(MV + 4 * t, 4), v(A_G16), O_MEAN + base + t * 64))
        a("ds_read_b128 %s, %s offset:%d" % (v(RV + 4 * t, 4), v(A_G16), O_RSTD + base + t * 64))
    a("ds_read_b128 %s, %s offset:%d" % (v(CSG, 4), v(TMP + 2), O_CS + 768))
    a("ds_read_b128 %s, %s offset:%d" % (v(CSU, 4), v(TMP + 2), O_CS + 1024))
    a("ds_read_b128 %s, %s offset:%d" % (v(CSQ, 4), v(TMP + 2), O_CS))
    if m == 0:
        norm_ct(a, ACC(1, 3), MT + 3, RT + 3, CSK, KP + 8)
        norm_v(a, ACC(2, 3), MV + 12, RV + 12, CSV, VP + 8)
        a("ds_write_b64 %s, %s offset:%d" % (v(TMP + 4), v(KP + 8, 2), O_XBUF))
        a("ds_write_b64 %s, %s offset:%d" % (v(TMP + 4), v(VP + 8, 2), O_XBUF + 512))
    else:
        norm_v(a, V_AH, MVH, RVH, CSV, VP)
        a("ds_write_b64 %s, %s offset:%d" % (v(TMP + 4), v(VP, 2), O_XBUF + 1024))
    a("s_waitcnt lgkmcnt(0)")
    stamp(a, 5, "st_epi")
    a("s_barrier")
    stamp(a, 6, "st_epi")
    if m == 0:
        a("ds_read_b64 %s, %s offset:%d" % (v(VP, 2), v(TMP + 4), O_XBUF + 1024))
        norm_ct4(a, [ACC(1, t) for t in range(3)] + [V_AH], [MT + t for t in range(3)] + [MH],
                 [RT + t for t in range(3)] + [RH], CSK, [KP + 2 + 2 * t for t in range(3)] + [KP])
    else:
        a("ds_read_b64 %s, %s offset:%d" % (v(KP, 2), v(TMP + 4), O_XBUF))
        a("ds_read_b64 %s, %s offset:%d" % (v(VP, 2), v(TMP + 4), O_XBUF + 512))
        bg.start()
        norm_ct4(a, [ACC(1, t) for t in range(4)], [MT + t for t in range(4)], [RT + t for t in range(4)], CSK,
                 [KP + 2 + 2 * t for t in range(4)])
        norm_v(a, ACC(2, 3), MV + 12, RV + 12, CSV, VP + 8)
    bg.tick(2)
    for t in range(4):
        a("v_mul_f32 %s, %s, %s" % (v(RQ + t), hexf(0.25 * LOG2E), v(RT + t)))
    for t in range(3):
        norm_v(a, ACC(2, t), MV + 4 * t, RV + 4 * t, CSV, VP + 2 + 2 * t)
    norm_ct4(a, [ACC(0, t) for t in range(4)], [MT + t for t in range(4)], [RQ + t for t in range(4)], CSQ,
             [QP + 2 * t for t in range(4)])
    bg.tick(2)
    act_addr_base(a, V_AO, TMP + 6, m)
    a("s_lshl_b32 %s, %s, 11" % (s(S_T0), s(S_UU)))
    a("s_lshl_b32 %s, %s, 9" % (s(S_T1), s(S_J)))
    a("s_add_u32 %s, %s, %s" % (s(S_T0), s(S_T0), s(S_T1)))
    a("v_add_u32 %s, %s, %s" % (v(V_AO), s(S_T0), v(V_AO)))
    a("v_add_u32 %s, %d, %s" % (v(V_AHH), 16 * 1024, v(V_AO)))
    stamp(a, 7, "st_epi")
    S0 = lambda t: ACC(0, t)
    S1 = lambda t: ACC(1, t)
    PP = lambda t: ACC(2, t)
    a("s_waitcnt lgkmcnt(0)")
    for t in range(4):
        a("v_mfma_f32_16x16x16_bf16 %s, %s, %s, 0" % (v(S1(t), 4), v(KP + 2 + 2 * t, 2), v(QP + 2 * t, 2)))
        a("v_mfma_f32_16x16x16_bf16 %s, %s, %s, 0" % (v(S0(t), 4), v(KP + 2 * t, 2), v(QP + 2 * t, 2)))
    gelu_tiles2(a, [(ACC(3, t), ACC(4, t), MT + t, RT + t, CSG, CSU, HP + 2 * t) for t in (0, 1)], TMP + 8, V_C1)
    bg.tick(2)
    a("v_mov_b32 %s, %s" % (v(TMP + 8), hexf(-1e30)))
    stamp(a, 8, "st_epi")
    AB = lambda t: 76 + 4 * t
    for t in range(4):
        a("v_cndmask_b32 %s, %s, %s, %s" % (v(AB(t)), v(S1(t)), v(S1(t) + 1), s(M_PAR, 2)))
        a("v_cndmask_b32 %s, %s, %s, %s" % (v(AB(t) + 1), v(S1(t) + 2), v(S1(t) + 3), s(M_PAR, 2)))
    for t in range(4):
        a("v_cndmask_b32 %s, %s, %s, %s" % (v(AB(t) + 2), v(S0(t)), v(S0(t) + 1), s(M_PAR, 2)))
        a("v_cndmask_b32 %s, %s, %s, %s" % (v(AB(t) + 3), v(S0(t) + 2), v(S0(t) + 3), s(M_PAR, 2)))
    for t in range(4):
        a("v_cndmask_b32 %s, %s, %s, %s" % (v(AB(t)), v(AB(t) + 2), v(AB(t)), s(M_CA, 2)))
        a("v_cndmask_b32 %s, %s, %s, %s" % (v(AB(t) + 1), v(AB(t) + 3), v(AB(t) + 1), s(M_CB, 2)))
    if m == 0:
        a("v_cndmask_b32 %s, %s, %s, %s" % (v(AB(0)), v(AB(0)), v(TMP + 8), s(M_FA, 2)))
        a("v_cndmask_b32 %s, %s, %s, %s" % (v(AB(0) + 1), v(AB(0) + 1), v(TMP + 8), s(M_FB, 2)))
    MX = TMP
    TT = TMP + 4
    for t in range(4):
        a("v_max_f32 %s, %s, %s" % (v(MX + t), v(AB(t)), v(AB(t) + 1)))
    for swap in ("v_permlane16_swap_b32", "v_permlane32_swap_b32"):
        for t in range(4):
            a("v_mov_b32 %s, %s" % (v(TT + t), v(MX + t)))
        for t in range(4):
            a("%s %s, %s" % (swap, v(MX + t), v(TT + t)))
        for t in range(4):
            a("v_max_f32 %s, %s, %s" % (v(MX + t), v(MX + t), v(TT + t)))
    for t in range(4):
        a("v_sub_f32 %s, %s, %s" % (v(AB(t)), v(AB(t)), v(MX + t)))
        a("v_sub_f32 %s, %s, %s" % (v(AB(t) + 1), v(AB(t) + 1), v(MX + t)))
    for t in range(4):
        a("v_exp_f32 %s, %s" % (v(AB(t)), v(AB(t))))
        a("v_exp_f32 %s, %s" % (v(AB(t) + 1), v(AB(t) + 1)))
    bg.tick(2)
    for t in range(4):
        a("v_cvt_pk_bf16_f32 %s, %s, %s" % (v(AB(t) + 2), v(AB(t)), v(AB(t))))
        a("v_cvt_pk_bf16_f32 %s, %s, %s" % (v(AB(t) + 3), v(AB(t) + 1), v(AB(t) + 1)))
    for t in range(4):
        a("v_and_b32 %s, %s, %s" % (v(PP(t)), v(AB(t) + 2), v(MK)))
        a("v_and_b32 %s, %s, %s" % (v(PP(t) + 1), v(AB(t) + 3), v(MK + 1)))
        a("v_and_b32 %s, %s, %s" % (v(PP(t) + 2), v(AB(t) + 2), v(MK + 2)))
        a("v_and_b32 %s, %s, %s" % (v(PP(t) + 3), v(AB(t) + 3), v(MK + 3)))
    stamp(a, 9, "st_epi")
    a("s_nop 1")
    for t in range(4):
        a("v_mfma_f32_16x16x32_bf16 %s, %s, %s, 0" % (v(S1(t), 4), v(V_ONES, 4), v(PP(t), 4)))
    for t in range(4):
        a("v_mfma_f32_16x16x32_bf16 %s, %s, %s, 0" % (v(S0(t), 4), v(VP + 2 * t, 4), v(PP(t), 4)))
    gelu_tiles2(a, [(ACC(3, t), ACC(4, t), MT + t, RT + t, CSG, CSU, HP + 2 * t) for t in (2, 3)], TMP + 8, V_C1)
    act_store_pairs(a, HP, V_AHH)
    for t in range(4):
        a("v_rcp_f32 %s, %s" % (v(MX + t), v(S1(t))))
    a("s_nop 1")
    for t in range(4):
        for r in range(4):
            a("v_mul_f32 %s, %s, %s" % (v(S0(t) + r), v(MX + t), v(S0(t) + r)))
    OP = 116
    for t in range(4):
        a("v_cvt_pk_bf16_f32 %s, %s, %s" % (v(OP + 2 * t), v(S0(t)), v(S0(t) + 1)))
        a("v_cvt_pk_bf16_f32 %s, %s, %s" % (v(OP + 2 * t + 1), v(S0(t) + 2), v(S0(t) + 3)))
    act_store_pairs(a, OP, V_AO)
    bg.flush()
    stamp(a, 11, "st_epi")


def epilogue_y(a, var, bg):
    m = var.m
    MT, RT = 48, 52
    MTM, RTM = 56, 58
    CS = 60
    CSG4, CSU4 = 76, 80
    HPA, HPB, HM = 84, 92, 100
    TMP = 20
    A_I16, A_G16 = 10, 11
    V_C1 = 12
    V_A, V_B, V_M = 13, 14, 15
    a.comment("---- Y epilogue m=%d ----" % m)
    a("v_and_b32 %s, 15, v0" % v(TMP))
    a("v_lshlrev_b32 %s, 2, %s" % (v(A_I16), v(TMP)))
    a("v_add_u32 %s, %d, %s" % (v(A_I16), LB, v(A_I16)))
    a("v_and_b32 %s, 48, v0" % v(A_G16))
    a("v_add_u32 %s, %d, %s" % (v(A_G16), LB, v(A_G16)))
    base = (16 + 64 * m) * 4
    a("s_lshl_b32 %s, %s, 6" % (s(S_T0), s(S_J)))
    a("v_add_u32 %s, %s, %s" % (v(TMP + 2), s(S_T0), v(A_G16)))
    for tau in range(2):
        a("ds_read_b128 %s, %s offset:%d" % (v(CS + 4 * tau, 4), v(TMP + 2), O_CS + 256 * tau))
    for t in range(4):
        a("ds_read_b32 %s, %s offset:%d" % (v(MT + t), v(A_I16), O_MEAN + base + t * 64))
        a("ds_read_b32 %s, %s offset:%d" % (v(RT + t), v(A_I16), O_RSTD + base + t * 64))
    for tau in range(2, 4):
        a("ds_read_b128 %s, %s offset:%d" % (v(CS + 4 * tau, 4), v(TMP + 2), O_CS + 256 * tau))
    a("v_lshrrev_b32 %s, 5, v0" % v(TMP + 3))
    a("v_lshl_add_u32 %s, %s, 6, %s" % (v(TMP + 3), v(TMP + 3), v(A_I16)))
    a("v_and_b32 %s, 16, v0" % v(TMP + 4))
    a("v_add_u32 %s, %s, %s" % (v(TMP + 4), s(S_T0), v(TMP + 4)))
    a("v_add_u32 %s, %d, %s" % (v(TMP + 4), LB, v(TMP + 4)))
    a("v_mov_b32 %s, %s" % (v(V_C1), hexf(C1)))
    a("s_mov_b32 %s, %s" % (s(S_C0), hexf(C0)))
    bg.start()
    bg.tick()
    a("s_waitcnt lgkmcnt(0)")
    for p in range(2):
        a("ds_read_b32 %s, %s offset:%d" % (v(MTM + p), v(TMP + 3), O_MEAN + base + p * 128))
        a("ds_read_b32 %s, %s offset:%d" % (v(RTM + p), v(TMP + 3), O_RSTD + base + p * 128))
    a("ds_read_b128 %s, %s offset:%d" % (v(CSG4, 4), v(TMP + 4), O_CS + 1024))
    a("ds_read_b128 %s, %s offset:%d" % (v(CSU4, 4), v(TMP + 4), O_CS + 1024 + 32))
    act_addr_base(a, TMP + 5, TMP, m)
    a("s_lshl_b32 %s, %s, 4" % (s(S_T0), s(S_COL0)))
    a("s_lshl_b32 %s, %s, 9" % (s(S_T1), s(S_J)))
    a("s_add_u32 %s, %s, %s" % (s(S_T0), s(S_T0), s(S_T1)))
    a("s_add_u32 %s, %s, 16384" % (s(S_T0), s(S_T0)))
    a("v_add_u32 %s, %s, %s" % (v(V_A), s(S_T0), v(TMP + 5)))
    a("v_add_u32 %s, %d, %s" % (v(V_B), 64 * 32, v(V_A)))
    for t0 in (0, 2):
        gelu_tiles2(a, [(ACC(0, t), ACC(1, t), MT + t, RT + t, CS, CS + 4, HPA + 2 * t) for t in (t0, t0 + 1)], TMP + 8, V_C1)
        bg.tick(4)
    act_store_pairs(a, HPA, V_A)
    for t0 in (0, 2):
        gelu_tiles2(a, [(ACC(2, t), ACC(3, t), MT + t, RT + t, CS + 8, CS + 12, HPB + 2 * t) for t in (t0, t0 + 1)], TMP + 8, V_C1)
        bg.tick(4)
    bg.flush()
    act_store_pairs(a, HPB, V_B)
    a("s_waitcnt lgkmcnt(0)")
    for p in range(2):
        for r in range(4):
            a("v_permlane32_swap_b32 %s, %s" % (v(ACC(4, 2 * p) + r), v(ACC(4, 2 * p + 1) + r)))
    a("v_bfe_u32 %s, v0, 4, 1" % v(TMP + 1))
    a("v_lshlrev_b32 %s, 1, %s" % (v(TMP + 1), v(TMP + 1)))
    a("v_lshrrev_b32 %s, 5, v0" % v(TMP))
    a("v_add_u32 %s, %s, %s" % (v(TMP), v(TMP), v(TMP + 1)))
    a("s_lshl_b32 %s, %s, 3" % (s(S_T0), s(S_RB)))
    a("s_add_u32 %s, %s, %d" % (s(S_T0), s(S_T0), 4 * m))
    a("v_add_u32 %s, %s, %s" % (v(TMP), s(S_T0), v(TMP)))
    a("v_mul_u32_u24 %s, %d, %s" % (v(TMP), ACT_T, v(TMP)))
    a("v_and_b32 %s, 15, v0" % v(TMP + 1))
    a("v_lshl_add_u32 %s, %s, 4, %s" % (v(TMP), v(TMP + 1), v(TMP)))
    a("s_lshl_b32 %s, %s, 4" % (s(S_T0), s(S_COL2)))
    a("s_lshl_b32 %s, %s, 8" % (s(S_T1), s(S_J)))
    a("s_add_u32 %s, %s, %s" % (s(S_T0), s(S_T0), s(S_T1)))
    a("s_add_u32 %s, %s, 16384" % (s(S_T0), s(S_T0)))
    a("v_add_u32 %s, %s, %s" % (v(V_M), s(S_T0), v(TMP)))
    gelu_tiles2(a, [(ACC(4, 2 * p), ACC(4, 2 * p + 1), MTM + p, RTM + p, CSG4, CSU4, HM + 2 * p) for p in range(2)], TMP + 8, V_C1)
    a("s_nop 1")
    a("v_permlane16_swap_b32 %s, %s" % (v(HM), v(HM + 2)))
    a("v_permlane16_swap_b32 %s, %s" % (v(HM + 1), v(HM + 3)))
    a("buffer_store_dwordx4 %s, %s, %s, 0 offen %s" % (v(HM, 4), v(V_M), s(SRD_WS, 4), Cfg.sc))


def emit_variant(a, var, after_label):
    L = var.L
    ool = []
    a.label("P1_%s" % var.name)
    T = V_T
    variant_addresses(a, var)
    if var.typ == 'X' and var.m == 0:
        srd(a, SRD_Q, S_Q, 512 * 3072)
    else:
        srd(a, SRD_G, S_G, 512 * 3584)
        srd(a, SRD_U, S_U, 512 * 3584)
        if var.typ == 'Y' and var.m == 1:
            a("s_cmp_lt_u32 %s, 2" % s(S_J))
            a("s_cselect_b32 %s, %s, %s" % (s(SRD_MIX), s(SRD_G), s(SRD_U)))
            a("s_cselect_b32 %s, %s, %s" % (s(SRD_MIX + 1), s(SRD_G + 1), s(SRD_U + 1)))
            a("s_mov_b32 %s, 0x%x" % (s(SRD_MIX + 2), 512 * 3584))
            a("s_mov_b32 %s, 0x20000" % s(SRD_MIX + 3))
    for slot in range(2):
        for i in range(len(var.loads)):
            pre, ld = w_load(var, i, slot)
            for t_ in pre:
                a(t_)
            a("s_nop 0")
            for t_ in ld:
                a(t_)
        for t_ in koff_adv(var):
            a(t_)
    n_after_row = 2 + 2 * (L - 1)
    srd(a, SRD_WS, S_WS, WS_USED)
    prologue_late(a)
    if Cfg.merged and var.m == 0:
        lab = a.newlabel("noep")
        a("s_cmp_eq_u32 %s, 0" % s(S_W))
        a("s_cbranch_scc0 %s" % lab)
        a("v_mov_b32 %s, %d" % (v(T + 15), WS_EPOCH))
        a("buffer_load_dword %s, %s, %s, 0 offen sc1" % (v(V_TAG), v(T + 15), s(SRD_WS, 4)))
        a.label(lab)
    if var.typ == 'X':
        halo_addresses(a)
    frag_lane_addresses(a, var)
    for i in range(84 if var.typ == 'X' else 80):
        a("v_mov_b32 %s, 0" % v(128 + i))
    stamp(a, 6, "st_pro")
    if var.typ == 'X' and var.m == 0:
        lab = a.newlabel("halo0")
        a("s_cmp_eq_u32 %s, 0" % s(S_W))
        a("s_cbranch_scc0 %s" % lab)
        halo_issue(a)
        a.label(lab)
    for h in range(2):
        pre, ld = x_load(h)
        for t_ in pre:
            a(t_)
        a("s_nop 0")
        for t_ in ld:
            a(t_)
    for g_ in x_adv():
        for t_ in g_:
            a(t_)
    if var.typ == 'X' and var.m == 0:
        lab = a.newlabel("halo1")
        a("s_cmp_eq_u32 %s, 1" % s(S_W))
        a("s_cbranch_scc0 %s" % lab)
        halo_issue(a)
        a.label(lab)
    a("s_waitcnt vmcnt(%d)" % (n_after_row + 2))
    stamp(a, 7, "st_pro")
    stats_compute(a)
    stamp(a, 8, "st_pro")
    if var.typ == 'X' and var.m == 0:
        l0, l1 = a.newlabel("w0"), a.newlabel("w1")
        a("s_cmp_eq_u32 %s, 1" % s(S_W))
        a("s_cbranch_scc0 %s" % l0)
        a("s_waitcnt vmcnt(5)")
        a("s_branch %s" % l1)
        a.label(l0)
        a("s_waitcnt vmcnt(3)")
        a.label(l1)
    else:
        a("s_waitcnt vmcnt(3)")
    a("s_barrier")
    stamp(a, 3)
    stamp(a, 3, "st_pro")
    stamp(a, 3, "st_loop")
    for g in frag_addr(var, kk=0, advance=False):
        for t in g:
            a(t)
    for t in frag_reads(var, 0, 0):
        a(t)
    for i in range(len(var.loads)):
        pre, ld = w_load(var, i, 2)
        for t_ in pre:
            a(t_)
        a("s_nop 0")
        for t_ in ld:
            a(t_)
    for t_ in koff_adv(var):
        a(t_)
    if var.typ == 'X':
        if var.m == 0:
            lab = a.newlabel("halo2")
            a("s_cmp_lt_u32 %s, 2" % s(S_W))
            a("s_cbranch_scc1 %s" % lab)
            halo_issue(a)
            a.label(lab)
        else:
            halo_issue(a)
    issue_plain(a, var, 3, 0)
    if ("prioloop1" in EXP and var.m == 1) or ("prioloop0" in EXP and var.m == 0):
        a("s_setprio 1")
    loop = "P1_%s_loop" % var.name
    a.label(loop)
    def top11(aa):
        lab = aa.newlabel("chk")
        back = aa.newlabel("chkback")
        aa("s_cmp_eq_u32 %s, %s" % (s(S_IT), s(S_EV1)))
        aa("s_cbranch_scc1 %s" % lab)
        aa.label(back)
        b = Asm()
        b.uid = aa.uid + 1000
        b.label(lab)
        o2 = []
        poll_check(b, o2, "early")
        b("s_branch %s" % back)
        ool.append(b.text())
        ool.extend(o2)
        aa.uid = b.uid + 1
    for s4 in range(4):
        emit_step(a, var, s4, 2 * L, post=(lambda k: (lambda aa: event_site(aa, var, k, ool)))(s4),
                  top=top11 if (s4 == 3 and var.m == 0 and Cfg.merged) else None)
    a("s_lshr_b32 %s, %s, 4" % (s(S_EV0), s(S_EV0)))
    if STAMPS["on"] and "st_loop" in EXP:
        for it in range(3):
            lab = a.newlabel("stl")
            a("s_cmp_eq_u32 %s, %d" % (s(S_IT), it))
            a("s_cbranch_scc0 %s" % lab)
            stamp(a, 4 + it, "st_loop")
            a.label(lab)
    a("s_add_u32 %s, %s, 1" % (s(S_IT), s(S_IT)))
    a("s_cmp_lt_u32 %s, 3" % s(S_IT))
    a("s_cbranch_scc1 %s" % loop)
    stamp(a, 4)
    nm = var.nm
    touch = Cfg.merged and "notouch" not in EXP

    def wait_by_wave(cases):
        default, exc = cases
        exc = [(w_, n_) for (w_, n_) in exc if (w_ >> 2) == var.m and n_ != default]
        if not exc:
            a("s_waitcnt vmcnt(%d)" % default)
            return
        done = a.newlabel("wbw")
        for w_, n_ in exc:
            nxt = a.newlabel("wbn")
            a("s_cmp_eq_u32 %s, %d" % (s(S_W), w_))
            a("s_cbranch_scc0 %s" % nxt)
            a("s_waitcnt vmcnt(%d)" % n_)
            a("s_branch %s" % done)
            a.label(nxt)
        a("s_waitcnt vmcnt(%d)" % default)
        a.label(done)
    f12 = spread(publish_addr(), 1, nm - 2) if "early11" in EXP else \
        spread(tail_loads(), 0, 8) + spread(publish_addr(), 9, nm - 1)
    emit_step(a, var, 0, 2 * L, dma=False, extra=f12, post=lambda aa: w2_touch(aa, 0))
    stamp(a, 7, "st_loop")
    emit_step(a, var, 1, L + 4, dma=False, extra=spread(k2_setup_fillers(), 3, nm - 1))
    stamp(a, 8, "st_loop")
    nA = lambda w_: 1 if (touch and w_ < 5) else 0
    nB = lambda w_: 1 if (touch and w_ >= 3) else 0
    d14 = 4 + nA(4 * var.m + 1)
    wait_by_wave((d14, [(w_, 4 + nA(w_)) for w_ in range(8)]))
    emit_step(a, var, 2, 63, dma=False, post=lambda aa: w2_touch(aa, 1))
    stamp(a, 9, "st_loop")
    d15 = nA(4 * var.m + 1) + nB(4 * var.m + 1)
    wait_by_wave((d15, [(w_, nA(w_) + nB(w_)) for w_ in range(8)]))
    emit_step(a, var, 3, 63, dma=False, prefetch=False, extra=spread(tail_reduce(), 0, nm - 3))
    for t_ in publish_writes():
        a(t_)
    stamp(a, 5)
    stamp(a, 11, "st_loop")
    a("s_waitcnt lgkmcnt(0)")
    a("s_barrier")
    stamp(a, 6)
    groups = [w2_load_group(t) for t in range(PRE2)] if (Cfg.merged and (var.typ == 'X' or var.m == 0)) else []
    bg = BG(a, groups)
    bg.burst = (var.m == 1)
    if "prio1" in EXP and var.m == 1:
        a("s_setprio 1")
    if "prio0" in EXP and var.m == 0:
        a("s_setprio 1")
    if var.typ == 'X':
        epilogue_x(a, var, bg)
    else:
        epilogue_y(a, var, bg)
    stamp(a, 7)
    if "prio1" in EXP or "prio0" in EXP:
        a("s_setprio 0")
    a("s_branch %s" % after_label)
    for t in ool:
        a.raw(t)


def emit_phase1(a, after_label):
    prologue_common(a)
    a("s_and_b32 %s, %s, 1" % (s(S_T0), s(S_CGI)))
    a("s_lshl_b32 %s, %s, 1" % (s(S_T0), s(S_T0)))
    a("s_or_b32 %s, %s, %s" % (s(S_T0), s(S_T0), s(S_M)))
    a("s_cmp_eq_u32 %s, 1" % s(S_T0))
    a("s_cbranch_scc1 P1_X1")
    a("s_cmp_eq_u32 %s, 2" % s(S_T0))
    a("s_cbranch_scc1 P1_Y0")
    a("s_cmp_eq_u32 %s, 3" % s(S_T0))
    a("s_cbranch_scc1 P1_Y1")
    for typ, m in (('X', 0), ('X', 1), ('Y', 0), ('Y', 1)):
        emit_variant(a, Variant(typ, m), after_label)


def emit_handoff(a):
    ool = []
    T = V_T
    V_P2 = V_DUMMY + 1
    a("s_lshl_b32 %s, %s, 7" % (s(S_T0), s(S_RB)))
    a("s_lshl_b32 %s, %s, 2" % (s(S_T1), s(S_CGI)))
    a("s_add_u32 %s, %s, %s" % (s(S_T0), s(S_T0), s(S_T1)))
    a("s_add_u32 %s, %s, %d" % (s(S_T0), s(S_T0), WS_FD))
    a("v_mov_b32 %s, 0x%x" % (v(T), OOB))
    a("v_writelane_b32 %s, %s, 0" % (v(T), s(S_T0)))
    a("s_lshr_b32 %s, %s, 1" % (s(S_T1), s(S2_TG)))
    a("s_lshl_b32 %s, %s, 7" % (s(S_T1), s(S_T1)))
    a("s_add_u32 %s, %s, %d" % (s(S_T1), s(S_T1), WS_FD))
    a("v_and_b32 %s, 15, v0" % v(T + 1))
    a("v_lshl_add_u32 %s, %s, 2, %s" % (v(V_PADDR), v(T + 1), s(S_T1)))

    def poll_y(go):
        a("buffer_load_dword %s, %s, %s, 0 offen sc1" % (v(V_PRES), v(V_PADDR), s(SRD_WS, 4)))
        a("s_mov_b32 %s, 0" % s(S_SPIN))
        loop = a.newlabel("ho_poll")
        a.label(loop)
        for cur, nxt in ((V_PRES, V_P2), (V_P2, V_PRES)):
            a("buffer_load_dword %s, %s, %s, 0 offen sc1" % (v(nxt), v(V_PADDR), s(SRD_WS, 4)))
            a("s_waitcnt vmcnt(1)")
            a("v_cmp_ne_u32 vcc, %s, %s" % (v(V_TAG), v(cur)))
            a("s_nop 1")
            a("s_and_b32 vcc_lo, vcc_lo, 0xaaaa")
            a("s_cbranch_scc0 %s" % go)
        a("s_add_u32 %s, %s, 1" % (s(S_SPIN), s(S_SPIN)))
        a("s_cmp_lt_u32 %s, %d" % (s(S_SPIN), SPIN_MAX))
        a("s_cbranch_scc1 %s" % loop)

    ytype = a.newlabel("ho_y")
    done = a.newlabel("ho_done")
    a("s_bitcmp1_b32 %s, 0" % s(S_CGI))
    a("s_cbranch_scc1 %s" % ytype)
    xw = a.newlabel("ho_xw")
    a("s_cmp_eq_u32 %s, 0" % s(S_W))
    a("s_cbranch_scc0 %s" % xw)
    poll_y(xw)
    a.label(xw)
    a("s_waitcnt vmcnt(0)")
    a("s_barrier")
    stamp(a, 8)
    a("s_cmp_eq_u32 %s, 0" % s(S_W))
    a("s_cbranch_scc0 %s" % done)
    a("buffer_store_dword %s, %s, %s, 0 offen sc1" % (v(V_TAG), v(T), s(SRD_WS, 4)))
    a("s_branch %s" % done)
    a.label(ytype)
    a("s_waitcnt vmcnt(0)")
    a("s_barrier")
    stamp(a, 8)
    go = a.newlabel("ho_go")
    other = a.newlabel("ho_other")
    wait = a.newlabel("ho_wait")
    a("s_cmp_eq_u32 %s, 0" % s(S_W))
    a("s_cbranch_scc0 %s" % other)
    a("buffer_store_dword %s, %s, %s, 0 offen sc1" % (v(V_TAG), v(T), s(SRD_WS, 4)))
    poll_y(go)
    a("s_branch %s" % go)
    a.label(other)
    a("s_cmp_eq_u32 %s, 0" % s(S_M))
    a("s_cbranch_scc1 %s" % go)
    for t_ in range(PRE2):
        for x in w2_load_group(t_):
            a(x)
    a("s_waitcnt vmcnt(0)")
    a.label(go)
    a("s_barrier")
    a.label(done)
    return ool


P2_AVO = 2
P2_WL = 4
P2_XO = 3
P2_XR = 16
P2_T = 20
DA = int(os.environ.get("DA", "12"))
WF2 = lambda st, u: 48 + st * 16 + u * 4
ACT2 = lambda i: 80 + (i % DA) * 4
ACC_D = lambda u: 128 + u * 4
ACC_S = lambda u: 144 + u * 4
V_EPF = 212
V_EPA = 47


def w2_schedule():
    sched = {}
    tiles = list(range(PRE2, 36))
    n = len(tiles)
    last = 27
    prev = 1
    for k, tau in enumerate(tiles):
        want = 2 + (k * (last - 2)) // max(n - 1, 1)
        earliest = 4 * ((tau - NTILE2 - 1 + 3) // 4) + 2 if tau - NTILE2 > 1 else 2
        V = max(0, -(-(tau - NTILE2 - 1) // 4))
        earliest = 4 * V + 2
        st = max(want, earliest, prev + 1)
        needV = -(-(tau - 7) // 4)
        assert st + 2 <= 4 * needV + 2, (tau, st)
        sched[st] = tau
        prev = st
    return sched


def p2_addresses(a):
    T = P2_T
    a("s_lshl_b32 %s, %s, 2" % (s(S_T0), s(S2_TG)))
    a("s_add_u32 %s, %s, %s" % (s(S_T0), s(S_T0), s(S_J)))
    a("s_mul_i32 %s, %s, %d" % (s(S_T0), s(S_T0), ACT_T))
    a("v_lshlrev_b32 %s, 4, v0" % v(T))
    a("v_add_u32 %s, %s, %s" % (v(P2_AVO), s(S_T0), v(T)))
    a("s_mul_i32 %s, %s, %d" % (s(S2_AOFF), s(S_M), 20 * 1024))
    a("s_add_u32 %s, %s, %d" % (s(S2_AOFF), s(S2_AOFF), 32 * 1024))
    a("v_lshrrev_b32 %s, 4, v0" % v(T + 1))
    a("v_bfe_u32 %s, v0, 2, 2" % v(T + 2))
    a("v_lshl_add_u32 %s, %s, 3, %s" % (v(T + 2), v(T + 1), v(T + 2)))
    a("v_lshlrev_b32 %s, 7, %s" % (v(T + 2), v(T + 2)))
    a("v_and_b32 %s, 3, v0" % v(T + 3))
    a("v_lshl_add_u32 %s, %s, 3, %s" % (v(T + 2), v(T + 3), v(T + 2)))
    a("s_lshl_b32 %s, %s, 12" % (s(S_T0), s(S_M)))
    a("v_add_u32 %s, %s, %s" % (v(T + 2), s(S_T0), v(T + 2)))
    a("v_bfe_u32 %s, v0, 3, 2" % v(T + 3))
    for u in range(4):
        a("v_xor_b32 %s, %d, %s" % (v(T + 4), u, v(T + 3)))
        a("v_lshl_add_u32 %s, %s, 5, %s" % (v(P2_WL + u), v(T + 4), v(T + 2)))
        a("v_add_u32 %s, 0x10000, %s" % (v(P2_WL + 4 + u), v(P2_WL + u)))
        a("v_add_u32 %s, 0x20000, %s" % (v(P2_WL + 8 + u), v(P2_WL + u)))
    a("s_lshl_b32 %s, %s, 6" % (s(S_T0), s(S2_TG)))
    a("s_lshl_b32 %s, %s, 4" % (s(S_T1), s(S_J)))
    a("s_add_u32 %s, %s, %s" % (s(S_T0), s(S_T0), s(S_T1)))
    a("v_and_b32 %s, 15, v0" % v(T + 4))
    a("v_add_u32 %s, %s, %s" % (v(T + 4), s(S_T0), v(T + 4)))
    a("v_lshlrev_b32 %s, 10, %s" % (v(T + 4), v(T + 4)))
    a("v_and_b32 %s, 1, %s" % (v(T + 5), v(T + 1)))
    a("v_lshl_add_u32 %s, %s, 5, %s" % (v(T + 4), v(T + 5), v(T + 4)))
    a("v_lshrrev_b32 %s, 1, %s" % (v(T + 5), v(T + 1)))
    a("v_lshl_add_u32 %s, %s, 4, %s" % (v(T + 4), v(T + 5), v(T + 4)))
    a("s_lshl_b32 %s, %s, 7" % (s(S_T0), s(S2_CG2)))
    a("s_lshl_b32 %s, %s, 6" % (s(S_T1), s(S_M)))
    a("s_add_u32 %s, %s, %s" % (s(S_T0), s(S_T0), s(S_T1)))
    a("v_add_u32 %s, %s, %s" % (v(P2_XO), s(S_T0), v(T + 4)))
    for r in range(16):
        a("v_mov_b32 %s, 0" % v(ACC_D(0) + r))
    srd(a, R_OUT, S_OUT, 2048 * 1024)


class VmSim:
    def __init__(self):
        self.ops = []

    def issue(self, tag):
        self.ops.append(tag)

    def need(self, tag):
        if tag not in self.ops:
            return None
        return len(self.ops) - 1 - self.ops.index(tag)


def p2_reads(tile, u):
    st = tile & 1
    slot = tile % NTILE2
    base = P2_WL + 4 * (slot // 8) + u
    off = (slot % 8) * TILE2
    return ["ds_read_b64_tr_b16 %s, %s offset:%d" % (v(WF2(st, u), 2), v(base), off),
            "ds_read_b64_tr_b16 %s, %s offset:%d" % (v(WF2(st, u) + 2, 2), v(base), off + 512)]


def p2_act(i):
    return "buffer_load_dwordx4 %s, %s, %s, %s offen offset:%d %s" % (
        v(ACT2(i), 4), v(P2_AVO), s(SRD_WS, 4), s(S2_AOFF), (i % 4) * 1024, Cfg.sc if Cfg.merged else "")


def emit_phase2_main(a, ool=None):
    sim = VmSim()
    stamp(a, 3, "st_p2")
    XR_STEP = 22
    if Cfg.merged:
        lab = a.newlabel("noepl")
        a("s_cmp_eq_u32 s2, 0")
        a("s_cbranch_scc0 %s" % lab)
        a("s_cmp_eq_u32 %s, 0" % s(S_W))
        a("s_cbranch_scc0 %s" % lab)
        a("v_lshrrev_b32 %s, 2, v0" % v(P2_T))
        a("v_lshlrev_b32 %s, 7, %s" % (v(P2_T), v(P2_T)))
        a("v_and_b32 %s, 3, v0" % v(P2_T + 1))
        a("v_lshl_add_u32 %s, %s, 4, %s" % (v(P2_T), v(P2_T + 1), v(P2_T)))
        a("v_add_u32 %s, %d, %s" % (v(V_EPA), WS_FA, v(P2_T)))
        a("buffer_load_dwordx4 %s, %s, %s, 0 offen sc1" % (v(V_EPF, 4), v(V_EPA), s(SRD_WS, 4)))
        a.label(lab)
    if Cfg.merged and "acttouch" in EXP:
        lab = a.newlabel("noat")
        T = P2_T
        a("s_lshl_b32 %s, %s, 3" % (s(S_T0), s(S_W)))
        a("s_add_u32 %s, %s, %s" % (s(S_T0), s(S_T0), s(S2_CG2)))
        a("s_add_u32 %s, %s, %d" % (s(S_T0), s(S_T0), DA))
        a("s_cmp_lt_u32 %s, 36" % s(S_T0))
        a("s_cbranch_scc0 %s" % lab)
        a("s_lshl_b32 %s, %s, 10" % (s(S_T0), s(S_T0)))
        a("s_lshl_b32 %s, %s, 2" % (s(S_T1), s(S2_TG)))
        a("s_mul_i32 %s, %s, %d" % (s(S_T1), s(S_T1), ACT_T))
        a("s_add_u32 %s, %s, %s" % (s(S_T0), s(S_T0), s(S_T1)))
        a("v_bfe_u32 %s, v0, 3, 2" % v(T))
        a("v_mul_u32_u24 %s, %d, %s" % (v(T), ACT_T, v(T)))
        a("v_lshrrev_b32 %s, 5, v0" % v(T + 1))
        a("v_mul_u32_u24 %s, %d, %s" % (v(T + 1), 36 * 1024, v(T + 1)))
        a("v_and_b32 %s, 7, v0" % v(T + 2))
        a("v_lshl_add_u32 %s, %s, 7, %s" % (v(T), v(T + 2), v(T)))
        a("v_add3_u32 %s, %s, %s, %s" % (v(T), v(T), v(T + 1), s(S_T0)))
        a("buffer_load_dword %s, %s, %s, 0 offen sc1" % (v(V_DUMMY), v(T), s(SRD_WS, 4)))
        a.label(lab)
    A0 = min(DA, int(os.environ.get("A0", "8")))
    state = {"next": 0}

    def act_upto(n):
        while state["next"] < min(n, 36):
            i = state["next"]
            a(p2_act(i))
            sim.issue(("a", i))
            if i == 19:
                a("s_lshl_b32 %s, %s, 14" % (s(S2_AOFF), s(S_M)))
            elif i % 4 == 3:
                a("s_add_u32 %s, %s, 4096" % (s(S2_AOFF), s(S2_AOFF)))
            state["next"] += 1
    XCHK = 10
    act_upto(A0)
    for u in range(4):
        for t in p2_reads(0, u):
            a(t)
    a("s_waitcnt lgkmcnt(0)")
    for u in range(4):
        for t in p2_reads(1, u):
            a(t)
    wsched = w2_schedule()
    for sg in range(36):
        if sg in (0, 2, 6, 12, 18, 26, 34):
            stamp(a, {0: 4, 2: 5, 6: 6, 12: 7, 18: 8, 26: 9, 34: 11}[sg], "st_p2")
        if sg == XCHK and Cfg.merged:
            lab = a.newlabel("noxchk")
            a("s_cmp_eq_u32 %s, 0" % s(S_W))
            a("s_cbranch_scc0 %s" % lab)
            a("s_waitcnt vmcnt(%d)" % (len(sim.ops) - state["xp"]))
            poll_check(a, ool, "xdone")
            a.label(lab)
        if sg % 4 == 2 and sg <= 30:
            V = (sg - 2) // 4
            last_tile = 4 * V + 7
            n = sim.need(("w", last_tile))
            if n is not None:
                a("s_waitcnt vmcnt(%d)" % n)
            a("s_barrier")
        if sg == XCHK - 4 and Cfg.merged:
            lab = a.newlabel("noxp")
            a("s_cmp_eq_u32 %s, 0" % s(S_W))
            a("s_cbranch_scc0 %s" % lab)
            a("buffer_load_dword %s, %s, %s, 0 offen sc1" % (v(V_PRES), v(V_PADDR), s(SRD_WS, 4)))
            a.label(lab)
            state["xp"] = len(sim.ops)
        if sg == 20:
            lab = a.newlabel("noacc")
            a("s_cmp_eq_u32 %s, 0" % s(S_M))
            a("s_cbranch_scc0 %s" % lab)
            a("s_nop 7")
            for r in range(16):
                a("v_mov_b32 %s, %s" % (v(ACC_S(0) + r), v(ACC_D(0) + r)))
            for r in range(16):
                a("v_mov_b32 %s, 0" % v(ACC_D(0) + r))
            a("s_nop 1")
            a.label(lab)
        n = sim.need(("a", sg))
        st = sg & 1
        a("s_waitcnt vmcnt(%d) lgkmcnt(%d)" % (n, 7 if sg < 35 else 0))
        for u in range(4):
            d = v(ACC_D(u), 4)
            a("v_mfma_f32_16x16x32_bf16 %s, %s, %s, %s" % (d, v(WF2(st, u), 4), v(ACT2(sg), 4), d))
            if sg + 2 < 36:
                for t in p2_reads(sg + 2, u):
                    a(t)
            if u == 1 and sg in wsched:
                tile = wsched[sg]
                for t in w2_load_group(tile):
                    a(t)
                sim.issue(("w", tile))
        lim = min(sg + 1 + DA, state["next"] + 2)
        if sg < XCHK:
            lim = min(lim, 20)
        act_upto(lim)
        if sg == XR_STEP:
            a("buffer_load_dwordx4 %s, %s, %s, 0 offen" % (v(P2_XR, 4), v(P2_XO), s(SRD_X, 4)))
            sim.issue("xr")


def emit_phase2_epilogue(a):
    T = P2_T
    a("s_nop 7")
    a("s_mul_i32 %s, %s, 6144" % (s(S_T0), s(S_J)))
    a("v_lshlrev_b32 %s, 4, v0" % v(T))
    a("v_add_u32 %s, %s, %s" % (v(T), s(S_T0), v(T)))
    k1 = a.newlabel("k2_kh1")
    join = a.newlabel("k2_join")
    S, D, E = 56, 64, 72
    a("s_cmp_eq_u32 %s, 0" % s(S_M))
    a("s_cbranch_scc0 %s" % k1)
    a("ds_write_b128 %s, %s" % (v(T), v(ACC_D(2), 4)))
    a("ds_write_b128 %s, %s offset:1024" % (v(T), v(ACC_D(3), 4)))
    a("ds_write_b128 %s, %s offset:2048" % (v(T), v(ACC_S(2), 4)))
    a("ds_write_b128 %s, %s offset:3072" % (v(T), v(ACC_S(3), 4)))
    for r in range(8):
        a("v_mov_b32 %s, %s" % (v(S + r), v(ACC_D(0) + r)))
    a("s_waitcnt lgkmcnt(0)")
    a("s_barrier")
    a("ds_read_b128 %s, %s offset:4096" % (v(48, 4), v(T)))
    a("ds_read_b128 %s, %s offset:5120" % (v(52, 4), v(T)))
    a("s_waitcnt lgkmcnt(0)")
    for h in range(0, 8, 2):
        a(pk("add", D + h, [('p', ACC_S(0) + h), ('p', 48 + h)]))
    a("s_branch %s" % join)
    a.label(k1)
    a("ds_write_b128 %s, %s offset:4096" % (v(T), v(ACC_D(0), 4)))
    a("ds_write_b128 %s, %s offset:5120" % (v(T), v(ACC_D(1), 4)))
    a("s_waitcnt lgkmcnt(0)")
    a("s_barrier")
    a("ds_read_b128 %s, %s" % (v(S, 4), v(T)))
    a("ds_read_b128 %s, %s offset:1024" % (v(S + 4, 4), v(T)))
    a("ds_read_b128 %s, %s offset:2048" % (v(48, 4), v(T)))
    a("ds_read_b128 %s, %s offset:3072" % (v(52, 4), v(T)))
    a("s_waitcnt lgkmcnt(0)")
    for h in range(0, 8, 2):
        a(pk("add", D + h, [('p', ACC_D(2) + h), ('p', 48 + h)]))
    a.label(join)
    a("s_mov_b32 %s, %s" % (s(S_C0), hexf(-LOG2E)))
    for h in range(0, 8, 2):
        a(pk("mul", E + h, [('p', D + h), ('s', S_C0)]))
    for r in range(8):
        a("v_exp_f32 %s, %s" % (v(E + r), v(E + r)))
    for h in range(0, 8, 2):
        a(pk("mul", S + h, [('p', S + h), ('p', D + h)]))
    for h in range(0, 8, 2):
        a(pk("add", E + h, [('p', E + h), ('c', "1.0")]))
    for r in range(8):
        a("v_rcp_f32 %s, %s" % (v(E + r), v(E + r)))
    for i in range(4):
        a("v_lshlrev_b32 %s, 16, %s" % (v(D + 2 * i), v(P2_XR + i)))
        a("v_and_b32 %s, 0xffff0000, %s" % (v(D + 2 * i + 1), v(P2_XR + i)))
    for h in range(0, 8, 2):
        a(pk("mul", S + h, [('p', S + h), ('p', E + h)]))
    a("s_nop 1")
    for r in range(4):
        a("v_permlane16_swap_b32 %s, %s" % (v(S + r), v(S + 4 + r)))
    a("s_nop 1")
    for h in range(0, 8, 2):
        a(pk("add", S + h, [('p', S + h), ('p', D + h)]))
    for i in range(4):
        a("v_cvt_pk_bf16_f32 %s, %s, %s" % (v(E + i), v(S + 2 * i), v(S + 2 * i + 1)))
    a("buffer_store_dwordx4 %s, %s, %s, 0 offen %s" % (v(E, 4), v(P2_XO), s(R_OUT, 4), os.environ.get("OUTSC", "sc1")))


def emit_epoch_bump(a):
    lab = a.newlabel("nobump")
    loop = a.newlabel("bumploop")
    go = a.newlabel("bumpgo")
    a("s_cmp_eq_u32 s2, 0")
    a("s_cbranch_scc0 %s" % lab)
    a("s_cmp_eq_u32 %s, 0" % s(S_W))
    a("s_cbranch_scc0 %s" % lab)
    a("s_mov_b32 %s, 0" % s(S_SPIN))
    a.label(loop)
    a("v_xor_b32 %s, %s, %s" % (v(V_EPF), v(V_TAG), v(V_EPF)))
    a("v_xor_b32 %s, %s, %s" % (v(V_EPF + 1), v(V_TAG), v(V_EPF + 1)))
    a("v_xor_b32 %s, %s, %s" % (v(V_EPF + 2), v(V_TAG), v(V_EPF + 2)))
    a("v_xor_b32 %s, %s, %s" % (v(V_EPF + 3), v(V_TAG), v(V_EPF + 3)))
    a("v_or_b32 %s, %s, %s" % (v(V_EPF), v(V_EPF), v(V_EPF + 1)))
    a("v_or3_b32 %s, %s, %s, %s" % (v(V_EPF), v(V_EPF), v(V_EPF + 2), v(V_EPF + 3)))
    a("v_cmp_ne_u32 vcc, 0, %s" % v(V_EPF))
    a("s_nop 1")
    a("s_cmp_lg_u64 vcc, 0")
    a("s_cbranch_scc0 %s" % go)
    a("buffer_load_dwordx4 %s, %s, %s, 0 offen sc1" % (v(V_EPF, 4), v(V_EPA), s(SRD_WS, 4)))
    a("s_add_u32 %s, %s, 1" % (s(S_SPIN), s(S_SPIN)))
    a("s_waitcnt vmcnt(0)")
    a("s_cmp_lt_u32 %s, %d" % (s(S_SPIN), SPIN_MAX))
    a("s_cbranch_scc1 %s" % loop)
    a.label(go)
    a("v_mov_b32 %s, 0x%x" % (v(P2_T), OOB))
    a("s_mov_b32 %s, %d" % (s(S_T0), WS_EPOCH))
    a("v_writelane_b32 %s, %s, 0" % (v(P2_T), s(S_T0)))
    a("s_nop 1")
    a("buffer_store_dword %s, %s, %s, 0 offen sc1" % (v(V_TAG), v(P2_T), s(SRD_WS, 4)))
    a.label(lab)


def emit_merged(a, end_label):
    emit_phase1(a, "P1_done")
    a.label("P1_done")
    p2_addresses(a)
    ool = emit_handoff(a)
    stamp(a, 9)
    emit_phase2_main(a, ool)
    stamp(a, 11)
    emit_phase2_epilogue(a)
    emit_epoch_bump(a)
    if STAMPS["on"]:
        a("s_waitcnt vmcnt(0)")
        stamp(a, 10)
        stamp_real(a, 2)
    stamp_flush(a, S_W, S_WS, 0)
    a("s_branch %s" % end_label)
    for t in ool:
        a.raw(t)


def emit_phase2_standalone(a):
    a("s_load_dwordx2 %s, s[0:1], 0" % s(S_X, 2))
    a("s_load_dwordx2 %s, s[0:1], 72" % s(S_WS, 2))
    a("s_load_dwordx2 %s, s[0:1], 16" % s(S_WO, 2))
    a("s_load_dwordx2 %s, s[0:1], 48" % s(S_WD, 2))
    a("s_load_dwordx2 %s, s[0:1], 56" % s(S_OUT, 2))
    a("v_lshrrev_b32 v1, 6, v0")
    a("v_and_b32 v0, 63, v0")
    a("v_readfirstlane_b32 %s, v1" % s(S_W))
    a("s_and_b32 %s, s2, 7" % s(S_T0))
    a("s_lshr_b32 %s, s2, 3" % s(S_T1))
    a("s_lshr_b32 %s, %s, 3" % (s(S_T3), s(S_T1)))
    a("s_lshl_b32 %s, %s, 2" % (s(S2_TG), s(S_T0)))
    a("s_add_u32 %s, %s, %s" % (s(S2_TG), s(S2_TG), s(S_T3)))
    a("s_and_b32 %s, %s, 7" % (s(S2_CG2), s(S_T1)))
    a("s_and_b32 %s, %s, 3" % (s(S_J), s(S_W)))
    a("s_lshr_b32 %s, %s, 2" % (s(S_M), s(S_W)))
    a("s_waitcnt lgkmcnt(0)")
    srd(a, SRD_X, S_X, 2048 * 1024)
    srd(a, SRD_WS, S_WS, WS_USED)
    for t in k2_setup_fillers():
        a(t)
    for t in range(PRE2):
        for x in w2_load_group(t):
            a(x)
    p2_addresses(a)
    a("s_waitcnt vmcnt(0)")
    a("s_barrier")
    emit_phase2_main(a)
    emit_phase2_epilogue(a)
```
